```python
import torch

def _softmax(x, axis=-1):
    return torch.softmax(x, dim=axis)
def _gelu(x):
    return torch.nn.functional.gelu(x, approximate="tanh")
def _silu(x):
    return torch.nn.functional.silu(x)
def _sigmoid(x):
    return torch.sigmoid(x)
def _layernorm(x, axis=-1, eps=1e-5):
    m = x.mean(dim=axis, keepdim=True)
    v = x.var(dim=axis, keepdim=True, unbiased=False)
    return (x - m) / torch.sqrt(v + eps)
def _scatter_add(tgt, idx, src, axis=0):
    return tgt.clone().index_add_(axis, idx, src)
def _segment_sum(src, seg, n):
    out = torch.zeros((n,) + src.shape[1:], dtype=src.dtype)
    return out.index_add_(0, seg, src)
def _pad(x, pw):
    flat = tuple(v for pair in reversed(pw) for v in pair)
    return torch.nn.functional.pad(x, flat)

kernel_name = 'sequential_preLN__grouped_kv_mqa__dense_activation_squared_relu__prompt'

def setup_inputs():

    _w = (lambda a: (lambda t: t.to(torch.bfloat16) if t.is_floating_point() else t)(torch.as_tensor(a)))
    def _A_setup():
        B, S, D, H = 1, 2048, 576, 32
        Dh = D // H
        return {
            "x": _w((lambda *s: torch.randn(*s, dtype=torch.bfloat16) * 0.05)(B, S, D)),
            "wq": _w((lambda *s: torch.randn(*s, dtype=torch.bfloat16) * 0.05)(D, H * Dh)),
            "wk": _w((lambda *s: torch.randn(*s, dtype=torch.bfloat16) * 0.05)(D, Dh)),
            "wv": _w((lambda *s: torch.randn(*s, dtype=torch.bfloat16) * 0.05)(D, Dh)),
            "wo": _w((lambda *s: torch.randn(*s, dtype=torch.bfloat16) * 0.05)(H * Dh, D)),
        }
    _A_in = _A_setup()

    def _B_setup():
        B, S, D, F = 1, 2048, 576, 4608
        return {
            "x": _w((lambda *s: torch.randn(*s, dtype=torch.bfloat16) * 0.05)(B, S, D)),
            "w1": _w((lambda *s: torch.randn(*s, dtype=torch.bfloat16) * 0.05)(D, F)),
            "b1": _w((lambda *s: torch.randn(*s, dtype=torch.bfloat16) * 0.4)(F)),
            "w2": _w((lambda *s: torch.randn(*s, dtype=torch.bfloat16) * 0.05)(F, D)),
            "b2": _w((lambda *s: torch.randn(*s, dtype=torch.bfloat16) * 3.2)(D)),
        }
    _B_in = _B_setup()

    return {
        "A_x": _A_in["x"],
        "A_wq": _A_in["wq"],
        "A_wk": _A_in["wk"],
        "A_wv": _A_in["wv"],
        "A_wo": _A_in["wo"],
        "B_x": _B_in["x"],
        "B_w1": _B_in["w1"],
        "B_b1": _B_in["b1"],
        "B_w2": _B_in["w2"],
        "B_b2": _B_in["b2"],
    }

def reference(A_x, A_wq, A_wk, A_wv, A_wo, B_x, B_w1, B_b1, B_w2, B_b2):
    def _A_ref(x, wq, wk, wv, wo):
        B, S, D = x.shape
        H = 32
        Dh = D // H
        q = (lambda x, *d: x.permute(*d))((x @ wq).reshape(B, S, H, Dh), 0, 2, 1, 3)
        k = x @ wk
        v = x @ wv
        scores = torch.einsum("bhqd,bkd->bhqk", q, k) * (Dh ** -0.5)
        p = _softmax(scores, axis=-1)
        o = torch.einsum("bhqk,bkd->bhqd", p, v)
        return (lambda x, *d: x.permute(*d))(o, 0, 2, 1, 3).reshape(B, S, H * Dh) @ wo

    def _B_ref(x, w1, b1, w2, b2):
        h = torch.einsum("bsd,df->bsf", x, w1) + b1
        zero = torch.zeros_like(h)
        r = torch.where(h > zero, h, zero)
        h = r * r
        out = torch.einsum("bsf,fd->bsd", h, w2) + b2
        return out

    x = A_x
    h = x + _A_ref(_layernorm(x, axis=-1), A_wq, A_wk, A_wv, A_wo)
    h2 = h + _B_ref(_layernorm(h, axis=-1), B_w1, B_b1, B_w2, B_b2)
    return h2
```

```python
import sys, math

NAME = "sequential_preLN__grouped_kv_mqa__dense_activation_squared_relu__prompt"

ROW = 1152
WS_Q    = 0
WS_O    = WS_Q + 2048 * ROW
WS_H    = WS_O + 2048 * ROW
WS_KV   = WS_H + 2048 * ROW
KVB     = 2368
KV_BYTES = 64 * KVB
WS_KN   = WS_KV + 152 * 1024
WS_FLAG = WS_KN + 4096
WS_WOF  = WS_FLAG + 128 * 128
WS_W1F  = WS_WOF + 36 * 18 * 1024
WS_W2F  = WS_W1F + 288 * 18 * 1024
WS_PART = WS_W2F + 288 * 18 * 1024
WS_END  = WS_PART + 32 * 4 * 9 * 8 * 2048
WS_SIZE = 0x10000000
assert WS_END < WS_SIZE

QSCALE = (18 ** -0.5) * math.log2(math.e)

def f32bits(x):
    import struct
    return "0x%08x" % struct.unpack("<I", struct.pack("<f", x))[0]

class Asm:
    def __init__(self):
        self.L = []
    def __call__(self, s):
        for ln in s.split("\n"):
            self.L.append("    " + ln.strip())
    def label(self, s):
        self.L.append(s + ":")
    def raw(self, s):
        self.L.append(s)
    def srd(self, d, p, size, off=0):
        if off:
            self(f"s_add_u32 s{d}, s{p}, {off}")
            self(f"s_addc_u32 s{d+1}, s{p+1}, 0")
        else:
            self(f"s_mov_b32 s{d}, s{p}")
            self(f"s_mov_b32 s{d+1}, s{p+1}")
        self(f"s_mov_b32 s{d+2}, {size}")
        self(f"s_mov_b32 s{d+3}, 0x00020000")
    def begin(self, k):
        self.raw(f".globl {k}\n.p2align 8\n.type {k},@function\n{k}:")
    def text(self):
        return "\n".join(self.L) + "\n"

def vr(b, n=4):
    return f"v[{b}:{b+n-1}]"
def ar(b, n=4):
    return f"a[{b}:{b+n-1}]"

def desc(k, nv, acc=None, ns=102):
    if acc is None:
        acc = min(256, (nv + 3) // 4 * 4)
    return f""".p2align 6
.amdhsa_kernel {k}
  .amdhsa_next_free_vgpr {nv}
  .amdhsa_next_free_sgpr {ns}
  .amdhsa_accum_offset {acc}
  .amdhsa_group_segment_fixed_size 0
  .amdhsa_kernarg_size 104
  .amdhsa_user_sgpr_count 2
  .amdhsa_user_sgpr_kernarg_segment_ptr 1
  .amdhsa_system_sgpr_workgroup_id_x 1
.end_amdhsa_kernel
"""

A_X, A_WQ, A_WK, A_WV, A_WO, A_BX, A_W1, A_B1, A_W2, A_B2, A_OUT, A_DBG, A_WS = [8 * i for i in range(13)]

DMAP = [[0, 1, 2, 3, 13, 14, 15, 16, 17], [9, 10, 11, 12, 4, 5, 6, 7, 8]]

def k0(a):
    K = "k0_kernel"
    a.begin(K)
    a(f"s_load_dwordx2 s[4:5], s[0:1], {A_W1}")
    a(f"s_load_dwordx2 s[6:7], s[0:1], {A_W2}")
    a(f"s_load_dwordx2 s[8:9], s[0:1], {A_WO}")
    a(f"s_load_dwordx2 s[10:11], s[0:1], {A_WS}")
    a("v_lshrrev_b32 v1, 6, v0")
    a("v_and_b32 v2, 15, v0")
    a("v_readfirstlane_b32 s3, v1")
    a("v_bfe_u32 v3, v0, 4, 2")
    a("s_lshl_b32 s20, s2, 2")
    a("s_add_u32 s20, s20, s3")
    a("s_cmp_ge_u32 s20, 2754")
    a("s_cbranch_scc1 K0_end")
    a("s_waitcnt lgkmcnt(0)")
    a.srd(16, 10, WS_SIZE)
    a("s_cmp_ge_u32 s20, 1296")
    a("s_cbranch_scc1 K0_notw1")
    a.srd(12, 4, 576 * 9216)
    a("s_mul_i32 s26, s20, 14564")
    a("s_lshr_b32 s26, s26, 20")
    a("s_mul_i32 s27, s26, 72")
    a("s_sub_u32 s27, s20, s27")
    a(f"s_mov_b32 s21, {8*9216}")
    a(f"s_mul_i32 s22, s26, {32*9216}")
    a("s_lshl_b32 s28, s27, 7")
    a("s_add_u32 s22, s22, s28")
    a("s_mov_b32 s23, 9216")
    a(f"s_mov_b32 s24, {4*9216}")
    a("s_mul_i32 s25, s27, 72")
    a("s_add_u32 s25, s25, s26")
    a("s_lshl_b32 s25, s25, 10")
    a(f"s_add_u32 s25, s25, {WS_W1F}")
    a("s_branch K0_go")
    a.label("K0_notw1")
    a("s_cmp_ge_u32 s20, 2592")
    a("s_cbranch_scc1 K0_wo")
    a.srd(12, 6, 4608 * ROW)
    a("s_sub_u32 s20, s20, 1296")
    a("s_mul_i32 s26, s20, 7282")
    a("s_lshr_b32 s26, s26, 16")
    a("s_mul_i32 s27, s26, 9")
    a("s_sub_u32 s27, s20, s27")
    a("s_mul_i32 s29, s26, 3641")
    a("s_lshr_b32 s29, s29, 16")
    a("s_mul_i32 s30, s29, 18")
    a("s_sub_u32 s30, s26, s30")
    a(f"s_mov_b32 s21, {4*ROW}")
    a(f"s_mul_i32 s22, s26, {32*ROW}")
    a("s_lshl_b32 s28, s27, 7")
    a("s_add_u32 s22, s22, s28")
    a(f"s_mov_b32 s23, {ROW}")
    a(f"s_mov_b32 s24, {16*ROW}")
    a("s_mul_i32 s25, s29, 36")
    a("s_lshl_b32 s28, s27, 2")
    a("s_add_u32 s25, s25, s28")
    a("s_mul_i32 s25, s25, 18")
    a("s_add_u32 s25, s25, s30")
    a("s_lshl_b32 s25, s25, 10")
    a(f"s_add_u32 s25, s25, {WS_W2F}")
    a("s_branch K0_go")
    a.label("K0_wo")
    a.srd(12, 8, 576 * ROW)
    a("s_sub_u32 s20, s20, 2592")
    a("s_mul_i32 s26, s20, 7282")
    a("s_lshr_b32 s26, s26, 16")
    a("s_mul_i32 s27, s26, 9")
    a("s_sub_u32 s27, s20, s27")
    a("s_mul_i32 s25, s27, 72")
    a("s_add_u32 s25, s25, s26")
    a("s_lshl_b32 s25, s25, 10")
    a(f"s_add_u32 s25, s25, {WS_WOF}")
    a("s_lshl_b32 s28, s27, 7")
    a("s_cmp_ge_u32 s26, 16")
    a("s_cbranch_scc1 K0_wo2")
    a(f"s_mov_b32 s21, {18*ROW}")
    a(f"s_mov_b32 s23, {ROW}")
    a("s_and_b32 s29, s26, 7")
    a(f"s_mul_i32 s22, s29, {72*ROW}")
    a("s_add_u32 s22, s22, s28")
    a("s_cmp_ge_u32 s26, 8")
    a(f"s_cselect_b32 s29, {DMAP[1][0]*ROW}, {DMAP[0][0]*ROW}")
    a(f"s_mov_b32 s30, {(DMAP[0][4]-DMAP[0][0])*ROW}")
    a(f"s_cselect_b32 s24, {(DMAP[1][4]-DMAP[1][0])*ROW}, s30")
    a("s_add_u32 s22, s22, s29")
    a("s_branch K0_go")
    a.label("K0_wo2")
    a(f"s_mov_b32 s21, {144*ROW}")
    a(f"s_mov_b32 s23, {18*ROW}")
    a(f"s_mov_b32 s24, {72*ROW}")
    a("s_cmp_eq_u32 s26, 16")
    a(f"s_mov_b32 s30, {DMAP[1][8]*ROW}")
    a(f"s_cselect_b32 s22, {DMAP[0][8]*ROW}, s30")
    a("s_add_u32 s22, s22, s28")
    a.label("K0_go")
    a("v_mul_lo_u32 v4, v3, s21")
    a("v_lshl_add_u32 v4, v2, 3, v4")
    a("v_lshrrev_b32 v5, 2, v2")
    a("v_mul_u32_u24 v5, 18432, v5")
    a("v_lshl_add_u32 v5, v3, 8, v5")
    a("v_and_b32 v6, 3, v2")
    a("v_lshl_add_u32 v5, v6, 6, v5")
    a("s_add_u32 s26, s22, s24")
    for j in range(8):
        base = 22 if j < 4 else 26
        a(f"buffer_load_dwordx2 v[{8+2*j}:{9+2*j}], v4, s[12:15], s{base} offen")
        a(f"s_add_u32 s{base}, s{base}, s23")
    a("s_mov_b32 s28, 0x05040100")
    a("s_mov_b32 s29, 0x07060302")
    a("s_waitcnt vmcnt(0)")
    for q in range(4):
        for p in range(4):
            ra = 8 + 2 * (2 * p) + (q >> 1)
            rb = 8 + 2 * (2 * p + 1) + (q >> 1)
            a(f"v_perm_b32 v{24+4*q+p}, v{rb}, v{ra}, s{28 + (q & 1)}")
    for q in range(4):
        a(f"buffer_store_dwordx4 {vr(24+4*q)}, v5, s[16:19], s25 offen offset:{16*q}")
    a.label("K0_end")
    a("s_endpgm")
    return K, desc(K, 40), (689, 256, 0)

def cross_g_sum(a, v, t):
    a(f"v_mov_b32 v{t}, v{v}")
    a("s_nop 1")
    a(f"v_permlane16_swap_b32 v{v}, v{t}")
    a("s_nop 1")
    a(f"v_add_f32 v{v}, v{v}, v{t}")
    a(f"v_mov_b32 v{t}, v{v}")
    a("s_nop 1")
    a(f"v_permlane32_swap_b32 v{v}, v{t}")
    a("s_nop 1")
    a(f"v_add_f32 v{v}, v{v}, v{t}")

def ln_center(a, X, T, order, sOnes, sLo, sHi, vMean, vRstd):
    for i in range(4):
        a(f"v_mov_b32 v{T+i}, 0")
    for i in range(72):
        a(f"v_dot2_f32_bf16 v{T+(i%4)}, v{X+i}, s{sOnes}, v{T+(i%4)}")
    a("s_nop 2")
    a(f"v_add_f32 v{T}, v{T}, v{T+1}")
    a(f"v_add_f32 v{T+2}, v{T+2}, v{T+3}")
    a(f"v_add_f32 v{T}, v{T}, v{T+2}")
    cross_g_sum(a, T, T + 1)
    a(f"v_mul_f32 v{vMean}, {f32bits(-1.0/576)}, v{T}")
    for i in range(4):
        a(f"v_mov_b32 v{T+8+i}, 0")
    for c in range(18):
        b = X + 4 * c
        for i in range(4):
            a(f"v_dot2_f32_bf16 v{T+i}, v{b+i}, s{sLo}, v{vMean}")
            a(f"v_dot2_f32_bf16 v{T+4+i}, v{b+i}, s{sHi}, v{vMean}")
        if c > 0:
            for i in range(4):
                a(f"v_dot2_f32_bf16 v{T+8+i}, v{b-4+i}, v{b-4+i}, v{T+8+i}")
        else:
            a("s_nop 2")
        if order == "perm":
            a(f"v_cvt_pk_bf16_f32 v{b}, v{T}, v{T+1}")
            a(f"v_cvt_pk_bf16_f32 v{b+1}, v{T+2}, v{T+3}")
            a(f"v_cvt_pk_bf16_f32 v{b+2}, v{T+4}, v{T+5}")
            a(f"v_cvt_pk_bf16_f32 v{b+3}, v{T+6}, v{T+7}")
        else:
            for i in range(4):
                a(f"v_cvt_pk_bf16_f32 v{b+i}, v{T+i}, v{T+4+i}")
    b = X + 68
    for i in range(4):
        a(f"v_dot2_f32_bf16 v{T+8+i}, v{b+i}, v{b+i}, v{T+8+i}")
    a("s_nop 2")
    a(f"v_add_f32 v{T+8}, v{T+8}, v{T+9}")
    a(f"v_add_f32 v{T+10}, v{T+10}, v{T+11}")
    a(f"v_add_f32 v{T+8}, v{T+8}, v{T+10}")
    cross_g_sum(a, T + 8, T + 9)
    a(f"v_mov_b32 v{T}, {f32bits(1e-5)}")
    a(f"v_fmac_f32 v{T}, {f32bits(1.0/576)}, v{T+8}")
    a(f"v_rsq_f32 v{vRstd}, v{T}")
    a("s_nop 0")

K1_KVIMG = 576 * 144
def k1(a):
    K = "k1_kernel"
    a.begin(K)
    a("s_cmp_ge_u32 s2, 256")
    a("s_cbranch_scc1 K1_end")
    a(f"s_load_dwordx4 s[4:7], s[0:1], {A_X}")
    a(f"s_load_dwordx4 s[8:11], s[0:1], {A_WK}")
    a(f"s_load_dwordx2 s[12:13], s[0:1], {A_WS}")
    a("v_lshrrev_b32 v1, 6, v0")
    a("v_and_b32 v2, 63, v0")
    a("v_readfirstlane_b32 s3, v1")
    a("v_and_b32 v3, 15, v0")
    a("v_bfe_u32 v4, v0, 4, 2")
    a("s_and_b32 s14, s2, 31")
    a("s_lshr_b32 s15, s2, 5")
    a(f"v_mul_u32_u24 v5, {ROW}, v3")
    a("v_lshl_add_u32 v5, v4, 4, v5")
    a("s_lshl_b32 s32, s14, 2")
    a("s_add_u32 s32, s32, s3")
    a(f"s_mul_i32 s33, s32, {16*ROW}")
    for n, vd in ((0, 6), (1, 7), (2, 8)):
        if n < 2:
            a(f"s_lshl_b32 s34, s3, 6")
            a(f"s_add_u32 s34, s34, {256*n}")
            a(f"v_add_u32 v9, s34, v2")
        else:
            a(f"v_add_u32 v9, 512, v2")
        a("v_mul_u32_u24 v10, 7282, v9")
        a("v_lshrrev_b32 v10, 16, v10")
        a("v_mul_u32_u24 v11, 9, v10")
        a("v_sub_u32 v11, v9, v11")
        a(f"v_mul_u32_u24 v{vd}, {ROW}, v10")
        a(f"v_lshl_add_u32 v{vd}, v11, 4, v{vd}")
    a("v_mul_u32_u24 v9, 36, v2")
    a("s_waitcnt lgkmcnt(0)")
    a.srd(16, 4, 2048 * ROW)
    a.srd(20, 6, 576 * ROW)
    a("s_cmp_lt_u32 s15, 3")
    a("s_cselect_b32 s24, s8, s10")
    a("s_cselect_b32 s25, s9, s11")
    a(f"s_mov_b32 s26, {576*36}")
    a("s_mov_b32 s27, 0x00020000")
    a.srd(28, 12, WS_SIZE)
    X = 64
    for kk in range(18):
        a(f"buffer_load_dwordx4 {vr(X+4*kk)}, v5, s[16:19], s33 offen offset:{64*kk}")
    a("s_mul_i32 s34, s15, 144")
    a("s_lshl_b32 s35, s3, 10")
    a("s_cmp_lt_u32 s15, 3")
    a("s_cselect_b32 s36, 0, 3")
    a("s_sub_u32 s36, s15, s36")
    a("s_lshl_b32 s37, s36, 4")
    a("s_cmp_ge_u32 s36, 2")
    a("s_cselect_b32 s37, 20, s37")
    a(f"s_mov_b32 s38, {K1_KVIMG}")
    a("s_mov_b32 s39, 8192")
    a("s_cmp_eq_u32 s3, 0")
    a("s_cbranch_scc1 K1_dma0")
    a("s_cmp_eq_u32 s3, 1")
    a("s_cbranch_scc1 K1_dma1")
    for variant in (2, 0, 1):
        if variant != 2:
            a.label(f"K1_dma{variant}")
        for blk in range(9):
            a("s_mov_b32 m0, s35")
            a("s_add_u32 s40, s35, 4096")
            a("buffer_load_dwordx4 v6, s[20:23], s34 offen lds")
            a("s_mov_b32 m0, s40")
            a("s_add_u32 s35, s35, 9216")
            a("buffer_load_dwordx4 v7, s[20:23], s34 offen lds")
            if variant == 0:
                a("s_mov_b32 m0, s39")
                a("s_add_u32 s39, s39, 9216")
                a("buffer_load_dwordx4 v8, s[20:23], s34 offen lds")
            if variant == 1:
                a("s_mov_b32 m0, s38")
                a("s_add_u32 s38, s38, 1024")
                a("buffer_load_dwordx4 v9, s[24:27], s37 offen lds")
                a(f"s_add_u32 s37, s37, {64*36}")
            a(f"s_add_u32 s34, s34, {64*ROW}")
        a(f"s_waitcnt vmcnt({18 if variant == 2 else 27})")
        if variant != 1:
            a("s_branch K1_ln")
    a.label("K1_ln")
    a("s_mov_b32 s40, 0x3f803f80")
    a("s_mov_b32 s41, 0x00003f80")
    a("s_mov_b32 s42, 0x3f800000")
    vMean, vRstd, T = 12, 13, 16
    ln_center(a, X, T, "perm", 40, 41, 42, vMean, vRstd)
    a("v_bfe_u32 v5, v0, 2, 2")
    a("v_and_b32 v6, 3, v0")
    a("v_lshlrev_b32 v7, 3, v4")
    a("v_lshl_add_u32 v7, v5, 1, v7")
    a("v_mul_u32_u24 v8, 144, v7")
    a("v_lshl_add_u32 v8, v6, 3, v8")
    a(f"v_add_u32 v9, {9*4608}, v8")
    a("v_lshlrev_b32 v10, 4, v7")
    a("v_lshl_add_u32 v10, v6, 3, v10")
    a(f"v_add_u32 v10, {K1_KVIMG-16}, v10")
    a("v_add_u32 v11, 16, v10")
    a("v_add_u32 v15, 128, v8")
    a("v_cmp_gt_u32 vcc, 2, v6")
    a("v_mov_b32 v14, 512")
    a("v_mov_b32 v5, 4608")
    a("v_cndmask_b32 v10, v10, v15, vcc")
    a("v_add_u32 v15, 144, v15")
    a("v_cndmask_b32 v14, v14, v5, vcc")
    a("v_cndmask_b32 v11, v11, v15, vcc")
    a("s_waitcnt vmcnt(0)")
    a("s_barrier")
    W = 136
    ACC = 16
    def reads(kk):
        wb = W + 20 * (kk & 1)
        vb = 8 if kk < 9 else 9
        o = (kk % 9) * 4608
        for t in range(4):
            a(f"ds_read_b64_tr_b16 {vr(wb+4*t,2)}, v{vb} offset:{o+32*t}")
            a(f"ds_read_b64_tr_b16 {vr(wb+4*t+2,2)}, v{vb} offset:{o+32*t+144}")
        a(f"ds_read_b64_tr_b16 {vr(wb+16,2)}, v10")
        a(f"ds_read_b64_tr_b16 {vr(wb+18,2)}, v11")
        a("v_add_u32 v10, v10, v14")
        a("v_add_u32 v11, v11, v14")
    reads(0)
    for kk in range(18):
        if kk + 1 < 18:
            reads(kk + 1)
            a("s_waitcnt lgkmcnt(10)")
        else:
            a("s_waitcnt lgkmcnt(0)")
        wb = W + 20 * (kk & 1)
        for t in range(5):
            c = "0" if kk == 0 else vr(ACC + 4 * t)
            a(f"v_mfma_f32_16x16x32_bf16 {vr(ACC+4*t)}, {vr(wb+4*t)}, {vr(X+4*kk)}, {c}")
    a(f"v_mul_f32 v14, {f32bits(QSCALE)}, v{vRstd}")
    a(f"v_mul_u32_u24 v5, {ROW}, v3")
    a("v_lshl_add_u32 v5, v4, 3, v5")
    a("s_mul_i32 s34, s15, 144")
    a("s_add_u32 s34, s34, s33")
    a(f"s_add_u32 s34, s34, {WS_Q}")
    a("v_cmp_gt_u32 vcc, 2, v4")
    a("s_nop 4")
    a(f"v_cndmask_b32 v15, v{vRstd}, v14, vcc")
    for t in range(5):
        sc = 14 if t < 4 else 15
        for r in range(4):
            a(f"v_mul_f32 v{ACC+4*t+r}, v{sc}, v{ACC+4*t+r}")
        a(f"v_cvt_pk_bf16_f32 v{40+2*t}, v{ACC+4*t}, v{ACC+4*t+1}")
        a(f"v_cvt_pk_bf16_f32 v{41+2*t}, v{ACC+4*t+2}, v{ACC+4*t+3}")
        if t < 4:
            a(f"buffer_store_dwordx2 {vr(40+2*t,2)}, v5, s[28:31], s34 offen offset:{32*t}")
    a("s_and_saveexec_b64 s[44:45], vcc")
    a(f"buffer_store_dwordx2 {vr(48,2)}, v5, s[28:31], s34 offen offset:128")
    a("s_mov_b64 exec, s[44:45]")
    a("s_lshr_b32 s35, s32, 1")
    a(f"s_mul_i32 s35, s35, {KVB}")
    a(f"s_add_u32 s35, s35, {WS_KV}")
    a("s_and_b32 s37, s32, 1")
    a("s_cmp_ge_u32 s15, 6")
    a("s_cbranch_scc1 K1_ones")
    a("s_cmp_ge_u32 s15, 3")
    a("s_cbranch_scc1 K1_v")
    A4 = ACC + 16
    a(f"v_mul_f32 v6, v{A4+2}, v{A4+2}")
    a(f"v_fmac_f32 v6, v{A4+3}, v{A4+3}")
    a(f"v_mul_f32 v7, v{A4}, v{A4}")
    a(f"v_fmac_f32 v7, v{A4+1}, v{A4+1}")
    a("s_lshl_b32 s38, s37, 4")
    a("v_add_u32 v8, s38, v3")
    a("s_cmp_eq_u32 s15, 2")
    a("s_cbranch_scc1 K1_k2")
    a("v_add_f32 v6, v6, v7")
    a("s_lshl_b32 s38, s15, 9")
    a("s_add_u32 s38, s38, s35")
    a("s_sub_u32 s38, s38, 16")
    a("v_lshlrev_b32 v9, 4, v8")
    a("v_lshl_add_u32 v9, v4, 3, v9")
    a("s_andn2_b64 exec, exec, vcc")
    a(f"buffer_store_dwordx2 {vr(48,2)}, v9, s[28:31], s38 offen")
    a("s_mov_b64 exec, s[44:45]")
    a("s_lshl_b32 s39, s15, 3")
    a("s_sub_u32 s39, s39, 8")
    a("s_mov_b32 s46, 0")
    a("s_mov_b32 s47, 0x00010001")
    a("s_branch K1_kn")
    a.label("K1_k2")
    a("v_lshlrev_b32 v9, 2, v8")
    a("s_mov_b32 s46, 0")
    a("s_mov_b32 s47, 0xffff0000")
    a("s_mov_b64 exec, s[46:47]")
    a("buffer_store_dword v49, v9, s[28:31], s35 offen offset:1024")
    a("s_mov_b64 exec, s[44:45]")
    a("s_mov_b32 s39, 4")
    a("s_mov_b32 s47, 0x00010000")
    a.label("K1_kn")
    for sh in (8, 4, 2, 1):
        a("s_nop 1")
        a(f"v_max_f32_dpp v6, v6, v6 row_ror:{sh} row_mask:0xf bank_mask:0xf")
    a("s_lshl_b32 s38, s32, 5")
    a("s_add_u32 s38, s38, s39")
    a(f"s_add_u32 s38, s38, {WS_KN}")
    a("v_lshlrev_b32 v9, 2, v4")
    a("s_mov_b64 exec, s[46:47]")
    a("buffer_store_dword v6, v9, s[28:31], s38 offen")
    a("s_endpgm")
    a.label("K1_v")
    a("v_bfe_u32 v6, v3, 2, 1")
    a("v_mul_u32_u24 v6, 304, v6")
    a("v_and_b32 v7, 3, v3")
    a("v_lshl_add_u32 v6, v7, 1, v6")
    a("v_lshrrev_b32 v7, 3, v3")
    a("v_lshl_add_u32 v6, v7, 3, v6")
    a("s_mul_i32 s38, s37, 608")
    a("s_add_u32 s38, s38, s35")
    a("s_add_u32 s38, s38, 1152")
    a("s_lshl_b32 s39, s36, 3")
    a("s_cmp_ge_u32 s36, 2")
    a("s_cselect_b32 s39, 10, s39")
    a("s_sub_u32 s39, s39, 8")
    a("v_lshlrev_b32 v7, 2, v4")
    a("v_add_u32 v7, s39, v7")
    a("s_andn2_b64 exec, exec, vcc")
    for r in range(4):
        a(f"v_add_u32 v8, {r}, v7")
        a("v_cmp_lt_u32 vcc, 8, v8")
        a("v_lshl_add_u32 v9, v8, 4, v6")
        a("v_add_u32 v10, 16, v9")
        a("v_cndmask_b32 v9, v9, v10, vcc")
        op = "buffer_store_short" if r % 2 == 0 else "buffer_store_short_d16_hi"
        a(f"{op} v{48 + r // 2}, v9, s[28:31], s38 offen")
    a("s_endpgm")
    a.label("K1_ones")
    a("s_cmp_eq_u32 s15, 6")
    a("s_cbranch_scc0 K1_flags")
    a("s_mul_i32 s38, s37, 608")
    a("s_add_u32 s38, s38, s35")
    a("v_mul_u32_u24 v6, 304, v2")
    for i in range(4):
        a(f"v_mov_b32 v{8+i}, s40")
    a("s_mov_b64 exec, 3")
    a(f"buffer_store_dwordx4 v[8:11], v6, s[28:31], s38 offen offset:{1152+144}")
    a("s_endpgm")
    a.label("K1_flags")
    a("s_lshl_b32 s38, s32, 7")
    a(f"s_add_u32 s38, s38, {WS_FLAG}")
    a("v_mov_b32 v6, 0")
    a("s_mov_b64 exec, 1")
    a("buffer_store_dword v6, v6, s[28:31], s38 offen")
    a.label("K1_end")
    a("s_endpgm")
    return K, desc(K, 176), (256, 256, K1_KVIMG + 576 * 16)

def k2(a):
    K = "k2_kernel"
    a.begin(K)
    a("s_cmp_ge_u32 s2, 256")
    a("s_cbranch_scc1 K2_end")
    a(f"s_load_dwordx2 s[4:5], s[0:1], {A_WS}")
    a("v_lshrrev_b32 v1, 6, v0")
    a("v_and_b32 v2, 63, v0")
    a("v_readfirstlane_b32 s3, v1")
    a("v_and_b32 v3, 31, v0")
    a("v_bfe_u32 v4, v0, 5, 1")
    a("v_lshlrev_b32 v5, 4, v2")
    a("v_mul_u32_u24 v6, 36, v3")
    a("v_lshl_add_u32 v7, v4, 4, v6")
    a("v_xor_b32 v8, 1, v4")
    a("v_lshl_add_u32 v8, v8, 4, v6")
    a("v_lshlrev_b32 v9, 5, v2")
    a("s_lshl_b32 s6, s2, 3")
    a("s_add_u32 s6, s6, s3")
    a(f"s_mul_i32 s7, s6, {ROW}")
    a("s_waitcnt lgkmcnt(0)")
    a.srd(8, 4, WS_SIZE)
    a.srd(12, 4, KV_BYTES, WS_KV)
    Q1, Q2 = 12, 16
    QO, KN = 20, 24
    a("s_lshl_b32 s16, s3, 10")
    def dma(k):
        a("s_mov_b32 m0, s16")
        a("s_nop 0")
        a("buffer_load_dwordx4 v5, s[12:15], s16 offen lds")
        a("s_add_u32 s16, s16, 8192")
    a(f"s_add_u32 s17, s7, {WS_Q}")
    a(f"s_mov_b32 s18, {WS_KN}")
    a(f"buffer_load_dwordx4 {vr(Q1)}, v7, s[8:11], s17 offen")
    a(f"buffer_load_dwordx4 {vr(QO)}, v8, s[8:11], s17 offen")
    a(f"buffer_load_dword v{Q2}, v6, s[8:11], s17 offen offset:32")
    a(f"buffer_load_dwordx4 {vr(KN)}, v9, s[8:11], s18 offen")
    a(f"buffer_load_dword v{KN+8}, v9, s[8:11], s18 offen offset:16")
    a(f"buffer_load_dwordx4 {vr(KN+4)}, v9, s[8:11], s18 offen offset:2048")
    a(f"buffer_load_dword v{KN+9}, v9, s[8:11], s18 offen offset:2064")
    for k in range(19):
        dma(k)
    vK, vK2, vV = 36, 37, 38
    a("v_mov_b32 v10, 9")
    a("v_cmp_gt_u32 vcc, 16, v3")
    a("v_subrev_u32 v11, 8, v3")
    a("s_nop 0")
    a("v_cndmask_b32 v10, v10, v11, vcc")
    a("v_cmp_gt_u32 vcc, 12, v3")
    a("v_add_u32 v11, 6, v3")
    a("s_nop 0")
    a("v_cndmask_b32 v10, v10, v11, vcc")
    a("v_cmp_gt_u32 vcc, 4, v3")
    a("s_nop 1")
    a("v_cndmask_b32 v10, v10, v3, vcc")
    a("v_cmp_eq_u32 vcc, 16, v3")
    a("s_nop 1")
    a("v_cndmask_b32_e64 v10, v10, 18, vcc")
    a("v_cmp_eq_u32 vcc, 20, v3")
    a("s_nop 1")
    a("v_cndmask_b32_e64 v10, v10, 8, vcc")
    a("v_mul_u32_u24 v39, 304, v4")
    a("v_lshl_add_u32 v39, v10, 4, v39")
    a("v_add_u32 v39, 1152, v39")
    a("v_lshlrev_b32 v40, 2, v3")
    a("v_add_u32 v40, 1024, v40")
    a("s_waitcnt vmcnt(19)")
    a(f"v_add_f32 v{KN}, v{KN}, v{KN+1}")
    a(f"v_add_f32 v{KN+2}, v{KN+2}, v{KN+3}")
    a(f"v_add_f32 v{KN+4}, v{KN+4}, v{KN+5}")
    a(f"v_add_f32 v{KN+6}, v{KN+6}, v{KN+7}")
    a(f"v_add_f32 v{KN}, v{KN}, v{KN+2}")
    a(f"v_add_f32 v{KN+4}, v{KN+4}, v{KN+6}")
    a(f"v_add_f32 v{KN}, v{KN}, v{KN+8}")
    a(f"v_add_f32 v{KN+4}, v{KN+4}, v{KN+9}")
    a(f"v_max_f32 v{KN}, v{KN}, v{KN+4}")
    for sh in (8, 4, 2, 1):
        a("s_nop 1")
        a(f"v_max_f32_dpp v{KN}, v{KN}, v{KN} row_ror:{sh} row_mask:0xf bank_mask:0xf")
    a(f"v_mov_b32 v{KN+1}, v{KN}")
    a("s_nop 1")
    a(f"v_permlane16_swap_b32 v{KN}, v{KN+1}")
    a("s_nop 1")
    a(f"v_max_f32 v{KN}, v{KN}, v{KN+1}")
    a(f"v_mov_b32 v{KN+1}, v{KN}")
    a("s_nop 1")
    a(f"v_permlane32_swap_b32 v{KN}, v{KN+1}")
    a("s_nop 1")
    a(f"v_max_f32 v{KN}, v{KN}, v{KN+1}")
    a(f"v_mov_b32 v{KN+2}, 0")
    for r in list(range(Q1, Q1 + 4)) + list(range(QO, QO + 4)) + [Q2]:
        a(f"v_dot2_f32_bf16 v{KN+2}, v{r}, v{r}, v{KN+2}")
    a("s_nop 2")
    a(f"v_mul_f32 v{KN+2}, v{KN+2}, v{KN}")
    a(f"v_sqrt_f32 v{KN+2}, v{KN+2}")
    a("s_nop 0")
    vM = 18
    a(f"v_mul_f32 v{vM}, {f32bits(1.02)}, v{KN+2}")
    a("v_cmp_eq_u32 s[20:21], 0, v4")
    a("s_nop 1")
    a(f"v_cndmask_b32_e64 v{Q2}, 0, v{Q2}, s[20:21]")
    a("s_mov_b32 s22, 0")
    a("s_waitcnt vmcnt(16)")
    a("s_barrier")
    S = [48, 64]; P = 80; O = 96
    KF = [112, 116]; K2F = [120, 122]; VF = [[124, 128], [132, 136]]
    a(f"v_mov_b32 v{K2F[0]+1}, 0x3f803f80")
    a(f"v_mov_b32 v{K2F[1]+1}, 0x3f803f80")
    a.label("K2_pass")
    a(f"v_sub_f32 v24, 0, v{vM}")
    a("v_and_b32 v25, 0xffff0000, v24")
    a("v_sub_f32 v24, v24, v25")
    a("v_and_b32 v26, 0xffff0000, v24")
    a("v_sub_f32 v24, v24, v26")
    a("v_lshrrev_b32 v25, 16, v25")
    a("v_or_b32 v25, v25, v26")
    a("v_lshrrev_b32 v24, 16, v24")
    a(f"v_cndmask_b32_e64 v{Q2+1}, v24, v25, s[20:21]")
    a(f"v_mov_b32 v{vK}, v5")
    a(f"v_mov_b32 v{vK2}, v40")
    a(f"v_mov_b32 v{vV}, v39")
    for i in range(16):
        a(f"v_mov_b32 v{O+i}, 0")
    for i in range(4):
        a(f"v_mov_b32 v{P+4+i}, 0")
        a(f"v_mov_b32 v{VF[1][1]+i}, 0")
    def rdK(kb, rel):
        a(f"ds_read_b128 {vr(KF[kb&1])}, v{vK} offset:{rel*KVB}")
        a(f"ds_read_b32 v{K2F[kb&1]}, v{vK2} offset:{rel*KVB}")
    def rdV(kb, rel, half):
        a(f"ds_read_b128 {vr(VF[kb&1][half])}, v{vV} offset:{rel*KVB+608*half}")
    def qk1(kb):
        a(f"v_mfma_f32_32x32x16_bf16 {vr(S[kb&1],16)}, {vr(KF[kb&1])}, {vr(Q1)}, 0")
    def qk2(kb):
        a(f"v_mfma_f32_32x32x8_bf16 {vr(S[kb&1],16)}, {vr(K2F[kb&1],2)}, {vr(Q2,2)}, {vr(S[kb&1],16)}")
    def pv(kb, half):
        a(f"v_mfma_f32_32x32x16_bf16 {vr(O,16)}, {vr(VF[kb&1][half])}, {vr(P+4*half)}, {vr(O,16)}")
    def ex(kb, lo, hi):
        for i in range(lo, hi):
            a(f"v_exp_f32 v{S[kb&1]+i}, v{S[kb&1]+i}")
    def cv(kb, lo, hi):
        for i in range(lo, hi):
            a(f"v_cvt_pk_bf16_f32 v{P+i}, v{S[kb&1]+2*i}, v{S[kb&1]+2*i+1}")
    rdK(0, 0); rdK(1, 1); rdV(0, 0, 0); rdV(0, 0, 1)
    a("s_waitcnt lgkmcnt(4)")
    qk1(0); qk2(0)
    a("s_mov_b32 s23, 0")
    a("s_nop 7")
    a("s_nop 3")
    a.raw(".p2align 6")
    a.label("K2_loop")
    U = 8
    for u in range(U):
        kb = u
        a("s_waitcnt lgkmcnt(0)")
        rdK(kb + 2, u + 2)
        rdV(kb + 1, u + 1, 0)
        ex(kb, 0, 2)
        pv(kb - 1, 1)
        rdV(kb + 1, u + 1, 1)
        ex(kb, 2, 4)
        qk1(kb + 1)
        ex(kb, 4, 8)
        qk2(kb + 1)
        cv(kb, 0, 4)
        ex(kb, 8, 12)
        pv(kb, 0)
        ex(kb, 12, 16)
        if u == U - 1:
            a(f"v_add_u32 v{vK}, {U*KVB}, v{vK}")
            a(f"v_add_u32 v{vK2}, {U*KVB}, v{vK2}")
            a(f"v_add_u32 v{vV}, {U*KVB}, v{vV}")
        cv(kb, 4, 8)
    a("s_add_u32 s23, s23, 1")
    a("s_or_b32 s24, s23, s22")
    a("s_cmp_lg_u32 s24, 1")
    a("s_cbranch_scc1 K2_nobar")
    a("s_cmp_lg_u32 s22, 0")
    a("s_cbranch_scc1 K2_nobar")
    a("s_waitcnt vmcnt(0)")
    a("s_barrier")
    a.label("K2_nobar")
    a(f"s_cmp_lt_u32 s23, {64//U}")
    a("s_cbranch_scc1 K2_loop")
    pv(63, 1)
    a("s_waitcnt lgkmcnt(0)")
    a("s_nop 7")
    a("s_nop 7")
    a("s_cmp_lg_u32 s22, 0")
    a("s_cbranch_scc1 K2_fin")
    a(f"v_cmp_gt_f32 vcc, {f32bits(2.0**-60)}, v{O+9}")
    a("s_nop 3")
    a("s_cmp_eq_u64 vcc, 0")
    a("s_cbranch_scc1 K2_fin")
    a(f"v_mov_b32 v{Q2+1}, 0")
    a(f"v_mov_b32 v{vK}, v5")
    a(f"v_mov_b32 v{vK2}, v40")
    a(f"v_mov_b32 v{vM}, 0xff800000")
    a("s_mov_b32 s23, 0")
    a.label("K2_mx")
    rdK(0, 0)
    a(f"v_add_u32 v{vK}, {KVB}, v{vK}")
    a(f"v_add_u32 v{vK2}, {KVB}, v{vK2}")
    a("s_waitcnt lgkmcnt(0)")
    qk1(0); qk2(0)
    a("s_nop 7")
    a("s_nop 7")
    for i in range(8):
        a(f"v_max3_f32 v{vM}, v{vM}, v{S[0]+2*i}, v{S[0]+2*i+1}")
    a("s_add_u32 s23, s23, 1")
    a("s_cmp_lt_u32 s23, 64")
    a("s_cbranch_scc1 K2_mx")
    a(f"v_mov_b32 v24, v{vM}")
    a("s_nop 1")
    a(f"v_permlane32_swap_b32 v{vM}, v24")
    a("s_nop 1")
    a(f"v_max_f32 v{vM}, v{vM}, v24")
    a("s_mov_b32 s22, 2")
    a("s_branch K2_pass")
    a.label("K2_fin")
    a(f"v_rcp_f32 v24, v{O+9}")
    a(f"s_add_u32 s17, s7, {WS_O}")
    for i in range(9):
        a(f"v_mul_f32 v{O+i}, v24, v{O+i}")
    for i in range(4):
        a(f"v_cvt_pk_bf16_f32 v{P+i}, v{O+2*i}, v{O+2*i+1}")
    a(f"v_cvt_pk_bf16_f32 v{P+4}, v{O+8}, v{O+8}")
    a("v_lshlrev_b32 v6, 1, v2")
    a(f"buffer_store_dwordx4 {vr(P)}, v5, s[8:11], s17 offen")
    a(f"buffer_store_short v{P+4}, v6, s[8:11], s17 offen offset:1024")
    a.label("K2_end")
    a("s_endpgm")
    return K, desc(K, 140), (256, 512, 152 * 1024)

def k2b(a):
    K = "k2b_kernel"
    a.begin(K)
    a("s_cmp_ge_u32 s2, 256")
    a("s_cbranch_scc1 K2B_end")
    a(f"s_load_dwordx2 s[4:5], s[0:1], {A_WS}")
    a(f"s_load_dwordx2 s[6:7], s[0:1], {A_X}")
    a("v_lshrrev_b32 v1, 6, v0")
    a("v_and_b32 v2, 63, v0")
    a("v_readfirstlane_b32 s3, v1")
    a("v_and_b32 v3, 15, v0")
    a("v_bfe_u32 v4, v0, 4, 2")
    a("v_lshlrev_b32 v5, 4, v2")
    a(f"v_mul_u32_u24 v6, {ROW}, v3")
    a("v_lshl_add_u32 v7, v4, 3, v6")
    a("v_lshl_add_u32 v6, v4, 4, v6")
    for k in range(1, 5):
        a(f"v_add_u32 v{7+k}, {4096*k}, v5")
    a("s_and_b32 s16, s2, 63")
    a("s_lshr_b32 s17, s2, 6")
    a(f"s_mul_i32 s18, s16, {32*ROW}")
    a("s_mul_i32 s19, s17, 9")
    a("s_add_u32 s19, s19, s3")
    a("s_waitcnt lgkmcnt(0)")
    a.srd(8, 4, WS_SIZE)
    a.srd(12, 6, 2048 * ROW)
    a(f"s_add_u32 s20, s18, {WS_O}")
    a("s_lshl_b32 s21, s3, 7")
    a("s_add_u32 s20, s20, s21")
    a("s_lshl_b32 s21, s3, 12")
    for n in range(4):
        kk, tt = n >> 1, n & 1
        a(f"s_add_u32 s22, s21, {n*1024}")
        a(f"s_add_u32 s23, s20, {kk*64 + tt*16*ROW}")
        a("s_mov_b32 m0, s22")
        a("s_nop 0")
        a("buffer_load_dwordx4 v6, s[8:11], s23 offen lds")
    Wb = 32
    a(f"s_mul_i32 s24, s19, {18*1024}")
    a(f"s_add_u32 s24, s24, {WS_WOF}")
    for kk in range(18):
        vb = 5 if kk < 4 else 7 + kk // 4
        a(f"buffer_load_dwordx4 {vr(Wb+4*kk)}, v{vb}, s[8:11], s24 offen offset:{(kk%4)*1024}")
    a("s_lshl_b32 s25, s19, 5")
    a("s_add_u32 s25, s25, s18")
    a(f"s_add_u32 s26, s25, {16*ROW}")
    a("buffer_load_dwordx2 v[12:13], v7, s[12:15], s25 offen")
    a("buffer_load_dwordx2 v[14:15], v7, s[12:15], s26 offen")
    a("s_waitcnt vmcnt(20)")
    a("s_barrier")
    B = 104
    ACC = 16
    def rd(kk):
        b = B + 8 * (kk % 3)
        a(f"ds_read_b128 {vr(b)}, v5 offset:{kk*2048}")
        a(f"ds_read_b128 {vr(b+4)}, v5 offset:{kk*2048+1024}")
    rd(0); rd(1)
    for kk in range(18):
        if kk + 2 < 18:
            rd(kk + 2)
        n = min(2, 17 - kk) * 2
        a(f"s_waitcnt vmcnt({19-kk}) lgkmcnt({n})")
        b = B + 8 * (kk % 3)
        for tt in range(2):
            c = "0" if kk == 0 else vr(ACC + 4 * tt)
            a(f"v_mfma_f32_16x16x32_bf16 {vr(ACC+4*tt)}, {vr(Wb+4*kk)}, {vr(b+4*tt)}, {c}")
    a("s_waitcnt vmcnt(0)")
    a(f"s_add_u32 s25, s25, {WS_H}")
    a(f"s_add_u32 s26, s26, {WS_H}")
    for tt in range(2):
        for p in range(2):
            a(f"v_lshlrev_b32 v{24+4*tt+2*p}, 16, v{12+2*tt+p}")
            a(f"v_and_b32 v{25+4*tt+2*p}, 0xffff0000, v{12+2*tt+p}")
    for tt in range(2):
        for r in range(4):
            a(f"v_add_f32 v{ACC+4*tt+r}, v{ACC+4*tt+r}, v{24+4*tt+r}")
        a(f"v_cvt_pk_bf16_f32 v{12+2*tt}, v{ACC+4*tt}, v{ACC+4*tt+1}")
        a(f"v_cvt_pk_bf16_f32 v{13+2*tt}, v{ACC+4*tt+2}, v{ACC+4*tt+3}")
        a(f"buffer_store_dwordx2 {vr(12+2*tt,2)}, v7, s[8:11], s{25+tt} offen")
    a.label("K2B_end")
    a("s_endpgm")
    return K, desc(K, 128), (256, 576, 36 * 1024)

def k3(a):
    K = "k3_kernel"
    RING = 36
    RB = 104
    BV = 72
    ACC = [40, 56]
    def bfrag(f):
        return ar(4 * f) if f < 64 else vr(BV + 4 * (f - 64))
    a.begin(K)
    a("s_cmp_ge_u32 s2, 256")
    a("s_cbranch_scc1 K3_end")
    a(f"s_load_dwordx2 s[4:5], s[0:1], {A_WS}")
    a(f"s_load_dwordx2 s[6:7], s[0:1], {A_B1}")
    a(f"s_load_dwordx4 s[24:27], s[0:1], {A_B2}")
    a("v_lshrrev_b32 v1, 6, v0")
    a("v_and_b32 v2, 63, v0")
    a("v_readfirstlane_b32 s3, v1")
    a("v_and_b32 v3, 15, v0")
    a("v_bfe_u32 v4, v0, 4, 2")
    a("v_lshlrev_b32 v5, 4, v2")
    for k in range(1, 5):
        a(f"v_add_u32 v{5+k}, {4096*k}, v5")
    a(f"v_mul_u32_u24 v10, {ROW}, v3")
    a("v_lshl_add_u32 v11, v4, 3, v10")
    a("v_lshl_add_u32 v10, v4, 4, v10")
    a("v_lshlrev_b32 v12, 3, v4")
    a("s_and_b32 s28, s2, 7")
    a("s_lshr_b32 s29, s2, 3")
    a(f"s_mul_i32 s30, s29, {64*ROW}")
    a(f"s_mul_i32 s31, s3, {16*ROW}")
    a("s_add_u32 s31, s31, s30")
    a(f"s_add_u32 s31, s31, {WS_H}")
    a("s_mul_i32 s60, s28, 36")
    a("s_mul_i32 s61, s3, 9")
    a("s_add_u32 s60, s60, s61")
    a("s_mul_i32 s61, s29, 57")
    a("s_lshr_b32 s61, s61, 9")
    a("s_mul_i32 s61, s61, 9")
    a("s_sub_u32 s61, s29, s61")
    for n in range(9):
        a(f"s_add_u32 s{50+n}, s61, {n}")
        a(f"s_cmp_ge_u32 s{50+n}, 9")
        a(f"s_cselect_b32 s62, 9, 0")
        a(f"s_sub_u32 s{50+n}, s{50+n}, s62")
        a(f"s_add_u32 s62, s{50+n}, s60")
        a(f"s_mul_i32 s62, s62, {18*1024}")
        a(f"s_add_u32 s{32+n}, s62, {WS_W1F}")
    for n in range(9):
        if n < 7:
            a(f"s_add_u32 s{64+n}, s28, {n+1}")
            a(f"s_and_b32 s{64+n}, s{64+n}, 7")
        elif n == 7:
            a(f"s_mov_b32 s{64+n}, 8")
        else:
            a(f"s_mov_b32 s{64+n}, s28")
        a(f"s_add_u32 s62, s{64+n}, s60")
        a(f"s_mul_i32 s62, s62, {18*1024}")
        a(f"s_add_u32 s{41+n}, s62, {WS_W2F}")
    a("s_waitcnt lgkmcnt(0)")
    a.srd(8, 4, WS_SIZE)
    a.srd(12, 6, 4608 * 2)
    a.srd(16, 24, 576 * 2)
    a.srd(20, 26, 2048 * ROW)
    X = RB + 72
    for kk in range(18):
        a(f"buffer_load_dwordx4 {vr(X+4*kk)}, v10, s[8:11], s31 offen offset:{64*kk}")
    for n in range(9):
        a(f"s_add_u32 s62, s{50+n}, s60")
        a(f"s_lshl_b32 s62, s62, 5")
        a(f"buffer_load_dwordx2 {vr(22+2*n,2)}, v12, s[12:15], s62 offen")
    def load(i):
        t, kk = divmod(i, 18)
        r = RB + (i % RING) * 4
        vb = 5 + kk // 4
        a(f"buffer_load_dwordx4 {vr(r)}, v{vb}, s[8:11], s{32+t} offen offset:{(kk%4)*1024}")
    for i in range(18):
        load(i)
    a("s_mov_b32 s74, 0x3f803f80")
    a("s_mov_b32 s75, 0x00003f80")
    a("s_mov_b32 s76, 0x3f800000")
    a("s_waitcnt vmcnt(27)")
    ln_center(a, X, 40, "nat", 74, 75, 76, 13, 14)
    a("s_lshl_b32 s62, s3, 10")
    a("v_add_u32 v15, s62, v5")
    a("v_add_u32 v16, 36864, v15")
    for kk in range(18):
        vb = 15 if kk < 9 else 16
        a(f"ds_write_b128 v{vb}, {vr(X+4*kk)} offset:{(kk%9)*4096}")
    a("s_lshl_b32 s62, s3, 6")
    a("v_lshlrev_b32 v17, 2, v3")
    a("v_add_u32 v17, 73728, v17")
    a("v_add_u32 v18, s62, v17")
    a("ds_write_b32 v18, v14")
    a("s_waitcnt lgkmcnt(0)")
    a("s_barrier")
    for i in range(18, 36):
        load(i)
    a("v_add_u32 v16, 36864, v5")
    def rdB(f):
        vb = 5 if f < 36 else 16
        a(f"ds_read_b128 {bfrag(f)}, v{vb} offset:{(f%36)*1024}")
    for tt in range(4):
        a(f"ds_read_b32 v{18+tt}, v17 offset:{64*tt}")
    NF = 324
    TMP = 248
    def g1_epilogue(n):
        acc = ACC[n % 2]
        L = []
        L.append(f"s_mul_i32 s62, s3, 9")
        L.append(f"s_add_u32 s62, s62, s{50+n}")
        L.append(f"s_lshr_b32 s63, s62, 1")
        L.append(f"s_lshl_b32 s63, s63, 12")
        L.append(f"s_and_b32 s62, s62, 1")
        L.append(f"s_lshl_b32 s62, s62, 3")
        L.append(f"s_add_u32 s62, s62, s63")
        L.append(f"s_add_u32 s62, s62, {HOFF}")
        L.append(f"v_add_u32 v15, s62, v5")
        L.append(f"v_lshlrev_b32 v{TMP}, 16, v{22+2*n}")
        L.append(f"v_and_b32 v{TMP+1}, 0xffff0000, v{22+2*n}")
        L.append(f"v_lshlrev_b32 v{TMP+2}, 16, v{23+2*n}")
        L.append(f"v_and_b32 v{TMP+3}, 0xffff0000, v{23+2*n}")
        for tt in range(4):
            for r in range(4):
                L.append(f"v_fma_f32 v{acc+4*tt+r}, v{acc+4*tt+r}, v{18+tt}, v{TMP+r}")
            for r in range(4):
                L.append(f"v_mul_f32 v{acc+4*tt+r}, v{acc+4*tt+r}, abs(v{acc+4*tt+r})")
            L.append(f"v_cvt_pk_bf16_f32 v{acc+4*tt}, v{acc+4*tt}, v{acc+4*tt+1}")
            L.append(f"v_cvt_pk_bf16_f32 v{acc+4*tt+1}, v{acc+4*tt+2}, v{acc+4*tt+3}")
            L.append(f"v_pk_max_i16 v{acc+4*tt}, v{acc+4*tt}, 0")
            L.append(f"v_pk_max_i16 v{acc+4*tt+1}, v{acc+4*tt+1}, 0")
            L.append(f"ds_write_b64 v15, {vr(acc+4*tt,2)} offset:{1024*tt}")
        return L
    HOFF = 75 * 1024
    a("s_lshl_b32 s77, s29, 2")
    a("s_add_u32 s77, s77, s3")
    a("s_lshl_b32 s78, s77, 7")
    a(f"s_add_u32 s78, s78, {WS_FLAG}")
    a(f"s_mul_i32 s77, s77, {9*8*2048}")
    a(f"s_add_u32 s77, s77, {WS_PART}")
    nstores = [0]
    def g2_epilogue(n):
        acc = ACC[(9 + n) % 2]
        L = []
        L.append(f"s_lshl_b32 s62, s{64+n}, 14")
        L.append(f"s_lshl_b32 s63, s28, 11")
        L.append(f"s_add_u32 s62, s62, s63")
        L.append(f"s_add_u32 s62, s62, s77")
        for tt in range(4):
            L.append(f"v_cvt_pk_bf16_f32 v{TMP+2*tt}, v{acc+4*tt}, v{acc+4*tt+1}")
            L.append(f"v_cvt_pk_bf16_f32 v{TMP+2*tt+1}, v{acc+4*tt+2}, v{acc+4*tt+3}")
        L.append(f"STORE buffer_store_dwordx4 {vr(TMP)}, v5, s[8:11], s62 offen sc1")
        L.append(f"STORE buffer_store_dwordx4 {vr(TMP+4)}, v5, s[8:11], s62 offen offset:1024 sc1")
        return L
    vmq = []
    vmq += ["b1"] * 9 + [("A", i) for i in range(36)]
    def wait_for(tag, extra=""):
        idx = len(vmq) - 1 - vmq[::-1].index(tag)
        n = len(vmq) - 1 - idx
        assert n <= 63
        a(f"s_waitcnt vmcnt({n}){extra}")
    pend = []
    for i in range(NF):
        t, kk = divmod(i, 18)
        first = t in (0, 9)
        if first and kk == 0:
            if t == 9:
                a("s_nop 7")
                for s in g1_epilogue(8):
                    a(s)
                pend = []
                a("s_waitcnt lgkmcnt(0)")
                a("s_barrier")
                a(f"v_add_u32 v17, {HOFF}, v5")
                a(f"v_add_u32 v16, {HOFF+36864}, v5")
            base_lo = 5 if t == 0 else 17
            def rdB(f, base_lo=base_lo):
                vb = base_lo if f < 36 else 16
                a(f"ds_read_b128 {bfrag(f)}, v{vb} offset:{(f%36)*1024}")
            for f in range(12):
                rdB(f)
        extra = ""
        if first:
            if kk > 0 and 4 * kk + 8 < 72:
                for f in range(4 * kk + 8, 4 * kk + 12):
                    rdB(f)
            rem = min(72, 4 * kk + 12) - (4 * kk + 4)
            extra = f" lgkmcnt({rem})"
        wait_for(("A", i), extra)
        r = RB + (i % RING) * 4
        acc = ACC[t % 2]
        if kk == 1 and not first:
            pend = g1_epilogue(t - 1) if t < 9 else g2_epilogue(t - 10)
        for tt in range(4):
            c = "0" if kk == 0 else vr(acc + 4 * tt)
            a(f"v_mfma_f32_16x16x32_bf16 {vr(acc+4*tt)}, {vr(r)}, {bfrag(kk*4+tt)}, {c}")
            if kk >= 2:
                for _ in range(2 if (pend and pend[0].startswith("s_")) else 1):
                    if pend:
                        s = pend.pop(0)
                        if s.startswith("STORE "):
                            s = s[6:]
                            vmq.append("st")
                        a(s)
        if kk == 17:
            assert not pend
        if i + RING < NF:
            load(i + RING)
            vmq.append(("A", i + RING))
    accO = ACC[17 % 2]
    a("s_waitcnt vmcnt(0)")
    a("v_mov_b32 v13, 1")
    a("v_mov_b32 v14, 0")
    a("s_mov_b64 s[80:81], exec")
    a("s_mov_b64 exec, 1")
    a("buffer_atomic_add v13, v14, s[8:11], s78 offen sc1")
    a("s_mov_b64 exec, s[80:81]")
    a("s_mul_i32 s62, s3, 288")
    a("s_lshl_b32 s63, s28, 5")
    a("s_add_u32 s82, s62, s63")
    a("s_add_u32 s83, s62, 256")
    R = RB
    a(f"buffer_load_dwordx2 {vr(R,2)}, v12, s[16:19], s82 offen")
    a(f"buffer_load_dwordx2 {vr(R+2,2)}, v12, s[16:19], s83 offen")
    a("s_add_u32 s84, s30, s82")
    a(f"s_add_u32 s85, s84, {WS_H}")
    for tt in range(4):
        a(f"buffer_load_dwordx2 {vr(R+4+2*tt,2)}, v11, s[8:11], s85 offen")
        a(f"s_add_u32 s85, s85, {16*ROW}")
    a("s_and_b32 s86, s28, 1")
    a(f"s_mul_i32 s87, s86, {32*ROW}")
    a("s_add_u32 s87, s87, s30")
    a("s_add_u32 s87, s87, s83")
    a(f"s_add_u32 s85, s87, {WS_H}")
    for tt in range(2):
        a(f"buffer_load_dwordx2 {vr(R+12+2*tt,2)}, v11, s[8:11], s85 offen")
        a(f"s_add_u32 s85, s85, {16*ROW}")
    a("s_mov_b32 s88, 0x40000")
    a.label("K3_poll")
    a(f"buffer_load_dword v13, v14, s[8:11], s78 offen sc1")
    a("s_waitcnt vmcnt(0)")
    a("v_readfirstlane_b32 s62, v13")
    a("s_cmp_ge_u32 s62, 8")
    a("s_cbranch_scc1 K3_go")
    a("s_sleep 2")
    a("s_sub_u32 s88, s88, 1")
    a("s_cmp_lg_u32 s88, 0")
    a("s_cbranch_scc1 K3_poll")
    a.label("K3_go")
    a("s_barrier")
    Pp = RB + 16
    a("s_lshl_b32 s62, s28, 14")
    a("s_add_u32 s62, s62, s77")
    for n in range(7):
        a(f"s_lshl_b32 s63, s{64+n}, 11")
        a("s_add_u32 s63, s63, s62")
        a(f"buffer_load_dwordx4 {vr(Pp+8*n)}, v5, s[8:11], s63 offen sc1")
        a(f"buffer_load_dwordx4 {vr(Pp+8*n+4)}, v5, s[8:11], s63 offen offset:1024 sc1")
    P8 = Pp + 56
    a("s_lshl_b32 s62, s86, 10")
    a("s_add_u32 s62, s62, s77")
    a(f"s_add_u32 s62, s62, {8*16384}")
    for n in range(8):
        a(f"buffer_load_dwordx4 {vr(P8+4*n)}, v5, s[8:11], s62 offen sc1")
        a("s_add_u32 s62, s62, 2048")
    for tt in range(4):
        for p in range(2):
            a(f"v_dot2_f32_bf16 v{accO+4*tt+2*p}, v{R+p}, s75, v{accO+4*tt+2*p}")
            a(f"v_dot2_f32_bf16 v{accO+4*tt+2*p+1}, v{R+p}, s76, v{accO+4*tt+2*p+1}")
    for tt in range(4):
        for p in range(2):
            a(f"v_dot2_f32_bf16 v{accO+4*tt+2*p}, v{R+4+2*tt+p}, s75, v{accO+4*tt+2*p}")
            a(f"v_dot2_f32_bf16 v{accO+4*tt+2*p+1}, v{R+4+2*tt+p}, s76, v{accO+4*tt+2*p+1}")
    acc8 = ACC[0] if accO == ACC[1] else ACC[1]
    for tt in range(2):
        for p in range(2):
            a(f"v_lshlrev_b32 v{acc8+4*tt+2*p}, 16, v{R+2+p}")
            a(f"v_and_b32 v{acc8+4*tt+2*p+1}, 0xffff0000, v{R+2+p}")
    for tt in range(2):
        for p in range(2):
            a(f"v_dot2_f32_bf16 v{acc8+4*tt+2*p}, v{R+12+2*tt+p}, s75, v{acc8+4*tt+2*p}")
            a(f"v_dot2_f32_bf16 v{acc8+4*tt+2*p+1}, v{R+12+2*tt+p}, s76, v{acc8+4*tt+2*p+1}")
    for n in range(7):
        a(f"s_waitcnt vmcnt({8 + 2*(6-n)})")
        for q in range(8):
            a(f"v_dot2_f32_bf16 v{accO+2*q}, v{Pp+8*n+q}, s75, v{accO+2*q}")
            a(f"v_dot2_f32_bf16 v{accO+2*q+1}, v{Pp+8*n+q}, s76, v{accO+2*q+1}")
    a("s_nop 2")
    for tt in range(4):
        a(f"v_cvt_pk_bf16_f32 v{TMP+2*tt}, v{accO+4*tt}, v{accO+4*tt+1}")
        a(f"v_cvt_pk_bf16_f32 v{TMP+2*tt+1}, v{accO+4*tt+2}, v{accO+4*tt+3}")
        a(f"buffer_store_dwordx2 {vr(TMP+2*tt,2)}, v11, s[20:23], s84 offen")
        a(f"s_add_u32 s84, s84, {16*ROW}")
    a("s_lshr_b32 s62, s28, 1")
    a("s_cmp_lg_u32 s62, s3")
    a("s_cbranch_scc1 K3_end")
    for n in range(8):
        a(f"s_waitcnt vmcnt({4 + 7 - n})")
        for q in range(4):
            a(f"v_dot2_f32_bf16 v{acc8+2*q}, v{P8+4*n+q}, s75, v{acc8+2*q}")
            a(f"v_dot2_f32_bf16 v{acc8+2*q+1}, v{P8+4*n+q}, s76, v{acc8+2*q+1}")
    a("s_nop 2")
    for tt in range(2):
        a(f"v_cvt_pk_bf16_f32 v{R+2*tt}, v{acc8+4*tt}, v{acc8+4*tt+1}")
        a(f"v_cvt_pk_bf16_f32 v{R+2*tt+1}, v{acc8+4*tt+2}, v{acc8+4*tt+3}")
        a(f"buffer_store_dwordx2 {vr(R+2*tt,2)}, v11, s[20:23], s87 offen")
        a(f"s_add_u32 s87, s87, {16*ROW}")
    a.label("K3_end")
    a("s_endpgm")
    return K, desc(K, 512, 256), (256, 256, HOFF + 72 * 1024)

def build(kernels, out):
    a = Asm()
    metas = [k(a) for k in kernels]
    hdr = open("cdna_kernels/" + NAME + ".s.ref").read().split("\n")
    top = []
    for ln in hdr:
        if ln.startswith(";") and "@launch" not in ln and "Override launch" not in ln and "grid=ceil" not in ln:
            top.append(ln)
        if not ln.startswith(";"):
            break
    s = "\n".join(top) + "\n"
    for K, d, (g, b, l) in metas:
        s += f"; @launch kernel={K} grid=({g},1,1) block=({b},1,1) lds={l}\n"
    s += '.amdgcn_target "amdgcn-amd-amdhsa--gfx950"\n.text\n'
    s += a.text()
    s += '.section .rodata,"a"\n'
    for K, d, _ in metas:
        s += d
    open(out, "w").write(s)

if __name__ == "__main__":
    out = sys.argv[1] if len(sys.argv) > 1 else "cdna_kernels/" + NAME + ".s"
    build([k0, k1, k2, k2b, k3], out)
    print("wrote", out)
```

```python
import sys, math, struct

NAME = "sequential_preLN__grouped_kv_mqa__dense_activation_squared_relu__prompt"

ROW = 1152
KVB = 2304
K2OFF = 64 * KVB
KV_BYTES = K2OFF + 16 * 512
WS_Q    = 0
WS_XN   = WS_Q + 2048 * ROW
WS_KV   = WS_XN + 2048 * ROW
WS_FLAG = WS_KV + 160 * 1024
WS_WOF  = WS_FLAG + 128 * 128
WOF_BYTES = 36 * 18 * 1024
WS_W1F  = WS_WOF + WOF_BYTES
WS_W2F  = WS_W1F + 288 * 18 * 1024
WS_PART = WS_W2F + 288 * 18 * 1024
WS_HRES = WS_PART + 32 * 36 * 8 * 2048
WS_DBG  = WS_HRES + 32 * 36 * 2048
POISON  = 0x7f7f7f7f
WS_END  = WS_DBG + 8 * 4096 * 64 + 2048 * 256
WS_SIZE = 0x10000000
OOB = 0x7ff00000
class Opt:
    WST = ''
    XST = ''
    FOLD = True
    DBG = False
assert WS_END < WS_SIZE

QSCALE = (18 ** -0.5) * math.log2(math.e)
DMAP = [[0, 1, 2, 3, 8, 9, 10, 11, 16], [4, 5, 6, 7, 12, 13, 14, 15, 17]]

def f32bits(x):
    return "0x%08x" % struct.unpack("<I", struct.pack("<f", x))[0]

class Asm:
    def __init__(self):
        self.L = []
        self.vmq = []
    def __call__(self, s):
        for ln in s.split("\n"):
            self.L.append("    " + ln.strip())
    def label(self, s):
        self.L.append(s + ":")
    def raw(self, s):
        self.L.append(s)
    def vm(self, tag, s):
        self.vmq.append(tag)
        self(s)
    def vmn(self, tag):
        idx = len(self.vmq) - 1 - self.vmq[::-1].index(tag)
        n = len(self.vmq) - 1 - idx
        return min(n, 63)
    def waitvm(self, tag, extra=""):
        self(f"s_waitcnt vmcnt({self.vmn(tag)}){extra}")
    def emit(self, it):
        if isinstance(it, str):
            self(it)
        elif it[0] == "vm":
            self.vm(it[1], it[2])
        elif it[0] == "wait":
            self.waitvm(it[1], it[2] if len(it) > 2 else "")
        elif it[0] == "label":
            self.label(it[1])
        elif it[0] == "stamp":
            self.stamp(it[1])
        else:
            raise ValueError(it)
    def srd(self, d, p, size, off=0):
        if off:
            self(f"s_add_u32 s{d}, s{p}, {off}")
            self(f"s_addc_u32 s{d+1}, s{p+1}, 0")
        else:
            self(f"s_mov_b32 s{d}, s{p}")
            self(f"s_mov_b32 s{d+1}, s{p+1}")
        self(f"s_mov_b32 s{d+2}, {size}")
        self(f"s_mov_b32 s{d+3}, 0x00020000")
    def stamp(self, i):
        if not Opt.DBG: return
        self("s_memrealtime s[100:101]")
        self("s_waitcnt lgkmcnt(0)")
        self(f"s_mov_b32 s{89+i}, s100")
    def stampc(self, i):
        if not Opt.DBG: return
        self("s_memtime s[100:101]")
        self("s_waitcnt lgkmcnt(0)")
        self(f"s_mov_b32 s{89+i}, s100")
    def end(self, kid, srd, nwaves, n=10):
        if Opt.DBG:
            self.stamp(8)
            self.stampc(9)
            self("s_mov_b64 exec, 1")
            self(f"s_mul_i32 s100, s2, {nwaves}")
            self("s_add_u32 s100, s100, s3")
            self("s_lshl_b32 s100, s100, 6")
            self(f"s_add_u32 s100, s100, {WS_DBG + kid * 4096 * 64}")
            self("v_mov_b32 v1, 0")
            for i in range(n + 1):
                self(f"v_mov_b32 v2, s{89+i}")
                self(f"buffer_store_dword v2, v1, s[{srd}:{srd+3}], s100 offen offset:{4*i}")
        self("s_endpgm")
    def begin(self, k):
        self.vmq = []
        self.raw(f".globl {k}\n.p2align 8\n.type {k},@function\n{k}:")
    def text(self):
        return "\n".join(self.L) + "\n"

def vr(b, n=4):
    return f"v[{b}:{b+n-1}]"
def ar(b, n=4):
    return f"a[{b}:{b+n-1}]"

def desc(k, nv, acc=None, ns=102):
    if acc is None:
        acc = min(256, (nv + 3) // 4 * 4)
    return f""".p2align 6
.amdhsa_kernel {k}
  .amdhsa_next_free_vgpr {nv}
  .amdhsa_next_free_sgpr {ns}
  .amdhsa_accum_offset {acc}
  .amdhsa_group_segment_fixed_size 0
  .amdhsa_kernarg_size 104
  .amdhsa_user_sgpr_count 2
  .amdhsa_user_sgpr_kernarg_segment_ptr 1
  .amdhsa_system_sgpr_workgroup_id_x 1
.end_amdhsa_kernel
"""

A_X, A_WQ, A_WK, A_WV, A_WO, A_BX, A_W1, A_B1, A_W2, A_B2, A_OUT, A_DBG, A_WS = [8 * i for i in range(13)]

def weave(main, side):
    out = []
    for i, m in enumerate(main):
        out += side.get(i, [])
        out.append(m)
    out += side.get(len(main), [])
    return out

def cross_g_sum(a, v, t):
    a(f"v_mov_b32 v{t}, v{v}")
    a("s_nop 1")
    a(f"v_permlane16_swap_b32 v{v}, v{t}")
    a("s_nop 1")
    a(f"v_add_f32 v{v}, v{v}, v{t}")
    a(f"v_mov_b32 v{t}, v{v}")
    a("s_nop 1")
    a(f"v_permlane32_swap_b32 v{v}, v{t}")
    a("s_nop 1")
    a(f"v_add_f32 v{v}, v{v}, v{t}")

def build(kernels, out):
    a = Asm()
    metas = [k(a) for k in kernels]
    hdr = open("cdna_kernels/" + NAME + ".s.ref").read().split("\n")
    top = []
    for ln in hdr:
        if ln.startswith(";") and "@launch" not in ln and "Override launch" not in ln and "grid=ceil" not in ln:
            top.append(ln)
        if not ln.startswith(";"):
            break
    s = "\n".join(top) + "\n"
    for K, d, (g, b, l) in metas:
        s += f"; @launch kernel={K} grid=({g},1,1) block=({b},1,1) lds={l}\n"
    s += '.amdgcn_target "amdgcn-amd-amdhsa--gfx950"\n.text\n'
    s += a.text()
    s += '.section .rodata,"a"\n'
    for K, d, _ in metas:
        s += d
    open(out, "w").write(s)
```

```python
from common import *
import relayout as RL
def k0(a):
    K = "k0_kernel"
    a.begin(K)
    a(f"s_load_dwordx2 s[4:5], s[0:1], {A_W1}")
    a(f"s_load_dwordx2 s[6:7], s[0:1], {A_W2}")
    a(f"s_load_dwordx2 s[8:9], s[0:1], {A_WO}")
    a(f"s_load_dwordx2 s[10:11], s[0:1], {A_WS}")
    a("v_lshrrev_b32 v1, 6, v0")
    a("s_nop 0")
    a("v_readfirstlane_b32 s3, v1")
    a("s_lshl_b32 s20, s2, 2")
    a("s_add_u32 s20, s20, s3")
    a("s_cmp_ge_u32 s20, 162")
    a("s_cbranch_scc1 K0_end")
    a("s_waitcnt lgkmcnt(0)")
    a.srd(16, 10, WS_SIZE)
    RL.params_wo(a, 20, 24, 12, 8)
    RL.voff_src(a, 4, 6, 24)
    RL.voff_dst(a, 5, 6)
    for it in RL.loads(8, 4, 24, 12, "raw"):
        a.emit(it)
    a("s_mov_b32 s34, 0x05040100")
    a("s_mov_b32 s35, 0x07060302")
    a("s_waitcnt vmcnt(0)")
    for it in RL.perms_stores(8, [24, 28, 32, 36], 5, 24, 16, 34, 35, "st"):
        a.emit(it)
    a.label("K0_end")
    a("s_endpgm")
    return K, desc(K, 40), (41, 256, 0)
```

```python
from common import *
import relayout as RL
WIMG = 0
KVIMG = 576 * 144
XIMG = KVIMG + 576 * 16
CS = XIMG + 4 * 17 * 1024
LDS = CS + 320

def k1(a):
    K = "k1_kernel"
    a.begin(K)
    a("s_cmp_ge_u32 s2, 256")
    a("s_cbranch_scc1 K1_end")
    a.stamp(0); a.stampc(10)
    a(f"s_load_dwordx4 s[4:7], s[0:1], {A_X}")
    a(f"s_load_dwordx4 s[8:11], s[0:1], {A_WK}")
    a(f"s_load_dwordx2 s[12:13], s[0:1], {A_WS}")
    a(f"s_load_dwordx2 s[52:53], s[0:1], {A_WO}")
    a("v_lshrrev_b32 v1, 6, v0")
    a("v_and_b32 v2, 63, v0")
    a("v_readfirstlane_b32 s3, v1")
    a("v_and_b32 v3, 15, v0")
    a("v_bfe_u32 v4, v0, 4, 2")
    a("s_and_b32 s14, s2, 31")
    a("s_lshr_b32 s15, s2, 5")
    a("s_lshr_b32 s48, s14, 3")
    a("s_lshl_b32 s48, s48, 1")
    a("s_add_u32 s48, s48, s15")
    a("s_cmp_ge_u32 s48, 9")
    a("s_cselect_b32 s49, 9, 0")
    a("s_sub_u32 s48, s48, s49")
    a("s_cmp_ge_u32 s3, 4")
    a("s_cbranch_scc1 K1_loader")
    a("v_lshrrev_b32 v5, 2, v2")
    a(f"v_mul_u32_u24 v6, {ROW}, v5")
    a("v_sub_u32 v7, 0, v4")
    a("v_xor_b32 v7, v7, v2")
    a("v_and_b32 v7, 3, v7")
    a("v_lshl_add_u32 v6, v7, 4, v6")
    a(f"v_mul_u32_u24 v5, {ROW}, v3")
    a("v_lshl_add_u32 v5, v4, 4, v5")
    a("s_lshl_b32 s32, s14, 2")
    a("s_add_u32 s32, s32, s3")
    a(f"s_mul_i32 s33, s32, {16*ROW}")
    a("s_lshl_b32 s34, s48, 7")
    a("s_mul_i32 s35, s3, 17408")
    a(f"s_add_u32 s35, s35, {XIMG}")
    a("s_waitcnt lgkmcnt(0)")
    a.srd(16, 4, 2048 * ROW)
    a.srd(28, 12, WS_SIZE)
    a.stamp(1)
    X = 64
    for n in range(18):
        a("s_add_u32 s36, s33, s34")
        if n < 17:
            a("s_mov_b32 m0, s35")
            a("s_add_u32 s35, s35, 1024")
            a.vm("x", "buffer_load_dwordx4 v6, s[16:19], s36 offen lds")
        else:
            a.vm("x", f"buffer_load_dwordx4 {vr(X+68)}, v5, s[16:19], s36 offen")
        if n < 17:
            a("s_add_u32 s34, s34, 64")
            if n % 2 == 1:
                a(f"s_cmp_ge_u32 s34, {ROW}")
                a(f"s_cselect_b32 s34, 0, s34")
    a("v_lshrrev_b32 v7, 2, v3")
    a("v_sub_u32 v7, 0, v7")
    a("v_xor_b32 v7, v7, v4")
    a("v_and_b32 v7, 3, v7")
    a("v_lshlrev_b32 v7, 4, v7")
    a("v_lshl_add_u32 v7, v3, 6, v7")
    a("s_mul_i32 s35, s3, 17408")
    a(f"s_add_u32 s35, s35, {XIMG}")
    a("v_add_u32 v7, s35, v7")
    a("v_bfe_u32 v5, v0, 2, 2")
    a("v_and_b32 v6, 3, v0")
    a("v_lshlrev_b32 v12, 3, v4")
    a("v_lshl_add_u32 v12, v5, 1, v12")
    a("v_mul_u32_u24 v8, 144, v12")
    a("v_lshl_add_u32 v8, v6, 3, v8")
    a(f"v_add_u32 v9, {9*4608}, v8")
    a("v_lshlrev_b32 v10, 4, v12")
    a("v_lshl_add_u32 v10, v6, 3, v10")
    a(f"v_add_u32 v10, {KVIMG-16}, v10")
    a("v_add_u32 v11, 16, v10")
    a("v_add_u32 v15, 128, v8")
    a("v_cmp_gt_u32 vcc, 2, v6")
    a("v_mov_b32 v14, 512")
    a("v_mov_b32 v5, 4608")
    a("v_cndmask_b32 v10, v10, v15, vcc")
    a("v_add_u32 v15, 144, v15")
    a("v_cndmask_b32 v14, v14, v5, vcc")
    a("v_cndmask_b32 v11, v11, v15, vcc")
    a("s_mov_b32 s40, 0x3f803f80")
    ONES = 56
    for i in range(4):
        a(f"v_mov_b32 v{ONES+i}, s40")
    ACC, CSA, ST = 16, 36, 60
    QA = 176
    a("v_and_b32 v16, 7, v3")
    a("v_lshrrev_b32 v17, 3, v3")
    a("v_mul_u32_u24 v17, 9216, v17")
    a("v_lshl_add_u32 v18, v16, 4, v17")
    a("v_lshl_add_u32 v19, v16, 2, v17")
    a("v_add_u32 v19, 1024, v19")
    a("v_lshlrev_b32 v20, 2, v4")
    for t in range(5):
        for q in range(2):
            d = QA + 2 * t + q
            a(f"v_add_u32 v21, {16*t+2*q}, v20")
            a("v_mul_u32_u24 v22, 57, v21")
            a("v_lshrrev_b32 v22, 10, v22")
            a("v_mul_u32_u24 v23, 18, v22")
            a("v_sub_u32 v21, v21, v23")
            a("v_cmp_gt_u32 vcc, 16, v21")
            a("v_lshrrev_b32 v23, 3, v21")
            a(f"v_lshl_add_u32 v{d}, v23, 9, v18")
            a(f"v_lshl_add_u32 v{d}, v22, 7, v{d}")
            a("v_and_b32 v23, 7, v21")
            a(f"v_lshl_add_u32 v{d}, v23, 1, v{d}")
            a("v_lshl_add_u32 v23, v22, 5, v19")
            a(f"v_cndmask_b32 v{d}, v23, v{d}, vcc")
    for i in range(4):
        a(f"v_mov_b32 v{ST+i}, 0")
    for n in range(17):
        if n % 6 == 0:
            a(f"s_waitcnt vmcnt({max(17 - n - 5, 0)})")
        a(f"ds_read_b128 {vr(X+4*n)}, v7 offset:{1024*n}")
    a.stamp(2)
    for n in range(18):
        if n == 17:
            a("s_waitcnt vmcnt(0)")
        elif n % 4 == 0:
            a(f"s_waitcnt lgkmcnt({max(17 - n - 4, 0)})")
        for t in range(4):
            a(f"v_dot2_f32_bf16 v{ST+(t&1)}, v{X+4*n+t}, s40, v{ST+(t&1)}")
            a(f"v_dot2_f32_bf16 v{ST+2+(t&1)}, v{X+4*n+t}, v{X+4*n+t}, v{ST+2+(t&1)}")
    a("s_nop 2")
    a(f"v_add_f32 v{ST}, v{ST}, v{ST+1}")
    a(f"v_add_f32 v{ST+2}, v{ST+2}, v{ST+3}")
    cross_g_sum(a, ST, ST + 1)
    cross_g_sum(a, ST + 2, ST + 3)
    vMean, vRstd = 12, 13
    a(f"v_mul_f32 v{vMean}, {f32bits(-1.0/576)}, v{ST}")
    a(f"v_mov_b32 v{ST+1}, {f32bits(1e-5)}")
    a(f"v_fmac_f32 v{ST+1}, {f32bits(1.0/576)}, v{ST+2}")
    a(f"v_fma_f32 v{ST+1}, -v{vMean}, v{vMean}, v{ST+1}")
    a(f"v_max_f32 v{ST+1}, {f32bits(1e-5)}, v{ST+1}")
    a(f"v_rsq_f32 v{vRstd}, v{ST+1}")
    a("v_lshlrev_b32 v5, 4, v4")
    a(f"v_add_u32 v5, {CS}, v5")
    W = 136
    def reads(kk, t):
        wb = W + 20 * (kk & 1)
        vb = 8 if kk < 9 else 9
        o = (kk % 9) * 4608
        if t < 4:
            a(f"ds_read_b64_tr_b16 {vr(wb+4*t,2)}, v{vb} offset:{o+32*t}")
            a(f"ds_read_b64_tr_b16 {vr(wb+4*t+2,2)}, v{vb} offset:{o+32*t+144}")
        else:
            a(f"ds_read_b64_tr_b16 {vr(wb+16,2)}, v10")
            a(f"ds_read_b64_tr_b16 {vr(wb+18,2)}, v11")
            a("v_add_u32 v10, v10, v14")
            a("v_add_u32 v11, v11, v14")
    for kk in range(18):
        if kk % 6 == 0:
            a("s_barrier")
            if kk == 0: a.stamp(3)
            if kk == 12: a.stamp(4)
            for t in range(5): reads(kk, t)
        wb = W + 20 * (kk & 1)
        last = kk % 6 == 5
        for t in range(5):
            a(f"s_waitcnt lgkmcnt({8 - 2 * t if last else 8})")
            c = "0" if kk == 0 else vr(ACC + 4 * t)
            a(f"v_mfma_f32_16x16x32_bf16 {vr(ACC+4*t)}, {vr(wb+4*t)}, {vr(X+4*kk)}, {c}")
            if not last: reads(kk + 1, t)
    a.stamp(5)
    a("s_barrier")
    for t in range(5):
        a(f"ds_read_b128 {vr(CSA+4*t)}, v5 offset:{64*t}")
    a.stamp(6)
    a(f"v_mul_f32 v14, {f32bits(QSCALE)}, v{vRstd}")
    a("s_lshl_b32 s34, s32, 4")
    a("s_add_u32 s34, s34, s15")
    a(f"s_mul_i32 s34, s34, {ROW}")
    a(f"s_add_u32 s34, s34, {WS_Q}")
    a("v_cmp_gt_u32 vcc, 2, v4")
    a("s_lshr_b32 s35, s32, 1")
    a(f"s_mul_i32 s35, s35, {KVB}")
    a(f"v_cndmask_b32 v15, v{vRstd}, v14, vcc")
    a(f"s_add_u32 s35, s35, {WS_KV}")
    a("s_and_b32 s37, s32, 1")
    PK = X
    for t in (4, 0, 1, 2, 3):
        sc = 14 if t < 4 else 15
        if t == 4:
            a("s_waitcnt lgkmcnt(0)")
        for r in range(4):
            a(f"v_fmac_f32 v{ACC+4*t+r}, v{vMean}, v{CSA+4*t+r}")
        for r in range(4):
            a(f"v_mul_f32 v{ACC+4*t+r}, v{sc}, v{ACC+4*t+r}")
        a(f"v_cvt_pk_bf16_f32 v{PK+2*t}, v{ACC+4*t}, v{ACC+4*t+1}")
        a(f"v_cvt_pk_bf16_f32 v{PK+1+2*t}, v{ACC+4*t+2}, v{ACC+4*t+3}")
        if t < 4:
            for q in range(2):
                a(f"buffer_store_dword v{PK+2*t+q}, v{QA+2*t+q}, s[28:31], s34 offen")
    a("s_mov_b64 exec, vcc")
    for q in range(2):
        a(f"buffer_store_dword v{PK+8+q}, v{QA+8+q}, s[28:31], s34 offen")
    a("s_not_b64 exec, vcc")
    a("s_cmp_ge_u32 s15, 6")
    a("s_cbranch_scc1 K1_ones")
    a("s_cmp_ge_u32 s15, 3")
    a("s_cbranch_scc1 K1_v")
    a("s_lshl_b32 s38, s37, 4")
    a("v_add_u32 v8, s38, v3")
    a("s_cmp_eq_u32 s15, 2")
    a("s_cbranch_scc1 K1_k2")
    a("s_lshl_b32 s38, s15, 9")
    a("s_add_u32 s38, s38, s35")
    a("s_sub_u32 s38, s38, 16")
    a("v_lshlrev_b32 v9, 4, v8")
    a("v_lshl_add_u32 v9, v4, 3, v9")
    a(f"buffer_store_dwordx2 {vr(PK+8,2)}, v9, s[28:31], s38 offen")
    a.end(1, 28, 8)
    a.label("K1_k2")
    a("v_lshlrev_b32 v9, 4, v8")
    a("s_lshr_b32 s38, s32, 3")
    a("s_lshl_b32 s38, s38, 9")
    a("s_and_b32 s39, s32, 6")
    a("s_lshl_b32 s39, s39, 1")
    a("s_add_u32 s38, s38, s39")
    a(f"s_add_u32 s38, s38, {WS_KV + K2OFF}")
    a("s_mov_b32 s46, 0")
    a("s_mov_b32 s47, 0xffff0000")
    a("s_mov_b64 exec, s[46:47]")
    a(f"buffer_store_dword v{PK+9}, v9, s[28:31], s38 offen")
    a.end(1, 28, 8)
    a.label("K1_v")
    a("v_bfe_u32 v6, v3, 2, 1")
    a("v_mul_u32_u24 v6, 320, v6")
    a("v_and_b32 v7, 3, v3")
    a("v_lshl_add_u32 v6, v7, 1, v6")
    a("v_lshrrev_b32 v7, 3, v3")
    a("v_lshl_add_u32 v6, v7, 3, v6")
    a("v_lshl_add_u32 v6, v4, 6, v6")
    a("s_mul_i32 s38, s37, 640")
    a("s_add_u32 s38, s38, s35")
    a("s_sub_u32 s36, s15, 3")
    a("s_lshl_b32 s39, s36, 7")
    a("s_cmp_ge_u32 s36, 2")
    a("s_cselect_b32 s39, 160, s39")
    a("s_cselect_b32 s36, 16, 0")
    a("s_add_u32 s38, s38, s39")
    a("s_add_u32 s38, s38, 896")
    a("v_and_b32 v7, 1, v4")
    a("v_mul_u32_u24 v7, s36, v7")
    a("v_add_u32 v7, v7, v6")
    for r in range(4):
        op = "buffer_store_short" if r % 2 == 0 else "buffer_store_short_d16_hi"
        a(f"{op} v{PK + 8 + r // 2}, v{6 if r < 3 else 7}, s[28:31], s38 offen offset:{16*r}")
    a.end(1, 28, 8)
    a.label("K1_ones")
    a("s_mov_b64 exec, 15")
    a("s_cmp_eq_u32 s15, 6")
    a("s_cbranch_scc0 K1_flags")
    a("s_mul_i32 s38, s37, 640")
    a("s_add_u32 s38, s38, s35")
    a("v_lshrrev_b32 v6, 1, v2")
    a("v_mul_u32_u24 v6, 320, v6")
    a("v_and_b32 v7, 1, v2")
    a("v_lshl_add_u32 v6, v7, 5, v6")
    a(f"buffer_store_dwordx4 {vr(ONES)}, v6, s[28:31], s38 offen offset:{1024+17*16}")
    a.end(1, 28, 8)
    a.label("K1_flags")
    a.end(1, 28, 8)
    a.label("K1_loader")
    a("s_sub_u32 s50, s3, 4")
    def rowperm(v, t):
        a(f"v_and_b32 v{t}, 1, v{v}")
        a(f"v_lshlrev_b32 v{t}, 2, v{t}")
        a(f"v_bfe_u32 v{t+1}, v{v}, 1, 2")
        a(f"v_or_b32 v{t}, v{t}, v{t+1}")
        a(f"v_and_b32 v{v}, 0xf8, v{v}")
        a(f"v_or_b32 v{v}, v{v}, v{t}")
    for n, vd in ((0, 6), (1, 7), (2, 8)):
        if n < 2:
            a(f"s_lshl_b32 s34, s50, 6")
            a(f"s_add_u32 s34, s34, {256*n}")
            a(f"v_add_u32 v9, s34, v2")
        else:
            a(f"v_add_u32 v9, 512, v2")
        a("v_mul_u32_u24 v10, 7282, v9")
        a("v_lshrrev_b32 v10, 16, v10")
        a("v_mul_u32_u24 v11, 9, v10")
        a("v_sub_u32 v11, v9, v11")
        rowperm(10, 12)
        a(f"v_mul_u32_u24 v{vd}, {ROW}, v10")
        a(f"v_lshl_add_u32 v{vd}, v11, 4, v{vd}")
    a("v_mov_b32 v10, v2")
    rowperm(10, 12)
    a("v_mul_u32_u24 v9, 36, v10")
    a("v_bfe_u32 v12, v0, 2, 2")
    a("v_and_b32 v13, 3, v0")
    a("v_lshlrev_b32 v14, 3, v4")
    a("v_lshl_add_u32 v14, v12, 1, v14")
    a("v_mul_u32_u24 v15, 144, v14")
    a("v_lshl_add_u32 v15, v13, 3, v15")
    a("s_lshl_b32 s34, s50, 5")
    a("v_add_u32 v16, s34, v15")
    a(f"v_add_u32 v17, {9*4608}, v16")
    a("v_lshlrev_b32 v18, 4, v14")
    a("v_lshl_add_u32 v18, v13, 3, v18")
    a(f"v_add_u32 v18, {KVIMG-16}, v18")
    a("v_add_u32 v19, 16, v18")
    a("v_add_u32 v15, 128, v15")
    a("v_cmp_gt_u32 vcc, 2, v13")
    a("v_mov_b32 v20, 512")
    a("v_mov_b32 v12, 4608")
    a("v_cndmask_b32 v18, v18, v15, vcc")
    a("v_add_u32 v15, 144, v15")
    a("v_cndmask_b32 v20, v20, v12, vcc")
    a("v_cndmask_b32 v19, v19, v15, vcc")
    for i in range(4):
        a(f"v_mov_b32 v{24+i}, 0x3f803f80")
    a("v_lshlrev_b32 v21, 4, v4")
    a("s_lshl_b32 s34, s50, 6")
    a(f"s_add_u32 s34, s34, {CS}")
    a("v_add_u32 v21, s34, v21")
    a("s_waitcnt lgkmcnt(0)")
    a.srd(20, 6, 576 * ROW)
    a("s_cmp_lt_u32 s15, 3")
    a("s_cselect_b32 s24, s8, s10")
    a("s_cselect_b32 s25, s9, s11")
    a(f"s_mov_b32 s26, {576*36}")
    a("s_mov_b32 s27, 0x00020000")
    a.srd(28, 12, WS_SIZE)
    a("s_cselect_b32 s36, 0, 3")
    a("s_sub_u32 s36, s15, s36")
    a("s_lshl_b32 s37, s36, 4")
    a("s_cmp_ge_u32 s36, 2")
    a("s_cselect_b32 s37, 20, s37")
    a("s_mul_i32 s33, s15, 144")
    a("s_lshl_b32 s35, s50, 10")
    a(f"s_mov_b32 s38, {KVIMG}")
    a("s_mov_b32 s39, 8192")
    a.stamp(1)
    for v_ in (0, 1, 3):
        a(f"s_cmp_eq_u32 s50, {v_}")
        a(f"s_cbranch_scc1 K1_dma{v_}")
    def colsum(ch, both):
        F = 32
        for k in range(6):
            kk = 6 * ch + k
            vb = 16 if kk < 9 else 17
            o = (kk % 9) * 4608
            a(f"ds_read_b64_tr_b16 {vr(F+4*k,2)}, v{vb} offset:{o}")
            a(f"ds_read_b64_tr_b16 {vr(F+4*k+2,2)}, v{vb} offset:{o+144}")
        if both:
            for k in range(6):
                a(f"ds_read_b64_tr_b16 {vr(F+24+4*k,2)}, v18")
                a(f"ds_read_b64_tr_b16 {vr(F+24+4*k+2,2)}, v19")
                a("v_add_u32 v18, v18, v20")
                a("v_add_u32 v19, v19, v20")
        a("s_waitcnt lgkmcnt(0)")
        for k in range(6):
            c = "0" if (ch == 0 and k == 0) else "v[28:31]"
            a(f"v_mfma_f32_16x16x32_bf16 v[28:31], {vr(F+4*k)}, v[24:27], {c}")
            if both:
                c = "0" if (ch == 0 and k == 0) else "v[80:83]"
                a(f"v_mfma_f32_16x16x32_bf16 v[80:83], {vr(F+24+4*k)}, v[24:27], {c}")
    for variant in (2, 0, 1, 3):
        if variant != 2:
            a.label(f"K1_dma{variant}")
        per = 3 if variant in (0, 1) else 2
        if variant == 3:
            a("s_min_u32 s54, s2, 161")
            RL.params_wo(a, 54, 56, 64, 52)
            RL.voff_src(a, 84, 86, 56)
            RL.voff_dst(a, 85, 86)
            for it in RL.loads(88, 84, 56, 64, "raw"):
                a.emit(it)
            a("s_mov_b32 s68, 0x05040100")
            a("s_mov_b32 s69, 0x07060302")
        for blk in range(9):
            a(f"s_mul_i32 s34, s48, {64*ROW}")
            a("s_add_u32 s34, s34, s33")
            a("s_mov_b32 m0, s35")
            a("s_add_u32 s40, s35, 4096")
            a("buffer_load_dwordx4 v6, s[20:23], s34 offen lds")
            a("s_mov_b32 m0, s40")
            a("s_add_u32 s35, s35, 9216")
            a("buffer_load_dwordx4 v7, s[20:23], s34 offen lds")
            if variant == 0:
                a("s_mov_b32 m0, s39")
                a("s_add_u32 s39, s39, 9216")
                a("buffer_load_dwordx4 v8, s[20:23], s34 offen lds")
            if variant == 1:
                a(f"s_mul_i32 s34, s48, {64*36}")
                a("s_add_u32 s34, s34, s37")
                a("s_mov_b32 m0, s38")
                a("s_add_u32 s38, s38, 1024")
                a("buffer_load_dwordx4 v9, s[24:27], s34 offen lds")
            a("s_add_u32 s48, s48, 1")
            a("s_cmp_ge_u32 s48, 9")
            a("s_cselect_b32 s48, 0, s48")
            if blk == 5:
                a(f"s_waitcnt vmcnt({3*per})")
                a.stamp(2)
                a("s_barrier")
                a.stamp(3)
        a(f"s_waitcnt vmcnt({3*per})")
        a("s_barrier")
        colsum(0, variant == 2)
        a("s_waitcnt vmcnt(0)")
        a.stamp(4)
        a("s_barrier")
        colsum(1, variant == 2)
        colsum(2, variant == 2)
        a("s_mov_b32 s44, 0x00010001")
        a("s_mov_b32 s45, 0x00010001")
        a("s_nop 7")
        a("s_mov_b64 exec, s[44:45]")
        a("ds_write_b128 v21, v[28:31]")
        if variant == 2:
            a("ds_write_b128 v21, v[80:83] offset:128")
        a("s_mov_b64 exec, -1")
        a("s_waitcnt lgkmcnt(0)")
        a("s_barrier")
        if variant == 3:
            a("s_cmp_ge_u32 s2, 162")
            a("s_cbranch_scc1 K1_nowo")
            for it in RL.perms_stores(88, [104, 108, 112, 116], 85, 56, 28, 68, 69, "st"):
                a.emit(it)
            a.label("K1_nowo")
        a.end(1, 28, 8)
    a.label("K1_end")
    a("s_endpgm")
    return K, desc(K, 188), (256, 512, LDS)
```

```python
from common import *
import relayout as RL
QB   = 0
OB   = 8 * 1536
STAT = OB + 18 * 512
MX   = STAT + 1024
PS   = MX + 1024
XS   = PS + 2 * 8 * 2560
STG  = XS + 8 * 1184
LDS  = STG + 8 * 10240

KF = [20 + 4 * s for s in range(8)]
K2F = 52
VF = [[60 + 8 * s, 64 + 8 * s] for s in range(8)]
S = [124, 140]
P = 156
O = [164, 180]
QR = [196, 204]
WACC = 212
WA = 232
WB = 252
vL16, vV, vK2, vL4, vOBr, vT0, vT1, vT2, vT3 = 5, 6, 7, 8, 9, 10, 11, 12, 13
vLo = 14
vX = 15
vSt, vStr = 16, 17
vPw, vPw8, vPr, vPr8 = 16, 17, 18, 19
vOw = 1

def k2(a):
    K = "k2_kernel"
    a.begin(K)
    a("s_cmp_ge_u32 s2, 256")
    a("s_cbranch_scc1 K2_end")
    a.stamp(0); a.stampc(10)
    a(f"s_load_dwordx2 s[4:5], s[0:1], {A_WS}")
    a(f"s_load_dwordx2 s[6:7], s[0:1], {A_X}")
    a(f"s_load_dwordx2 s[80:81], s[0:1], {A_W1}")
    a(f"s_load_dwordx2 s[82:83], s[0:1], {A_W2}")
    a("v_lshrrev_b32 v1, 6, v0")
    a("v_and_b32 v2, 63, v0")
    a("v_readfirstlane_b32 s3, v1")
    a("s_mov_b32 s22, 0")
    a.label("K2_main")
    a("v_and_b32 v3, 31, v0")
    a("v_bfe_u32 v4, v0, 5, 1")
    a(f"v_lshlrev_b32 v{vL16}, 4, v2")
    a(f"v_lshlrev_b32 v{vL4}, 2, v2")
    a(f"s_mul_i32 s16, s2, {8*ROW}")
    a(f"s_add_u32 s16, s16, {WS_Q}")
    a(f"s_mul_i32 s54, s3, {ROW}")
    a("s_add_u32 s54, s54, s16")
    a(f"v_lshl_or_b32 v{vT0}, v4, 30, v{vL4}")
    a(f"v_mul_u32_u24 v{vV}, 320, v4")
    a(f"v_lshl_add_u32 v{vV}, v3, 4, v{vV}")
    a(f"v_add_u32 v{vV}, 1024, v{vV}")
    a(f"v_subrev_u32 v18, 32, v{vV}")
    a(f"v_and_b32 v19, 30, v3")
    a("v_cmp_eq_u32 vcc, 20, v19")
    a("v_cmp_gt_u32 s[20:21], 18, v3")
    a(f"v_mov_b32 v19, {OOB}")
    a(f"v_cndmask_b32 v18, v19, v18, vcc")
    a(f"v_cndmask_b32_e64 v{vV}, v18, v{vV}, s[20:21]")
    a(f"v_lshl_or_b32 v{vK2}, v4, 30, v{vL16}")
    a("v_cmp_eq_u32 s[20:21], 0, v4")
    a("s_lshr_b32 s18, s2, 3")
    a("s_lshl_b32 s19, s3, 1")
    a("s_add_u32 s18, s18, s19")
    a("s_and_b32 s18, s18, 15")
    a("s_add_u32 s19, s18, 1")
    a("s_and_b32 s19, s19, 15")
    for s in range(8):
        a(f"s_mul_i32 s{24+s}, s{18 + s // 4}, {4*KVB}")
        if s % 4:
            a(f"s_add_u32 s{24+s}, s{24+s}, {(s % 4) * KVB}")
    for k in (18, 19):
        a(f"s_lshl_b32 s{k}, s{k}, 9")
        a(f"s_add_u32 s{k}, s{k}, {K2OFF}")
    a("s_waitcnt lgkmcnt(0)")
    a.srd(8, 4, WS_SIZE)
    a.srd(12, 4, KV_BYTES, WS_KV)
    def ldK(s):
        L = [("vm", ("k", s), f"buffer_load_dwordx4 {vr(KF[s])}, v{vL16}, s[12:15], s{24+s} offen")]
        if s % 4 == 0:
            L.append(("vm", ("k", s), f"buffer_load_dwordx4 {vr(K2F+s)}, v{vK2}, s[12:15], s{18 + s // 4} offen"))
        return L
    def fixK2(b):
        return [f"v_cndmask_b32_e64 v{K2F+b+i}, v{vT2}, v{K2F+b+i}, s[20:21]" for i in range(4)]
    def ldV(s):
        return [("vm", ("v", s), f"buffer_load_dwordx4 {vr(VF[s][0])}, v{vV}, s[12:15], s{24+s} offen"),
                ("vm", ("v", s), f"buffer_load_dwordx4 {vr(VF[s][1])}, v{vV}, s[12:15], s{24+s} offen offset:640")]
    a.vm("q0", f"buffer_load_dwordx4 {vr(QR[0])}, v{vL16}, s[8:11], s16 offen")
    a.vm("q0", f"buffer_load_dword v{QR[0]+4}, v{vT0}, s[8:11], s16 offen offset:1024")
    for it in ldK(0) + ldK(1) + ldV(0):
        a.emit(it)
    a("s_mul_i32 s17, s3, 1536")
    a("s_cmp_eq_u32 s22, 0")
    a(f"s_cselect_b32 s17, s17, {XS}")
    a("s_mov_b32 m0, s17")
    a(f"v_add_u32 v{vPr}, s17, v{vL4}")
    a.vm("q", f"buffer_load_dwordx4 v{vL16}, s[8:11], s54 offen lds")
    a.vm("q", f"buffer_load_dword v{vT0}, s[8:11], s54 offen offset:1024 lds")
    a(f"v_mov_b32 v{QR[0]+5}, 0")
    a(f"ds_write_b32 v{vPr}, v{QR[0]+5} offset:1280")
    a.srd(32, 4, WOF_BYTES, WS_WOF)
    a.srd(36, 6, 2048 * ROW)
    a(f"v_bfe_u32 v{vT0}, v0, 4, 2")
    a(f"v_and_b32 v{vT3}, 7, v0")
    a(f"v_lshlrev_b32 v{vOBr}, 7, v{vT0}")
    a(f"v_lshl_add_u32 v{vOBr}, v{vT3}, 4, v{vOBr}")
    a(f"v_add_u32 v{vOBr}, {OB}, v{vOBr}")
    a(f"v_bfe_u32 v{vT1}, v0, 3, 2")
    a(f"v_lshl_add_u32 v{vT1}, v{vT1}, 1, v4")
    a(f"v_lshlrev_b32 v{vLo}, 4, v{vT3}")
    a(f"v_lshl_add_u32 v{vLo}, v{vT1}, 1, v{vLo}")
    a(f"v_add_u32 v{vLo}, {OB+8192}, v{vLo}")
    a(f"v_mul_u32_u24 v{vX}, 1184, v{vT3}")
    a(f"v_lshl_add_u32 v{vX}, v{vT0}, 3, v{vX}")
    a("s_lshl_b32 s17, s3, 5")
    a(f"s_add_u32 s17, s17, {XS}")
    a(f"v_add_u32 v{vX}, s17, v{vX}")
    a("s_mul_i32 s55, s3, 10240")
    a(f"s_add_u32 s55, s55, {STG}")
    a("s_mul_i32 s17, s3, 2560")
    a(f"s_add_u32 s17, s17, {PS}")
    a(f"v_add_u32 v{vPw}, s17, v{vL16}")
    a(f"v_lshlrev_b32 v{vPr8}, 3, v2")
    a(f"v_add_u32 v{vPw8}, s17, v{vPr8}")
    a(f"v_add_u32 v{vPr8}, {PS}, v{vPr8}")
    a("s_and_b32 s52, s3, 3")
    a("s_lshr_b32 s53, s3, 2")
    a("s_lshr_b32 s17, s52, 1")
    a("s_lshl_b32 s17, s17, 10")
    a("s_and_b32 s41, s52, 1")
    a("s_lshl_b32 s41, s41, 3")
    a("s_add_u32 s17, s17, s41")
    a(f"s_add_u32 s17, s17, {PS}")
    a(f"v_add_u32 v{vPr}, s17, v{vL16}")
    a("s_lshl_b32 s17, s52, 2")
    a(f"v_add_u32 v{vOw}, s17, v{vL16}")
    a("s_mov_b32 s23, 0")
    a(f"s_mul_i32 s40, s3, {18*1024}")
    a(f"v_mov_b32 v{QR[0]+6}, 0")
    a(f"v_mov_b32 v{vT2}, 0x3f803f80")
    def rdQ(p):
        o = (QB + 1536 * p + 1024) // 256
        return [f"ds_read_b128 {vr(QR[p&1])}, v{vL16} offset:{QB+1536*p}",
                f"ds_read2st64_b32 {vr(QR[p&1]+4,2)}, v{vL4} offset0:{o} offset1:{o+1}",
                f"ds_read2st64_b32 {vr(QR[p&1]+6,2)}, v{vL4} offset0:{o+1} offset1:{o}"]
    a.stamp(1)
    a.waitvm(("k", 0))
    for it in fixK2(0): a(it)
    a(f"v_mov_b32 v{QR[0]+7}, v{QR[0]+4}")
    a("s_cmp_eq_u32 s22, 0")
    a("s_cbranch_scc1 K2_go")
    for it in rdQ(0):
        a(it)
    a("s_waitcnt lgkmcnt(0)")
    a.label("K2_go")
    def qk1(t):
        p, s = divmod(t, 8)
        return f"v_mfma_f32_32x32x16_bf16 {vr(S[t&1],16)}, {vr(KF[s])}, {vr(QR[p&1])}, 0"
    def qk2(t):
        p, s = divmod(t, 8)
        return f"v_mfma_f32_32x32x8_bf16 {vr(S[t&1],16)}, {vr(K2F+(s&~1),2)}, {vr(QR[p&1]+4+2*(s&1),2)}, {vr(S[t&1],16)}"
    def pv(t, half):
        p, s = divmod(t, 8)
        c = "0" if (s == 0 and half == 0) else vr(O[p & 1], 16)
        return f"v_mfma_f32_32x32x16_bf16 {vr(O[p&1],16)}, {vr(VF[s][half])}, {vr(P+4*half)}, {c}"
    def ex(t, i):
        return f"v_exp_f32 v{S[t&1]+i}, v{S[t&1]+i}"
    def cv(t, i):
        return f"v_cvt_pk_bf16_f32 v{P+i}, v{S[t&1]+2*i}, v{S[t&1]+2*i+1}"
    a.stamp(2)
    a(qk1(0)); a(qk2(0))
    for it in ldK(2) + ldK(3) + ldV(1):
        a.emit(it)
    a("s_and_b32 s84, s2, 7")
    a("s_andn2_b32 s85, s2, 7")
    a("s_add_u32 s85, s85, s3")
    RL.params_w12(a, 84, 85, 56, 64, 80, 82)
    a("s_lshr_b32 s85, s2, 3")
    a("s_lshl_b32 s17, s85, 1")
    a("s_add_u32 s17, s17, s3")
    a("s_add_u32 s17, s17, 256")
    a("s_add_u32 s85, s85, 320")
    a("s_cmp_lt_u32 s3, 2")
    a("s_cselect_b32 s85, s17, s85")
    a("s_cmp_gt_u32 s3, 2")
    a("s_cselect_b32 s85, 999, s85")
    RL.params_w12(a, 84, 85, 68, 76, 80, 82)

    def e1(p):
        o = O[p & 1]; b = (p & 1) * 20480
        return [f"ds_write_b128 v{vPw}, {vr(o)} offset:{b}", f"ds_write_b128 v{vPw}, {vr(o+4)} offset:{b+1024}",
                f"ds_write_b64 v{vPw8}, {vr(o+8,2)} offset:{b+2048}"]
    def guard(p, tag, body):
        return [f"s_cmp_lg_u32 s53, {p & 1}", f"s_cbranch_scc1 K2_{tag}"] + body + [("label", f"K2_{tag}")]
    def rdP(p, half):
        o = O[p & 1]; b = (p & 1) * 20480 + half * 4 * 2560
        L = []
        for k in range(4):
            L.append(f"ds_read_b64 {vr(o+4*k,2)}, v{vPr} offset:{b+2560*k}")
            L.append(f"ds_read_b64 {vr(o+4*k+2,2)}, v{vPr8} offset:{b+2560*k+2048}")
        return L
    def e2a(p):
        return guard(p, f"e2a{p}", rdP(p, 0))
    def e2b(p):
        o = O[p & 1]
        L = ["s_waitcnt lgkmcnt(0)"]
        for q in range(2):
            L.append(f"v_pk_add_f32 {vr(o+2*q,2)}, {vr(o+2*q,2)}, {vr(o+4+2*q,2)}")
            L.append(f"v_pk_add_f32 {vr(o+8+2*q,2)}, {vr(o+8+2*q,2)}, {vr(o+12+2*q,2)}")
        for q in range(2):
            L.append(f"v_pk_add_f32 {vr(vT0+2*q,2)}, {vr(o+2*q,2)}, {vr(o+8+2*q,2)}")
        return guard(p, f"e2b{p}", L + rdP(p, 1))
    def e2c(p):
        o = O[p & 1]
        L = ["s_waitcnt lgkmcnt(0)"]
        for q in (1, 0):
            L.append(f"v_pk_add_f32 {vr(o+2*q,2)}, {vr(o+2*q,2)}, {vr(o+4+2*q,2)}")
            L.append(f"v_pk_add_f32 {vr(o+8+2*q,2)}, {vr(o+8+2*q,2)}, {vr(o+12+2*q,2)}")
            L.append(f"v_pk_add_f32 {vr(vT0+2*q,2)}, {vr(vT0+2*q,2)}, {vr(o+2*q,2)}")
            L.append(f"v_pk_add_f32 {vr(vT0+2*q,2)}, {vr(vT0+2*q,2)}, {vr(o+8+2*q,2)}")
            if q == 1:
                L.append(f"v_rcp_f32 v{o+6}, v{vT3}")
        L.append(f"v_subrev_u32 v{o+7}, {f32bits(2.0**-60)}, v{vT3}")
        L.append(f"v_pk_mul_f32 {vr(vT0,2)}, {vr(vT0,2)}, {vr(o+6,2)} op_sel_hi:[1,0]")
        L.append(f"v_cmp_lt_u32 vcc, {120 << 23}, v{o+7}")
        L.append(f"v_mul_f32 v{vT2}, v{o+6}, v{vT2}")
        L.append(f"v_cvt_pk_bf16_f32 v{vT0}, v{vT0}, v{vT1}")
        L.append(f"v_cvt_pk_bf16_f32 v{vT2}, v{vT2}, v{vT2}")
        L.append(f"ds_write_b32 v{vOw}, v{vT0} offset:{OB+1024*p}")
        L.append(f"ds_write_b16 v{vLo}, v{vT2} offset:{128*p}")
        L.append(f"s_or_b32 s23, s23, vcc_lo")
        L.append(f"s_or_b32 s23, s23, vcc_hi")
        return guard(p, f"e2c{p}", L)
    def ldWA(ks, base):
        L = []
        for t in range(5):
            L.append(f"s_add_u32 s41, s40, {t*8*18*1024 + ks*1024}")
            L.append(("vm", ("wa", ks), f"buffer_load_dwordx4 {vr(base[t])}, v{vL16}, s[32:35], s41 offen"))
        return L
    def rdWB(ks, wb):
        return [f"ds_read_b128 {vr(wb)}, v{vOBr} offset:{512*ks}"]
    first_wo = [True]
    def woM(ks, base, wb):
        L = []
        for t in range(5):
            c = "0" if first_wo[0] else vr(WACC + 4 * t)
            L.append(f"v_mfma_f32_16x16x32_bf16 {vr(WACC+4*t)}, {vr(base[t])}, {vr(wb)}, {c}")
        first_wo[0] = False
        return L
    WAb = [WA + 4 * t for t in range(5)]
    WA2 = [VF[0][0], VF[0][1], VF[1][0], VF[1][1], KF[0]]
    WA3 = [VF[2][0], VF[2][1], VF[3][0], VF[3][1], KF[1]]
    WA4 = [VF[4][0], VF[4][1], KF[2], KF[3], KF[4]]
    XR = VF[5][0]

    uses = {}
    order = []
    for tu, ks in ((22, 0), (26, 1), (28, 2), (30, 3), (35, 4), (38, 5), (42, 6), (44, 7), (46, 16), (51, 8), (54, 9), (58, 10), (60, 11)):
        uses[tu] = (ks, WAb)
        order.append((tu, ks))
    side_ld = {}
    side_ld[20] = ldWA(order[0][1], WAb)
    extra = {}
    def addx(t, groups):
        extra.setdefault(t, []).extend(groups)
    vSrc, vTr = vV, 4
    def rl_init(S_, vSrc):
        return [f"v_lshrrev_b32 v{vSrc}, 3, v2", f"v_mul_lo_u32 v{vSrc}, v{vSrc}, s{S_+2}", f"v_and_b32 v{vK2}, 7, v2",
                f"v_lshl_add_u32 v{vSrc}, v{vK2}, 4, v{vSrc}", f"s_lshl_b32 s{S_+6}, s{S_+2}, 3"]
    def rl_dma(S_, R_, ldsoff, tag, n, vSrc):
        ld = f"buffer_load_dwordx4 v{vSrc}, s[{R_}:{R_+3}], s{S_+1} offen lds"
        return [f"s_add_u32 s41, s55, {ldsoff+1024*n}", "s_mov_b32 m0, s41", "s_nop 0",
                ("vm", tag, ld) if tag else ld, f"s_add_u32 s{S_+1}, s{S_+1}, s{S_+6}"]
    def rl_rd(ldsoff, q, d):
        return [f"ds_read_b64_tr_b16 {vr(d,2)}, v{vTr} offset:{ldsoff+32*q}",
                f"ds_read_b64_tr_b16 {vr(d+2,2)}, v{vTr} offset:{ldsoff+32*q+2048}"]
    def rl_st(S_, tag, d):
        st = f"buffer_store_dwordx4 {vr(d)}, v{vL16}, s[8:11], s{S_+5} offen{Opt.WST}"
        return ["s_waitcnt lgkmcnt(0)", ("vm", tag, st) if tag else st, f"s_add_u32 s{S_+5}, s{S_+5}, 18432"]
    def opt(tag, body):
        return ["s_cmp_ge_u32 s85, 324", f"s_cbranch_scc1 K2_{tag}"] + body + [("label", f"K2_{tag}")]
    if Opt.FOLD:
        for n, t_ in enumerate((6, 8, 11, 13)):
            addx(t_, [[], (rl_init(56, vV) if n == 0 else []) + rl_dma(56, 64, 0, "rl", n, vV)])
        for n, t_ in enumerate((5, 7, 10, 12)):
            addx(t_, [[], (rl_init(68, WACC) if n == 0 else []) + opt(f"rlb{n}", rl_dma(68, 76, 4096, None, n, WACC))])
        addx(15, [[f"v_lshrrev_b32 v{vTr}, 2, v2", f"v_lshlrev_b32 v{vTr}, 7, v{vTr}", f"v_and_b32 v{vK2}, 3, v2",
                   f"v_lshl_add_u32 v{vTr}, v{vK2}, 3, v{vTr}", f"v_add_u32 v{vTr}, s55, v{vTr}"]])
        addx(18, [[("wait", "rl")] + rl_rd(0, 0, WACC + 4)] + [rl_rd(0, q, WACC + 4 + 4 * q) for q in range(1, 4)])
        addx(19, [rl_st(56, "rs", WACC + 4 + 4 * q) for q in range(4)])
        addx(20, [[], opt("rlr", [x for q in range(4) for x in rl_rd(4096, q, WACC + 4 + 4 * q)])])
        addx(21, [opt(f"rls{q}", rl_st(68, None, WACC + 4 + 4 * q)) for q in range(4)])
    addx(37, [[f"s_lshl_b32 s41, s2, 3", "s_add_u32 s41, s41, s3", f"s_mul_i32 s41, s41, {ROW}", "s_mul_i32 s42, s3, 1184", f"s_add_u32 s42, s42, {XS}",
              "s_mov_b32 m0, s42", "s_nop 0", ("vm", "x", f"buffer_load_dwordx4 v{vL16}, s[36:39], s41 offen lds")],
             ["s_mov_b64 exec, 0xff", ("vm", "x", f"buffer_load_dwordx4 v{vL16}, s[36:39], s41 offen offset:1024 lds"), "s_mov_b64 exec, -1"]])
    for n, t_ in enumerate((15, 16, 17)):
        addx(t_, [["s_andn2_b32 s41, s2, 7", "s_add_u32 s41, s41, s3", "s_mul_i32 s41, s41, 2624", f"s_add_u32 s41, s41, {1024*n}",
                   "s_add_u32 s42, s55, 9216", "s_mov_b32 m0, s42", "s_nop 0",
                   ("vm", "pf", f"buffer_load_dwordx4 v{vL16}, s[32:35], s41 offen lds")]])
    addx(8, [["s_lshl_b32 s43, s2, 3", "s_add_u32 s43, s43, s3", "s_mul_i32 s43, s43, 9216", f"s_add_u32 s43, s43, {WS_PART}"]])
    for k, t_ in enumerate((24, 25, 32, 33, 34, 40, 41, 48, 49)):
        if t_ in (24, 32, 40, 48):
            addx(t_, [[f"v_mov_b32 v{vT0+i}, {POISON}" for i in range(4)]])
        addx(t_, [[("vm", "po", f"buffer_store_dwordx4 {vr(vT0)}, v{vL16}, s[8:11], s43 offen sc1"), "s_add_u32 s43, s43, 1024"]])
    for n in range(10):
        ks, t_ = 14 + n // 5, n % 5
        addx((37, 50, 50, 53, 53)[n // 2],
             [[f"s_add_u32 s42, s55, {1024*n}", "s_mov_b32 m0, s42", f"s_add_u32 s41, s40, {t_*8*18*1024 + ks*1024}",
               ("vm", "stg", f"buffer_load_dwordx4 v{vL16}, s[32:35], s41 offen lds")]])
    addx(62, [[f"v_add_u32 v{vK2}, s55, v{vL16}"]] + [[f"ds_read_b128 {vr(WAb[n])}, v{vK2} offset:{1024*n}"] for n in range(5)])
    addx(63, [[f"ds_read_b128 {vr(WA4[n])}, v{vK2} offset:{1024*(5+n)}"] for n in range(5)])
    for (tu, ks), (tn, kn) in zip(order[:-1], order[1:]):
        side_ld[tu + 1] = ldWA(kn, WAb)
    side_ld[8 * 7 + 3] = side_ld[8 * 7 + 3] + ldWA(12, WA2)
    side_ld[8 * 7 + 5] = ldWA(13, WA3)
    side_ld[8 * 7 + 7] = ldWA(17, WA2)
    uses[8 * 7 + 6] = (12, WA2)
    uses[8 * 7 + 7] = (13, WA3)
    PRIO = {2: 3, 5: 2, 0: 1, 1: 0}

    for t in range(64):
        p, s = divmod(t, 8)
        m = [ex(t, 0), ex(t, 1)]
        m += [pv(t - 1, 1)] if t > 0 else ["s_nop 0"]
        m += [ex(t, i) for i in range(2, 7)]
        m += [qk1(t + 1)] if t < 63 else ["s_nop 0"]
        m += [ex(t, 7)] + [cv(t, i) for i in range(4)] + [ex(t, 8), ex(t, 9)]
        m += [qk2(t + 1)] if t < 63 else ["s_nop 0"]
        m += [ex(t, i) for i in range(10, 15)]
        m += [pv(t, 0)]
        m += [ex(t, 15)] + [cv(t, i) for i in range(4, 8)]
        sd = {i: [] for i in range(29)}
        sd[0].append("s_nop 0")
        if Opt.DBG:
            sd[0].append("s_memtime s[86:87]")
            sd[27] += ["s_waitcnt lgkmcnt(0)", f"v_writelane_b32 v3, s86, {t}"]
        if p == 0:
            if t < 63 and s + 1 < 8:
                sd[8].append(("wait", ("k", s + 1)))
                if s == 3:
                    sd[8] += fixK2(4)
            sd[22].append(("wait", ("v", s)))
            L = []
            if s % 2 == 0 and s + 4 < 8:
                L += ldK(s + 4) + ldK(s + 5)
            if s + 2 < 8:
                L += ldV(s + 2)
            for i, it in enumerate(L):
                sd[1 + i * 26 // len(L)].append(it)
            if s == 3:
                sd[28] += ["s_waitcnt lgkmcnt(0)", "s_barrier"]
        if s == 4 and p < 7:
            sd[3] += rdQ(p + 1)
        if s == 7 and p < 7:
            sd[8].append("s_waitcnt lgkmcnt(0)")
        if p >= 1:
            if s == 0:
                for i, it in enumerate(e1(p - 1)):
                    sd[17 + 4 * i].append(it)
            if s == 1:
                sd[28] += ["s_waitcnt lgkmcnt(0)", "s_barrier"] + e2a(p - 1)
                if p in (1, 4, 7):
                    sd[28].append(("stamp", {1: 3, 4: 4, 7: 5}[p]))
            if s == 3:
                sd[0] += e2b(p - 1)
            if s == 4:
                sd[0] += e2c(p - 1)
        if p == 7 and s == 5:
            sd[0] += ["s_waitcnt lgkmcnt(0)", "s_barrier"]
        if t + 1 in uses:
            sd[28 if s == 1 else 24] += rdWB(uses[t + 1][0], WB)
        if t in uses:
            ks, base = uses[t]
            sd[6] += [("wait", ("wa", ks), " lgkmcnt(0)")]
            for pos, it in zip((6, 13, 14, 20, 21), woM(ks, base, WB)):
                sd[pos].append(it)
        if t in side_ld:
            L = side_ld[t]
            n = len(L) // 2
            lo = 22 if (t in uses and uses[t][1][0] in [int(x[2].split("v[")[1].split(":")[0]) for x in L[1::2]]) else 1
            for i in range(n):
                pos = lo + i * (27 - lo) // n
                sd[pos] += L[2 * i:2 * i + 2]
        if t in extra:
            G_ = extra[t]
            for i, g_ in enumerate(G_):
                sd[3 + i * 24 // len(G_)] += g_
        pr = PRIO.get(s)
        if p == 0: pr = {0: 3, 2: 1, 3: 0, 4: 3, 6: 2}.get(s)
        if p == 7: pr = {2: 3, 3: 2, 4: 1, 5: 3, 6: 2, 7: 1, 0: 1, 1: 0}.get(s)
        if pr is not None:
            sd[0].insert(0, f"s_setprio {pr}")
        for it in weave(m, sd):
            a.emit(it)
    a("s_nop 1")
    a(pv(63, 1))
    XR = S[0]
    for t in range(5):
        a(f"ds_read_b64 {vr(XR+2*t,2)}, v{vX} offset:{256*t}")
    a("s_nop 4")
    a("s_nop 2")
    for it in e1(7):
        a(it)
    a("s_lshr_b32 s44, s2, 3")
    a("s_bfe_u32 s45, s2, 0x20001")
    a("s_and_b32 s46, s2, 1")
    a("s_lshl_b32 s46, s46, 8")
    a("s_mul_i32 s47, s44, 73728")
    a("s_lshr_b32 s48, s3, 1")
    a("s_lshl_b32 s48, s48, 12")
    a("s_add_u32 s47, s47, s48")
    a("s_lshl_b32 s48, s45, 10")
    a("s_add_u32 s47, s47, s48")
    a("s_and_b32 s48, s3, 1")
    a("s_lshl_b32 s48, s48, 9")
    a("s_add_u32 s47, s47, s48")
    a("s_add_u32 s47, s47, s46")
    a(f"s_add_u32 s47, s47, {WS_XN}")
    a("s_mul_i32 s49, s44, 36")
    a("s_add_u32 s49, s49, s3")
    a("s_lshl_b32 s49, s49, 11")
    a("s_lshl_b32 s48, s45, 9")
    a("s_add_u32 s49, s49, s48")
    a("s_add_u32 s49, s49, s46")
    a(f"s_add_u32 s49, s49, {WS_HRES}")
    a("s_waitcnt lgkmcnt(0)")
    a("s_barrier")
    a.stamp(6)
    for it in e2a(7) + e2b(7) + e2c(7):
        a.emit(it)
    a("s_nop 0")
    a(f"v_bfe_u32 v{vPr}, v0, 4, 2")
    a(f"v_and_b32 v{vPr8}, 7, v0")
    a(f"v_lshlrev_b32 v{vSt}, 6, v{vPr}")
    a(f"v_lshl_add_u32 v{vSt}, v{vPr8}, 3, v{vSt}")
    a("s_waitcnt lgkmcnt(0)")
    a(f"v_and_b32 v{vT1}, 8, v0")
    a(f"v_cmp_eq_u32 s[50:51], 0, v{vT1}")
    a(f"v_mov_b32 v{vT1}, s47")
    a(f"v_mov_b32 v{vT2}, s49")
    a(f"v_cndmask_b32_e64 v{vT1}, v{vT1}, v{vT2}, s[50:51]")
    a(f"v_add_u32 v{vSt}, v{vSt}, v{vT1}")
    a("s_waitcnt lgkmcnt(0)")
    a("s_barrier")
    WBs = [WB, P, P + 4]
    for ks, wb in zip((14, 15, 17), WBs):
        a(rdWB(ks, wb)[0])
    XF = S[1]
    xf = [XF + i for i in range(16)] + [O[0] + i for i in range(4)]
    a("s_cmp_lt_u32 s3, 4")
    a("s_cselect_b32 s17, -1, 0")
    a(f"v_and_b32 v{XR+8}, s17, v{XR+8}")
    a(f"v_and_b32 v{XR+9}, s17, v{XR+9}")
    for t in range(5):
        for q in range(2):
            a(f"v_lshlrev_b32 v{xf[4*t+2*q]}, 16, v{XR+2*t+q}")
            a(f"v_and_b32 v{xf[4*t+2*q+1]}, 0xffff0000, v{XR+2*t+q}")
    a("s_waitcnt vmcnt(0) lgkmcnt(0)")
    for ks, base, wb in ((14, WAb, WBs[0]), (15, WA4, WBs[1]), (17, WA2, WBs[2])):
        for it in woM(ks, base, wb):
            a(it)
    a(f"v_lshlrev_b32 v{vT3}, 3, v{vPr8}")
    a(f"v_add_u32 v{vT3}, {STAT}, v{vT3}")
    a("s_lshl_b32 s17, s3, 6")
    a(f"v_add_u32 v{vT2}, s17, v{vT3}")
    a("s_nop 0")
    SS = O[0] + 4
    for t in range(5):
        for q in range(2):
            r = WACC + 4 * t + 2 * q
            a(f"v_pk_add_f32 {vr(r,2)}, {vr(r,2)}, {vr(xf[4*t+2*q],2)}")
    for i in range(10):
        r = WACC + 2 * i
        if i == 0:
            a(f"v_pk_mul_f32 {vr(SS+2,2)}, {vr(r,2)}, {vr(r,2)}")
        elif i == 1:
            a(f"v_pk_add_f32 {vr(SS,2)}, {vr(WACC,2)}, {vr(r,2)}")
            a(f"v_pk_fma_f32 {vr(SS+2,2)}, {vr(r,2)}, {vr(r,2)}, {vr(SS+2,2)}")
        else:
            a(f"v_pk_add_f32 {vr(SS,2)}, {vr(SS,2)}, {vr(r,2)}")
            a(f"v_pk_fma_f32 {vr(SS+2,2)}, {vr(r,2)}, {vr(r,2)}, {vr(SS+2,2)}")
    a(f"v_add_f32 v{SS}, v{SS}, v{SS+1}")
    a(f"v_add_f32 v{SS+1}, v{SS+2}, v{SS+3}")
    HP = S[0]
    hp = [f"v_cvt_pk_bf16_f32 v{HP+i}, v{WACC+2*i}, v{WACC+2*i+1}" for i in range(10)]
    for sw in ("v_permlane16_swap_b32", "v_permlane32_swap_b32"):
        a(f"v_mov_b32 v{SS+2}, v{SS}")
        a(f"v_mov_b32 v{SS+3}, v{SS+1}")
        a(hp.pop(0)); a(hp.pop(0))
        a(f"{sw} v{SS}, v{SS+2}")
        a(f"{sw} v{SS+1}, v{SS+3}")
        a(hp.pop(0)); a(hp.pop(0))
        a(f"v_pk_add_f32 {vr(SS,2)}, {vr(SS,2)}, {vr(SS+2,2)}")
    a("s_lshl_b32 s17, s3, 2")
    a(f"s_add_u32 s17, s17, {STAT+512}")
    a(f"v_mov_b32 v{vT0}, s17")
    a(f"v_mov_b32 v{vT1}, s23")
    a("s_mov_b64 exec, 0xff")
    a(f"ds_write_b64 v{vT2}, {vr(SS,2)}")
    a(f"ds_write_b32 v{vT0}, v{vT1}")
    a("s_mov_b64 exec, -1")
    for x_ in hp: a(x_)
    a(f"v_lshlrev_b32 v{vT0}, 2, v{vPr8}")
    a("s_waitcnt lgkmcnt(0)")
    a("s_barrier")
    a.stamp(7)
    RS = S[1]
    for k in range(8):
        a(f"ds_read_b64 {vr(RS+2*k,2)}, v{vT3} offset:{64*k}")
    a(f"ds_read_b32 v{SS+2}, v{vT0} offset:{STAT+512}")
    a("s_waitcnt lgkmcnt(0)")
    a(f"v_cmp_ne_u32 vcc, 0, v{SS+2}")
    for k in range(4):
        a(f"v_pk_add_f32 {vr(RS+4*k,2)}, {vr(RS+4*k,2)}, {vr(RS+4*k+2,2)}")
    a(f"v_pk_add_f32 {vr(RS,2)}, {vr(RS,2)}, {vr(RS+4,2)}")
    a(f"v_pk_add_f32 {vr(RS+8,2)}, {vr(RS+8,2)}, {vr(RS+12,2)}")
    a(f"v_pk_add_f32 {vr(SS,2)}, {vr(RS,2)}, {vr(RS+8,2)}")
    a("s_mov_b32 s23, vcc_lo")
    a(f"v_mul_f32 v{SS}, {f32bits(-1.0/576)}, v{SS}")
    a(f"v_mov_b32 v{SS+2}, {f32bits(1e-5)}")
    a(f"v_fmac_f32 v{SS+2}, {f32bits(1.0/576)}, v{SS+1}")
    a(f"v_fma_f32 v{SS+2}, -v{SS}, v{SS}, v{SS+2}")
    a(f"v_max_f32 v{SS+2}, {f32bits(1e-5)}, v{SS+2}")
    a(f"v_rsq_f32 v{SS+2}, v{SS+2}")
    a("s_cmp_lg_u32 s22, 0")
    a("s_cselect_b32 s23, 0, s23")
    a("s_cmp_lg_u32 s23, 0")
    a("s_cbranch_scc1 K2_slow")
    a(f"v_mul_f32 v{SS}, v{SS}, v{SS+2}")
    for t in range(5):
        for q in range(2):
            r = WACC + 4 * t + 2 * q
            a(f"v_pk_fma_f32 {vr(r,2)}, {vr(r,2)}, {vr(SS+2,2)}, {vr(SS,2)} op_sel_hi:[1,0,0]")
        for q in range(2):
            r = WACC + 4 * t + 2 * q
            a(f"v_cvt_pk_bf16_f32 v{r}, v{r}, v{r+1}")
            a(f"v_cndmask_b32_e64 v{HP+2*t+q}, v{r}, v{HP+2*t+q}, s[50:51]")
        if t == 4:
            a("s_cmp_ge_u32 s3, 4")
            a("s_cbranch_scc1 K2_fin")
        a(f"s_mov_b32 s17, {16384*t}")
        a(f"buffer_store_dwordx2 {vr(HP+2*t,2)}, v{vSt}, s[8:11], s17 offen{Opt.XST}")
    a.label("K2_fin")
    if Opt.DBG:
        a("s_lshl_b32 s100, s2, 3")
        a("s_add_u32 s100, s100, s3")
        a("s_lshl_b32 s100, s100, 8")
        a(f"s_add_u32 s100, s100, {WS_DBG + 8 * 4096 * 64}")
        a(f"buffer_store_dword v3, v{vL4}, s[8:11], s100 offen")
    a.end(2, 8, 8)
    a.label("K2_slow")
    for s in range(8):
        a(ldK(s)[0][2])
    a(f"v_lshlrev_b32 v{vT0}, 2, v3")
    a(f"v_add_u32 v{vT0}, {MX}, v{vT0}")
    a(f"v_mov_b32 v{vT1}, 0xff800000")
    a("s_lshl_b32 s17, s3, 7")
    a(f"v_add_u32 v{vT2}, s17, v{vT0}")
    a(f"ds_write_b32 v{vT2}, v{vT1}")
    a(f"v_mov_b32 v{vT3}, v{vL16}")
    a(f"v_mov_b32 v{vPr}, v{vL4}")
    a("s_mov_b32 s17, 0")
    a("s_waitcnt vmcnt(0) lgkmcnt(0)")
    a("s_barrier")
    a.label("K2_mx")
    a(f"ds_read_b128 {vr(QR[0])}, v{vT3} offset:{QB}")
    a(f"ds_read2st64_b32 {vr(QR[0]+4,2)}, v{vPr} offset0:4 offset1:5")
    a(f"ds_read2st64_b32 {vr(QR[0]+6,2)}, v{vPr} offset0:5 offset1:4")
    a(f"v_mov_b32 v{vT1}, 0xff800000")
    a("s_waitcnt lgkmcnt(0)")
    for s in range(8):
        a(qk1(s)); a(qk2(s))
        a("s_nop 7"); a("s_nop 7")
        for i in range(8):
            a(f"v_max3_f32 v{vT1}, v{vT1}, v{S[s&1]+2*i}, v{S[s&1]+2*i+1}")
    a(f"ds_max_f32 v{vT0}, v{vT1}")
    a(f"v_add_u32 v{vT0}, 128, v{vT0}")
    a(f"v_add_u32 v{vT3}, 1536, v{vT3}")
    a(f"v_add_u32 v{vPr}, 1536, v{vPr}")
    a("s_add_u32 s17, s17, 1")
    a("s_cmp_lt_u32 s17, 8")
    a("s_cbranch_scc1 K2_mx")
    a("s_waitcnt lgkmcnt(0)")
    a("s_barrier")
    a(f"ds_read_b32 v{vT1}, v{vT2}")
    a("s_mul_i32 s17, s3, 1536")
    a(f"v_add_u32 v{vT3}, s17, v{vL4}")
    a("s_waitcnt lgkmcnt(0)")
    T = S[0]
    a(f"v_sub_f32 v{vT1}, 0, v{vT1}")
    a(f"v_and_b32 v{T}, 0xffff0000, v{vT1}")
    a(f"v_sub_f32 v{vT1}, v{vT1}, v{T}")
    a(f"v_and_b32 v{T+1}, 0xffff0000, v{vT1}")
    a(f"v_sub_f32 v{vT1}, v{vT1}, v{T+1}")
    a(f"v_lshrrev_b32 v{T}, 16, v{T}")
    a(f"v_or_b32 v{T}, v{T}, v{T+1}")
    a(f"v_lshrrev_b32 v{T+1}, 16, v{vT1}")
    a("s_not_b64 exec, s[20:21]")
    a(f"ds_write_b32 v{vT3}, v{T} offset:{QB+1024}")
    a(f"ds_write_b32 v{vT3}, v{T+1} offset:{QB+1280}")
    a("s_mov_b64 exec, -1")
    a("s_mov_b32 s22, 1")
    a("s_waitcnt lgkmcnt(0)")
    a("s_barrier")
    a("s_branch K2_main")
    a.label("K2_end")
    a("s_endpgm")
    return K, desc(K, 256), (256, 512, LDS)
```

```python
from common import *
RING = 36
RB = 104
BV = 72
ACC = [40, 56]
TMP = 248
BIAS = 16
B1R = 24
ACCP = 16
LZ = 32
HOFF = 72 * 1024
LDS = HOFF + 72 * 1024
NF = 324

def bfrag(f):
    return ar(4 * f) if f < 64 else vr(BV + 4 * (f - 64))
def b1reg(n):
    return B1R + 2 * n if n < 8 else 14
def slot(i):
    return RB + (i % RING) * 4

def k3(a):
    K = "k3_kernel"
    a.begin(K)
    a("s_cmp_ge_u32 s2, 256")
    a("s_cbranch_scc1 K3_end")
    a.stamp(0); a.stampc(10)
    a(f"s_load_dwordx2 s[4:5], s[0:1], {A_WS}")
    a(f"s_load_dwordx2 s[6:7], s[0:1], {A_B1}")
    a(f"s_load_dwordx4 s[24:27], s[0:1], {A_B2}")
    a("v_lshrrev_b32 v1, 6, v0")
    a("v_and_b32 v2, 63, v0")
    a("v_readfirstlane_b32 s3, v1")
    a("v_and_b32 v3, 15, v0")
    a("v_bfe_u32 v4, v0, 4, 2")
    a("v_lshlrev_b32 v5, 4, v2")
    for k in range(1, 5):
        a(f"v_add_u32 v{5+k}, {4096*k}, v5")
    a("v_lshlrev_b32 v12, 3, v4")
    a("v_and_b32 v10, 0x23, v2")
    a("v_lshlrev_b32 v10, 4, v10")
    a("v_bfe_u32 v11, v2, 3, 2")
    a("v_lshl_add_u32 v10, v11, 6, v10")
    a("v_bfe_u32 v11, v2, 2, 1")
    a("v_lshl_add_u32 v10, v11, 8, v10")
    a("s_and_b32 s28, s2, 7")
    a("s_lshr_b32 s29, s2, 3")
    a("s_mul_i32 s31, s29, 73728")
    a("s_lshl_b32 s30, s3, 10")
    a("s_add_u32 s31, s31, s30")
    a(f"s_add_u32 s31, s31, {WS_XN}")
    a("s_mul_i32 s60, s28, 36")
    a("s_mul_i32 s59, s3, 9")
    a("s_mul_i32 s61, s29, 57")
    a("s_lshr_b32 s61, s61, 9")
    a("s_mul_i32 s61, s61, 9")
    a("s_sub_u32 s61, s29, s61")
    def g1par(n):
        a(f"s_add_u32 s{50+n}, s61, {n}")
        a(f"s_cmp_ge_u32 s{50+n}, 9")
        a(f"s_cselect_b32 s62, 9, 0")
        a(f"s_sub_u32 s{50+n}, s{50+n}, s62")
        a(f"s_add_u32 s{50+n}, s{50+n}, s59")
        a(f"s_add_u32 s62, s{50+n}, s60")
        a(f"s_mul_i32 s62, s62, {18*1024}")
        a(f"s_add_u32 s{32+n}, s62, {WS_W1F}")
    g1par(0); g1par(1)
    a("s_waitcnt lgkmcnt(0)")
    a.srd(8, 4, WS_SIZE)
    a.srd(12, 6, 4608 * 2)
    def load(i):
        t, kk = divmod(i, 18)
        return [("vm", ("A", i), f"buffer_load_dwordx4 {vr(slot(i))}, v{5 + kk // 4}, s[8:11], s{32+t} offen offset:{(kk%4)*1024}")]
    def dmax(kk):
        return ["s_mov_b32 m0, s30", "s_add_u32 s30, s30, 4096",
                ("vm", ("X", kk), "buffer_load_dwordx4 v10, s[8:11], s31 offen lds"), "s_add_u32 s31, s31, 4096"]
    def ldb1(n):
        return [f"s_add_u32 s62, s{50+n}, s60", f"s_lshl_b32 s62, s62, 5",
                ("vm", ("b1", n), f"buffer_load_dwordx2 {vr(b1reg(n),2)}, v12, s[12:15], s62 offen")]
    def E(L):
        for x in L: a.emit(x)
    for kk in range(6): E(dmax(kk))
    E(ldb1(0)); E(ldb1(1))
    for kk in range(3): E(load(kk)); E(load(18 + kk))
    for kk in range(6, 12): E(dmax(kk))
    for kk in range(3, 6): E(load(kk)); E(load(18 + kk))
    for n in range(2, 9): g1par(n)
    a.srd(16, 24, 576 * 2)
    a.srd(20, 26, 2048 * ROW)
    a("s_add_u32 s28, s28, s29")
    a("s_and_b32 s28, s28, 7")
    for n in range(9):
        if n == 0:
            a(f"s_mov_b32 s{64+n}, 8")
        else:
            a(f"s_add_u32 s{64+n}, s28, {n}")
            a(f"s_and_b32 s{64+n}, s{64+n}, 7")
        a(f"s_lshl_b32 s62, s{64+n}, 2")
        a(f"s_add_u32 s62, s62, s3")
        a(f"s_add_u32 s62, s62, s60")
        a(f"s_mul_i32 s62, s62, {18*1024}")
        a(f"s_add_u32 s{41+n}, s62, {WS_W2F}")
    a("s_mov_b32 s75, 0x00003f80")
    a("s_mov_b32 s76, 0x3f800000")
    a(f"v_lshlrev_b32 v{TMP+7}, 3, v2")
    a(f"v_add_u32 v11, {HOFF}, v5")
    a(f"v_add_u32 v13, {HOFF+36864}, v5")
    a("s_mul_i32 s78, s29, 36")
    a("s_add_u32 s78, s78, s3")
    a("s_lshl_b32 s77, s78, 14")
    a(f"s_add_u32 s77, s77, {WS_PART}")
    a("s_lshl_b32 s78, s78, 11")
    a(f"s_add_u32 s78, s78, {WS_HRES}")
    a("s_lshl_b32 s79, s28, 11")
    a("s_add_u32 s79, s79, s77")
    a("s_lshl_b32 s84, s28, 16")
    a("s_add_u32 s84, s84, s77")
    a("s_lshl_b32 s62, s28, 7")
    a("s_lshl_b32 s63, s3, 5")
    a("s_add_u32 s82, s62, s63")
    a("s_add_u32 s83, s63, 1024")
    a("s_lshr_b32 s62, s28, 2")
    a("s_lshl_b32 s62, s62, 10")
    a("s_and_b32 s63, s28, 2")
    a("s_lshl_b32 s63, s63, 2")
    a("s_add_u32 s73, s62, s63")
    a("s_add_u32 s85, s73, s77")
    a(f"s_add_u32 s85, s85, {8*65536}")
    a("s_and_b32 s62, s28, 1")
    a("s_lshl_b32 s62, s62, 3")
    a("s_lshl_b32 s80, 0x00ff00ff, s62")
    a("s_mov_b32 s81, s80")
    a("s_mov_b32 s74, 0x1fe")
    def unpack(src, dst):
        return [f"v_lshlrev_b32 v{dst}, 16, v{src}", f"v_and_b32 v{dst+1}, 0xffff0000, v{src}",
                f"v_lshlrev_b32 v{dst+2}, 16, v{src+1}", f"v_and_b32 v{dst+3}, 0xffff0000, v{src+1}"]
    def g1_epilogue(n):
        acc = ACC[n % 2]
        L = [f"s_lshr_b32 s63, s{50+n}, 1", f"s_lshl_b32 s63, s63, 12", f"s_and_b32 s62, s{50+n}, 1",
             f"s_lshl_b32 s62, s62, 3", f"s_add_u32 s62, s62, s63", f"v_add_u32 v{TMP}, s62, v11"]
        for tt in range(4):
            for r in range(4):
                L.append(f"v_mul_f32 v{acc+4*tt+r}, v{acc+4*tt+r}, abs(v{acc+4*tt+r})")
            L.append(f"v_cvt_pk_bf16_f32 v{acc+4*tt}, v{acc+4*tt}, v{acc+4*tt+1}")
            L.append(f"v_cvt_pk_bf16_f32 v{acc+4*tt+1}, v{acc+4*tt+2}, v{acc+4*tt+3}")
            L.append(f"v_pk_max_i16 v{acc+4*tt}, v{acc+4*tt}, 0")
            L.append(f"v_pk_max_i16 v{acc+4*tt+1}, v{acc+4*tt+1}, 0")
            L.append(f"ds_write_b64 v{TMP}, {vr(acc+4*tt,2)} offset:{1024*tt}")
        return L
    def g2_epilogue(n):
        acc = ACC[(9 + n) % 2]
        L = [f"s_lshl_b32 s62, s{64+n}, 16", f"s_add_u32 s62, s62, s79"]
        for hf in range(2):
            for tt in (2 * hf, 2 * hf + 1):
                L.append(f"v_cvt_pk_bf16_f32 v{TMP+2*tt}, v{acc+4*tt}, v{acc+4*tt+1}")
                L.append(f"v_cvt_pk_bf16_f32 v{TMP+2*tt+1}, v{acc+4*tt+2}, v{acc+4*tt+3}")
            L.append(("vm", "st", f"buffer_store_dwordx4 {vr(TMP+4*hf)}, v5, s[8:11], s62 offen offset:{1024*hf} sc1"))
        return L
    def fetch(n, lz, track=True):
        L = [f"s_lshl_b32 s63, s{64+8-n}, 11", "s_add_u32 s63, s63, s84"]
        for hf in range(2):
            s_ = f"buffer_load_dwordx4 {vr(lz+4*hf)}, v5, s[8:11], s63 offen offset:{1024*hf} sc1"
            L.append(("vm", ("P", n), s_) if track else s_)
        return L
    vC = 14
    def check(regs, bit):
        L = [f"v_max3_i32 v{vC}, v{regs[0]}, v{regs[1]}, v{regs[2]}"]
        k = 3
        while k + 1 < len(regs):
            L.append(f"v_max3_i32 v{vC}, v{vC}, v{regs[k]}, v{regs[k+1]}"); k += 2
        if k < len(regs):
            L.append(f"v_max_i32 v{vC}, v{vC}, v{regs[k]}")
        L.append(f"v_cmp_eq_i32 vcc, {POISON}, v{vC}")
        L.append("v_nop"); L.append("v_nop")
        if bit == 8:
            L.append("s_and_b64 vcc, vcc, s[80:81]")
        L += ["s_cmp_eq_u64 vcc, 0", "s_cselect_b32 s86, s75, 0", "s_cselect_b32 s87, s76, 0",
              f"s_cselect_b32 s62, {1 << bit}, 0", "s_andn2_b32 s74, s74, s62"]
        return L
    def accum(lz, dst, n):
        L = []
        for q in range(n):
            L.append(f"v_dot2_f32_bf16 v{dst+2*q}, v{lz+q}, s86, v{dst+2*q}")
            L.append(f"v_dot2_f32_bf16 v{dst+2*q+1}, v{lz+q}, s87, v{dst+2*q+1}")
        return L
    def take(n, lz, track=True):
        return ([("wait", ("P", n))] if track else []) + check(list(range(lz, lz + 8)), n) + accum(lz, ACCP, 8)
    LZs = {1: LZ, 2: LZ, 3: slot(288), 4: slot(296), 5: slot(298), 6: slot(300), 7: slot(302)}
    SH = slot(290)
    A8 = SH + 20
    def fetch_share(track=True):
        L = ["s_mov_b64 exec, s[80:81]", "s_mov_b32 s63, s85"]
        for n in range(8):
            for q in range(2):
                s_ = f"buffer_load_dword v{SH+2*n+q}, v5, s[8:11], s63 offen offset:{4*q} sc1"
                L.append(("vm", "sh", s_) if track else s_)
            L.append("s_add_u32 s63, s63, 2048")
        L.append("s_mov_b64 exec, -1")
        return L

    a.waitvm(("b1", 1))
    E(unpack(b1reg(0), BIAS) + unpack(b1reg(1), BIAS + 4))
    def rdB(f, lo, hi):
        a(f"ds_read_b128 {bfrag(f)}, v{lo if f < 36 else hi} offset:{(f%36)*1024}")
    def rdX(f):
        a(f"ds_read2st64_b64 {bfrag(f)}, v{TMP+7} offset0:{2*f} offset1:{2*f+1}")
    seq = []
    for kk in range(12): seq += [kk, 18 + kk]
    seq += list(range(12, 18)) + list(range(30, NF))
    pend = []
    post = {}
    def addpost(i, L): post.setdefault(i, []).extend(L)
    for kk in range(6):
        addpost(kk, load(6 + kk) + dmax(12 + kk)); addpost(18 + kk, load(24 + kk))
        addpost(6 + kk, load(12 + kk) + load(36 + kk)); addpost(24 + kk, load(30 + kk) + load(42 + kk))
        addpost(12 + kk, load(48 + kk) + load(54 + kk)); addpost(30 + kk, load(60 + kk) + load(66 + kk))
    for n in range(2, 9):
        addpost(4 + n, ldb1(n))
    for i in range(36, NF - RING):
        addpost(i, load(i + RING))
    addpost(9 * 18 + 2, [("vm", "b2", f"buffer_load_dwordx2 v[14:15], v12, s[16:19], s82 offen"),
                         "s_lshl_b32 s62, s28, 13", "s_add_u32 s62, s62, s78",
                         "v_lshrrev_b32 v2, 3, v3", "v_lshlrev_b32 v2, 8, v2", "v_lshl_add_u32 v2, v4, 6, v2",
                         "v_and_b32 v10, 7, v3", "v_lshl_add_u32 v2, v10, 3, v2"] +
                        [("vm", "hr", f"buffer_load_dwordx2 {vr(LZ+2*tt,2)}, v2, s[8:11], s62 offen offset:{512*tt}") for tt in range(4)])
    addpost(14 * 18, fetch(1, LZs[1]))
    addpost(16 * 18, fetch(2, LZs[2]))
    addpost(16 * 18 + 1, fetch(3, LZs[3]))
    addpost(16 * 18 + 8, ["v_lshlrev_b32 v15, 3, v4", "s_lshr_b32 s62, s28, 1", "s_lshl_b32 s62, s62, 9", "s_add_u32 s62, s62, s78", f"s_add_u32 s62, s62, {8*8192}",
                          ("vm", "sh0", f"buffer_load_dwordx2 {vr(SH+16,2)}, v2, s[8:11], s62 offen"),
                          ("vm", "sh0", f"buffer_load_dwordx2 {vr(SH+18,2)}, v15, s[16:19], s83 offen")] + fetch_share())
    addpost(17 * 18, fetch(4, LZs[4]))
    for i in seq:
        t, kk = divmod(i, 18)
        extra = ""
        if t == 0:
            if kk % 6 == 0:
                a.waitvm(("X", kk + 5))
                if kk == 0: a.stamp(1)
                a("s_barrier")
                if kk == 0: a.stamp(2)
                if kk == 12: a.stamp(3)
                for f in range(4 * kk, 4 * kk + 12):
                    rdX(f)
            elif kk % 6 <= 3:
                for f in range(4 * kk + 8, 4 * kk + 12):
                    rdX(f)
            rem = min(4 * (kk - kk % 6) + 24, 4 * kk + 12) - (4 * kk + 4)
            extra = f" lgkmcnt({rem})"
        if t == 9:
            if kk == 0:
                a("s_nop 7")
                E(g1_epilogue(8))
                a("s_waitcnt lgkmcnt(0)")
                a.stamp(4)
                a("s_barrier")
                for f in range(12):
                    rdB(f, 11, 13)
            elif 4 * kk + 8 < 72:
                for f in range(4 * kk + 8, 4 * kk + 12):
                    rdB(f, 11, 13)
            rem = min(72, 4 * kk + 12) - (4 * kk + 4)
            extra = f" lgkmcnt({rem})"
        if Opt.DBG and kk == 0 and t not in (0, 1, 9):
            a("s_memtime s[100:101]")
        if Opt.DBG and kk == 9 and t not in (0, 1, 9):
            a("s_waitcnt lgkmcnt(0)")
            a(f"v_writelane_b32 v1, s100, {t}")
        a.waitvm(("A", i), extra)
        acc = ACC[t % 2]
        rate = 1
        if i == 30:
            pend = [None] + g1_epilogue(0) + [("wait", ("b1", 2))] + unpack(b1reg(2), BIAS)
        if t == 1: rate = 2
        if kk == 1 and t >= 2:
            assert not pend
            if t <= 8: pend += g1_epilogue(t - 1)
            if t >= 10: pend += g2_epilogue(t - 10)
            if t < 8: pend += unpack(b1reg(t + 1), BIAS + 4 * ((t + 1) % 2))
            if t == 11:
                pend += [("wait", "hr")] + unpack(14, 10) + [None]
                for q in range(8):
                    pend.append(f"v_dot2_f32_bf16 v{ACCP+2*q}, v{LZ+q}, s75, v{10+(2*q)%4}")
                    pend.append(f"v_dot2_f32_bf16 v{ACCP+2*q+1}, v{LZ+q}, s76, v{10+(2*q+1)%4}")
            if t == 15: pend += [None] * 12 + take(1, LZs[1])
            if t == 17: pend += take(2, LZs[2]) + take(3, LZs[3])
        if t == 17: rate = 2 if kk >= 6 else 1
        for tt in range(4):
            if kk == 0:
                c = vr(BIAS + 4 * (t % 2)) if t < 9 else "0"
            else:
                c = vr(acc + 4 * tt)
            a(f"v_mfma_f32_16x16x32_bf16 {vr(acc+4*tt)}, {vr(slot(i))}, {bfrag(kk*4+tt)}, {c}")
            if (kk >= 2 and (tt < 3 or rate == 2)) or (kk == 1 and tt == 3 and t >= 10):
                for _ in range(rate):
                    while pend:
                        s = pend.pop(0)
                        if s is None: break
                        a.emit(s)
                        if not (isinstance(s, str) and s.startswith("s_")): break
        if kk == 17 and t >= 1:
            assert not pend, (t, pend)
        E(post.get(i, []))
    accO = ACC[17 % 2]
    a.stamp(5)
    for n in (5, 6, 7):
        E(fetch(n, LZs[n]))
    a(f"v_mul_u32_u24 v10, {ROW}, v3")
    a("v_lshl_add_u32 v10, v4, 3, v10")
    a(f"s_mul_i32 s30, s29, {64*ROW}")
    a("s_add_u32 s82, s30, s82")
    a("s_lshr_b32 s62, s28, 1")
    a(f"s_mul_i32 s62, s62, {16*ROW}")
    a("s_add_u32 s62, s62, s30")
    a("s_add_u32 s83, s83, s62")
    a.waitvm("sh")
    E(unpack(SH + 18, A8))
    for q in range(2):
        a(f"v_dot2_f32_bf16 v{A8+2*q}, v{SH+16+q}, s75, v{A8+2*q}")
        a(f"v_dot2_f32_bf16 v{A8+2*q+1}, v{SH+16+q}, s76, v{A8+2*q+1}")
    def take_share():
        L = check(list(range(SH, SH + 16)), 8)
        for n in range(8):
            L += accum(SH + 2 * n, A8, 2)
        return L
    E(take_share())
    for n in (4, 5, 6, 7):
        E(take(n, LZs[n]))
    a.stamp(6)
    a("s_mov_b32 s88, 0x8000")
    LZt = dict(LZs); LZt[1] = slot(304)
    a.label("K3_poll")
    a("s_cmp_eq_u32 s74, 0")
    a("s_cbranch_scc1 K3_done")
    a("s_sub_u32 s88, s88, 1")
    a("s_cmp_eq_u32 s88, 0")
    a("s_cbranch_scc1 K3_done")
    a("s_mov_b32 s31, s74")
    for n in range(1, 9):
        a(f"s_bitcmp0_b32 s31, {n}")
        a(f"s_cbranch_scc1 K3_pf{n}")
        E(fetch(n, LZt[n], False) if n < 8 else fetch_share(False))
        a.label(f"K3_pf{n}")
    a("s_waitcnt vmcnt(0)")
    for n in range(1, 9):
        a(f"s_bitcmp0_b32 s31, {n}")
        a(f"s_cbranch_scc1 K3_pt{n}")
        E(take(n, LZt[n], False) if n < 8 else take_share())
        a.label(f"K3_pt{n}")
    a("s_branch K3_poll")
    a.label("K3_done")
    a.stamp(7)
    a("s_nop 1")
    for tt in range(4):
        for q in range(2):
            a(f"v_pk_add_f32 {vr(accO+4*tt+2*q,2)}, {vr(accO+4*tt+2*q,2)}, {vr(ACCP+4*tt+2*q,2)}")
        a(f"v_cvt_pk_bf16_f32 v{TMP+2*tt}, v{accO+4*tt}, v{accO+4*tt+1}")
        a(f"v_cvt_pk_bf16_f32 v{TMP+2*tt+1}, v{accO+4*tt+2}, v{accO+4*tt+3}")
        a(f"buffer_store_dwordx2 {vr(TMP+2*tt,2)}, v10, s[20:23], s82 offen")
        a(f"s_add_u32 s82, s82, {16*ROW}")
    a(f"v_cvt_pk_bf16_f32 v{LZ}, v{A8}, v{A8+1}")
    a(f"v_cvt_pk_bf16_f32 v{LZ+1}, v{A8+2}, v{A8+3}")
    a("s_mov_b64 exec, s[80:81]")
    a(f"buffer_store_dwordx2 {vr(LZ,2)}, v10, s[20:23], s83 offen")
    a("s_mov_b64 exec, -1")
    if Opt.DBG:
        a("s_getreg_b32 s100, hwreg(HW_REG_XCC_ID)")
        a("v_writelane_b32 v1, s100, 0")
        a("v_writelane_b32 v1, s88, 1")
        a("s_lshl_b32 s100, s2, 2")
        a("s_add_u32 s100, s100, s3")
        a("s_lshl_b32 s100, s100, 8")
        a(f"s_add_u32 s100, s100, {WS_DBG + 6 * 4096 * 64}")
        a("v_lshrrev_b32 v2, 2, v5")
        a("buffer_store_dword v1, v2, s[8:11], s100 offen")
    a.end(4, 8, 4)
    a.label("K3_end")
    a("s_endpgm")
    return K, desc(K, 512, 256), (256, 256, LDS)
```

```python
from common import *

def params_w12(a, sfc, sn, S, R, pW1, pW2):
    T, U = S + 6, S + 7
    a(f"s_cmp_lt_u32 s{sn}, 162")
    a(f"s_cselect_b32 s{R}, s{pW1}, s{pW2}")
    a(f"s_cselect_b32 s{R+1}, s{pW1+1}, s{pW2+1}")
    a(f"s_mov_b32 s{R+2}, {576*9216}")
    a(f"s_mov_b32 s{R+3}, 0x00020000")
    a(f"s_mov_b32 s{T}, {ROW}")
    a(f"s_cselect_b32 s{S+2}, 9216, s{T}")
    a(f"s_mov_b32 s{T}, {576*ROW}")
    a(f"s_cselect_b32 s{S+1}, {ROW}, s{T}")
    a(f"s_mov_b32 s{T}, {WS_W2F}")
    a(f"s_cselect_b32 s{S+5}, {WS_W1F}, s{T}")
    a(f"s_cselect_b32 s{T}, 0, 162")
    a(f"s_sub_u32 s{T}, s{sn}, s{T}")
    a(f"s_mul_i32 s{S+1}, s{S+1}, s{sfc}")
    a(f"s_mul_i32 s{U}, s{T}, 7282")
    a(f"s_lshr_b32 s{U}, s{U}, 16")
    a(f"s_mul_i32 s{S}, s{U}, 9")
    a(f"s_sub_u32 s{T}, s{T}, s{S}")
    a(f"s_lshl_b32 s{S}, s{T}, 7")
    a(f"s_add_u32 s{S+1}, s{S+1}, s{S}")
    a(f"s_lshl_b32 s{S}, s{S+2}, 5")
    a(f"s_mul_i32 s{S}, s{S}, s{U}")
    a(f"s_add_u32 s{S+1}, s{S+1}, s{S}")
    a(f"s_mul_i32 s{S}, s{sfc}, 9")
    a(f"s_add_u32 s{S}, s{S}, s{T}")
    a(f"s_mul_i32 s{S}, s{S}, 72")
    a(f"s_add_u32 s{S}, s{S}, s{U}")
    a(f"s_lshl_b32 s{S}, s{S}, 10")
    a(f"s_add_u32 s{S+5}, s{S+5}, s{S}")
    a(f"s_lshl_b32 s{S}, s{S+2}, 2")
    a(f"s_lshl_b32 s{S+3}, s{S+2}, 1")
    a(f"s_lshl_b32 s{S+4}, s{S+2}, 4")

def params_wo(a, su, S, R, pWO):
    T, U = S + 6, S + 7
    a.srd(R, pWO, 576 * ROW)
    a(f"s_mul_i32 s{U}, s{su}, 7282")
    a(f"s_lshr_b32 s{U}, s{U}, 16")
    a(f"s_mul_i32 s{T}, s{U}, 9")
    a(f"s_sub_u32 s{T}, s{su}, s{T}")
    a(f"s_mul_i32 s{S+5}, s{T}, 72")
    a(f"s_add_u32 s{S+5}, s{S+5}, s{U}")
    a(f"s_lshl_b32 s{S+5}, s{S+5}, 10")
    a(f"s_add_u32 s{S+5}, s{S+5}, {WS_WOF}")
    a(f"s_lshl_b32 s{T}, s{T}, 7")
    a(f"s_lshr_b32 s{S}, s{U}, 1")
    a(f"s_mul_i32 s{S}, s{S}, 72")
    a(f"s_and_b32 s{S+1}, s{U}, 1")
    a(f"s_lshl_b32 s{S+2}, s{S+1}, 2")
    a(f"s_add_u32 s{S}, s{S}, s{S+2}")
    a(f"s_mul_i32 s{S+1}, s{S+1}, 288")
    a(f"s_add_u32 s{S+1}, s{S+1}, 16")
    a(f"s_cmp_lt_u32 s{U}, 16")
    a(f"s_cselect_b32 s{S+1}, s{S}, s{S+1}")
    a(f"s_cselect_b32 s{S}, 18, 72")
    a(f"s_cselect_b32 s{S+3}, 2, 18")
    a(f"s_cselect_b32 s{S+4}, 8, 36")
    a(f"s_mul_i32 s{S+1}, s{S+1}, {ROW}")
    a(f"s_add_u32 s{S+1}, s{S+1}, s{T}")
    a(f"s_mul_i32 s{S}, s{S}, {ROW}")
    a(f"s_mov_b32 s{S+2}, {ROW}")
    a(f"s_mul_i32 s{S+3}, s{S+3}, {ROW}")
    a(f"s_mul_i32 s{S+4}, s{S+4}, {ROW}")

def voff_src(a, vsrc, vt, S):
    a(f"v_bfe_u32 v{vt}, v0, 4, 2")
    a(f"v_mul_lo_u32 v{vsrc}, v{vt}, s{S}")
    a(f"v_and_b32 v{vt}, 15, v0")
    a(f"v_lshl_add_u32 v{vsrc}, v{vt}, 3, v{vsrc}")

def voff_dst(a, vdst, vt):
    a(f"v_bfe_u32 v{vt}, v0, 2, 2")
    a(f"v_mul_u32_u24 v{vdst}, 18432, v{vt}")
    a(f"v_bfe_u32 v{vt}, v0, 4, 2")
    a(f"v_lshl_add_u32 v{vdst}, v{vt}, 8, v{vdst}")
    a(f"v_and_b32 v{vt}, 3, v0")
    a(f"v_lshl_add_u32 v{vdst}, v{vt}, 6, v{vdst}")

def loads(raw, vsrc, S, R, tag):
    T = S + 6
    L = []
    for j in range(8):
        terms = [S + 1] + ([S + 2] if j & 1 else []) + ([S + 3] if j & 2 else []) + ([S + 4] if j & 4 else [])
        if len(terms) == 1:
            so = terms[0]
        else:
            L.append(f"s_add_u32 s{T}, s{terms[0]}, s{terms[1]}")
            for t in terms[2:]:
                L.append(f"s_add_u32 s{T}, s{T}, s{t}")
            so = T
        L.append(("vm", tag, f"buffer_load_dwordx2 {vr(raw+2*j,2)}, v{vsrc}, s[{R}:{R+3}], s{so} offen"))
    return L

def perms_stores(raw, outs, vdst, S, WSR, sLo, sHi, tag, flags=""):
    L = []
    for q in range(4):
        o = outs[q % len(outs)]
        for p in range(4):
            ra = raw + 2 * (2 * p) + (q >> 1)
            rb = raw + 2 * (2 * p + 1) + (q >> 1)
            L.append(f"v_perm_b32 v{o+p}, v{rb}, v{ra}, s{sHi if q & 1 else sLo}")
        L.append(("vm", tag, f"buffer_store_dwordx4 {vr(o)}, v{vdst}, s[{WSR}:{WSR+3}], s{S+5} offen offset:{16*q}{flags}"))
    return L
```

```python
import sys
from common import *
import k1, k2, k3, k2w4, k3w8
if __name__ == "__main__":
    out = sys.argv[1] if len(sys.argv) > 1 else "cdna_kernels/" + NAME + ".s"
    Opt.DBG = len(sys.argv) > 2 and sys.argv[2] == "dbg"
    for x in sys.argv[3:]:
        k, v = x.split("=")
        setattr(Opt, k, int(v) if v.isdigit() and k != "PBOUND" else {"True": True, "False": False}.get(v, v.replace("_", " ")))
    if Opt.FUSE: build([k1.k1, k2.k23], out)
    else: build([k1.k1, k2w4.k2 if Opt.W4 else k2.k2, k3w8.k3 if Opt.W8 else k3.k3], out)
    print("wrote", out)
```

```python
import sys, math, struct

NAME = "sequential_preLN__grouped_kv_mqa__dense_activation_squared_relu__prompt"

ROW = 1152
KVB = 2304
K2OFF = 64 * KVB
KV_BYTES = K2OFF + 16 * 512
WS_Q    = 0
WS_XN   = WS_Q + 2048 * ROW
WS_KV   = WS_XN + 2048 * ROW
WS_FLAG = WS_KV + 160 * 1024
WS_WOF  = WS_FLAG + 128 * 128
WOF_BYTES = 36 * 18 * 1024
WS_W1F  = WS_WOF + WOF_BYTES
WS_W2F  = WS_W1F + 288 * 18 * 1024
WS_PART = WS_W2F + 288 * 18 * 1024
WS_HRES = WS_PART + 32 * 36 * 8 * 2048
WS_DBG  = WS_HRES + 32 * 36 * 2048
POISON  = 0x7f7f7f7f
WS_END  = WS_DBG + 8 * 4096 * 64 + 2048 * 256
WS_SIZE = 0x10000000
OOB = 0x7ff00000
class Opt:
    WST = ''
    CPF = True
    XST = ''
    FOLD = True
    DBG = False
assert WS_END < WS_SIZE

QSCALE = (18 ** -0.5) * math.log2(math.e)
DMAP = [[0, 1, 2, 3, 8, 9, 10, 11, 16], [4, 5, 6, 7, 12, 13, 14, 15, 17]]

def f32bits(x):
    return "0x%08x" % struct.unpack("<I", struct.pack("<f", x))[0]

class Asm:
    def __init__(self):
        self.L = []
        self.vmq = []
    def __call__(self, s):
        for ln in s.split("\n"):
            self.L.append("    " + ln.strip())
    def label(self, s):
        self.L.append(s + ":")
    def raw(self, s):
        self.L.append(s)
    def vm(self, tag, s):
        self.vmq.append(tag)
        self(s)
    def vmn(self, tag):
        idx = len(self.vmq) - 1 - self.vmq[::-1].index(tag)
        n = len(self.vmq) - 1 - idx
        return min(n, 63)
    def waitvm(self, tag, extra=""):
        self(f"s_waitcnt vmcnt({self.vmn(tag)}){extra}")
    def emit(self, it):
        if isinstance(it, str):
            self(it)
        elif it[0] == "vm":
            self.vm(it[1], it[2])
        elif it[0] == "wait":
            self.waitvm(it[1], it[2] if len(it) > 2 else "")
        elif it[0] == "label":
            self.label(it[1])
        elif it[0] == "stamp":
            self.stamp(it[1])
        else:
            raise ValueError(it)
    def srd(self, d, p, size, off=0):
        if off:
            self(f"s_add_u32 s{d}, s{p}, {off}")
            self(f"s_addc_u32 s{d+1}, s{p+1}, 0")
        else:
            self(f"s_mov_b32 s{d}, s{p}")
            self(f"s_mov_b32 s{d+1}, s{p+1}")
        self(f"s_mov_b32 s{d+2}, {size}")
        self(f"s_mov_b32 s{d+3}, 0x00020000")
    def stamp(self, i):
        if not Opt.DBG: return
        self("s_memrealtime s[100:101]")
        self("s_waitcnt lgkmcnt(0)")
        self(f"s_mov_b32 s{89+i}, s100")
    def stampc(self, i):
        if not Opt.DBG: return
        self("s_memtime s[100:101]")
        self("s_waitcnt lgkmcnt(0)")
        self(f"s_mov_b32 s{89+i}, s100")
    def end(self, kid, srd, nwaves, n=10):
        if Opt.DBG:
            self.stamp(8)
            self.stampc(9)
            self("s_mov_b64 exec, 1")
            self(f"s_mul_i32 s100, s2, {nwaves}")
            self("s_add_u32 s100, s100, s3")
            self("s_lshl_b32 s100, s100, 6")
            self(f"s_add_u32 s100, s100, {WS_DBG + kid * 4096 * 64}")
            self("v_mov_b32 v1, 0")
            for i in range(n + 1):
                self(f"v_mov_b32 v2, s{89+i}")
                self(f"buffer_store_dword v2, v1, s[{srd}:{srd+3}], s100 offen offset:{4*i}")
        self("s_endpgm")
    def codepf(self, start, end, sidx, vlane16, vdst, sp, tag="cpf"):
        if not Opt.CPF: return
        self.n_pf = getattr(self, "n_pf", 0) + 1
        lb = f"Lpf{self.n_pf}"
        self(f"s_getpc_b64 s[{sp}:{sp+1}]")
        self.label(lb)
        self(f"s_lshl_b32 s{sp+2}, s{sidx}, 10")
        self(f"s_min_u32 s{sp+2}, s{sp+2}, {end}-{start}-1024")
        self(f"s_add_u32 s{sp}, s{sp}, s{sp+2}")
        self(f"s_addc_u32 s{sp+1}, s{sp+1}, 0")
        self(f"s_add_u32 s{sp}, s{sp}, {start}-{lb}")
        self(f"s_addc_u32 s{sp+1}, s{sp+1}, ({start}-{lb})>>32")
        self.vm(tag, f"global_load_dwordx4 v[{vdst}:{vdst+3}], v{vlane16}, s[{sp}:{sp+1}]")
    def begin(self, k):
        self.vmq = []
        self.raw(f".globl {k}\n.p2align 8\n.type {k},@function\n{k}:")
    def text(self):
        return "\n".join(self.L) + "\n"

def vr(b, n=4):
    return f"v[{b}:{b+n-1}]"
def ar(b, n=4):
    return f"a[{b}:{b+n-1}]"

def desc(k, nv, acc=None, ns=102):
    if acc is None:
        acc = min(256, (nv + 3) // 4 * 4)
    return f""".p2align 6
.amdhsa_kernel {k}
  .amdhsa_next_free_vgpr {nv}
  .amdhsa_next_free_sgpr {ns}
  .amdhsa_accum_offset {acc}
  .amdhsa_group_segment_fixed_size 0
  .amdhsa_kernarg_size 104
  .amdhsa_user_sgpr_count 2
  .amdhsa_user_sgpr_kernarg_segment_ptr 1
  .amdhsa_system_sgpr_workgroup_id_x 1
.end_amdhsa_kernel
"""

A_X, A_WQ, A_WK, A_WV, A_WO, A_BX, A_W1, A_B1, A_W2, A_B2, A_OUT, A_DBG, A_WS = [8 * i for i in range(13)]

def weave(main, side):
    out = []
    for i, m in enumerate(main):
        out += side.get(i, [])
        out.append(m)
    out += side.get(len(main), [])
    return out

def cross_g_sum(a, v, t):
    a(f"v_mov_b32 v{t}, v{v}")
    a("s_nop 1")
    a(f"v_permlane16_swap_b32 v{v}, v{t}")
    a("s_nop 1")
    a(f"v_add_f32 v{v}, v{v}, v{t}")
    a(f"v_mov_b32 v{t}, v{v}")
    a("s_nop 1")
    a(f"v_permlane32_swap_b32 v{v}, v{t}")
    a("s_nop 1")
    a(f"v_add_f32 v{v}, v{v}, v{t}")

def build(kernels, out):
    a = Asm()
    metas = [k(a) for k in kernels]
    hdr = open("cdna_kernels/" + NAME + ".s.ref").read().split("\n")
    top = []
    for ln in hdr:
        if ln.startswith(";") and "@launch" not in ln and "Override launch" not in ln and "grid=ceil" not in ln:
            top.append(ln)
        if not ln.startswith(";"):
            break
    s = "\n".join(top) + "\n"
    for K, d, (g, b, l) in metas:
        s += f"; @launch kernel={K} grid=({g},1,1) block=({b},1,1) lds={l}\n"
    s += '.amdgcn_target "amdgcn-amd-amdhsa--gfx950"\n.text\n'
    s += a.text()
    s += '.section .rodata,"a"\n'
    for K, d, _ in metas:
        s += d
    open(out, "w").write(s)
```

```python
from common import *
import relayout as RL
WIMG = 0
KVIMG = 576 * 144
XIMG = KVIMG + 576 * 16
CS = XIMG + 4 * 17 * 1024
LDS = CS + 320

def k1(a):
    K = "k1_kernel"
    a.begin(K)
    a("s_cmp_ge_u32 s2, 256")
    a("s_cbranch_scc1 K1_end")
    a.stamp(0); a.stampc(10)
    a(f"s_load_dwordx4 s[4:7], s[0:1], {A_X}")
    a(f"s_load_dwordx4 s[8:11], s[0:1], {A_WK}")
    a(f"s_load_dwordx2 s[12:13], s[0:1], {A_WS}")
    a(f"s_load_dwordx2 s[52:53], s[0:1], {A_WO}")
    a("v_lshrrev_b32 v1, 6, v0")
    a("v_and_b32 v2, 63, v0")
    a("v_readfirstlane_b32 s3, v1")
    a("v_and_b32 v3, 15, v0")
    a("v_bfe_u32 v4, v0, 4, 2")
    a("s_and_b32 s14, s2, 31")
    a("s_lshr_b32 s15, s2, 5")
    a("s_lshr_b32 s48, s14, 3")
    a("s_lshl_b32 s48, s48, 1")
    a("s_add_u32 s48, s48, s15")
    a("s_cmp_ge_u32 s48, 9")
    a("s_cselect_b32 s49, 9, 0")
    a("s_sub_u32 s48, s48, s49")
    a("s_cmp_ge_u32 s3, 4")
    a("s_cbranch_scc1 K1_loader")
    a("v_lshrrev_b32 v5, 2, v2")
    a(f"v_mul_u32_u24 v6, {ROW}, v5")
    a("v_sub_u32 v7, 0, v4")
    a("v_xor_b32 v7, v7, v2")
    a("v_and_b32 v7, 3, v7")
    a("v_lshl_add_u32 v6, v7, 4, v6")
    a(f"v_mul_u32_u24 v5, {ROW}, v3")
    a("v_lshl_add_u32 v5, v4, 4, v5")
    a("s_lshl_b32 s32, s14, 2")
    a("s_add_u32 s32, s32, s3")
    a(f"s_mul_i32 s33, s32, {16*ROW}")
    a("s_lshl_b32 s34, s48, 7")
    a("s_mul_i32 s35, s3, 17408")
    a(f"s_add_u32 s35, s35, {XIMG}")
    a("s_waitcnt lgkmcnt(0)")
    a.srd(16, 4, 2048 * ROW)
    a.srd(28, 12, WS_SIZE)
    a.stamp(1)
    X = 64
    for n in range(18):
        a("s_add_u32 s36, s33, s34")
        if n < 17:
            a("s_mov_b32 m0, s35")
            a("s_add_u32 s35, s35, 1024")
            a.vm("x", "buffer_load_dwordx4 v6, s[16:19], s36 offen lds")
        else:
            a.vm("x", f"buffer_load_dwordx4 {vr(X+68)}, v5, s[16:19], s36 offen")
        if n < 17:
            a("s_add_u32 s34, s34, 64")
            if n % 2 == 1:
                a(f"s_cmp_ge_u32 s34, {ROW}")
                a(f"s_cselect_b32 s34, 0, s34")
    a("v_lshrrev_b32 v7, 2, v3")
    a("v_sub_u32 v7, 0, v7")
    a("v_xor_b32 v7, v7, v4")
    a("v_and_b32 v7, 3, v7")
    a("v_lshlrev_b32 v7, 4, v7")
    a("v_lshl_add_u32 v7, v3, 6, v7")
    a("s_mul_i32 s35, s3, 17408")
    a(f"s_add_u32 s35, s35, {XIMG}")
    a("v_add_u32 v7, s35, v7")
    a("v_bfe_u32 v5, v0, 2, 2")
    a("v_and_b32 v6, 3, v0")
    a("v_lshlrev_b32 v12, 3, v4")
    a("v_lshl_add_u32 v12, v5, 1, v12")
    a("v_mul_u32_u24 v8, 144, v12")
    a("v_lshl_add_u32 v8, v6, 3, v8")
    a(f"v_add_u32 v9, {9*4608}, v8")
    a("v_lshlrev_b32 v10, 4, v12")
    a("v_lshl_add_u32 v10, v6, 3, v10")
    a(f"v_add_u32 v10, {KVIMG-16}, v10")
    a("v_add_u32 v11, 16, v10")
    a("v_add_u32 v15, 128, v8")
    a("v_cmp_gt_u32 vcc, 2, v6")
    a("v_mov_b32 v14, 512")
    a("v_mov_b32 v5, 4608")
    a("v_cndmask_b32 v10, v10, v15, vcc")
    a("v_add_u32 v15, 144, v15")
    a("v_cndmask_b32 v14, v14, v5, vcc")
    a("v_cndmask_b32 v11, v11, v15, vcc")
    a("s_mov_b32 s40, 0x3f803f80")
    ONES = 56
    for i in range(4):
        a(f"v_mov_b32 v{ONES+i}, s40")
    ACC, CSA, ST = 16, 36, 60
    QA = 176
    a("v_and_b32 v16, 7, v3")
    a("v_lshrrev_b32 v17, 3, v3")
    a("v_mul_u32_u24 v17, 9216, v17")
    a("v_lshl_add_u32 v18, v16, 4, v17")
    a("v_lshl_add_u32 v19, v16, 2, v17")
    a("v_add_u32 v19, 1024, v19")
    a("v_lshlrev_b32 v20, 2, v4")
    for t in range(5):
        for q in range(2):
            d = QA + 2 * t + q
            a(f"v_add_u32 v21, {16*t+2*q}, v20")
            a("v_mul_u32_u24 v22, 57, v21")
            a("v_lshrrev_b32 v22, 10, v22")
            a("v_mul_u32_u24 v23, 18, v22")
            a("v_sub_u32 v21, v21, v23")
            a("v_cmp_gt_u32 vcc, 16, v21")
            a("v_lshrrev_b32 v23, 3, v21")
            a(f"v_lshl_add_u32 v{d}, v23, 9, v18")
            a(f"v_lshl_add_u32 v{d}, v22, 7, v{d}")
            a("v_and_b32 v23, 7, v21")
            a(f"v_lshl_add_u32 v{d}, v23, 1, v{d}")
            a("v_lshl_add_u32 v23, v22, 5, v19")
            a(f"v_cndmask_b32 v{d}, v23, v{d}, vcc")
    for i in range(4):
        a(f"v_mov_b32 v{ST+i}, 0")
    for n in range(17):
        if n % 6 == 0:
            a(f"s_waitcnt vmcnt({max(17 - n - 5, 0)})")
        a(f"ds_read_b128 {vr(X+4*n)}, v7 offset:{1024*n}")
    a.stamp(2)
    for n in range(18):
        if n == 17:
            a("s_waitcnt vmcnt(0)")
        elif n % 4 == 0:
            a(f"s_waitcnt lgkmcnt({max(17 - n - 4, 0)})")
        for t in range(4):
            a(f"v_dot2_f32_bf16 v{ST+(t&1)}, v{X+4*n+t}, s40, v{ST+(t&1)}")
            a(f"v_dot2_f32_bf16 v{ST+2+(t&1)}, v{X+4*n+t}, v{X+4*n+t}, v{ST+2+(t&1)}")
    a("s_nop 2")
    a(f"v_add_f32 v{ST}, v{ST}, v{ST+1}")
    a(f"v_add_f32 v{ST+2}, v{ST+2}, v{ST+3}")
    cross_g_sum(a, ST, ST + 1)
    cross_g_sum(a, ST + 2, ST + 3)
    vMean, vRstd = 12, 13
    a(f"v_mul_f32 v{vMean}, {f32bits(-1.0/576)}, v{ST}")
    a(f"v_mov_b32 v{ST+1}, {f32bits(1e-5)}")
    a(f"v_fmac_f32 v{ST+1}, {f32bits(1.0/576)}, v{ST+2}")
    a(f"v_fma_f32 v{ST+1}, -v{vMean}, v{vMean}, v{ST+1}")
    a(f"v_max_f32 v{ST+1}, {f32bits(1e-5)}, v{ST+1}")
    a(f"v_rsq_f32 v{vRstd}, v{ST+1}")
    a("v_lshlrev_b32 v5, 4, v4")
    a(f"v_add_u32 v5, {CS}, v5")
    W = 136
    def reads(kk, t):
        wb = W + 20 * (kk & 1)
        vb = 8 if kk < 9 else 9
        o = (kk % 9) * 4608
        if t < 4:
            a(f"ds_read_b64_tr_b16 {vr(wb+4*t,2)}, v{vb} offset:{o+32*t}")
            a(f"ds_read_b64_tr_b16 {vr(wb+4*t+2,2)}, v{vb} offset:{o+32*t+144}")
        else:
            a(f"ds_read_b64_tr_b16 {vr(wb+16,2)}, v10")
            a(f"ds_read_b64_tr_b16 {vr(wb+18,2)}, v11")
            a("v_add_u32 v10, v10, v14")
            a("v_add_u32 v11, v11, v14")
    for kk in range(18):
        if kk % 6 == 0:
            a("s_barrier")
            if kk == 0: a.stamp(3)
            if kk == 12: a.stamp(4)
            for t in range(5): reads(kk, t)
        wb = W + 20 * (kk & 1)
        last = kk % 6 == 5
        for t in range(5):
            a(f"s_waitcnt lgkmcnt({8 - 2 * t if last else 8})")
            c = "0" if kk == 0 else vr(ACC + 4 * t)
            a(f"v_mfma_f32_16x16x32_bf16 {vr(ACC+4*t)}, {vr(wb+4*t)}, {vr(X+4*kk)}, {c}")
            if not last: reads(kk + 1, t)
    a.stamp(5)
    a("s_barrier")
    for t in range(5):
        a(f"ds_read_b128 {vr(CSA+4*t)}, v5 offset:{64*t}")
    a.stamp(6)
    a(f"v_mul_f32 v14, {f32bits(QSCALE)}, v{vRstd}")
    a("s_lshl_b32 s34, s32, 4")
    a("s_add_u32 s34, s34, s15")
    a(f"s_mul_i32 s34, s34, {ROW}")
    a(f"s_add_u32 s34, s34, {WS_Q}")
    a("v_cmp_gt_u32 vcc, 2, v4")
    a("s_lshr_b32 s35, s32, 1")
    a(f"s_mul_i32 s35, s35, {KVB}")
    a(f"v_cndmask_b32 v15, v{vRstd}, v14, vcc")
    a(f"s_add_u32 s35, s35, {WS_KV}")
    a("s_and_b32 s37, s32, 1")
    PK = X
    for t in (4, 0, 1, 2, 3):
        sc = 14 if t < 4 else 15
        if t == 4:
            a("s_waitcnt lgkmcnt(0)")
        for r in range(4):
            a(f"v_fmac_f32 v{ACC+4*t+r}, v{vMean}, v{CSA+4*t+r}")
        for r in range(4):
            a(f"v_mul_f32 v{ACC+4*t+r}, v{sc}, v{ACC+4*t+r}")
        a(f"v_cvt_pk_bf16_f32 v{PK+2*t}, v{ACC+4*t}, v{ACC+4*t+1}")
        a(f"v_cvt_pk_bf16_f32 v{PK+1+2*t}, v{ACC+4*t+2}, v{ACC+4*t+3}")
        if t < 4:
            for q in range(2):
                a(f"buffer_store_dword v{PK+2*t+q}, v{QA+2*t+q}, s[28:31], s34 offen")
    a("s_mov_b64 exec, vcc")
    for q in range(2):
        a(f"buffer_store_dword v{PK+8+q}, v{QA+8+q}, s[28:31], s34 offen")
    a("s_not_b64 exec, vcc")
    a("s_cmp_ge_u32 s15, 6")
    a("s_cbranch_scc1 K1_ones")
    a("s_cmp_ge_u32 s15, 3")
    a("s_cbranch_scc1 K1_v")
    a("s_lshl_b32 s38, s37, 4")
    a("v_add_u32 v8, s38, v3")
    a("s_cmp_eq_u32 s15, 2")
    a("s_cbranch_scc1 K1_k2")
    a("s_lshl_b32 s38, s15, 9")
    a("s_add_u32 s38, s38, s35")
    a("s_sub_u32 s38, s38, 16")
    a("v_lshlrev_b32 v9, 4, v8")
    a("v_lshl_add_u32 v9, v4, 3, v9")
    a(f"buffer_store_dwordx2 {vr(PK+8,2)}, v9, s[28:31], s38 offen")
    a.end(1, 28, 8)
    a.label("K1_k2")
    a("v_lshlrev_b32 v9, 4, v8")
    a("s_lshr_b32 s38, s32, 3")
    a("s_lshl_b32 s38, s38, 9")
    a("s_and_b32 s39, s32, 6")
    a("s_lshl_b32 s39, s39, 1")
    a("s_add_u32 s38, s38, s39")
    a(f"s_add_u32 s38, s38, {WS_KV + K2OFF}")
    a("s_mov_b32 s46, 0")
    a("s_mov_b32 s47, 0xffff0000")
    a("s_mov_b64 exec, s[46:47]")
    a(f"buffer_store_dword v{PK+9}, v9, s[28:31], s38 offen")
    a.end(1, 28, 8)
    a.label("K1_v")
    a("v_bfe_u32 v6, v3, 2, 1")
    a("v_mul_u32_u24 v6, 320, v6")
    a("v_and_b32 v7, 3, v3")
    a("v_lshl_add_u32 v6, v7, 1, v6")
    a("v_lshrrev_b32 v7, 3, v3")
    a("v_lshl_add_u32 v6, v7, 3, v6")
    a("v_lshl_add_u32 v6, v4, 6, v6")
    a("s_mul_i32 s38, s37, 640")
    a("s_add_u32 s38, s38, s35")
    a("s_sub_u32 s36, s15, 3")
    a("s_lshl_b32 s39, s36, 7")
    a("s_cmp_ge_u32 s36, 2")
    a("s_cselect_b32 s39, 160, s39")
    a("s_cselect_b32 s36, 16, 0")
    a("s_add_u32 s38, s38, s39")
    a("s_add_u32 s38, s38, 896")
    a("v_and_b32 v7, 1, v4")
    a("v_mul_u32_u24 v7, s36, v7")
    a("v_add_u32 v7, v7, v6")
    for r in range(4):
        op = "buffer_store_short" if r % 2 == 0 else "buffer_store_short_d16_hi"
        a(f"{op} v{PK + 8 + r // 2}, v{6 if r < 3 else 7}, s[28:31], s38 offen offset:{16*r}")
    a.end(1, 28, 8)
    a.label("K1_ones")
    a("s_mov_b64 exec, 15")
    a("s_cmp_eq_u32 s15, 6")
    a("s_cbranch_scc0 K1_flags")
    a("s_mul_i32 s38, s37, 640")
    a("s_add_u32 s38, s38, s35")
    a("v_lshrrev_b32 v6, 1, v2")
    a("v_mul_u32_u24 v6, 320, v6")
    a("v_and_b32 v7, 1, v2")
    a("v_lshl_add_u32 v6, v7, 5, v6")
    a(f"buffer_store_dwordx4 {vr(ONES)}, v6, s[28:31], s38 offen offset:{1024+17*16}")
    a.end(1, 28, 8)
    a.label("K1_flags")
    a.end(1, 28, 8)
    a.label("K1_loader")
    a("s_sub_u32 s50, s3, 4")
    a("s_lshr_b32 s70, s2, 3")
    a("s_and_b32 s71, s3, 1")
    a("s_lshl_b32 s71, s71, 5")
    a("s_add_u32 s70, s70, s71")
    a("v_lshlrev_b32 v5, 4, v2")
    a("s_cmp_lt_u32 s50, 2")
    a("s_cbranch_scc1 K1_nopf")
    a.codepf("k1_kernel", "K3_end", 70, 5, 120, 72)
    a.label("K1_nopf")
    def rowperm(v, t):
        a(f"v_and_b32 v{t}, 1, v{v}")
        a(f"v_lshlrev_b32 v{t}, 2, v{t}")
        a(f"v_bfe_u32 v{t+1}, v{v}, 1, 2")
        a(f"v_or_b32 v{t}, v{t}, v{t+1}")
        a(f"v_and_b32 v{v}, 0xf8, v{v}")
        a(f"v_or_b32 v{v}, v{v}, v{t}")
    for n, vd in ((0, 6), (1, 7), (2, 8)):
        if n < 2:
            a(f"s_lshl_b32 s34, s50, 6")
            a(f"s_add_u32 s34, s34, {256*n}")
            a(f"v_add_u32 v9, s34, v2")
        else:
            a(f"v_add_u32 v9, 512, v2")
        a("v_mul_u32_u24 v10, 7282, v9")
        a("v_lshrrev_b32 v10, 16, v10")
        a("v_mul_u32_u24 v11, 9, v10")
        a("v_sub_u32 v11, v9, v11")
        rowperm(10, 12)
        a(f"v_mul_u32_u24 v{vd}, {ROW}, v10")
        a(f"v_lshl_add_u32 v{vd}, v11, 4, v{vd}")
    a("v_mov_b32 v10, v2")
    rowperm(10, 12)
    a("v_mul_u32_u24 v9, 36, v10")
    a("v_bfe_u32 v12, v0, 2, 2")
    a("v_and_b32 v13, 3, v0")
    a("v_lshlrev_b32 v14, 3, v4")
    a("v_lshl_add_u32 v14, v12, 1, v14")
    a("v_mul_u32_u24 v15, 144, v14")
    a("v_lshl_add_u32 v15, v13, 3, v15")
    a("s_lshl_b32 s34, s50, 5")
    a("v_add_u32 v16, s34, v15")
    a(f"v_add_u32 v17, {9*4608}, v16")
    a("v_lshlrev_b32 v18, 4, v14")
    a("v_lshl_add_u32 v18, v13, 3, v18")
    a(f"v_add_u32 v18, {KVIMG-16}, v18")
    a("v_add_u32 v19, 16, v18")
    a("v_add_u32 v15, 128, v15")
    a("v_cmp_gt_u32 vcc, 2, v13")
    a("v_mov_b32 v20, 512")
    a("v_mov_b32 v12, 4608")
    a("v_cndmask_b32 v18, v18, v15, vcc")
    a("v_add_u32 v15, 144, v15")
    a("v_cndmask_b32 v20, v20, v12, vcc")
    a("v_cndmask_b32 v19, v19, v15, vcc")
    for i in range(4):
        a(f"v_mov_b32 v{24+i}, 0x3f803f80")
    a("v_lshlrev_b32 v21, 4, v4")
    a("s_lshl_b32 s34, s50, 6")
    a(f"s_add_u32 s34, s34, {CS}")
    a("v_add_u32 v21, s34, v21")
    a("s_waitcnt lgkmcnt(0)")
    a.srd(20, 6, 576 * ROW)
    a("s_cmp_lt_u32 s15, 3")
    a("s_cselect_b32 s24, s8, s10")
    a("s_cselect_b32 s25, s9, s11")
    a(f"s_mov_b32 s26, {576*36}")
    a("s_mov_b32 s27, 0x00020000")
    a.srd(28, 12, WS_SIZE)
    a("s_cselect_b32 s36, 0, 3")
    a("s_sub_u32 s36, s15, s36")
    a("s_lshl_b32 s37, s36, 4")
    a("s_cmp_ge_u32 s36, 2")
    a("s_cselect_b32 s37, 20, s37")
    a("s_mul_i32 s33, s15, 144")
    a("s_lshl_b32 s35, s50, 10")
    a(f"s_mov_b32 s38, {KVIMG}")
    a("s_mov_b32 s39, 8192")
    a.stamp(1)
    for v_ in (0, 1, 3):
        a(f"s_cmp_eq_u32 s50, {v_}")
        a(f"s_cbranch_scc1 K1_dma{v_}")
    def colsum(ch, both):
        F = 32
        for k in range(6):
            kk = 6 * ch + k
            vb = 16 if kk < 9 else 17
            o = (kk % 9) * 4608
            a(f"ds_read_b64_tr_b16 {vr(F+4*k,2)}, v{vb} offset:{o}")
            a(f"ds_read_b64_tr_b16 {vr(F+4*k+2,2)}, v{vb} offset:{o+144}")
        if both:
            for k in range(6):
                a(f"ds_read_b64_tr_b16 {vr(F+24+4*k,2)}, v18")
                a(f"ds_read_b64_tr_b16 {vr(F+24+4*k+2,2)}, v19")
                a("v_add_u32 v18, v18, v20")
                a("v_add_u32 v19, v19, v20")
        a("s_waitcnt lgkmcnt(0)")
        for k in range(6):
            c = "0" if (ch == 0 and k == 0) else "v[28:31]"
            a(f"v_mfma_f32_16x16x32_bf16 v[28:31], {vr(F+4*k)}, v[24:27], {c}")
            if both:
                c = "0" if (ch == 0 and k == 0) else "v[80:83]"
                a(f"v_mfma_f32_16x16x32_bf16 v[80:83], {vr(F+24+4*k)}, v[24:27], {c}")
    for variant in (2, 0, 1, 3):
        if variant != 2:
            a.label(f"K1_dma{variant}")
        per = 3 if variant in (0, 1) else 2
        if variant == 3:
            a("s_min_u32 s54, s2, 161")
            RL.params_wo(a, 54, 56, 64, 52)
            RL.voff_src(a, 84, 86, 56)
            RL.voff_dst(a, 85, 86)
            for it in RL.loads(88, 84, 56, 64, "raw"):
                a.emit(it)
            a("s_mov_b32 s68, 0x05040100")
            a("s_mov_b32 s69, 0x07060302")
        for blk in range(9):
            a(f"s_mul_i32 s34, s48, {64*ROW}")
            a("s_add_u32 s34, s34, s33")
            a("s_mov_b32 m0, s35")
            a("s_add_u32 s40, s35, 4096")
            a("buffer_load_dwordx4 v6, s[20:23], s34 offen lds")
            a("s_mov_b32 m0, s40")
            a("s_add_u32 s35, s35, 9216")
            a("buffer_load_dwordx4 v7, s[20:23], s34 offen lds")
            if variant == 0:
                a("s_mov_b32 m0, s39")
                a("s_add_u32 s39, s39, 9216")
                a("buffer_load_dwordx4 v8, s[20:23], s34 offen lds")
            if variant == 1:
                a(f"s_mul_i32 s34, s48, {64*36}")
                a("s_add_u32 s34, s34, s37")
                a("s_mov_b32 m0, s38")
                a("s_add_u32 s38, s38, 1024")
                a("buffer_load_dwordx4 v9, s[24:27], s34 offen lds")
            a("s_add_u32 s48, s48, 1")
            a("s_cmp_ge_u32 s48, 9")
            a("s_cselect_b32 s48, 0, s48")
            if blk == 5:
                a(f"s_waitcnt vmcnt({3*per})")
                a.stamp(2)
                a("s_barrier")
                a.stamp(3)
        a(f"s_waitcnt vmcnt({3*per})")
        a("s_barrier")
        colsum(0, variant == 2)
        a("s_waitcnt vmcnt(0)")
        a.stamp(4)
        a("s_barrier")
        colsum(1, variant == 2)
        colsum(2, variant == 2)
        a("s_mov_b32 s44, 0x00010001")
        a("s_mov_b32 s45, 0x00010001")
        a("s_nop 7")
        a("s_mov_b64 exec, s[44:45]")
        a("ds_write_b128 v21, v[28:31]")
        if variant == 2:
            a("ds_write_b128 v21, v[80:83] offset:128")
        a("s_mov_b64 exec, -1")
        a("s_waitcnt lgkmcnt(0)")
        a("s_barrier")
        if variant == 3:
            a("s_cmp_ge_u32 s2, 162")
            a("s_cbranch_scc1 K1_nowo")
            for it in RL.perms_stores(88, [104, 108, 112, 116], 85, 56, 28, 68, 69, "st"):
                a.emit(it)
            a.label("K1_nowo")
        a.end(1, 28, 8)
    a.label("K1_end")
    a("s_endpgm")
    return K, desc(K, 188), (256, 512, LDS)
```

```python
from common import *
import relayout as RL
QB   = 0
OB   = 8 * 1536
STAT = OB + 18 * 512
MX   = STAT + 1024
PS   = MX + 1024
XS   = PS + 2 * 8 * 2560
STG  = XS + 8 * 1184
LDS  = STG + 8 * 10240

KF = [20 + 4 * s for s in range(8)]
K2F = 52
VF = [[60 + 8 * s, 64 + 8 * s] for s in range(8)]
S = [124, 140]
P = 156
O = [164, 180]
QR = [196, 204]
WACC = 212
WA = 232
WB = 252
vL16, vV, vK2, vL4, vOBr, vT0, vT1, vT2, vT3 = 5, 6, 7, 8, 9, 10, 11, 12, 13
vLo = 14
vX = 15
vSt, vStr = 16, 17
vPw, vPw8, vPr, vPr8 = 16, 17, 18, 19
vOw = 1

def k2(a):
    K = "k2_kernel"
    a.begin(K)
    a("s_cmp_ge_u32 s2, 256")
    a("s_cbranch_scc1 K2_end")
    a.stamp(0); a.stampc(10)
    a(f"s_load_dwordx2 s[4:5], s[0:1], {A_WS}")
    a(f"s_load_dwordx2 s[6:7], s[0:1], {A_X}")
    a(f"s_load_dwordx2 s[80:81], s[0:1], {A_W1}")
    a(f"s_load_dwordx2 s[82:83], s[0:1], {A_W2}")
    a("v_lshrrev_b32 v1, 6, v0")
    a("v_and_b32 v2, 63, v0")
    a("v_readfirstlane_b32 s3, v1")
    a("s_mov_b32 s22, 0")
    a.label("K2_main")
    a("v_and_b32 v3, 31, v0")
    a("v_bfe_u32 v4, v0, 5, 1")
    a(f"v_lshlrev_b32 v{vL16}, 4, v2")
    a(f"v_lshlrev_b32 v{vL4}, 2, v2")
    a(f"s_mul_i32 s16, s2, {8*ROW}")
    a(f"s_add_u32 s16, s16, {WS_Q}")
    a(f"s_mul_i32 s54, s3, {ROW}")
    a("s_add_u32 s54, s54, s16")
    a(f"v_lshl_or_b32 v{vT0}, v4, 30, v{vL4}")
    a(f"v_mul_u32_u24 v{vV}, 320, v4")
    a(f"v_lshl_add_u32 v{vV}, v3, 4, v{vV}")
    a(f"v_add_u32 v{vV}, 1024, v{vV}")
    a(f"v_subrev_u32 v18, 32, v{vV}")
    a(f"v_and_b32 v19, 30, v3")
    a("v_cmp_eq_u32 vcc, 20, v19")
    a("v_cmp_gt_u32 s[20:21], 18, v3")
    a(f"v_mov_b32 v19, {OOB}")
    a(f"v_cndmask_b32 v18, v19, v18, vcc")
    a(f"v_cndmask_b32_e64 v{vV}, v18, v{vV}, s[20:21]")
    a(f"v_lshl_or_b32 v{vK2}, v4, 30, v{vL16}")
    a("v_cmp_eq_u32 s[20:21], 0, v4")
    a("s_lshr_b32 s18, s2, 3")
    a("s_lshl_b32 s19, s3, 1")
    a("s_add_u32 s18, s18, s19")
    a("s_and_b32 s18, s18, 15")
    a("s_add_u32 s19, s18, 1")
    a("s_and_b32 s19, s19, 15")
    for s in range(8):
        a(f"s_mul_i32 s{24+s}, s{18 + s // 4}, {4*KVB}")
        if s % 4:
            a(f"s_add_u32 s{24+s}, s{24+s}, {(s % 4) * KVB}")
    for k in (18, 19):
        a(f"s_lshl_b32 s{k}, s{k}, 9")
        a(f"s_add_u32 s{k}, s{k}, {K2OFF}")
    a("s_waitcnt lgkmcnt(0)")
    a.srd(8, 4, WS_SIZE)
    a.srd(12, 4, KV_BYTES, WS_KV)
    def ldK(s):
        L = [("vm", ("k", s), f"buffer_load_dwordx4 {vr(KF[s])}, v{vL16}, s[12:15], s{24+s} offen")]
        if s % 4 == 0:
            L.append(("vm", ("k", s), f"buffer_load_dwordx4 {vr(K2F+s)}, v{vK2}, s[12:15], s{18 + s // 4} offen"))
        return L
    def fixK2(b):
        return [f"v_cndmask_b32_e64 v{K2F+b+i}, v{vT2}, v{K2F+b+i}, s[20:21]" for i in range(4)]
    def ldV(s):
        return [("vm", ("v", s), f"buffer_load_dwordx4 {vr(VF[s][0])}, v{vV}, s[12:15], s{24+s} offen"),
                ("vm", ("v", s), f"buffer_load_dwordx4 {vr(VF[s][1])}, v{vV}, s[12:15], s{24+s} offen offset:640")]
    a.vm("q0", f"buffer_load_dwordx4 {vr(QR[0])}, v{vL16}, s[8:11], s16 offen")
    a.vm("q0", f"buffer_load_dword v{QR[0]+4}, v{vT0}, s[8:11], s16 offen offset:1024")
    for it in ldK(0) + ldK(1) + ldV(0):
        a.emit(it)
    a("s_mul_i32 s17, s3, 1536")
    a("s_cmp_eq_u32 s22, 0")
    a(f"s_cselect_b32 s17, s17, {XS}")
    a("s_mov_b32 m0, s17")
    a(f"v_add_u32 v{vPr}, s17, v{vL4}")
    a.vm("q", f"buffer_load_dwordx4 v{vL16}, s[8:11], s54 offen lds")
    a.vm("q", f"buffer_load_dword v{vT0}, s[8:11], s54 offen offset:1024 lds")
    a(f"v_mov_b32 v{QR[0]+5}, 0")
    a(f"ds_write_b32 v{vPr}, v{QR[0]+5} offset:1280")
    a("s_lshr_b32 s41, s2, 3")
    a("s_cmp_lg_u32 s3, 7")
    a("s_cbranch_scc1 K2_nopf")
    a.codepf("k2_kernel", "K2_end", 41, vL16, WA, 42)
    a.vmq.pop()
    a.label("K2_nopf")
    a.srd(32, 4, WOF_BYTES, WS_WOF)
    a.srd(36, 6, 2048 * ROW)
    a(f"v_bfe_u32 v{vT0}, v0, 4, 2")
    a(f"v_and_b32 v{vT3}, 7, v0")
    a(f"v_lshlrev_b32 v{vOBr}, 7, v{vT0}")
    a(f"v_lshl_add_u32 v{vOBr}, v{vT3}, 4, v{vOBr}")
    a(f"v_add_u32 v{vOBr}, {OB}, v{vOBr}")
    a(f"v_bfe_u32 v{vT1}, v0, 3, 2")
    a(f"v_lshl_add_u32 v{vT1}, v{vT1}, 1, v4")
    a(f"v_lshlrev_b32 v{vLo}, 4, v{vT3}")
    a(f"v_lshl_add_u32 v{vLo}, v{vT1}, 1, v{vLo}")
    a(f"v_add_u32 v{vLo}, {OB+8192}, v{vLo}")
    a(f"v_mul_u32_u24 v{vX}, 1184, v{vT3}")
    a(f"v_lshl_add_u32 v{vX}, v{vT0}, 3, v{vX}")
    a("s_lshl_b32 s17, s3, 5")
    a(f"s_add_u32 s17, s17, {XS}")
    a(f"v_add_u32 v{vX}, s17, v{vX}")
    a("s_mul_i32 s55, s3, 10240")
    a(f"s_add_u32 s55, s55, {STG}")
    a("s_mul_i32 s17, s3, 2560")
    a(f"s_add_u32 s17, s17, {PS}")
    a(f"v_add_u32 v{vPw}, s17, v{vL16}")
    a(f"v_lshlrev_b32 v{vPr8}, 3, v2")
    a(f"v_add_u32 v{vPw8}, s17, v{vPr8}")
    a(f"v_add_u32 v{vPr8}, {PS}, v{vPr8}")
    a("s_and_b32 s52, s3, 3")
    a("s_lshr_b32 s53, s3, 2")
    a("s_lshr_b32 s17, s52, 1")
    a("s_lshl_b32 s17, s17, 10")
    a("s_and_b32 s41, s52, 1")
    a("s_lshl_b32 s41, s41, 3")
    a("s_add_u32 s17, s17, s41")
    a(f"s_add_u32 s17, s17, {PS}")
    a(f"v_add_u32 v{vPr}, s17, v{vL16}")
    a("s_lshl_b32 s17, s52, 2")
    a(f"v_add_u32 v{vOw}, s17, v{vL16}")
    a("s_mov_b32 s23, 0")
    a(f"s_mul_i32 s40, s3, {18*1024}")
    a(f"v_mov_b32 v{QR[0]+6}, 0")
    a(f"v_mov_b32 v{vT2}, 0x3f803f80")
    def rdQ(p):
        o = (QB + 1536 * p + 1024) // 256
        return [f"ds_read_b128 {vr(QR[p&1])}, v{vL16} offset:{QB+1536*p}",
                f"ds_read2st64_b32 {vr(QR[p&1]+4,2)}, v{vL4} offset0:{o} offset1:{o+1}",
                f"ds_read2st64_b32 {vr(QR[p&1]+6,2)}, v{vL4} offset0:{o+1} offset1:{o}"]
    a.stamp(1)
    a.waitvm(("k", 0))
    for it in fixK2(0): a(it)
    a(f"v_mov_b32 v{QR[0]+7}, v{QR[0]+4}")
    a("s_cmp_eq_u32 s22, 0")
    a("s_cbranch_scc1 K2_go")
    for it in rdQ(0):
        a(it)
    a("s_waitcnt lgkmcnt(0)")
    a.label("K2_go")
    def qk1(t):
        p, s = divmod(t, 8)
        return f"v_mfma_f32_32x32x16_bf16 {vr(S[t&1],16)}, {vr(KF[s])}, {vr(QR[p&1])}, 0"
    def qk2(t):
        p, s = divmod(t, 8)
        return f"v_mfma_f32_32x32x8_bf16 {vr(S[t&1],16)}, {vr(K2F+(s&~1),2)}, {vr(QR[p&1]+4+2*(s&1),2)}, {vr(S[t&1],16)}"
    def pv(t, half):
        p, s = divmod(t, 8)
        c = "0" if (s == 0 and half == 0) else vr(O[p & 1], 16)
        return f"v_mfma_f32_32x32x16_bf16 {vr(O[p&1],16)}, {vr(VF[s][half])}, {vr(P+4*half)}, {c}"
    def ex(t, i):
        return f"v_exp_f32 v{S[t&1]+i}, v{S[t&1]+i}"
    def cv(t, i):
        return f"v_cvt_pk_bf16_f32 v{P+i}, v{S[t&1]+2*i}, v{S[t&1]+2*i+1}"
    a.stamp(2)
    a(qk1(0)); a(qk2(0))
    for it in ldK(2) + ldK(3) + ldV(1):
        a.emit(it)
    a("s_and_b32 s84, s2, 7")
    a("s_andn2_b32 s85, s2, 7")
    a("s_add_u32 s85, s85, s3")
    RL.params_w12(a, 84, 85, 56, 64, 80, 82)
    a("s_lshr_b32 s85, s2, 3")
    a("s_lshl_b32 s17, s85, 1")
    a("s_add_u32 s17, s17, s3")
    a("s_add_u32 s17, s17, 256")
    a("s_add_u32 s85, s85, 320")
    a("s_cmp_lt_u32 s3, 2")
    a("s_cselect_b32 s85, s17, s85")
    a("s_cmp_gt_u32 s3, 2")
    a("s_cselect_b32 s85, 999, s85")
    RL.params_w12(a, 84, 85, 68, 76, 80, 82)

    def e1(p):
        o = O[p & 1]; b = (p & 1) * 20480
        return [f"ds_write_b128 v{vPw}, {vr(o)} offset:{b}", f"ds_write_b128 v{vPw}, {vr(o+4)} offset:{b+1024}",
                f"ds_write_b64 v{vPw8}, {vr(o+8,2)} offset:{b+2048}"]
    def guard(p, tag, body):
        return [f"s_cmp_lg_u32 s53, {p & 1}", f"s_cbranch_scc1 K2_{tag}"] + body + [("label", f"K2_{tag}")]
    def rdP(p, half):
        o = O[p & 1]; b = (p & 1) * 20480 + half * 4 * 2560
        L = []
        for k in range(4):
            L.append(f"ds_read_b64 {vr(o+4*k,2)}, v{vPr} offset:{b+2560*k}")
            L.append(f"ds_read_b64 {vr(o+4*k+2,2)}, v{vPr8} offset:{b+2560*k+2048}")
        return L
    def e2a(p):
        return guard(p, f"e2a{p}", rdP(p, 0))
    def e2b(p):
        o = O[p & 1]
        L = ["s_waitcnt lgkmcnt(0)"]
        for q in range(2):
            L.append(f"v_pk_add_f32 {vr(o+2*q,2)}, {vr(o+2*q,2)}, {vr(o+4+2*q,2)}")
            L.append(f"v_pk_add_f32 {vr(o+8+2*q,2)}, {vr(o+8+2*q,2)}, {vr(o+12+2*q,2)}")
        for q in range(2):
            L.append(f"v_pk_add_f32 {vr(vT0+2*q,2)}, {vr(o+2*q,2)}, {vr(o+8+2*q,2)}")
        return guard(p, f"e2b{p}", L + rdP(p, 1))
    def e2c(p):
        o = O[p & 1]
        L = ["s_waitcnt lgkmcnt(0)"]
        for q in (1, 0):
            L.append(f"v_pk_add_f32 {vr(o+2*q,2)}, {vr(o+2*q,2)}, {vr(o+4+2*q,2)}")
            L.append(f"v_pk_add_f32 {vr(o+8+2*q,2)}, {vr(o+8+2*q,2)}, {vr(o+12+2*q,2)}")
            L.append(f"v_pk_add_f32 {vr(vT0+2*q,2)}, {vr(vT0+2*q,2)}, {vr(o+2*q,2)}")
            L.append(f"v_pk_add_f32 {vr(vT0+2*q,2)}, {vr(vT0+2*q,2)}, {vr(o+8+2*q,2)}")
            if q == 1:
                L.append(f"v_rcp_f32 v{o+6}, v{vT3}")
        L.append(f"v_subrev_u32 v{o+7}, {f32bits(2.0**-60)}, v{vT3}")
        L.append(f"v_pk_mul_f32 {vr(vT0,2)}, {vr(vT0,2)}, {vr(o+6,2)} op_sel_hi:[1,0]")
        L.append(f"v_cmp_lt_u32 vcc, {120 << 23}, v{o+7}")
        L.append(f"v_mul_f32 v{vT2}, v{o+6}, v{vT2}")
        L.append(f"v_cvt_pk_bf16_f32 v{vT0}, v{vT0}, v{vT1}")
        L.append(f"v_cvt_pk_bf16_f32 v{vT2}, v{vT2}, v{vT2}")
        L.append(f"ds_write_b32 v{vOw}, v{vT0} offset:{OB+1024*p}")
        L.append(f"ds_write_b16 v{vLo}, v{vT2} offset:{128*p}")
        L.append(f"s_or_b32 s23, s23, vcc_lo")
        L.append(f"s_or_b32 s23, s23, vcc_hi")
        return guard(p, f"e2c{p}", L)
    def ldWA(ks, base):
        L = []
        for t in range(5):
            L.append(f"s_add_u32 s41, s40, {t*8*18*1024 + ks*1024}")
            L.append(("vm", ("wa", ks), f"buffer_load_dwordx4 {vr(base[t])}, v{vL16}, s[32:35], s41 offen"))
        return L
    def rdWB(ks, wb):
        return [f"ds_read_b128 {vr(wb)}, v{vOBr} offset:{512*ks}"]
    first_wo = [True]
    def woM(ks, base, wb):
        L = []
        for t in range(5):
            c = "0" if first_wo[0] else vr(WACC + 4 * t)
            L.append(f"v_mfma_f32_16x16x32_bf16 {vr(WACC+4*t)}, {vr(base[t])}, {vr(wb)}, {c}")
        first_wo[0] = False
        return L
    WAb = [WA + 4 * t for t in range(5)]
    WA2 = [VF[0][0], VF[0][1], VF[1][0], VF[1][1], KF[0]]
    WA3 = [VF[2][0], VF[2][1], VF[3][0], VF[3][1], KF[1]]
    WA4 = [VF[4][0], VF[4][1], KF[2], KF[3], KF[4]]
    XR = VF[5][0]

    uses = {}
    order = []
    for tu, ks in ((22, 0), (26, 1), (28, 2), (30, 3), (35, 4), (38, 5), (42, 6), (44, 7), (46, 16), (51, 8), (54, 9), (58, 10), (60, 11)):
        uses[tu] = (ks, WAb)
        order.append((tu, ks))
    side_ld = {}
    side_ld[20] = ldWA(order[0][1], WAb)
    extra = {}
    def addx(t, groups):
        extra.setdefault(t, []).extend(groups)
    vSrc, vTr = vV, 4
    def rl_init(S_, vSrc):
        return [f"v_lshrrev_b32 v{vSrc}, 3, v2", f"v_mul_lo_u32 v{vSrc}, v{vSrc}, s{S_+2}", f"v_and_b32 v{vK2}, 7, v2",
                f"v_lshl_add_u32 v{vSrc}, v{vK2}, 4, v{vSrc}", f"s_lshl_b32 s{S_+6}, s{S_+2}, 3"]
    def rl_dma(S_, R_, ldsoff, tag, n, vSrc):
        ld = f"buffer_load_dwordx4 v{vSrc}, s[{R_}:{R_+3}], s{S_+1} offen lds"
        return [f"s_add_u32 s41, s55, {ldsoff+1024*n}", "s_mov_b32 m0, s41", "s_nop 0",
                ("vm", tag, ld) if tag else ld, f"s_add_u32 s{S_+1}, s{S_+1}, s{S_+6}"]
    def rl_rd(ldsoff, q, d):
        return [f"ds_read_b64_tr_b16 {vr(d,2)}, v{vTr} offset:{ldsoff+32*q}",
                f"ds_read_b64_tr_b16 {vr(d+2,2)}, v{vTr} offset:{ldsoff+32*q+2048}"]
    def rl_st(S_, tag, d):
        st = f"buffer_store_dwordx4 {vr(d)}, v{vL16}, s[8:11], s{S_+5} offen{Opt.WST}"
        return ["s_waitcnt lgkmcnt(0)", ("vm", tag, st) if tag else st, f"s_add_u32 s{S_+5}, s{S_+5}, 18432"]
    def opt(tag, body):
        return ["s_cmp_ge_u32 s85, 324", f"s_cbranch_scc1 K2_{tag}"] + body + [("label", f"K2_{tag}")]
    if Opt.FOLD:
        for n, t_ in enumerate((6, 8, 11, 13)):
            addx(t_, [[], (rl_init(56, vV) if n == 0 else []) + rl_dma(56, 64, 0, "rl", n, vV)])
        for n, t_ in enumerate((5, 7, 10, 12)):
            addx(t_, [[], (rl_init(68, WACC) if n == 0 else []) + opt(f"rlb{n}", rl_dma(68, 76, 4096, None, n, WACC))])
        addx(15, [[f"v_lshrrev_b32 v{vTr}, 2, v2", f"v_lshlrev_b32 v{vTr}, 7, v{vTr}", f"v_and_b32 v{vK2}, 3, v2",
                   f"v_lshl_add_u32 v{vTr}, v{vK2}, 3, v{vTr}", f"v_add_u32 v{vTr}, s55, v{vTr}"]])
        addx(18, [[("wait", "rl")] + rl_rd(0, 0, WACC + 4)] + [rl_rd(0, q, WACC + 4 + 4 * q) for q in range(1, 4)])
        addx(19, [rl_st(56, "rs", WACC + 4 + 4 * q) for q in range(4)])
        addx(20, [[], opt("rlr", [x for q in range(4) for x in rl_rd(4096, q, WACC + 4 + 4 * q)])])
        addx(21, [opt(f"rls{q}", rl_st(68, None, WACC + 4 + 4 * q)) for q in range(4)])
    addx(37, [[f"s_lshl_b32 s41, s2, 3", "s_add_u32 s41, s41, s3", f"s_mul_i32 s41, s41, {ROW}", "s_mul_i32 s42, s3, 1184", f"s_add_u32 s42, s42, {XS}",
              "s_mov_b32 m0, s42", "s_nop 0", ("vm", "x", f"buffer_load_dwordx4 v{vL16}, s[36:39], s41 offen lds")],
             ["s_mov_b64 exec, 0xff", ("vm", "x", f"buffer_load_dwordx4 v{vL16}, s[36:39], s41 offen offset:1024 lds"), "s_mov_b64 exec, -1"]])
    for n, t_ in enumerate((15, 16, 17)):
        addx(t_, [["s_andn2_b32 s41, s2, 7", "s_add_u32 s41, s41, s3", "s_mul_i32 s41, s41, 2624", f"s_add_u32 s41, s41, {1024*n}",
                   "s_add_u32 s42, s55, 9216", "s_mov_b32 m0, s42", "s_nop 0",
                   ("vm", "pf", f"buffer_load_dwordx4 v{vL16}, s[32:35], s41 offen lds")]])
    addx(8, [["s_lshl_b32 s43, s2, 3", "s_add_u32 s43, s43, s3", "s_mul_i32 s43, s43, 9216", f"s_add_u32 s43, s43, {WS_PART}"]])
    for k, t_ in enumerate((24, 25, 32, 33, 34, 40, 41, 48, 49)):
        if t_ in (24, 32, 40, 48):
            addx(t_, [[f"v_mov_b32 v{vT0+i}, {POISON}" for i in range(4)]])
        addx(t_, [[("vm", "po", f"buffer_store_dwordx4 {vr(vT0)}, v{vL16}, s[8:11], s43 offen sc1"), "s_add_u32 s43, s43, 1024"]])
    for n in range(10):
        ks, t_ = 14 + n // 5, n % 5
        addx((37, 50, 50, 53, 53)[n // 2],
             [[f"s_add_u32 s42, s55, {1024*n}", "s_mov_b32 m0, s42", f"s_add_u32 s41, s40, {t_*8*18*1024 + ks*1024}",
               ("vm", "stg", f"buffer_load_dwordx4 v{vL16}, s[32:35], s41 offen lds")]])
    addx(62, [[f"v_add_u32 v{vK2}, s55, v{vL16}"]] + [[f"ds_read_b128 {vr(WAb[n])}, v{vK2} offset:{1024*n}"] for n in range(5)])
    addx(63, [[f"ds_read_b128 {vr(WA4[n])}, v{vK2} offset:{1024*(5+n)}"] for n in range(5)])
    for (tu, ks), (tn, kn) in zip(order[:-1], order[1:]):
        side_ld[tu + 1] = ldWA(kn, WAb)
    side_ld[8 * 7 + 3] = side_ld[8 * 7 + 3] + ldWA(12, WA2)
    side_ld[8 * 7 + 5] = ldWA(13, WA3)
    side_ld[8 * 7 + 7] = ldWA(17, WA2)
    uses[8 * 7 + 6] = (12, WA2)
    uses[8 * 7 + 7] = (13, WA3)
    PRIO = {2: 3, 5: 2, 0: 1, 1: 0}

    for t in range(64):
        p, s = divmod(t, 8)
        m = [ex(t, 0), ex(t, 1)]
        m += [pv(t - 1, 1)] if t > 0 else ["s_nop 0"]
        m += [ex(t, i) for i in range(2, 7)]
        m += [qk1(t + 1)] if t < 63 else ["s_nop 0"]
        m += [ex(t, 7)] + [cv(t, i) for i in range(4)] + [ex(t, 8), ex(t, 9)]
        m += [qk2(t + 1)] if t < 63 else ["s_nop 0"]
        m += [ex(t, i) for i in range(10, 15)]
        m += [pv(t, 0)]
        m += [ex(t, 15)] + [cv(t, i) for i in range(4, 8)]
        sd = {i: [] for i in range(29)}
        sd[0].append("s_nop 0")
        if Opt.DBG:
            sd[0].append("s_memtime s[86:87]")
            sd[27] += ["s_waitcnt lgkmcnt(0)", f"v_writelane_b32 v3, s86, {t}"]
        if p == 0:
            if t < 63 and s + 1 < 8:
                sd[8].append(("wait", ("k", s + 1)))
                if s == 3:
                    sd[8] += fixK2(4)
            sd[22].append(("wait", ("v", s)))
            L = []
            if s % 2 == 0 and s + 4 < 8:
                L += ldK(s + 4) + ldK(s + 5)
            if s + 2 < 8:
                L += ldV(s + 2)
            for i, it in enumerate(L):
                sd[1 + i * 26 // len(L)].append(it)
            if s == 3:
                sd[28] += ["s_waitcnt lgkmcnt(0)", "s_barrier"]
        if s == 4 and p < 7:
            sd[3] += rdQ(p + 1)
        if s == 7 and p < 7:
            sd[8].append("s_waitcnt lgkmcnt(0)")
        if p >= 1:
            if s == 0:
                for i, it in enumerate(e1(p - 1)):
                    sd[17 + 4 * i].append(it)
            if s == 1:
                sd[28] += ["s_waitcnt lgkmcnt(0)", "s_barrier"] + e2a(p - 1)
                if p in (1, 4, 7):
                    sd[28].append(("stamp", {1: 3, 4: 4, 7: 5}[p]))
            if s == 3:
                sd[0] += e2b(p - 1)
            if s == 4:
                sd[0] += e2c(p - 1)
        if p == 7 and s == 5:
            sd[0] += ["s_waitcnt lgkmcnt(0)", "s_barrier"]
        if t + 1 in uses:
            sd[28 if s == 1 else 24] += rdWB(uses[t + 1][0], WB)
        if t in uses:
            ks, base = uses[t]
            sd[6] += [("wait", ("wa", ks), " lgkmcnt(0)")]
            for pos, it in zip((6, 13, 14, 20, 21), woM(ks, base, WB)):
                sd[pos].append(it)
        if t in side_ld:
            L = side_ld[t]
            n = len(L) // 2
            lo = 22 if (t in uses and uses[t][1][0] in [int(x[2].split("v[")[1].split(":")[0]) for x in L[1::2]]) else 1
            for i in range(n):
                pos = lo + i * (27 - lo) // n
                sd[pos] += L[2 * i:2 * i + 2]
        if t in extra:
            G_ = extra[t]
            for i, g_ in enumerate(G_):
                sd[3 + i * 24 // len(G_)] += g_
        pr = PRIO.get(s)
        if p == 0: pr = {0: 3, 2: 1, 3: 0, 4: 3, 6: 2}.get(s)
        if p == 7: pr = {2: 3, 3: 2, 4: 1, 5: 3, 6: 2, 7: 1, 0: 1, 1: 0}.get(s)
        if pr is not None:
            sd[0].insert(0, f"s_setprio {pr}")
        for it in weave(m, sd):
            a.emit(it)
    a("s_nop 1")
    a(pv(63, 1))
    XR = S[0]
    for t in range(5):
        a(f"ds_read_b64 {vr(XR+2*t,2)}, v{vX} offset:{256*t}")
    a("s_nop 4")
    a("s_nop 2")
    for it in e1(7):
        a(it)
    a("s_lshr_b32 s44, s2, 3")
    a("s_bfe_u32 s45, s2, 0x20001")
    a("s_and_b32 s46, s2, 1")
    a("s_lshl_b32 s46, s46, 8")
    a("s_mul_i32 s47, s44, 73728")
    a("s_lshr_b32 s48, s3, 1")
    a("s_lshl_b32 s48, s48, 12")
    a("s_add_u32 s47, s47, s48")
    a("s_lshl_b32 s48, s45, 10")
    a("s_add_u32 s47, s47, s48")
    a("s_and_b32 s48, s3, 1")
    a("s_lshl_b32 s48, s48, 9")
    a("s_add_u32 s47, s47, s48")
    a("s_add_u32 s47, s47, s46")
    a(f"s_add_u32 s47, s47, {WS_XN}")
    a("s_mul_i32 s49, s44, 36")
    a("s_add_u32 s49, s49, s3")
    a("s_lshl_b32 s49, s49, 11")
    a("s_lshl_b32 s48, s45, 9")
    a("s_add_u32 s49, s49, s48")
    a("s_add_u32 s49, s49, s46")
    a(f"s_add_u32 s49, s49, {WS_HRES}")
    a("s_waitcnt lgkmcnt(0)")
    a("s_barrier")
    a.stamp(6)
    for it in e2a(7) + e2b(7) + e2c(7):
        a.emit(it)
    a("s_nop 0")
    a(f"v_bfe_u32 v{vPr}, v0, 4, 2")
    a(f"v_and_b32 v{vPr8}, 7, v0")
    a(f"v_lshlrev_b32 v{vSt}, 6, v{vPr}")
    a(f"v_lshl_add_u32 v{vSt}, v{vPr8}, 3, v{vSt}")
    a("s_waitcnt lgkmcnt(0)")
    a(f"v_and_b32 v{vT1}, 8, v0")
    a(f"v_cmp_eq_u32 s[50:51], 0, v{vT1}")
    a(f"v_mov_b32 v{vT1}, s47")
    a(f"v_mov_b32 v{vT2}, s49")
    a(f"v_cndmask_b32_e64 v{vT1}, v{vT1}, v{vT2}, s[50:51]")
    a(f"v_add_u32 v{vSt}, v{vSt}, v{vT1}")
    a("s_waitcnt lgkmcnt(0)")
    a("s_barrier")
    WBs = [WB, P, P + 4]
    for ks, wb in zip((14, 15, 17), WBs):
        a(rdWB(ks, wb)[0])
    XF = S[1]
    xf = [XF + i for i in range(16)] + [O[0] + i for i in range(4)]
    a("s_cmp_lt_u32 s3, 4")
    a("s_cselect_b32 s17, -1, 0")
    a(f"v_and_b32 v{XR+8}, s17, v{XR+8}")
    a(f"v_and_b32 v{XR+9}, s17, v{XR+9}")
    for t in range(5):
        for q in range(2):
            a(f"v_lshlrev_b32 v{xf[4*t+2*q]}, 16, v{XR+2*t+q}")
            a(f"v_and_b32 v{xf[4*t+2*q+1]}, 0xffff0000, v{XR+2*t+q}")
    a("s_waitcnt vmcnt(0) lgkmcnt(0)")
    for ks, base, wb in ((14, WAb, WBs[0]), (15, WA4, WBs[1]), (17, WA2, WBs[2])):
        for it in woM(ks, base, wb):
            a(it)
    a(f"v_lshlrev_b32 v{vT3}, 3, v{vPr8}")
    a(f"v_add_u32 v{vT3}, {STAT}, v{vT3}")
    a("s_lshl_b32 s17, s3, 6")
    a(f"v_add_u32 v{vT2}, s17, v{vT3}")
    a("s_nop 0")
    SS = O[0] + 4
    for t in range(5):
        for q in range(2):
            r = WACC + 4 * t + 2 * q
            a(f"v_pk_add_f32 {vr(r,2)}, {vr(r,2)}, {vr(xf[4*t+2*q],2)}")
    for i in range(10):
        r = WACC + 2 * i
        if i == 0:
            a(f"v_pk_mul_f32 {vr(SS+2,2)}, {vr(r,2)}, {vr(r,2)}")
        elif i == 1:
            a(f"v_pk_add_f32 {vr(SS,2)}, {vr(WACC,2)}, {vr(r,2)}")
            a(f"v_pk_fma_f32 {vr(SS+2,2)}, {vr(r,2)}, {vr(r,2)}, {vr(SS+2,2)}")
        else:
            a(f"v_pk_add_f32 {vr(SS,2)}, {vr(SS,2)}, {vr(r,2)}")
            a(f"v_pk_fma_f32 {vr(SS+2,2)}, {vr(r,2)}, {vr(r,2)}, {vr(SS+2,2)}")
    a(f"v_add_f32 v{SS}, v{SS}, v{SS+1}")
    a(f"v_add_f32 v{SS+1}, v{SS+2}, v{SS+3}")
    HP = S[0]
    hp = [f"v_cvt_pk_bf16_f32 v{HP+i}, v{WACC+2*i}, v{WACC+2*i+1}" for i in range(10)]
    for sw in ("v_permlane16_swap_b32", "v_permlane32_swap_b32"):
        a(f"v_mov_b32 v{SS+2}, v{SS}")
        a(f"v_mov_b32 v{SS+3}, v{SS+1}")
        a(hp.pop(0)); a(hp.pop(0))
        a(f"{sw} v{SS}, v{SS+2}")
        a(f"{sw} v{SS+1}, v{SS+3}")
        a(hp.pop(0)); a(hp.pop(0))
        a(f"v_pk_add_f32 {vr(SS,2)}, {vr(SS,2)}, {vr(SS+2,2)}")
    a("s_lshl_b32 s17, s3, 2")
    a(f"s_add_u32 s17, s17, {STAT+512}")
    a(f"v_mov_b32 v{vT0}, s17")
    a(f"v_mov_b32 v{vT1}, s23")
    a("s_mov_b64 exec, 0xff")
    a(f"ds_write_b64 v{vT2}, {vr(SS,2)}")
    a(f"ds_write_b32 v{vT0}, v{vT1}")
    a("s_mov_b64 exec, -1")
    for x_ in hp: a(x_)
    a(f"v_lshlrev_b32 v{vT0}, 2, v{vPr8}")
    a("s_waitcnt lgkmcnt(0)")
    a("s_barrier")
    a.stamp(7)
    RS = S[1]
    for k in range(8):
        a(f"ds_read_b64 {vr(RS+2*k,2)}, v{vT3} offset:{64*k}")
    a(f"ds_read_b32 v{SS+2}, v{vT0} offset:{STAT+512}")
    a("s_waitcnt lgkmcnt(0)")
    a(f"v_cmp_ne_u32 vcc, 0, v{SS+2}")
    for k in range(4):
        a(f"v_pk_add_f32 {vr(RS+4*k,2)}, {vr(RS+4*k,2)}, {vr(RS+4*k+2,2)}")
    a(f"v_pk_add_f32 {vr(RS,2)}, {vr(RS,2)}, {vr(RS+4,2)}")
    a(f"v_pk_add_f32 {vr(RS+8,2)}, {vr(RS+8,2)}, {vr(RS+12,2)}")
    a(f"v_pk_add_f32 {vr(SS,2)}, {vr(RS,2)}, {vr(RS+8,2)}")
    a("s_mov_b32 s23, vcc_lo")
    a(f"v_mul_f32 v{SS}, {f32bits(-1.0/576)}, v{SS}")
    a(f"v_mov_b32 v{SS+2}, {f32bits(1e-5)}")
    a(f"v_fmac_f32 v{SS+2}, {f32bits(1.0/576)}, v{SS+1}")
    a(f"v_fma_f32 v{SS+2}, -v{SS}, v{SS}, v{SS+2}")
    a(f"v_max_f32 v{SS+2}, {f32bits(1e-5)}, v{SS+2}")
    a(f"v_rsq_f32 v{SS+2}, v{SS+2}")
    a("s_cmp_lg_u32 s22, 0")
    a("s_cselect_b32 s23, 0, s23")
    a("s_cmp_lg_u32 s23, 0")
    a("s_cbranch_scc1 K2_slow")
    a(f"v_mul_f32 v{SS}, v{SS}, v{SS+2}")
    for t in range(5):
        for q in range(2):
            r = WACC + 4 * t + 2 * q
            a(f"v_pk_fma_f32 {vr(r,2)}, {vr(r,2)}, {vr(SS+2,2)}, {vr(SS,2)} op_sel_hi:[1,0,0]")
        for q in range(2):
            r = WACC + 4 * t + 2 * q
            a(f"v_cvt_pk_bf16_f32 v{r}, v{r}, v{r+1}")
            a(f"v_cndmask_b32_e64 v{HP+2*t+q}, v{r}, v{HP+2*t+q}, s[50:51]")
        if t == 4:
            a("s_cmp_ge_u32 s3, 4")
            a("s_cbranch_scc1 K2_fin")
        a(f"s_mov_b32 s17, {16384*t}")
        a(f"buffer_store_dwordx2 {vr(HP+2*t,2)}, v{vSt}, s[8:11], s17 offen{Opt.XST}")
    a.label("K2_fin")
    if Opt.DBG:
        a("s_lshl_b32 s100, s2, 3")
        a("s_add_u32 s100, s100, s3")
        a("s_lshl_b32 s100, s100, 8")
        a(f"s_add_u32 s100, s100, {WS_DBG + 8 * 4096 * 64}")
        a(f"buffer_store_dword v3, v{vL4}, s[8:11], s100 offen")
    a.end(2, 8, 8)
    a.label("K2_slow")
    for s in range(8):
        a(ldK(s)[0][2])
    a(f"v_lshlrev_b32 v{vT0}, 2, v3")
    a(f"v_add_u32 v{vT0}, {MX}, v{vT0}")
    a(f"v_mov_b32 v{vT1}, 0xff800000")
    a("s_lshl_b32 s17, s3, 7")
    a(f"v_add_u32 v{vT2}, s17, v{vT0}")
    a(f"ds_write_b32 v{vT2}, v{vT1}")
    a(f"v_mov_b32 v{vT3}, v{vL16}")
    a(f"v_mov_b32 v{vPr}, v{vL4}")
    a("s_mov_b32 s17, 0")
    a("s_waitcnt vmcnt(0) lgkmcnt(0)")
    a("s_barrier")
    a.label("K2_mx")
    a(f"ds_read_b128 {vr(QR[0])}, v{vT3} offset:{QB}")
    a(f"ds_read2st64_b32 {vr(QR[0]+4,2)}, v{vPr} offset0:4 offset1:5")
    a(f"ds_read2st64_b32 {vr(QR[0]+6,2)}, v{vPr} offset0:5 offset1:4")
    a(f"v_mov_b32 v{vT1}, 0xff800000")
    a("s_waitcnt lgkmcnt(0)")
    for s in range(8):
        a(qk1(s)); a(qk2(s))
        a("s_nop 7"); a("s_nop 7")
        for i in range(8):
            a(f"v_max3_f32 v{vT1}, v{vT1}, v{S[s&1]+2*i}, v{S[s&1]+2*i+1}")
    a(f"ds_max_f32 v{vT0}, v{vT1}")
    a(f"v_add_u32 v{vT0}, 128, v{vT0}")
    a(f"v_add_u32 v{vT3}, 1536, v{vT3}")
    a(f"v_add_u32 v{vPr}, 1536, v{vPr}")
    a("s_add_u32 s17, s17, 1")
    a("s_cmp_lt_u32 s17, 8")
    a("s_cbranch_scc1 K2_mx")
    a("s_waitcnt lgkmcnt(0)")
    a("s_barrier")
    a(f"ds_read_b32 v{vT1}, v{vT2}")
    a("s_mul_i32 s17, s3, 1536")
    a(f"v_add_u32 v{vT3}, s17, v{vL4}")
    a("s_waitcnt lgkmcnt(0)")
    T = S[0]
    a(f"v_sub_f32 v{vT1}, 0, v{vT1}")
    a(f"v_and_b32 v{T}, 0xffff0000, v{vT1}")
    a(f"v_sub_f32 v{vT1}, v{vT1}, v{T}")
    a(f"v_and_b32 v{T+1}, 0xffff0000, v{vT1}")
    a(f"v_sub_f32 v{vT1}, v{vT1}, v{T+1}")
    a(f"v_lshrrev_b32 v{T}, 16, v{T}")
    a(f"v_or_b32 v{T}, v{T}, v{T+1}")
    a(f"v_lshrrev_b32 v{T+1}, 16, v{vT1}")
    a("s_not_b64 exec, s[20:21]")
    a(f"ds_write_b32 v{vT3}, v{T} offset:{QB+1024}")
    a(f"ds_write_b32 v{vT3}, v{T+1} offset:{QB+1280}")
    a("s_mov_b64 exec, -1")
    a("s_mov_b32 s22, 1")
    a("s_waitcnt lgkmcnt(0)")
    a("s_barrier")
    a("s_branch K2_main")
    a.label("K2_end")
    a("s_endpgm")
    return K, desc(K, 256), (256, 512, LDS)
```

```python
from common import *
RING = 36
RB = 104
BV = 72
ACC = [40, 56]
TMP = 248
BIAS = 16
B1R = 24
ACCP = 16
LZ = 32
HOFF = 72 * 1024
LDS = HOFF + 72 * 1024
NF = 324

def bfrag(f):
    return ar(4 * f) if f < 64 else vr(BV + 4 * (f - 64))
def b1reg(n):
    return B1R + 2 * n if n < 8 else 14
def slot(i):
    return RB + (i % RING) * 4

def k3(a):
    K = "k3_kernel"
    a.begin(K)
    a("s_cmp_ge_u32 s2, 256")
    a("s_cbranch_scc1 K3_end")
    a.stamp(0); a.stampc(10)
    a(f"s_load_dwordx2 s[4:5], s[0:1], {A_WS}")
    a(f"s_load_dwordx2 s[6:7], s[0:1], {A_B1}")
    a(f"s_load_dwordx4 s[24:27], s[0:1], {A_B2}")
    a("v_lshrrev_b32 v1, 6, v0")
    a("v_and_b32 v2, 63, v0")
    a("v_readfirstlane_b32 s3, v1")
    a("v_and_b32 v3, 15, v0")
    a("v_bfe_u32 v4, v0, 4, 2")
    a("v_lshlrev_b32 v5, 4, v2")
    for k in range(1, 5):
        a(f"v_add_u32 v{5+k}, {4096*k}, v5")
    a("v_lshlrev_b32 v12, 3, v4")
    a("v_and_b32 v10, 0x23, v2")
    a("v_lshlrev_b32 v10, 4, v10")
    a("v_bfe_u32 v11, v2, 3, 2")
    a("v_lshl_add_u32 v10, v11, 6, v10")
    a("v_bfe_u32 v11, v2, 2, 1")
    a("v_lshl_add_u32 v10, v11, 8, v10")
    a("s_and_b32 s28, s2, 7")
    a("s_lshr_b32 s29, s2, 3")
    a("s_mul_i32 s31, s29, 73728")
    a("s_lshl_b32 s30, s3, 10")
    a("s_add_u32 s31, s31, s30")
    a(f"s_add_u32 s31, s31, {WS_XN}")
    a("s_mul_i32 s60, s28, 36")
    a("s_mul_i32 s59, s3, 9")
    a("s_mul_i32 s61, s29, 57")
    a("s_lshr_b32 s61, s61, 9")
    a("s_mul_i32 s61, s61, 9")
    a("s_sub_u32 s61, s29, s61")
    def g1par(n):
        a(f"s_add_u32 s{50+n}, s61, {n}")
        a(f"s_cmp_ge_u32 s{50+n}, 9")
        a(f"s_cselect_b32 s62, 9, 0")
        a(f"s_sub_u32 s{50+n}, s{50+n}, s62")
        a(f"s_add_u32 s{50+n}, s{50+n}, s59")
        a(f"s_add_u32 s62, s{50+n}, s60")
        a(f"s_mul_i32 s62, s62, {18*1024}")
        a(f"s_add_u32 s{32+n}, s62, {WS_W1F}")
    g1par(0); g1par(1)
    a("s_waitcnt lgkmcnt(0)")
    a.srd(8, 4, WS_SIZE)
    a.srd(12, 6, 4608 * 2)
    def load(i):
        t, kk = divmod(i, 18)
        return [("vm", ("A", i), f"buffer_load_dwordx4 {vr(slot(i))}, v{5 + kk // 4}, s[8:11], s{32+t} offen offset:{(kk%4)*1024}")]
    def dmax(kk):
        return ["s_mov_b32 m0, s30", "s_add_u32 s30, s30, 4096",
                ("vm", ("X", kk), "buffer_load_dwordx4 v10, s[8:11], s31 offen lds"), "s_add_u32 s31, s31, 4096"]
    def ldb1(n):
        return [f"s_add_u32 s62, s{50+n}, s60", f"s_lshl_b32 s62, s62, 5",
                ("vm", ("b1", n), f"buffer_load_dwordx2 {vr(b1reg(n),2)}, v12, s[12:15], s62 offen")]
    def E(L):
        for x in L: a.emit(x)
    a("s_cmp_lg_u32 s3, 3")
    a("s_cbranch_scc1 K3_nopf")
    a.codepf("k3_kernel", "K3_end", 29, 5, TMP, 86)
    a.vmq.pop()
    a.label("K3_nopf")
    for kk in range(6): E(dmax(kk))
    E(ldb1(0)); E(ldb1(1))
    for kk in range(3): E(load(kk)); E(load(18 + kk))
    for kk in range(6, 12): E(dmax(kk))
    for kk in range(3, 6): E(load(kk)); E(load(18 + kk))
    for n in range(2, 9): g1par(n)
    a.srd(16, 24, 576 * 2)
    a.srd(20, 26, 2048 * ROW)
    a("s_add_u32 s28, s28, s29")
    a("s_and_b32 s28, s28, 7")
    for n in range(9):
        if n == 0:
            a(f"s_mov_b32 s{64+n}, 8")
        else:
            a(f"s_add_u32 s{64+n}, s28, {n}")
            a(f"s_and_b32 s{64+n}, s{64+n}, 7")
        a(f"s_lshl_b32 s62, s{64+n}, 2")
        a(f"s_add_u32 s62, s62, s3")
        a(f"s_add_u32 s62, s62, s60")
        a(f"s_mul_i32 s62, s62, {18*1024}")
        a(f"s_add_u32 s{41+n}, s62, {WS_W2F}")
    a("s_mov_b32 s75, 0x00003f80")
    a("s_mov_b32 s76, 0x3f800000")
    a(f"v_lshlrev_b32 v{TMP+7}, 3, v2")
    a(f"v_add_u32 v11, {HOFF}, v5")
    a(f"v_add_u32 v13, {HOFF+36864}, v5")
    a("s_mul_i32 s78, s29, 36")
    a("s_add_u32 s78, s78, s3")
    a("s_lshl_b32 s77, s78, 14")
    a(f"s_add_u32 s77, s77, {WS_PART}")
    a("s_lshl_b32 s78, s78, 11")
    a(f"s_add_u32 s78, s78, {WS_HRES}")
    a("s_lshl_b32 s79, s28, 11")
    a("s_add_u32 s79, s79, s77")
    a("s_lshl_b32 s84, s28, 16")
    a("s_add_u32 s84, s84, s77")
    a("s_lshl_b32 s62, s28, 7")
    a("s_lshl_b32 s63, s3, 5")
    a("s_add_u32 s82, s62, s63")
    a("s_add_u32 s83, s63, 1024")
    a("s_lshr_b32 s62, s28, 2")
    a("s_lshl_b32 s62, s62, 10")
    a("s_and_b32 s63, s28, 2")
    a("s_lshl_b32 s63, s63, 2")
    a("s_add_u32 s73, s62, s63")
    a("s_add_u32 s85, s73, s77")
    a(f"s_add_u32 s85, s85, {8*65536}")
    a("s_and_b32 s62, s28, 1")
    a("s_lshl_b32 s62, s62, 3")
    a("s_lshl_b32 s80, 0x00ff00ff, s62")
    a("s_mov_b32 s81, s80")
    a("s_mov_b32 s74, 0x1fe")
    def unpack(src, dst):
        return [f"v_lshlrev_b32 v{dst}, 16, v{src}", f"v_and_b32 v{dst+1}, 0xffff0000, v{src}",
                f"v_lshlrev_b32 v{dst+2}, 16, v{src+1}", f"v_and_b32 v{dst+3}, 0xffff0000, v{src+1}"]
    def g1_epilogue(n):
        acc = ACC[n % 2]
        L = [f"s_lshr_b32 s63, s{50+n}, 1", f"s_lshl_b32 s63, s63, 12", f"s_and_b32 s62, s{50+n}, 1",
             f"s_lshl_b32 s62, s62, 3", f"s_add_u32 s62, s62, s63", f"v_add_u32 v{TMP}, s62, v11"]
        for tt in range(4):
            for r in range(4):
                L.append(f"v_mul_f32 v{acc+4*tt+r}, v{acc+4*tt+r}, abs(v{acc+4*tt+r})")
            L.append(f"v_cvt_pk_bf16_f32 v{acc+4*tt}, v{acc+4*tt}, v{acc+4*tt+1}")
            L.append(f"v_cvt_pk_bf16_f32 v{acc+4*tt+1}, v{acc+4*tt+2}, v{acc+4*tt+3}")
            L.append(f"v_pk_max_i16 v{acc+4*tt}, v{acc+4*tt}, 0")
            L.append(f"v_pk_max_i16 v{acc+4*tt+1}, v{acc+4*tt+1}, 0")
            L.append(f"ds_write_b64 v{TMP}, {vr(acc+4*tt,2)} offset:{1024*tt}")
        return L
    def g2_epilogue(n):
        acc = ACC[(9 + n) % 2]
        L = [f"s_lshl_b32 s62, s{64+n}, 16", f"s_add_u32 s62, s62, s79"]
        for hf in range(2):
            for tt in (2 * hf, 2 * hf + 1):
                L.append(f"v_cvt_pk_bf16_f32 v{TMP+2*tt}, v{acc+4*tt}, v{acc+4*tt+1}")
                L.append(f"v_cvt_pk_bf16_f32 v{TMP+2*tt+1}, v{acc+4*tt+2}, v{acc+4*tt+3}")
            L.append(("vm", "st", f"buffer_store_dwordx4 {vr(TMP+4*hf)}, v5, s[8:11], s62 offen offset:{1024*hf} sc1"))
        return L
    def fetch(n, lz, track=True):
        L = [f"s_lshl_b32 s63, s{64+8-n}, 11", "s_add_u32 s63, s63, s84"]
        for hf in range(2):
            s_ = f"buffer_load_dwordx4 {vr(lz+4*hf)}, v5, s[8:11], s63 offen offset:{1024*hf} sc1"
            L.append(("vm", ("P", n), s_) if track else s_)
        return L
    vC = 14
    def check(regs, bit):
        L = [f"v_max3_i32 v{vC}, v{regs[0]}, v{regs[1]}, v{regs[2]}"]
        k = 3
        while k + 1 < len(regs):
            L.append(f"v_max3_i32 v{vC}, v{vC}, v{regs[k]}, v{regs[k+1]}"); k += 2
        if k < len(regs):
            L.append(f"v_max_i32 v{vC}, v{vC}, v{regs[k]}")
        L.append(f"v_cmp_eq_i32 vcc, {POISON}, v{vC}")
        L.append("v_nop"); L.append("v_nop")
        if bit == 8:
            L.append("s_and_b64 vcc, vcc, s[80:81]")
        L += ["s_cmp_eq_u64 vcc, 0", "s_cselect_b32 s86, s75, 0", "s_cselect_b32 s87, s76, 0",
              f"s_cselect_b32 s62, {1 << bit}, 0", "s_andn2_b32 s74, s74, s62"]
        return L
    def accum(lz, dst, n):
        L = []
        for q in range(n):
            L.append(f"v_dot2_f32_bf16 v{dst+2*q}, v{lz+q}, s86, v{dst+2*q}")
            L.append(f"v_dot2_f32_bf16 v{dst+2*q+1}, v{lz+q}, s87, v{dst+2*q+1}")
        return L
    def take(n, lz, track=True):
        return ([("wait", ("P", n))] if track else []) + check(list(range(lz, lz + 8)), n) + accum(lz, ACCP, 8)
    LZs = {1: LZ, 2: LZ, 3: slot(288), 4: slot(296), 5: slot(298), 6: slot(300), 7: slot(302)}
    SH = slot(290)
    A8 = SH + 20
    def fetch_share(track=True):
        L = ["s_mov_b64 exec, s[80:81]", "s_mov_b32 s63, s85"]
        for n in range(8):
            for q in range(2):
                s_ = f"buffer_load_dword v{SH+2*n+q}, v5, s[8:11], s63 offen offset:{4*q} sc1"
                L.append(("vm", "sh", s_) if track else s_)
            L.append("s_add_u32 s63, s63, 2048")
        L.append("s_mov_b64 exec, -1")
        return L

    a.waitvm(("b1", 1))
    E(unpack(b1reg(0), BIAS) + unpack(b1reg(1), BIAS + 4))
    def rdB(f, lo, hi):
        a(f"ds_read_b128 {bfrag(f)}, v{lo if f < 36 else hi} offset:{(f%36)*1024}")
    def rdX(f):
        a(f"ds_read2st64_b64 {bfrag(f)}, v{TMP+7} offset0:{2*f} offset1:{2*f+1}")
    seq = []
    for kk in range(12): seq += [kk, 18 + kk]
    seq += list(range(12, 18)) + list(range(30, NF))
    pend = []
    post = {}
    def addpost(i, L): post.setdefault(i, []).extend(L)
    for kk in range(6):
        addpost(kk, load(6 + kk) + dmax(12 + kk)); addpost(18 + kk, load(24 + kk))
        addpost(6 + kk, load(12 + kk) + load(36 + kk)); addpost(24 + kk, load(30 + kk) + load(42 + kk))
        addpost(12 + kk, load(48 + kk) + load(54 + kk)); addpost(30 + kk, load(60 + kk) + load(66 + kk))
    for n in range(2, 9):
        addpost(4 + n, ldb1(n))
    for i in range(36, NF - RING):
        addpost(i, load(i + RING))
    addpost(9 * 18 + 2, [("vm", "b2", f"buffer_load_dwordx2 v[14:15], v12, s[16:19], s82 offen"),
                         "s_lshl_b32 s62, s28, 13", "s_add_u32 s62, s62, s78",
                         "v_lshrrev_b32 v2, 3, v3", "v_lshlrev_b32 v2, 8, v2", "v_lshl_add_u32 v2, v4, 6, v2",
                         "v_and_b32 v10, 7, v3", "v_lshl_add_u32 v2, v10, 3, v2"] +
                        [("vm", "hr", f"buffer_load_dwordx2 {vr(LZ+2*tt,2)}, v2, s[8:11], s62 offen offset:{512*tt}") for tt in range(4)])
    addpost(14 * 18, fetch(1, LZs[1]))
    addpost(16 * 18, fetch(2, LZs[2]))
    addpost(16 * 18 + 1, fetch(3, LZs[3]))
    addpost(16 * 18 + 8, ["v_lshlrev_b32 v15, 3, v4", "s_lshr_b32 s62, s28, 1", "s_lshl_b32 s62, s62, 9", "s_add_u32 s62, s62, s78", f"s_add_u32 s62, s62, {8*8192}",
                          ("vm", "sh0", f"buffer_load_dwordx2 {vr(SH+16,2)}, v2, s[8:11], s62 offen"),
                          ("vm", "sh0", f"buffer_load_dwordx2 {vr(SH+18,2)}, v15, s[16:19], s83 offen")] + fetch_share())
    addpost(17 * 18, fetch(4, LZs[4]))
    for i in seq:
        t, kk = divmod(i, 18)
        extra = ""
        if t == 0:
            if kk % 6 == 0:
                a.waitvm(("X", kk + 5))
                if kk == 0: a.stamp(1)
                a("s_barrier")
                if kk == 0: a.stamp(2)
                if kk == 12: a.stamp(3)
                for f in range(4 * kk, 4 * kk + 12):
                    rdX(f)
            elif kk % 6 <= 3:
                for f in range(4 * kk + 8, 4 * kk + 12):
                    rdX(f)
            rem = min(4 * (kk - kk % 6) + 24, 4 * kk + 12) - (4 * kk + 4)
            extra = f" lgkmcnt({rem})"
        if t == 9:
            if kk == 0:
                a("s_nop 7")
                E(g1_epilogue(8))
                a("s_waitcnt lgkmcnt(0)")
                a.stamp(4)
                a("s_barrier")
                for f in range(12):
                    rdB(f, 11, 13)
            elif 4 * kk + 8 < 72:
                for f in range(4 * kk + 8, 4 * kk + 12):
                    rdB(f, 11, 13)
            rem = min(72, 4 * kk + 12) - (4 * kk + 4)
            extra = f" lgkmcnt({rem})"
        if Opt.DBG and kk == 0 and t not in (0, 1, 9):
            a("s_memtime s[100:101]")
        if Opt.DBG and kk == 9 and t not in (0, 1, 9):
            a("s_waitcnt lgkmcnt(0)")
            a(f"v_writelane_b32 v1, s100, {t}")
        a.waitvm(("A", i), extra)
        acc = ACC[t % 2]
        rate = 1
        if i == 30:
            pend = [None] + g1_epilogue(0) + [("wait", ("b1", 2))] + unpack(b1reg(2), BIAS)
        if t == 1: rate = 2
        if kk == 1 and t >= 2:
            assert not pend
            if t <= 8: pend += g1_epilogue(t - 1)
            if t >= 10: pend += g2_epilogue(t - 10)
            if t < 8: pend += unpack(b1reg(t + 1), BIAS + 4 * ((t + 1) % 2))
            if t == 11:
                pend += [("wait", "hr")] + unpack(14, 10) + [None]
                for q in range(8):
                    pend.append(f"v_dot2_f32_bf16 v{ACCP+2*q}, v{LZ+q}, s75, v{10+(2*q)%4}")
                    pend.append(f"v_dot2_f32_bf16 v{ACCP+2*q+1}, v{LZ+q}, s76, v{10+(2*q+1)%4}")
            if t == 15: pend += [None] * 12 + take(1, LZs[1])
            if t == 17: pend += take(2, LZs[2]) + take(3, LZs[3])
        if t == 17: rate = 2 if kk >= 6 else 1
        for tt in range(4):
            if kk == 0:
                c = vr(BIAS + 4 * (t % 2)) if t < 9 else "0"
            else:
                c = vr(acc + 4 * tt)
            a(f"v_mfma_f32_16x16x32_bf16 {vr(acc+4*tt)}, {vr(slot(i))}, {bfrag(kk*4+tt)}, {c}")
            if (kk >= 2 and (tt < 3 or rate == 2)) or (kk == 1 and tt == 3 and t >= 10):
                for _ in range(rate):
                    while pend:
                        s = pend.pop(0)
                        if s is None: break
                        a.emit(s)
                        if not (isinstance(s, str) and s.startswith("s_")): break
        if kk == 17 and t >= 1:
            assert not pend, (t, pend)
        E(post.get(i, []))
    accO = ACC[17 % 2]
    a.stamp(5)
    for n in (5, 6, 7):
        E(fetch(n, LZs[n]))
    a(f"v_mul_u32_u24 v10, {ROW}, v3")
    a("v_lshl_add_u32 v10, v4, 3, v10")
    a(f"s_mul_i32 s30, s29, {64*ROW}")
    a("s_add_u32 s82, s30, s82")
    a("s_lshr_b32 s62, s28, 1")
    a(f"s_mul_i32 s62, s62, {16*ROW}")
    a("s_add_u32 s62, s62, s30")
    a("s_add_u32 s83, s83, s62")
    a.waitvm("sh")
    E(unpack(SH + 18, A8))
    for q in range(2):
        a(f"v_dot2_f32_bf16 v{A8+2*q}, v{SH+16+q}, s75, v{A8+2*q}")
        a(f"v_dot2_f32_bf16 v{A8+2*q+1}, v{SH+16+q}, s76, v{A8+2*q+1}")
    def take_share():
        L = check(list(range(SH, SH + 16)), 8)
        for n in range(8):
            L += accum(SH + 2 * n, A8, 2)
        return L
    E(take_share())
    for n in (4, 5, 6, 7):
        E(take(n, LZs[n]))
    a.stamp(6)
    a("s_mov_b32 s88, 0x8000")
    LZt = dict(LZs); LZt[1] = slot(304)
    a.label("K3_poll")
    a("s_cmp_eq_u32 s74, 0")
    a("s_cbranch_scc1 K3_done")
    a("s_sub_u32 s88, s88, 1")
    a("s_cmp_eq_u32 s88, 0")
    a("s_cbranch_scc1 K3_done")
    a("s_mov_b32 s31, s74")
    for n in range(1, 9):
        a(f"s_bitcmp0_b32 s31, {n}")
        a(f"s_cbranch_scc1 K3_pf{n}")
        E(fetch(n, LZt[n], False) if n < 8 else fetch_share(False))
        a.label(f"K3_pf{n}")
    a("s_waitcnt vmcnt(0)")
    for n in range(1, 9):
        a(f"s_bitcmp0_b32 s31, {n}")
        a(f"s_cbranch_scc1 K3_pt{n}")
        E(take(n, LZt[n], False) if n < 8 else take_share())
        a.label(f"K3_pt{n}")
    a("s_branch K3_poll")
    a.label("K3_done")
    a.stamp(7)
    a("s_nop 1")
    for tt in range(4):
        for q in range(2):
            a(f"v_pk_add_f32 {vr(accO+4*tt+2*q,2)}, {vr(accO+4*tt+2*q,2)}, {vr(ACCP+4*tt+2*q,2)}")
        a(f"v_cvt_pk_bf16_f32 v{TMP+2*tt}, v{accO+4*tt}, v{accO+4*tt+1}")
        a(f"v_cvt_pk_bf16_f32 v{TMP+2*tt+1}, v{accO+4*tt+2}, v{accO+4*tt+3}")
        a(f"buffer_store_dwordx2 {vr(TMP+2*tt,2)}, v10, s[20:23], s82 offen")
        a(f"s_add_u32 s82, s82, {16*ROW}")
    a(f"v_cvt_pk_bf16_f32 v{LZ}, v{A8}, v{A8+1}")
    a(f"v_cvt_pk_bf16_f32 v{LZ+1}, v{A8+2}, v{A8+3}")
    a("s_mov_b64 exec, s[80:81]")
    a(f"buffer_store_dwordx2 {vr(LZ,2)}, v10, s[20:23], s83 offen")
    a("s_mov_b64 exec, -1")
    if Opt.DBG:
        a("s_getreg_b32 s100, hwreg(HW_REG_XCC_ID)")
        a("v_writelane_b32 v1, s100, 0")
        a("v_writelane_b32 v1, s88, 1")
        a("s_lshl_b32 s100, s2, 2")
        a("s_add_u32 s100, s100, s3")
        a("s_lshl_b32 s100, s100, 8")
        a(f"s_add_u32 s100, s100, {WS_DBG + 6 * 4096 * 64}")
        a("v_lshrrev_b32 v2, 2, v5")
        a("buffer_store_dword v1, v2, s[8:11], s100 offen")
    a.end(4, 8, 4)
    a.label("K3_end")
    a("s_endpgm")
    return K, desc(K, 512, 256), (256, 256, LDS)
```

```python
import sys, math, struct

NAME = "sequential_preLN__grouped_kv_mqa__dense_activation_squared_relu__prompt"

ROW = 1152
KVB = 2304
K2OFF = 64 * KVB
KV_BYTES = K2OFF + 16 * 512
WS_Q    = 0
WS_XN   = WS_Q + 2048 * ROW
WS_KV   = WS_XN + 2048 * ROW
WS_FLAG = WS_KV + 160 * 1024
WS_WOF  = WS_FLAG + 128 * 128
WOF_BYTES = 36 * 18 * 1024
WS_W1F  = WS_WOF + WOF_BYTES
WS_W2F  = WS_W1F + 288 * 18 * 1024
WS_PART = WS_W2F + 288 * 18 * 1024
WS_HRES = WS_PART + 32 * 36 * 8 * 2048
WS_DBG  = WS_HRES + 32 * 36 * 2048
POISON  = 0x7f7f7f7f
WS_END  = WS_DBG + 8 * 4096 * 64 + 2048 * 256
WS_SIZE = 0x10000000
OOB = 0x7ff00000
class Opt:
    WST = ''
    XNT = ''
    QNT = ''
    WNT = ''
    K1BAR = 3
    PST = ' sc1'
    PBOUND = '0x8000'
    EXP = ''
    CPF = True
    XST = ''
    FOLD = True
    DBG = False
assert WS_END < WS_SIZE

QSCALE = (18 ** -0.5) * math.log2(math.e)
DMAP = [[0, 1, 2, 3, 8, 9, 10, 11, 16], [4, 5, 6, 7, 12, 13, 14, 15, 17]]

def f32bits(x):
    return "0x%08x" % struct.unpack("<I", struct.pack("<f", x))[0]

class Asm:
    def __init__(self):
        self.L = []
        self.vmq = []
    def __call__(self, s):
        for ln in s.split("\n"):
            self.L.append("    " + ln.strip())
    def label(self, s):
        self.L.append(s + ":")
    def raw(self, s):
        self.L.append(s)
    def vm(self, tag, s):
        self.vmq.append(tag)
        self(s)
    def vmn(self, tag):
        idx = len(self.vmq) - 1 - self.vmq[::-1].index(tag)
        n = len(self.vmq) - 1 - idx
        return min(n, 63)
    def waitvm(self, tag, extra=""):
        self(f"s_waitcnt vmcnt({self.vmn(tag)}){extra}")
    def emit(self, it):
        if isinstance(it, str):
            self(it)
        elif it[0] == "vm":
            self.vm(it[1], it[2])
        elif it[0] == "wait":
            self.waitvm(it[1], it[2] if len(it) > 2 else "")
        elif it[0] == "label":
            self.label(it[1])
        elif it[0] == "stamp":
            self.stamp(it[1])
        else:
            raise ValueError(it)
    def srd(self, d, p, size, off=0):
        if off:
            self(f"s_add_u32 s{d}, s{p}, {off}")
            self(f"s_addc_u32 s{d+1}, s{p+1}, 0")
        else:
            self(f"s_mov_b32 s{d}, s{p}")
            self(f"s_mov_b32 s{d+1}, s{p+1}")
        self(f"s_mov_b32 s{d+2}, {size}")
        self(f"s_mov_b32 s{d+3}, 0x00020000")
    def stamp(self, i):
        if not Opt.DBG: return
        self("s_memrealtime s[100:101]")
        self("s_waitcnt lgkmcnt(0)")
        self(f"s_mov_b32 s{89+i}, s100")
    def stampc(self, i):
        if not Opt.DBG: return
        self("s_memtime s[100:101]")
        self("s_waitcnt lgkmcnt(0)")
        self(f"s_mov_b32 s{89+i}, s100")
    def end(self, kid, srd, nwaves, n=10):
        if Opt.DBG:
            self.stamp(8)
            self.stampc(9)
            self("s_mov_b64 exec, 1")
            self(f"s_mul_i32 s100, s2, {nwaves}")
            self("s_add_u32 s100, s100, s3")
            self("s_lshl_b32 s100, s100, 6")
            self(f"s_add_u32 s100, s100, {WS_DBG + kid * 4096 * 64}")
            self("v_mov_b32 v1, 0")
            for i in range(n + 1):
                self(f"v_mov_b32 v2, s{89+i}")
                self(f"buffer_store_dword v2, v1, s[{srd}:{srd+3}], s100 offen offset:{4*i}")
        self("s_endpgm")
    def codepf(self, start, end, sidx, vlane16, vdst, sp, tag="cpf"):
        if not Opt.CPF: return
        self.n_pf = getattr(self, "n_pf", 0) + 1
        lb = f"Lpf{self.n_pf}"
        self(f"s_getpc_b64 s[{sp}:{sp+1}]")
        self.label(lb)
        self(f"s_lshl_b32 s{sp+2}, s{sidx}, 10")
        self(f"s_min_u32 s{sp+2}, s{sp+2}, {end}-{start}-1024")
        self(f"s_add_u32 s{sp}, s{sp}, s{sp+2}")
        self(f"s_addc_u32 s{sp+1}, s{sp+1}, 0")
        self(f"s_add_u32 s{sp}, s{sp}, {start}-{lb}")
        self(f"s_addc_u32 s{sp+1}, s{sp+1}, ({start}-{lb})>>32")
        self.vm(tag, f"global_load_dwordx4 v[{vdst}:{vdst+3}], v{vlane16}, s[{sp}:{sp+1}]")
    def begin(self, k):
        self.vmq = []
        self.raw(f".globl {k}\n.p2align 8\n.type {k},@function\n{k}:")
    def text(self):
        return "\n".join(self.L) + "\n"

def vr(b, n=4):
    return f"v[{b}:{b+n-1}]"
def ar(b, n=4):
    return f"a[{b}:{b+n-1}]"

def desc(k, nv, acc=None, ns=102):
    if acc is None:
        acc = min(256, (nv + 3) // 4 * 4)
    return f""".p2align 6
.amdhsa_kernel {k}
  .amdhsa_next_free_vgpr {nv}
  .amdhsa_next_free_sgpr {ns}
  .amdhsa_accum_offset {acc}
  .amdhsa_group_segment_fixed_size 0
  .amdhsa_kernarg_size 104
  .amdhsa_user_sgpr_count 2
  .amdhsa_user_sgpr_kernarg_segment_ptr 1
  .amdhsa_system_sgpr_workgroup_id_x 1
.end_amdhsa_kernel
"""

A_X, A_WQ, A_WK, A_WV, A_WO, A_BX, A_W1, A_B1, A_W2, A_B2, A_OUT, A_DBG, A_WS = [8 * i for i in range(13)]

def weave(main, side):
    out = []
    for i, m in enumerate(main):
        out += side.get(i, [])
        out.append(m)
    out += side.get(len(main), [])
    return out

def cross_g_sum(a, v, t):
    a(f"v_mov_b32 v{t}, v{v}")
    a("s_nop 1")
    a(f"v_permlane16_swap_b32 v{v}, v{t}")
    a("s_nop 1")
    a(f"v_add_f32 v{v}, v{v}, v{t}")
    a(f"v_mov_b32 v{t}, v{v}")
    a("s_nop 1")
    a(f"v_permlane32_swap_b32 v{v}, v{t}")
    a("s_nop 1")
    a(f"v_add_f32 v{v}, v{v}, v{t}")

def build(kernels, out):
    a = Asm()
    metas = [k(a) for k in kernels]
    hdr = open("cdna_kernels/" + NAME + ".s.ref").read().split("\n")
    top = []
    for ln in hdr:
        if ln.startswith(";") and "@launch" not in ln and "Override launch" not in ln and "grid=ceil" not in ln:
            top.append(ln)
        if not ln.startswith(";"):
            break
    s = "\n".join(top) + "\n"
    for K, d, (g, b, l) in metas:
        s += f"; @launch kernel={K} grid=({g},1,1) block=({b},1,1) lds={l}\n"
    s += '.amdgcn_target "amdgcn-amd-amdhsa--gfx950"\n.text\n'
    s += a.text()
    s += '.section .rodata,"a"\n'
    for K, d, _ in metas:
        s += d
    open(out, "w").write(s)
```

```python
from common import *
import relayout as RL
WIMG = 0
KVIMG = 576 * 144
XIMG = KVIMG + 576 * 16
FL = XIMG + 4 * 17 * 1024
LDS = FL + 64

def k1(a):
    K = "k1_kernel"
    a.begin(K)
    a("s_cmp_ge_u32 s2, 256")
    a("s_cbranch_scc1 K1_end")
    a.stamp(0); a.stampc(10)
    a(f"s_load_dwordx4 s[4:7], s[0:1], {A_X}")
    a(f"s_load_dwordx4 s[8:11], s[0:1], {A_WK}")
    a(f"s_load_dwordx2 s[12:13], s[0:1], {A_WS}")
    a(f"s_load_dwordx2 s[52:53], s[0:1], {A_WO}")
    a("v_lshrrev_b32 v1, 6, v0")
    a("v_and_b32 v2, 63, v0")
    a("v_readfirstlane_b32 s3, v1")
    a("v_and_b32 v3, 15, v0")
    a("v_bfe_u32 v4, v0, 4, 2")
    a("s_and_b32 s14, s2, 31")
    a("s_lshr_b32 s15, s2, 5")
    a("s_lshr_b32 s48, s14, 3")
    a("s_lshl_b32 s48, s48, 1")
    a("s_add_u32 s48, s48, s15")
    a("s_cmp_ge_u32 s48, 9")
    a("s_cselect_b32 s49, 9, 0")
    a("s_sub_u32 s48, s48, s49")
    a("s_cmp_lt_u32 s3, 4")
    a("s_cbranch_scc1 K1_compute")
    a("s_sub_u32 s50, s3, 4")
    a("s_lshl_b32 s34, s50, 2")
    a(f"s_add_u32 s34, s34, {FL}")
    a("v_mov_b32 v21, s34")
    a("v_mov_b32 v22, 0")
    a("ds_write_b32 v21, v22")
    def pattern(vq, vd, stride, usec):
        if usec:
            a(f"v_mul_u32_u24 v10, 7282, v{vq}")
            a("v_lshrrev_b32 v10, 16, v10")
            a("v_mul_u32_u24 v11, 9, v10")
            a(f"v_sub_u32 v11, v{vq}, v11")
        else:
            a(f"v_mov_b32 v10, v{vq}")
        a("v_and_b32 v12, 1, v10")
        a("v_bfe_u32 v13, v10, 1, 2")
        a("v_lshl_or_b32 v12, v12, 2, v13")
        a("v_and_or_b32 v10, v10, -8, v12")
        a(f"v_mul_u32_u24 v{vd}, {stride}, v10")
        if usec:
            a(f"v_lshl_add_u32 v{vd}, v11, 4, v{vd}")
    a("v_and_b32 v9, 255, v0")
    pattern(9, 6, ROW, True)
    a("v_add_u32 v9, 256, v9")
    pattern(9, 7, ROW, True)
    a("v_add_u32 v9, 512, v2")
    pattern(9, 8, ROW, True)
    pattern(2, 9, 36, False)
    a("s_cmp_eq_u32 s50, 1")
    a("s_cselect_b64 vcc, -1, 0")
    a("v_lshrrev_b32 v5, 2, v2")
    a(f"v_mul_u32_u24 v5, {ROW}, v5")
    a("v_sub_u32 v10, 0, v4")
    a("v_xor_b32 v10, v10, v2")
    a("v_and_b32 v10, 3, v10")
    a("v_lshl_add_u32 v5, v10, 4, v5")
    a("v_cndmask_b32 v8, v8, v9, vcc")
    a("s_mul_i32 s33, s15, 144")
    a("s_lshl_b32 s32, s14, 2")
    a("s_add_u32 s32, s32, s50")
    a(f"s_mul_i32 s32, s32, {16*ROW}")
    a("s_mul_i32 s44, s50, 17408")
    a(f"s_add_u32 s44, s44, {XIMG}")
    a("s_lshl_b32 s35, s50, 10")
    a("s_mov_b32 s42, 0")
    a("s_cmp_lt_u32 s15, 3")
    a("s_cselect_b32 s36, 0, 3")
    a("s_waitcnt lgkmcnt(0)")
    a("s_cselect_b32 s24, s8, s10")
    a("s_cselect_b32 s25, s9, s11")
    a("s_barrier")
    a.srd(16, 4, 2048 * ROW)
    a.srd(20, 6, 576 * ROW)
    a("s_sub_u32 s36, s15, s36")
    a("s_lshl_b32 s37, s36, 4")
    a("s_cmp_ge_u32 s36, 2")
    a("s_cselect_b32 s37, 20, s37")
    a("s_cmp_eq_u32 s50, 1")
    a("s_cselect_b32 s24, s24, s6")
    a("s_cselect_b32 s25, s25, s7")
    a(f"s_cselect_b32 s26, {576*36}, s22")
    a("s_mov_b32 s27, 0x00020000")
    a("s_cselect_b32 s37, s37, s33")
    a(f"s_mov_b32 s41, {64*ROW}")
    a(f"s_cselect_b32 s41, {64*36}, s41")
    a("s_mov_b32 s38, 8192")
    a(f"s_cselect_b32 s38, {KVIMG}, s38")
    a("s_mov_b32 s39, 9216")
    a("s_cselect_b32 s39, 1024, s39")
    a.stamp(1)
    a.label("K1_dma")
    a("s_lshl_b32 s34, s48, 7")
    a("s_add_u32 s34, s34, s32")
    a("s_mov_b32 m0, s44")
    a("s_add_u32 s40, s44, 960")
    a(f"buffer_load_dwordx4 v5, s[16:19], s34 offen{Opt.XNT} lds")
    a("s_cmp_eq_u32 s42, 8")
    a("s_cbranch_scc1 K1_nx")
    a("s_mov_b32 m0, s40")
    a("s_add_u32 s44, s44, 2048")
    a(f"buffer_load_dwordx4 v5, s[16:19], s34 offen offset:64{Opt.XNT} lds")
    a.label("K1_nx")
    a(f"s_mul_i32 s34, s48, {64*ROW}")
    a("s_add_u32 s34, s34, s33")
    a("s_mov_b32 m0, s35")
    a("s_add_u32 s40, s35, 4096")
    a(f"buffer_load_dwordx4 v6, s[20:23], s34 offen{Opt.QNT} lds")
    a("s_mov_b32 m0, s40")
    a("s_add_u32 s35, s35, 9216")
    a(f"buffer_load_dwordx4 v7, s[20:23], s34 offen{Opt.QNT} lds")
    a("s_cmp_ge_u32 s50, 2")
    a("s_cbranch_scc1 K1_two")
    a("s_mul_i32 s34, s48, s41")
    a("s_add_u32 s34, s34, s37")
    a("s_mov_b32 m0, s38")
    a("s_add_u32 s38, s38, s39")
    a("buffer_load_dwordx4 v8, s[24:27], s34 offen lds")
    a.label("K1_two")
    a("v_mov_b32 v22, s42")
    a("s_add_u32 s48, s48, 1")
    a("s_cmp_ge_u32 s48, 9")
    a("s_cselect_b32 s48, 0, s48")
    a("s_add_u32 s42, s42, 1")
    a("s_cmp_lt_u32 s42, 9")
    a("s_waitcnt vmcnt(3)")
    a("ds_write_b32 v21, v22")
    a("s_cbranch_scc1 K1_dma")
    a.stamp(2)
    a("v_mov_b32 v23, 9")
    a("s_waitcnt vmcnt(0)")
    a("ds_write_b32 v21, v23")
    a.stamp(4)
    for x_ in a.touch("K2"): a(x_)
    if Opt.DBG: a.srd(28, 12, WS_SIZE)
    a.end(1, 28, 8)
    a.label("K1_compute")
    X = 64
    RAW = 200
    a(f"v_mul_u32_u24 v5, {ROW}, v3")
    a("v_lshl_add_u32 v5, v4, 4, v5")
    a("s_lshl_b32 s32, s14, 2")
    a("s_add_u32 s32, s32, s3")
    a(f"s_mul_i32 s33, s32, {16*ROW}")
    a("s_lshl_b32 s34, s48, 7")
    a("s_sub_u32 s34, s34, 64")
    a("s_cmp_eq_u32 s48, 0")
    a(f"s_cselect_b32 s34, {ROW-64}, s34")
    a("s_add_u32 s36, s33, s34")
    a("s_waitcnt lgkmcnt(0)")
    a("s_barrier")
    a.srd(16, 4, 2048 * ROW)
    a.srd(28, 12, WS_SIZE)
    a.stamp(1)
    a("s_min_u32 s54, s2, 161")
    RL.params_wo(a, 54, 56, 64, 52)
    RL.voff_src(a, 196, 198, 56)
    RL.voff_dst(a, 197, 198)
    a("s_cmp_lt_u32 s2, 162")
    a("s_cselect_b32 s55, s3, 0")
    a("v_mov_b32 v198, v5")
    a("v_lshrrev_b32 v7, 2, v3")
    a("v_sub_u32 v7, 0, v7")
    a("v_xor_b32 v7, v7, v4")
    a("v_and_b32 v7, 3, v7")
    a("v_lshlrev_b32 v7, 4, v7")
    a("v_lshl_add_u32 v7, v3, 6, v7")
    a("s_mul_i32 s35, s3, 17408")
    a(f"s_add_u32 s35, s35, {XIMG}")
    a("v_add_u32 v7, s35, v7")
    a("v_bfe_u32 v5, v0, 2, 2")
    a("v_and_b32 v6, 3, v0")
    a("v_lshlrev_b32 v12, 3, v4")
    a("v_lshl_add_u32 v12, v5, 1, v12")
    a("v_mul_u32_u24 v8, 144, v12")
    a("v_lshl_add_u32 v8, v6, 3, v8")
    a(f"v_add_u32 v9, {9*4608}, v8")
    a("v_lshlrev_b32 v10, 4, v12")
    a("v_lshl_add_u32 v10, v6, 3, v10")
    a(f"v_add_u32 v10, {KVIMG-16}, v10")
    a("v_add_u32 v11, 16, v10")
    a("v_add_u32 v15, 128, v8")
    a("v_cmp_gt_u32 vcc, 2, v6")
    a("v_mov_b32 v14, 512")
    a("v_mov_b32 v5, 4608")
    a("v_cndmask_b32 v10, v10, v15, vcc")
    a("v_add_u32 v15, 144, v15")
    a("v_cndmask_b32 v14, v14, v5, vcc")
    a("v_cndmask_b32 v11, v11, v15, vcc")
    ONES = 56
    for i in range(4):
        a(f"v_mov_b32 v{ONES+i}, 0x3f803f80")
    ACC, CSA, SM, GR, FT = 16, 36, 60, 188, 192
    QA = 176
    a(f"v_mov_b32 v5, {FL}")
    a("s_mov_b32 s43, 0")
    W = 136
    def reads(kk, t):
        wb = W + 20 * (kk & 1)
        vb = 8 if kk < 9 else 9
        o = (kk % 9) * 4608
        if t < 4:
            a(f"ds_read_b64_tr_b16 {vr(wb+4*t,2)}, v{vb} offset:{o+32*t}")
            a(f"ds_read_b64_tr_b16 {vr(wb+4*t+2,2)}, v{vb} offset:{o+32*t+144}")
        else:
            a(f"ds_read_b64_tr_b16 {vr(wb+16,2)}, v10")
            a(f"ds_read_b64_tr_b16 {vr(wb+18,2)}, v11")
            a("v_add_u32 v10, v10, v14")
            a("v_add_u32 v11, v11, v14")
    def need(blk):
        a.label(f"K1_w{blk}")
        a(f"s_cmp_ge_u32 s43, {blk+1}")
        a(f"s_cbranch_scc1 K1_ok{blk}")
        a(f"ds_read_b128 {vr(FT)}, v5")
        a("s_waitcnt lgkmcnt(0)")
        a(f"v_min3_u32 v{FT}, v{FT}, v{FT+1}, v{FT+2}")
        a(f"v_min_u32 v{FT}, v{FT}, v{FT+3}")
        a("s_nop 0")
        a(f"v_readfirstlane_b32 s43, v{FT}")
        a(f"s_branch K1_w{blk}")
        a.label(f"K1_ok{blk}")
    a("v_and_b32 v16, 7, v3")
    a("v_lshrrev_b32 v17, 3, v3")
    a("v_mul_u32_u24 v17, 9216, v17")
    a("v_lshl_add_u32 v18, v16, 4, v17")
    a("v_lshl_add_u32 v19, v16, 2, v17")
    a("v_add_u32 v19, 1024, v19")
    a("v_lshlrev_b32 v20, 2, v4")
    for t in range(5):
        for q in range(2):
            d = QA + 2 * t + q
            a(f"v_add_u32 v21, {16*t+2*q}, v20")
            a("v_mul_u32_u24 v22, 57, v21")
            a("v_lshrrev_b32 v22, 10, v22")
            a("v_mad_i32_i24 v21, v22, -16, v21")
            a("v_mad_i32_i24 v21, v22, -2, v21")
            a("v_cmp_gt_u32 vcc, 16, v21")
            a("v_lshrrev_b32 v23, 3, v21")
            a(f"v_lshl_add_u32 v{d}, v23, 9, v18")
            a(f"v_lshl_add_u32 v{d}, v22, 7, v{d}")
            a("v_and_b32 v23, 7, v21")
            a(f"v_lshl_add_u32 v{d}, v23, 1, v{d}")
            a("v_lshl_add_u32 v23, v22, 5, v19")
            a(f"v_cndmask_b32 v{d}, v23, v{d}, vcc")
    def rdx(n):
        if n < 17: a(f"ds_read_b128 {vr(X+4*n)}, v7 offset:{1024*n}")
    def rd1(kk, t, h):
        wb = W + 20 * (kk & 1)
        vb = 8 if kk < 9 else 9
        o = (kk % 9) * 4608
        if t < 4:
            a(f"ds_read_b64_tr_b16 {vr(wb+4*t+2*h,2)}, v{vb} offset:{o+32*t+144*h}")
        else:
            a(f"ds_read_b64_tr_b16 {vr(wb+16+2*h,2)}, v{10+h}")
            a(f"v_add_u32 v{10+h}, v{10+h}, v14")
    a.stamp(2)
    need(0)
    a.stamp(3)
    a(f"buffer_load_dwordx4 {vr(X+68)}, v198, s[16:19], s36 offen")
    a("s_cmp_lg_u32 s55, 3")
    a("s_cbranch_scc1 K1_nowo")
    for it in RL.loads(RAW, 196, 56, 64, "raw"):
        a.emit(it)
    a.label("K1_nowo")
    a("v_lshlrev_b32 v199, 4, v2")
    a("s_lshr_b32 s70, s2, 3")
    a("s_lshl_b32 s71, s3, 5")
    a("s_add_u32 s70, s70, s71")
    a("s_cmp_ge_u32 s3, 2")
    a("s_cbranch_scc1 K1_nopf")
    a.codepf("k1_kernel", "K3_end", 70, 199, RAW, 72)
    a.label("K1_nopf")
    rdx(0)
    for t in range(5): reads(0, t)
    for kk in range(18):
        wb = W + 20 * (kk & 1)
        last = kk == 17
        if kk % 2 == 1 and not last:
            need((kk + 1) // 2)
        z = kk == 0
        if last: a("s_waitcnt vmcnt(0)")
        for t in range(5):
            a(f"s_waitcnt lgkmcnt({8 - 2 * t if last else 8})")
            a(f"v_mfma_f32_16x16x32_bf16 {vr(ACC+4*t)}, {vr(wb+4*t)}, {vr(X+4*kk)}, {'0' if z else vr(ACC+4*t)}")
            if t == 0:
                if not last: rdx(kk + 1)
                a(f"v_mfma_f32_16x16x32_bf16 {vr(SM)}, {vr(ONES)}, {vr(X+4*kk)}, {'0' if z else vr(SM)}")
            if not last: rd1(kk + 1, t, 0)
            a(f"v_mfma_f32_16x16x32_bf16 {vr(CSA+4*t)}, {vr(wb+4*t)}, {vr(ONES)}, {'0' if z else vr(CSA+4*t)}")
            if not last: rd1(kk + 1, t, 1)
            if t == 1:
                a(f"v_mfma_f32_16x16x32_bf16 {vr(GR)}, {vr(X+4*kk)}, {vr(X+4*kk)}, {'0' if z else vr(GR)}")
        if kk == 8: a.stamp(4)
        if kk == 14:
            a("s_cmp_lg_u32 s55, 3")
            a("s_cbranch_scc1 K1_aend")
            a("s_mov_b32 s68, 0x05040100")
            a("s_mov_b32 s69, 0x07060302")
            a("s_waitcnt vmcnt(0)")
            for it in RL.perms_stores(RAW, [216, 220, 224, 228], 197, 56, 28, 68, 69, "st"):
                a.emit(it)
            a.label("K1_aend")
    a.stamp(5)
    vMean, vRstd = 12, 13
    a("v_and_b32 v5, 3, v3")
    a("v_lshrrev_b32 v6, 2, v3")
    a("v_cmp_eq_u32 vcc, 1, v5")
    a("v_cmp_eq_u32 s[44:45], 2, v5")
    a("v_cmp_eq_u32 s[46:47], 3, v5")
    a(f"v_mul_f32 v{vMean}, {f32bits(-1.0/576)}, v{SM}")
    a(f"v_cndmask_b32 v{GR}, v{GR}, v{GR+1}, vcc")
    a("v_cmp_eq_u32 vcc, v6, v4")
    a(f"v_cndmask_b32_e64 v{GR}, v{GR}, v{GR+2}, s[44:45]")
    a(f"v_cndmask_b32_e64 v{GR}, v{GR}, v{GR+3}, s[46:47]")
    a(f"v_cndmask_b32 v{GR}, 0, v{GR}, vcc")
    fm = [f"v_fmac_f32 v{ACC+r}, v{vMean}, v{CSA+r}" for r in range(20)]
    for sw in ("v_permlane16_swap_b32", "v_permlane32_swap_b32"):
        a(f"v_mov_b32 v{GR+1}, v{GR}")
        a(fm.pop(0)); a(fm.pop(0))
        a(f"{sw} v{GR}, v{GR+1}")
        a(fm.pop(0)); a(fm.pop(0))
        a(f"v_add_f32 v{GR}, v{GR}, v{GR+1}")
    a(f"v_mov_b32 v{GR+1}, {f32bits(1e-5)}")
    a(f"v_fmac_f32 v{GR+1}, {f32bits(1.0/576)}, v{GR}")
    a(f"v_fma_f32 v{GR+1}, -v{vMean}, v{vMean}, v{GR+1}")
    a(f"v_max_f32 v{GR+1}, {f32bits(1e-5)}, v{GR+1}")
    a(f"v_rsq_f32 v{vRstd}, v{GR+1}")
    a("v_cmp_gt_u32 vcc, 2, v4")
    for x_ in fm: a(x_)
    a.stamp(6)
    a(f"v_mul_f32 v14, {f32bits(QSCALE)}, v{vRstd}")
    a("s_lshl_b32 s34, s32, 4")
    a("s_add_u32 s34, s34, s15")
    a(f"s_mul_i32 s34, s34, {ROW}")
    a(f"s_add_u32 s34, s34, {WS_Q}")
    a("s_lshr_b32 s35, s32, 1")
    a(f"s_mul_i32 s35, s35, {KVB}")
    a(f"v_cndmask_b32 v15, v{vRstd}, v14, vcc")
    a(f"s_add_u32 s35, s35, {WS_KV}")
    a("s_and_b32 s37, s32, 1")
    PK = X
    for t in (4, 0, 1, 2, 3):
        sc = 14 if t < 4 else 15
        for r in range(4):
            a(f"v_mul_f32 v{ACC+4*t+r}, v{sc}, v{ACC+4*t+r}")
        a(f"v_cvt_pk_bf16_f32 v{PK+2*t}, v{ACC+4*t}, v{ACC+4*t+1}")
        a(f"v_cvt_pk_bf16_f32 v{PK+1+2*t}, v{ACC+4*t+2}, v{ACC+4*t+3}")
        if t < 4:
            for q in range(2):
                a(f"buffer_store_dword v{PK+2*t+q}, v{QA+2*t+q}, s[28:31], s34 offen")
    a("s_mov_b64 exec, vcc")
    for q in range(2):
        a(f"buffer_store_dword v{PK+8+q}, v{QA+8+q}, s[28:31], s34 offen")
    a("s_not_b64 exec, vcc")
    a("s_cmp_ge_u32 s15, 6")
    a("s_cbranch_scc1 K1_ones")
    a("s_cmp_ge_u32 s15, 3")
    a("s_cbranch_scc1 K1_v")
    a("s_lshl_b32 s38, s37, 4")
    a("v_add_u32 v8, s38, v3")
    a("v_lshlrev_b32 v9, 4, v8")
    a("s_cmp_eq_u32 s15, 2")
    a("s_cbranch_scc1 K1_k2")
    a("s_lshl_b32 s38, s15, 9")
    a("s_add_u32 s38, s38, s35")
    a("s_sub_u32 s38, s38, 16")
    a("v_lshl_add_u32 v9, v4, 3, v9")
    a(f"buffer_store_dwordx2 {vr(PK+8,2)}, v9, s[28:31], s38 offen")
    a("s_branch K1_fin")
    a.label("K1_k2")
    a("s_lshr_b32 s38, s32, 3")
    a("s_lshl_b32 s38, s38, 9")
    a("s_and_b32 s39, s32, 6")
    a("s_lshl_b32 s39, s39, 1")
    a("s_add_u32 s38, s38, s39")
    a(f"s_add_u32 s38, s38, {WS_KV + K2OFF}")
    a("s_mov_b32 exec_hi, 0xffff0000")
    a(f"buffer_store_dword v{PK+9}, v9, s[28:31], s38 offen")
    a("s_branch K1_fin")
    a.label("K1_v")
    a("v_bfe_u32 v6, v3, 2, 1")
    a("v_mul_u32_u24 v6, 320, v6")
    a("v_and_b32 v7, 3, v3")
    a("v_lshl_add_u32 v6, v7, 1, v6")
    a("v_lshrrev_b32 v7, 3, v3")
    a("v_lshl_add_u32 v6, v7, 3, v6")
    a("v_lshl_add_u32 v6, v4, 6, v6")
    a("s_mul_i32 s38, s37, 640")
    a("s_add_u32 s38, s38, s35")
    a("s_sub_u32 s36, s15, 3")
    a("s_lshl_b32 s39, s36, 7")
    a("s_cmp_ge_u32 s36, 2")
    a("s_cselect_b32 s39, 160, s39")
    a("s_cselect_b32 s36, 16, 0")
    a("s_add_u32 s38, s38, s39")
    a("s_add_u32 s38, s38, 896")
    a("v_and_b32 v7, 1, v4")
    a("v_mul_u32_u24 v7, s36, v7")
    a("v_add_u32 v7, v7, v6")
    for r in range(4):
        op = "buffer_store_short" if r % 2 == 0 else "buffer_store_short_d16_hi"
        a(f"{op} v{PK + 8 + r // 2}, v{6 if r < 3 else 7}, s[28:31], s38 offen offset:{16*r}")
    a("s_branch K1_fin")
    a.label("K1_ones")
    a("s_mov_b64 exec, 15")
    a("s_cmp_eq_u32 s15, 6")
    a("s_cbranch_scc0 K1_fin")
    a("s_mul_i32 s38, s37, 640")
    a("s_add_u32 s38, s38, s35")
    a("v_lshrrev_b32 v6, 1, v2")
    a("v_mul_u32_u24 v6, 320, v6")
    a("v_and_b32 v7, 1, v2")
    a("v_lshl_add_u32 v6, v7, 5, v6")
    a(f"buffer_store_dwordx4 {vr(ONES)}, v6, s[28:31], s38 offen offset:{1024+17*16}")
    a.label("K1_fin")
    a.end(1, 28, 8)
    a.label("K1_end")
    a("s_endpgm")
    return K, desc(K, 232), (256, 512, LDS)
```

```python
from common import *
import relayout as RL
QB   = 0
OB   = 8 * 1536
STAT = OB + 18 * 512
MX   = STAT + 1024
PS   = MX + 1024
XS   = PS + 2 * 8 * 2560
STG  = XS + 8 * 1184
LDS  = STG + 8 * 10240

KF = [20 + 4 * s for s in range(8)]
K2F = 52
VF = [[60 + 8 * s, 64 + 8 * s] for s in range(8)]
S = [124, 140]
P = 156
O = [164, 180]
QR = [196, 204]
WACC = 212
WA = 232
WB = 252
vL16, vV, vK2, vL4, vOBr, vT0, vT1, vT2, vT3 = 5, 6, 7, 8, 9, 10, 11, 12, 13
vLo = 14
vX = 15
vSt, vStr = 16, 17
vPw, vPw8, vPr, vPr8 = 16, 17, 18, 19
vOw = 1

def k2(a):
    K = "k2_kernel"
    a.begin(K)
    a("s_cmp_ge_u32 s2, 256")
    a("s_cbranch_scc1 K2_end")
    a.stamp(0); a.stampc(10)
    a(f"s_load_dwordx2 s[4:5], s[0:1], {A_WS}")
    a(f"s_load_dwordx2 s[6:7], s[0:1], {A_X}")
    a(f"s_load_dwordx2 s[80:81], s[0:1], {A_W1}")
    a(f"s_load_dwordx2 s[82:83], s[0:1], {A_W2}")
    a("v_lshrrev_b32 v1, 6, v0")
    a("v_and_b32 v2, 63, v0")
    a("v_readfirstlane_b32 s3, v1")
    a("s_mov_b32 s22, 0")
    a.label("K2_main")
    a("v_and_b32 v3, 31, v0")
    a("v_bfe_u32 v4, v0, 5, 1")
    a(f"v_lshlrev_b32 v{vL16}, 4, v2")
    a(f"v_lshlrev_b32 v{vL4}, 2, v2")
    a(f"s_mul_i32 s16, s2, {8*ROW}")
    a(f"s_add_u32 s16, s16, {WS_Q}")
    a(f"s_mul_i32 s54, s3, {ROW}")
    a("s_add_u32 s54, s54, s16")
    a(f"v_lshl_or_b32 v{vT0}, v4, 30, v{vL4}")
    a(f"v_mul_u32_u24 v{vV}, 320, v4")
    a(f"v_lshl_add_u32 v{vV}, v3, 4, v{vV}")
    a(f"v_add_u32 v{vV}, 1024, v{vV}")
    a(f"v_subrev_u32 v18, 32, v{vV}")
    a(f"v_and_b32 v19, 30, v3")
    a("v_cmp_eq_u32 vcc, 20, v19")
    a("v_cmp_gt_u32 s[20:21], 18, v3")
    a(f"v_mov_b32 v19, {OOB}")
    a(f"v_cndmask_b32 v18, v19, v18, vcc")
    a(f"v_cndmask_b32_e64 v{vV}, v18, v{vV}, s[20:21]")
    a(f"v_lshl_or_b32 v{vK2}, v4, 30, v{vL16}")
    a("v_cmp_eq_u32 s[20:21], 0, v4")
    a("s_lshr_b32 s18, s2, 3")
    a("s_lshl_b32 s19, s3, 1")
    a("s_add_u32 s18, s18, s19")
    a("s_and_b32 s18, s18, 15")
    a("s_add_u32 s19, s18, 1")
    a("s_and_b32 s19, s19, 15")
    for s in range(8):
        a(f"s_mul_i32 s{24+s}, s{18 + s // 4}, {4*KVB}")
        if s % 4:
            a(f"s_add_u32 s{24+s}, s{24+s}, {(s % 4) * KVB}")
    for k in (18, 19):
        a(f"s_lshl_b32 s{k}, s{k}, 9")
        a(f"s_add_u32 s{k}, s{k}, {K2OFF}")
    a("s_waitcnt lgkmcnt(0)")
    a.srd(8, 4, WS_SIZE)
    a.srd(12, 4, KV_BYTES, WS_KV)
    def ldK(s):
        L = [("vm", ("k", s), f"buffer_load_dwordx4 {vr(KF[s])}, v{vL16}, s[12:15], s{24+s} offen")]
        if s % 4 == 0:
            L.append(("vm", ("k", s), f"buffer_load_dwordx4 {vr(K2F+s)}, v{vK2}, s[12:15], s{18 + s // 4} offen"))
        return L
    def fixK2(b):
        return [f"v_cndmask_b32_e64 v{K2F+b+i}, v{vT2}, v{K2F+b+i}, s[20:21]" for i in range(4)]
    def ldV(s):
        return [("vm", ("v", s), f"buffer_load_dwordx4 {vr(VF[s][0])}, v{vV}, s[12:15], s{24+s} offen"),
                ("vm", ("v", s), f"buffer_load_dwordx4 {vr(VF[s][1])}, v{vV}, s[12:15], s{24+s} offen offset:640")]
    a.vm("q0", f"buffer_load_dwordx4 {vr(QR[0])}, v{vL16}, s[8:11], s16 offen")
    a.vm("q0", f"buffer_load_dword v{QR[0]+4}, v{vT0}, s[8:11], s16 offen offset:1024")
    for it in ldK(0) + ldK(1) + ldV(0):
        a.emit(it)
    a("s_mul_i32 s17, s3, 1536")
    a("s_cmp_eq_u32 s22, 0")
    a(f"s_cselect_b32 s17, s17, {XS}")
    a("s_mov_b32 m0, s17")
    a(f"v_add_u32 v{vPr}, s17, v{vL4}")
    a.vm("q", f"buffer_load_dwordx4 v{vL16}, s[8:11], s54 offen lds")
    a.vm("q", f"buffer_load_dword v{vT0}, s[8:11], s54 offen offset:1024 lds")
    a(f"v_mov_b32 v{QR[0]+5}, 0")
    a(f"ds_write_b32 v{vPr}, v{QR[0]+5} offset:1280")
    a("s_lshr_b32 s41, s2, 3")
    a("s_cmp_lg_u32 s3, 7")
    a("s_cbranch_scc1 K2_nopf")
    a.codepf("k2_kernel", "K2_end", 41, vL16, WA, 42)
    a.vmq.pop()
    a.label("K2_nopf")
    a.srd(32, 4, WOF_BYTES, WS_WOF)
    a.srd(36, 6, 2048 * ROW)
    a(f"v_bfe_u32 v{vT0}, v0, 4, 2")
    a(f"v_and_b32 v{vT3}, 7, v0")
    a(f"v_lshlrev_b32 v{vOBr}, 7, v{vT0}")
    a(f"v_lshl_add_u32 v{vOBr}, v{vT3}, 4, v{vOBr}")
    a(f"v_add_u32 v{vOBr}, {OB}, v{vOBr}")
    a(f"v_bfe_u32 v{vT1}, v0, 3, 2")
    a(f"v_lshl_add_u32 v{vT1}, v{vT1}, 1, v4")
    a(f"v_lshlrev_b32 v{vLo}, 4, v{vT3}")
    a(f"v_lshl_add_u32 v{vLo}, v{vT1}, 1, v{vLo}")
    a(f"v_add_u32 v{vLo}, {OB+8192}, v{vLo}")
    a(f"v_mul_u32_u24 v{vX}, 1184, v{vT3}")
    a(f"v_lshl_add_u32 v{vX}, v{vT0}, 3, v{vX}")
    a("s_lshl_b32 s17, s3, 5")
    a(f"s_add_u32 s17, s17, {XS}")
    a(f"v_add_u32 v{vX}, s17, v{vX}")
    a("s_mul_i32 s55, s3, 10240")
    a(f"s_add_u32 s55, s55, {STG}")
    a("s_mul_i32 s17, s3, 2560")
    a(f"s_add_u32 s17, s17, {PS}")
    a(f"v_add_u32 v{vPw}, s17, v{vL16}")
    a(f"v_lshlrev_b32 v{vPr8}, 3, v2")
    a(f"v_add_u32 v{vPw8}, s17, v{vPr8}")
    a(f"v_add_u32 v{vPr8}, {PS}, v{vPr8}")
    a("s_and_b32 s52, s3, 3")
    a("s_lshr_b32 s53, s3, 2")
    a("s_lshr_b32 s17, s52, 1")
    a("s_lshl_b32 s17, s17, 10")
    a("s_and_b32 s41, s52, 1")
    a("s_lshl_b32 s41, s41, 3")
    a("s_add_u32 s17, s17, s41")
    a(f"s_add_u32 s17, s17, {PS}")
    a(f"v_add_u32 v{vPr}, s17, v{vL16}")
    a("s_lshl_b32 s17, s52, 2")
    a(f"v_add_u32 v{vOw}, s17, v{vL16}")
    a("s_mov_b32 s23, 0")
    a(f"s_mul_i32 s40, s3, {18*1024}")
    a(f"v_mov_b32 v{QR[0]+6}, 0")
    a(f"v_mov_b32 v{vT2}, 0x3f803f80")
    def rdQ(p):
        o = (QB + 1536 * p + 1024) // 256
        return [f"ds_read_b128 {vr(QR[p&1])}, v{vL16} offset:{QB+1536*p}",
                f"ds_read2st64_b32 {vr(QR[p&1]+4,2)}, v{vL4} offset0:{o} offset1:{o+1}",
                f"ds_read2st64_b32 {vr(QR[p&1]+6,2)}, v{vL4} offset0:{o+1} offset1:{o}"]
    a.stamp(1)
    a.waitvm(("k", 0))
    for it in fixK2(0): a(it)
    a(f"v_mov_b32 v{QR[0]+7}, v{QR[0]+4}")
    a("s_cmp_eq_u32 s22, 0")
    a("s_cbranch_scc1 K2_go")
    for it in rdQ(0):
        a(it)
    a("s_waitcnt lgkmcnt(0)")
    a.label("K2_go")
    def qk1(t):
        p, s = divmod(t, 8)
        return f"v_mfma_f32_32x32x16_bf16 {vr(S[t&1],16)}, {vr(KF[s])}, {vr(QR[p&1])}, 0"
    def qk2(t):
        p, s = divmod(t, 8)
        return f"v_mfma_f32_32x32x8_bf16 {vr(S[t&1],16)}, {vr(K2F+(s&~1),2)}, {vr(QR[p&1]+4+2*(s&1),2)}, {vr(S[t&1],16)}"
    def pv(t, half):
        p, s = divmod(t, 8)
        c = "0" if (s == 0 and half == 0) else vr(O[p & 1], 16)
        return f"v_mfma_f32_32x32x16_bf16 {vr(O[p&1],16)}, {vr(VF[s][half])}, {vr(P+4*half)}, {c}"
    def ex(t, i):
        return f"v_exp_f32 v{S[t&1]+i}, v{S[t&1]+i}"
    def cv(t, i):
        return f"v_cvt_pk_bf16_f32 v{P+i}, v{S[t&1]+2*i}, v{S[t&1]+2*i+1}"
    a.stamp(2)
    a(qk1(0)); a(qk2(0))
    for it in ldK(2) + ldK(3) + ldV(1):
        a.emit(it)
    a("s_and_b32 s84, s2, 7")
    a("s_andn2_b32 s85, s2, 7")
    a("s_add_u32 s85, s85, s3")
    RL.params_w12(a, 84, 85, 56, 64, 80, 82)
    a("s_lshr_b32 s85, s2, 3")
    a("s_lshl_b32 s17, s85, 1")
    a("s_add_u32 s17, s17, s3")
    a("s_add_u32 s17, s17, 256")
    a("s_add_u32 s85, s85, 320")
    a("s_cmp_lt_u32 s3, 2")
    a("s_cselect_b32 s85, s17, s85")
    a("s_cmp_gt_u32 s3, 2")
    a("s_cselect_b32 s85, 999, s85")
    RL.params_w12(a, 84, 85, 68, 76, 80, 82)

    def e1(p):
        o = O[p & 1]; b = (p & 1) * 20480
        return [f"ds_write_b128 v{vPw}, {vr(o)} offset:{b}", f"ds_write_b128 v{vPw}, {vr(o+4)} offset:{b+1024}",
                f"ds_write_b64 v{vPw8}, {vr(o+8,2)} offset:{b+2048}"]
    def guard(p, tag, body):
        return [f"s_cmp_lg_u32 s53, {p & 1}", f"s_cbranch_scc1 K2_{tag}"] + body + [("label", f"K2_{tag}")]
    def rdP(p, half):
        o = O[p & 1]; b = (p & 1) * 20480 + half * 4 * 2560
        L = []
        for k in range(4):
            L.append(f"ds_read_b64 {vr(o+4*k,2)}, v{vPr} offset:{b+2560*k}")
            L.append(f"ds_read_b64 {vr(o+4*k+2,2)}, v{vPr8} offset:{b+2560*k+2048}")
        return L
    def e2a(p):
        return guard(p, f"e2a{p}", rdP(p, 0))
    def e2b(p):
        o = O[p & 1]
        L = ["s_waitcnt lgkmcnt(0)"]
        for q in range(2):
            L.append(f"v_pk_add_f32 {vr(o+2*q,2)}, {vr(o+2*q,2)}, {vr(o+4+2*q,2)}")
            L.append(f"v_pk_add_f32 {vr(o+8+2*q,2)}, {vr(o+8+2*q,2)}, {vr(o+12+2*q,2)}")
        for q in range(2):
            L.append(f"v_pk_add_f32 {vr(vT0+2*q,2)}, {vr(o+2*q,2)}, {vr(o+8+2*q,2)}")
        return guard(p, f"e2b{p}", L + rdP(p, 1))
    def e2c(p):
        o = O[p & 1]
        L = ["s_waitcnt lgkmcnt(0)"]
        for q in (1, 0):
            L.append(f"v_pk_add_f32 {vr(o+2*q,2)}, {vr(o+2*q,2)}, {vr(o+4+2*q,2)}")
            L.append(f"v_pk_add_f32 {vr(o+8+2*q,2)}, {vr(o+8+2*q,2)}, {vr(o+12+2*q,2)}")
            L.append(f"v_pk_add_f32 {vr(vT0+2*q,2)}, {vr(vT0+2*q,2)}, {vr(o+2*q,2)}")
            L.append(f"v_pk_add_f32 {vr(vT0+2*q,2)}, {vr(vT0+2*q,2)}, {vr(o+8+2*q,2)}")
            if q == 1:
                L.append(f"v_rcp_f32 v{o+6}, v{vT3}")
        L.append(f"v_subrev_u32 v{o+7}, {f32bits(2.0**-60)}, v{vT3}")
        L.append(f"v_pk_mul_f32 {vr(vT0,2)}, {vr(vT0,2)}, {vr(o+6,2)} op_sel_hi:[1,0]")
        L.append(f"v_cmp_lt_u32 vcc, {120 << 23}, v{o+7}")
        L.append(f"v_mul_f32 v{vT2}, v{o+6}, v{vT2}")
        L.append(f"v_cvt_pk_bf16_f32 v{vT0}, v{vT0}, v{vT1}")
        L.append(f"v_cvt_pk_bf16_f32 v{vT2}, v{vT2}, v{vT2}")
        L.append(f"ds_write_b32 v{vOw}, v{vT0} offset:{OB+1024*p}")
        L.append(f"ds_write_b16 v{vLo}, v{vT2} offset:{128*p}")
        L.append(f"s_or_b32 s23, s23, vcc_lo")
        L.append(f"s_or_b32 s23, s23, vcc_hi")
        return guard(p, f"e2c{p}", L)
    def ldWA(ks, base):
        L = []
        for t in range(5):
            L.append(f"s_add_u32 s41, s40, {t*8*18*1024 + ks*1024}")
            if Opt.EXP == "nold" or Opt.EXP == "none":
                L.append(("vm", ("wa", ks), f"s_nop 0 ; v[{base[t]}:"))
            else:
                L.append(("vm", ("wa", ks), f"buffer_load_dwordx4 {vr(base[t])}, v{vL16}, s[32:35], s41 offen"))
        return L
    def rdWB(ks, wb):
        return [f"ds_read_b128 {vr(wb)}, v{vOBr} offset:{512*ks}"]
    first_wo = [True]
    def woM(ks, base, wb):
        L = []
        for t in range(5):
            c = "0" if first_wo[0] else vr(WACC + 4 * t)
            if Opt.EXP in ("nomm", "none") and not first_wo[0]:
                L.append("s_nop 0")
            else:
                L.append(f"v_mfma_f32_16x16x32_bf16 {vr(WACC+4*t)}, {vr(base[t])}, {vr(wb)}, {c}")
        first_wo[0] = False
        return L
    WAb = [WA + 4 * t for t in range(5)]
    WA2 = [VF[0][0], VF[0][1], VF[1][0], VF[1][1], KF[0]]
    WA3 = [VF[2][0], VF[2][1], VF[3][0], VF[3][1], KF[1]]
    WA4 = [VF[4][0], VF[4][1], KF[2], KF[3], KF[4]]
    XR = VF[5][0]

    uses = {}
    order = []
    for tu, ks in ((22, 0), (26, 1), (28, 2), (30, 3), (35, 4), (38, 5), (42, 6), (44, 7), (46, 16), (51, 8), (54, 9), (58, 10), (60, 11)):
        uses[tu] = (ks, WAb)
        order.append((tu, ks))
    side_ld = {}
    side_ld[20] = ldWA(order[0][1], WAb)
    extra = {}
    def addx(t, groups):
        extra.setdefault(t, []).extend(groups)
    vSrc, vTr = vV, 4
    def rl_init(S_, vSrc):
        return [f"v_lshrrev_b32 v{vSrc}, 3, v2", f"v_mul_lo_u32 v{vSrc}, v{vSrc}, s{S_+2}", f"v_and_b32 v{vK2}, 7, v2",
                f"v_lshl_add_u32 v{vSrc}, v{vK2}, 4, v{vSrc}", f"s_lshl_b32 s{S_+6}, s{S_+2}, 3"]
    def rl_dma(S_, R_, ldsoff, tag, n, vSrc):
        ld = f"buffer_load_dwordx4 v{vSrc}, s[{R_}:{R_+3}], s{S_+1} offen{Opt.WNT} lds"
        return [f"s_add_u32 s41, s55, {ldsoff+1024*n}", "s_mov_b32 m0, s41", "s_nop 0",
                ("vm", tag, ld) if tag else ld, f"s_add_u32 s{S_+1}, s{S_+1}, s{S_+6}"]
    def rl_rd(ldsoff, q, d):
        return [f"ds_read_b64_tr_b16 {vr(d,2)}, v{vTr} offset:{ldsoff+32*q}",
                f"ds_read_b64_tr_b16 {vr(d+2,2)}, v{vTr} offset:{ldsoff+32*q+2048}"]
    def rl_st(S_, tag, d):
        st = f"buffer_store_dwordx4 {vr(d)}, v{vL16}, s[8:11], s{S_+5} offen{Opt.WST}"
        return ["s_waitcnt lgkmcnt(0)", ("vm", tag, st) if tag else st, f"s_add_u32 s{S_+5}, s{S_+5}, 18432"]
    def opt(tag, body):
        return ["s_cmp_ge_u32 s85, 324", f"s_cbranch_scc1 K2_{tag}"] + body + [("label", f"K2_{tag}")]
    if Opt.FOLD:
        for n, t_ in enumerate((6, 8, 11, 13)):
            addx(t_, [[], (rl_init(56, vV) if n == 0 else []) + rl_dma(56, 64, 0, "rl", n, vV)])
        for n, t_ in enumerate((5, 7, 10, 12)):
            addx(t_, [[], (rl_init(68, WACC) if n == 0 else []) + opt(f"rlb{n}", rl_dma(68, 76, 4096, None, n, WACC))])
        addx(15, [[f"v_lshrrev_b32 v{vTr}, 2, v2", f"v_lshlrev_b32 v{vTr}, 7, v{vTr}", f"v_and_b32 v{vK2}, 3, v2",
                   f"v_lshl_add_u32 v{vTr}, v{vK2}, 3, v{vTr}", f"v_add_u32 v{vTr}, s55, v{vTr}"]])
        addx(18, [[("wait", "rl")] + rl_rd(0, 0, WACC + 4)] + [rl_rd(0, q, WACC + 4 + 4 * q) for q in range(1, 4)])
        addx(19, [rl_st(56, "rs", WACC + 4 + 4 * q) for q in range(4)])
        addx(20, [[], opt("rlr", [x for q in range(4) for x in rl_rd(4096, q, WACC + 4 + 4 * q)])])
        addx(21, [opt(f"rls{q}", rl_st(68, None, WACC + 4 + 4 * q)) for q in range(4)])
    addx(37, [[f"s_lshl_b32 s41, s2, 3", "s_add_u32 s41, s41, s3", f"s_mul_i32 s41, s41, {ROW}", "s_mul_i32 s42, s3, 1184", f"s_add_u32 s42, s42, {XS}",
              "s_mov_b32 m0, s42", "s_nop 0", ("vm", "x", f"buffer_load_dwordx4 v{vL16}, s[36:39], s41 offen lds")],
             ["s_mov_b64 exec, 0xff", ("vm", "x", f"buffer_load_dwordx4 v{vL16}, s[36:39], s41 offen offset:1024 lds"), "s_mov_b64 exec, -1"]])
    for n, t_ in enumerate((15, 16, 17)):
        addx(t_, [["s_andn2_b32 s41, s2, 7", "s_add_u32 s41, s41, s3", "s_mul_i32 s41, s41, 2624", f"s_add_u32 s41, s41, {1024*n}",
                   "s_add_u32 s42, s55, 9216", "s_mov_b32 m0, s42", "s_nop 0",
                   ("vm", "pf", f"buffer_load_dwordx4 v{vL16}, s[32:35], s41 offen lds")]])
    addx(8, [["s_lshl_b32 s43, s2, 3", "s_add_u32 s43, s43, s3", "s_mul_i32 s43, s43, 9216", f"s_add_u32 s43, s43, {WS_PART}"]])
    for k, t_ in enumerate((24, 25, 32, 33, 34, 40, 41, 48, 49)):
        if t_ in (24, 32, 40, 48):
            addx(t_, [[f"v_mov_b32 v{vT0+i}, {POISON}" for i in range(4)]])
        addx(t_, [[("vm", "po", f"buffer_store_dwordx4 {vr(vT0)}, v{vL16}, s[8:11], s43 offen sc1"), "s_add_u32 s43, s43, 1024"]])
    for n in range(10):
        ks, t_ = 14 + n // 5, n % 5
        addx((37, 50, 50, 53, 53)[n // 2],
             [[f"s_add_u32 s42, s55, {1024*n}", "s_mov_b32 m0, s42", f"s_add_u32 s41, s40, {t_*8*18*1024 + ks*1024}",
               ("vm", "stg", f"buffer_load_dwordx4 v{vL16}, s[32:35], s41 offen lds")]])
    addx(62, [[f"v_add_u32 v{vK2}, s55, v{vL16}"]] + [[f"ds_read_b128 {vr(WAb[n])}, v{vK2} offset:{1024*n}"] for n in range(5)])
    addx(63, [[f"ds_read_b128 {vr(WA4[n])}, v{vK2} offset:{1024*(5+n)}"] for n in range(5)])
    for (tu, ks), (tn, kn) in zip(order[:-1], order[1:]):
        side_ld[tu + 1] = ldWA(kn, WAb)
    side_ld[8 * 7 + 3] = side_ld[8 * 7 + 3] + ldWA(12, WA2)
    side_ld[8 * 7 + 5] = ldWA(13, WA3)
    side_ld[8 * 7 + 7] = ldWA(17, WA2)
    uses[8 * 7 + 6] = (12, WA2)
    uses[8 * 7 + 7] = (13, WA3)
    PRIO = {2: 3, 5: 2, 0: 1, 1: 0}

    for t in range(64):
        p, s = divmod(t, 8)
        m = [ex(t, 0), ex(t, 1)]
        m += [pv(t - 1, 1)] if t > 0 else ["s_nop 0"]
        m += [ex(t, i) for i in range(2, 7)]
        m += [qk1(t + 1)] if t < 63 else ["s_nop 0"]
        m += [ex(t, 7)] + [cv(t, i) for i in range(4)] + [ex(t, 8), ex(t, 9)]
        m += [qk2(t + 1)] if t < 63 else ["s_nop 0"]
        m += [ex(t, i) for i in range(10, 15)]
        m += [pv(t, 0)]
        m += [ex(t, 15)] + [cv(t, i) for i in range(4, 8)]
        sd = {i: [] for i in range(29)}
        sd[0].append("s_nop 0")
        if Opt.DBG:
            sd[0].append("s_memtime s[86:87]")
            sd[27] += ["s_waitcnt lgkmcnt(0)", f"v_writelane_b32 v3, s86, {t}"]
        if p == 0:
            if t < 63 and s + 1 < 8:
                sd[8].append(("wait", ("k", s + 1)))
                if s == 3:
                    sd[8] += fixK2(4)
            sd[22].append(("wait", ("v", s)))
            L = []
            if s % 2 == 0 and s + 4 < 8:
                L += ldK(s + 4) + ldK(s + 5)
            if s + 2 < 8:
                L += ldV(s + 2)
            for i, it in enumerate(L):
                sd[1 + i * 26 // len(L)].append(it)
            if s == 3:
                sd[28] += ["s_waitcnt lgkmcnt(0)", "s_barrier"]
        if s == 4 and p < 7:
            sd[3] += rdQ(p + 1)
        if s == 7 and p < 7:
            sd[8].append("s_waitcnt lgkmcnt(0)")
        if p >= 1:
            if s == 0:
                for i, it in enumerate(e1(p - 1)):
                    sd[17 + 4 * i].append(it)
            if s == 1:
                sd[28] += ["s_waitcnt lgkmcnt(0)", "s_barrier"] + e2a(p - 1)
                if p in (1, 4, 7):
                    sd[28].append(("stamp", {1: 3, 4: 4, 7: 5}[p]))
            if s == 3:
                sd[0] += e2b(p - 1)
            if s == 4:
                sd[0] += e2c(p - 1)
        if p == 7 and s == 5:
            sd[0] += ["s_waitcnt lgkmcnt(0)", "s_barrier"]
        if t + 1 in uses:
            sd[28 if s == 1 else 24] += rdWB(uses[t + 1][0], WB)
        if t in uses:
            ks, base = uses[t]
            sd[6] += [("wait", ("wa", ks), " lgkmcnt(0)")]
            for pos, it in zip((6, 13, 14, 20, 21), woM(ks, base, WB)):
                sd[pos].append(it)
        if t in side_ld:
            L = side_ld[t]
            n = len(L) // 2
            lo = 22 if (t in uses and uses[t][1][0] in [int(x[2].split("v[")[1].split(":")[0]) for x in L[1::2]]) else 1
            for i in range(n):
                pos = lo + i * (27 - lo) // n
                sd[pos] += L[2 * i:2 * i + 2]
        if t in extra:
            G_ = extra[t]
            for i, g_ in enumerate(G_):
                sd[3 + i * 24 // len(G_)] += g_
        pr = PRIO.get(s)
        if p == 0: pr = {0: 3, 2: 1, 3: 0, 4: 3, 6: 2}.get(s)
        if p == 7: pr = {2: 3, 3: 2, 4: 1, 5: 3, 6: 2, 7: 1, 0: 1, 1: 0}.get(s)
        if pr is not None:
            sd[0].insert(0, f"s_setprio {pr}")
        for it in weave(m, sd):
            a.emit(it)
    a("s_nop 1")
    a(pv(63, 1))
    XR = S[0]
    for t in range(5):
        a(f"ds_read_b64 {vr(XR+2*t,2)}, v{vX} offset:{256*t}")
    a("s_nop 4")
    a("s_nop 2")
    for it in e1(7):
        a(it)
    a("s_lshr_b32 s44, s2, 3")
    a("s_bfe_u32 s45, s2, 0x20001")
    a("s_and_b32 s46, s2, 1")
    a("s_lshl_b32 s46, s46, 8")
    a("s_mul_i32 s47, s44, 73728")
    a("s_lshr_b32 s48, s3, 1")
    a("s_lshl_b32 s48, s48, 12")
    a("s_add_u32 s47, s47, s48")
    a("s_lshl_b32 s48, s45, 10")
    a("s_add_u32 s47, s47, s48")
    a("s_and_b32 s48, s3, 1")
    a("s_lshl_b32 s48, s48, 9")
    a("s_add_u32 s47, s47, s48")
    a("s_add_u32 s47, s47, s46")
    a(f"s_add_u32 s47, s47, {WS_XN}")
    a("s_mul_i32 s49, s44, 36")
    a("s_add_u32 s49, s49, s3")
    a("s_lshl_b32 s49, s49, 11")
    a("s_lshl_b32 s48, s45, 9")
    a("s_add_u32 s49, s49, s48")
    a("s_add_u32 s49, s49, s46")
    a(f"s_add_u32 s49, s49, {WS_HRES}")
    a("s_waitcnt lgkmcnt(0)")
    a("s_barrier")
    a.stamp(6)
    for it in e2a(7) + e2b(7) + e2c(7):
        a.emit(it)
    a("s_nop 0")
    a(f"v_bfe_u32 v{vPr}, v0, 4, 2")
    a(f"v_and_b32 v{vPr8}, 7, v0")
    a(f"v_lshlrev_b32 v{vSt}, 6, v{vPr}")
    a(f"v_lshl_add_u32 v{vSt}, v{vPr8}, 3, v{vSt}")
    a("s_waitcnt lgkmcnt(0)")
    a(f"v_and_b32 v{vT1}, 8, v0")
    a(f"v_cmp_eq_u32 s[50:51], 0, v{vT1}")
    a(f"v_mov_b32 v{vT1}, s47")
    a(f"v_mov_b32 v{vT2}, s49")
    a(f"v_cndmask_b32_e64 v{vT1}, v{vT1}, v{vT2}, s[50:51]")
    a(f"v_add_u32 v{vSt}, v{vSt}, v{vT1}")
    a("s_waitcnt lgkmcnt(0)")
    a("s_barrier")
    WBs = [WB, P, P + 4]
    for ks, wb in zip((14, 15, 17), WBs):
        a(rdWB(ks, wb)[0])
    XF = S[1]
    xf = [XF + i for i in range(16)] + [O[0] + i for i in range(4)]
    a("s_cmp_lt_u32 s3, 4")
    a("s_cselect_b32 s17, -1, 0")
    a(f"v_and_b32 v{XR+8}, s17, v{XR+8}")
    a(f"v_and_b32 v{XR+9}, s17, v{XR+9}")
    for t in range(5):
        for q in range(2):
            a(f"v_lshlrev_b32 v{xf[4*t+2*q]}, 16, v{XR+2*t+q}")
            a(f"v_and_b32 v{xf[4*t+2*q+1]}, 0xffff0000, v{XR+2*t+q}")
    a("s_waitcnt vmcnt(0) lgkmcnt(0)")
    for ks, base, wb in ((14, WAb, WBs[0]), (15, WA4, WBs[1]), (17, WA2, WBs[2])):
        for it in woM(ks, base, wb):
            a(it)
    a(f"v_lshlrev_b32 v{vT3}, 3, v{vPr8}")
    a(f"v_add_u32 v{vT3}, {STAT}, v{vT3}")
    a("s_lshl_b32 s17, s3, 6")
    a(f"v_add_u32 v{vT2}, s17, v{vT3}")
    a("s_nop 0")
    SS = O[0] + 4
    for t in range(5):
        for q in range(2):
            r = WACC + 4 * t + 2 * q
            a(f"v_pk_add_f32 {vr(r,2)}, {vr(r,2)}, {vr(xf[4*t+2*q],2)}")
    for i in range(10):
        r = WACC + 2 * i
        if i == 0:
            a(f"v_pk_mul_f32 {vr(SS+2,2)}, {vr(r,2)}, {vr(r,2)}")
        elif i == 1:
            a(f"v_pk_add_f32 {vr(SS,2)}, {vr(WACC,2)}, {vr(r,2)}")
            a(f"v_pk_fma_f32 {vr(SS+2,2)}, {vr(r,2)}, {vr(r,2)}, {vr(SS+2,2)}")
        else:
            a(f"v_pk_add_f32 {vr(SS,2)}, {vr(SS,2)}, {vr(r,2)}")
            a(f"v_pk_fma_f32 {vr(SS+2,2)}, {vr(r,2)}, {vr(r,2)}, {vr(SS+2,2)}")
    a(f"v_add_f32 v{SS}, v{SS}, v{SS+1}")
    a(f"v_add_f32 v{SS+1}, v{SS+2}, v{SS+3}")
    HP = S[0]
    hp = [f"v_cvt_pk_bf16_f32 v{HP+i}, v{WACC+2*i}, v{WACC+2*i+1}" for i in range(10)]
    for sw in ("v_permlane16_swap_b32", "v_permlane32_swap_b32"):
        a(f"v_mov_b32 v{SS+2}, v{SS}")
        a(f"v_mov_b32 v{SS+3}, v{SS+1}")
        a(hp.pop(0)); a(hp.pop(0))
        a(f"{sw} v{SS}, v{SS+2}")
        a(f"{sw} v{SS+1}, v{SS+3}")
        a(hp.pop(0)); a(hp.pop(0))
        a(f"v_pk_add_f32 {vr(SS,2)}, {vr(SS,2)}, {vr(SS+2,2)}")
    a("s_lshl_b32 s17, s3, 2")
    a(f"s_add_u32 s17, s17, {STAT+512}")
    a(f"v_mov_b32 v{vT0}, s17")
    a(f"v_mov_b32 v{vT1}, s23")
    a("s_mov_b64 exec, 0xff")
    a(f"ds_write_b64 v{vT2}, {vr(SS,2)}")
    a(f"ds_write_b32 v{vT0}, v{vT1}")
    a("s_mov_b64 exec, -1")
    for x_ in hp: a(x_)
    a(f"v_lshlrev_b32 v{vT0}, 2, v{vPr8}")
    a("s_waitcnt lgkmcnt(0)")
    a("s_barrier")
    a.stamp(7)
    RS = S[1]
    for k in range(8):
        a(f"ds_read_b64 {vr(RS+2*k,2)}, v{vT3} offset:{64*k}")
    a(f"ds_read_b32 v{SS+2}, v{vT0} offset:{STAT+512}")
    a("s_waitcnt lgkmcnt(0)")
    a(f"v_cmp_ne_u32 vcc, 0, v{SS+2}")
    for k in range(4):
        a(f"v_pk_add_f32 {vr(RS+4*k,2)}, {vr(RS+4*k,2)}, {vr(RS+4*k+2,2)}")
    a(f"v_pk_add_f32 {vr(RS,2)}, {vr(RS,2)}, {vr(RS+4,2)}")
    a(f"v_pk_add_f32 {vr(RS+8,2)}, {vr(RS+8,2)}, {vr(RS+12,2)}")
    a(f"v_pk_add_f32 {vr(SS,2)}, {vr(RS,2)}, {vr(RS+8,2)}")
    a("s_mov_b32 s23, vcc_lo")
    a(f"v_mul_f32 v{SS}, {f32bits(-1.0/576)}, v{SS}")
    a(f"v_mov_b32 v{SS+2}, {f32bits(1e-5)}")
    a(f"v_fmac_f32 v{SS+2}, {f32bits(1.0/576)}, v{SS+1}")
    a(f"v_fma_f32 v{SS+2}, -v{SS}, v{SS}, v{SS+2}")
    a(f"v_max_f32 v{SS+2}, {f32bits(1e-5)}, v{SS+2}")
    a(f"v_rsq_f32 v{SS+2}, v{SS+2}")
    a("s_cmp_lg_u32 s22, 0")
    a("s_cselect_b32 s23, 0, s23")
    a("s_cmp_lg_u32 s23, 0")
    a("s_cbranch_scc1 K2_slow")
    a(f"v_mul_f32 v{SS}, v{SS}, v{SS+2}")
    for t in range(5):
        for q in range(2):
            r = WACC + 4 * t + 2 * q
            a(f"v_pk_fma_f32 {vr(r,2)}, {vr(r,2)}, {vr(SS+2,2)}, {vr(SS,2)} op_sel_hi:[1,0,0]")
        for q in range(2):
            r = WACC + 4 * t + 2 * q
            a(f"v_cvt_pk_bf16_f32 v{r}, v{r}, v{r+1}")
            a(f"v_cndmask_b32_e64 v{HP+2*t+q}, v{r}, v{HP+2*t+q}, s[50:51]")
        if t == 4:
            a("s_cmp_ge_u32 s3, 4")
            a("s_cbranch_scc1 K2_fin")
        a(f"s_mov_b32 s17, {16384*t}")
        a(f"buffer_store_dwordx2 {vr(HP+2*t,2)}, v{vSt}, s[8:11], s17 offen{Opt.XST}")
    a.label("K2_fin")
    if Opt.DBG:
        a("s_lshl_b32 s100, s2, 3")
        a("s_add_u32 s100, s100, s3")
        a("s_lshl_b32 s100, s100, 8")
        a(f"s_add_u32 s100, s100, {WS_DBG + 8 * 4096 * 64}")
        a(f"buffer_store_dword v3, v{vL4}, s[8:11], s100 offen")
    a.end(2, 8, 8)
    a.label("K2_slow")
    for s in range(8):
        a(ldK(s)[0][2])
    a(f"v_lshlrev_b32 v{vT0}, 2, v3")
    a(f"v_add_u32 v{vT0}, {MX}, v{vT0}")
    a(f"v_mov_b32 v{vT1}, 0xff800000")
    a("s_lshl_b32 s17, s3, 7")
    a(f"v_add_u32 v{vT2}, s17, v{vT0}")
    a(f"ds_write_b32 v{vT2}, v{vT1}")
    a(f"v_mov_b32 v{vT3}, v{vL16}")
    a(f"v_mov_b32 v{vPr}, v{vL4}")
    a("s_mov_b32 s17, 0")
    a("s_waitcnt vmcnt(0) lgkmcnt(0)")
    a("s_barrier")
    a.label("K2_mx")
    a(f"ds_read_b128 {vr(QR[0])}, v{vT3} offset:{QB}")
    a(f"ds_read2st64_b32 {vr(QR[0]+4,2)}, v{vPr} offset0:4 offset1:5")
    a(f"ds_read2st64_b32 {vr(QR[0]+6,2)}, v{vPr} offset0:5 offset1:4")
    a(f"v_mov_b32 v{vT1}, 0xff800000")
    a("s_waitcnt lgkmcnt(0)")
    for s in range(8):
        a(qk1(s)); a(qk2(s))
        a("s_nop 7"); a("s_nop 7")
        for i in range(8):
            a(f"v_max3_f32 v{vT1}, v{vT1}, v{S[s&1]+2*i}, v{S[s&1]+2*i+1}")
    a(f"ds_max_f32 v{vT0}, v{vT1}")
    a(f"v_add_u32 v{vT0}, 128, v{vT0}")
    a(f"v_add_u32 v{vT3}, 1536, v{vT3}")
    a(f"v_add_u32 v{vPr}, 1536, v{vPr}")
    a("s_add_u32 s17, s17, 1")
    a("s_cmp_lt_u32 s17, 8")
    a("s_cbranch_scc1 K2_mx")
    a("s_waitcnt lgkmcnt(0)")
    a("s_barrier")
    a(f"ds_read_b32 v{vT1}, v{vT2}")
    a("s_mul_i32 s17, s3, 1536")
    a(f"v_add_u32 v{vT3}, s17, v{vL4}")
    a("s_waitcnt lgkmcnt(0)")
    T = S[0]
    a(f"v_sub_f32 v{vT1}, 0, v{vT1}")
    a(f"v_and_b32 v{T}, 0xffff0000, v{vT1}")
    a(f"v_sub_f32 v{vT1}, v{vT1}, v{T}")
    a(f"v_and_b32 v{T+1}, 0xffff0000, v{vT1}")
    a(f"v_sub_f32 v{vT1}, v{vT1}, v{T+1}")
    a(f"v_lshrrev_b32 v{T}, 16, v{T}")
    a(f"v_or_b32 v{T}, v{T}, v{T+1}")
    a(f"v_lshrrev_b32 v{T+1}, 16, v{vT1}")
    a("s_not_b64 exec, s[20:21]")
    a(f"ds_write_b32 v{vT3}, v{T} offset:{QB+1024}")
    a(f"ds_write_b32 v{vT3}, v{T+1} offset:{QB+1280}")
    a("s_mov_b64 exec, -1")
    a("s_mov_b32 s22, 1")
    a("s_waitcnt lgkmcnt(0)")
    a("s_barrier")
    a("s_branch K2_main")
    a.label("K2_end")
    a("s_endpgm")
    return K, desc(K, 256), (256, 512, LDS)
```

```python
from common import *
RING = 36
RB = 104
BV = 72
ACC = [40, 56]
TMP = 248
BIAS = 16
B1R = 24
ACCP = 16
LZ = 32
HOFF = 72 * 1024
LDS = HOFF + 72 * 1024
NF = 324

def bfrag(f):
    return ar(4 * f) if f < 64 else vr(BV + 4 * (f - 64))
def b1reg(n):
    return B1R + 2 * n if n < 8 else 14
def slot(i):
    return RB + (i % RING) * 4

def k3(a):
    K = "k3_kernel"
    a.begin(K)
    a("s_cmp_ge_u32 s2, 256")
    a("s_cbranch_scc1 K3_end")
    a.stamp(0); a.stampc(10)
    a(f"s_load_dwordx2 s[4:5], s[0:1], {A_WS}")
    a(f"s_load_dwordx2 s[6:7], s[0:1], {A_B1}")
    a(f"s_load_dwordx4 s[24:27], s[0:1], {A_B2}")
    a("v_lshrrev_b32 v1, 6, v0")
    a("v_and_b32 v2, 63, v0")
    a("v_readfirstlane_b32 s3, v1")
    a("v_and_b32 v3, 15, v0")
    a("v_bfe_u32 v4, v0, 4, 2")
    a("v_lshlrev_b32 v5, 4, v2")
    for k in range(1, 5):
        a(f"v_add_u32 v{5+k}, {4096*k}, v5")
    a("v_lshlrev_b32 v12, 3, v4")
    a("v_and_b32 v10, 0x23, v2")
    a("v_lshlrev_b32 v10, 4, v10")
    a("v_bfe_u32 v11, v2, 3, 2")
    a("v_lshl_add_u32 v10, v11, 6, v10")
    a("v_bfe_u32 v11, v2, 2, 1")
    a("v_lshl_add_u32 v10, v11, 8, v10")
    a("s_and_b32 s28, s2, 7")
    a("s_lshr_b32 s29, s2, 3")
    a("s_mul_i32 s31, s29, 73728")
    a("s_lshl_b32 s30, s3, 10")
    a("s_add_u32 s31, s31, s30")
    a(f"s_add_u32 s31, s31, {WS_XN}")
    a("s_mul_i32 s60, s28, 36")
    a("s_mul_i32 s59, s3, 9")
    a("s_mul_i32 s61, s29, 57")
    a("s_lshr_b32 s61, s61, 9")
    a("s_mul_i32 s61, s61, 9")
    a("s_sub_u32 s61, s29, s61")
    def g1par(n):
        a(f"s_add_u32 s{50+n}, s61, {n}")
        a(f"s_cmp_ge_u32 s{50+n}, 9")
        a(f"s_cselect_b32 s62, 9, 0")
        a(f"s_sub_u32 s{50+n}, s{50+n}, s62")
        a(f"s_add_u32 s{50+n}, s{50+n}, s59")
        a(f"s_add_u32 s62, s{50+n}, s60")
        a(f"s_mul_i32 s62, s62, {18*1024}")
        a(f"s_add_u32 s{32+n}, s62, {WS_W1F}")
    g1par(0); g1par(1)
    a("s_waitcnt lgkmcnt(0)")
    a.srd(8, 4, WS_SIZE)
    a.srd(12, 6, 4608 * 2)
    def load(i):
        t, kk = divmod(i, 18)
        return [("vm", ("A", i), f"buffer_load_dwordx4 {vr(slot(i))}, v{5 + kk // 4}, s[8:11], s{32+t} offen offset:{(kk%4)*1024}")]
    def dmax(kk):
        return ["s_mov_b32 m0, s30", "s_add_u32 s30, s30, 4096",
                ("vm", ("X", kk), "buffer_load_dwordx4 v10, s[8:11], s31 offen lds"), "s_add_u32 s31, s31, 4096"]
    def ldb1(n):
        return [f"s_add_u32 s62, s{50+n}, s60", f"s_lshl_b32 s62, s62, 5",
                ("vm", ("b1", n), f"buffer_load_dwordx2 {vr(b1reg(n),2)}, v12, s[12:15], s62 offen")]
    def E(L):
        for x in L: a.emit(x)
    a("s_cmp_lg_u32 s3, 3")
    a("s_cbranch_scc1 K3_nopf")
    a.codepf("k3_kernel", "K3_end", 29, 5, TMP, 86)
    a.vmq.pop()
    a.label("K3_nopf")
    for kk in range(3): E(dmax(kk))
    E(ldb1(0)); E(ldb1(1))
    E(load(0)); E(load(18))
    for kk in range(3, 6): E(dmax(kk))
    for kk in range(1, 3): E(load(kk)); E(load(18 + kk))
    for n in range(2, 9): g1par(n)
    a.srd(16, 24, 576 * 2)
    a.srd(20, 26, 2048 * ROW)
    a("s_add_u32 s28, s28, s29")
    a("s_and_b32 s28, s28, 7")
    for n in range(9):
        if n == 0:
            a(f"s_mov_b32 s{64+n}, 8")
        else:
            a(f"s_add_u32 s{64+n}, s28, {n}")
            a(f"s_and_b32 s{64+n}, s{64+n}, 7")
        a(f"s_lshl_b32 s62, s{64+n}, 2")
        a(f"s_add_u32 s62, s62, s3")
        a(f"s_add_u32 s62, s62, s60")
        a(f"s_mul_i32 s62, s62, {18*1024}")
        a(f"s_add_u32 s{41+n}, s62, {WS_W2F}")
    a("s_mov_b32 s75, 0x00003f80")
    a("s_mov_b32 s76, 0x3f800000")
    a(f"v_lshlrev_b32 v{TMP+7}, 3, v2")
    a(f"v_add_u32 v11, {HOFF}, v5")
    a(f"v_add_u32 v13, {HOFF+36864}, v5")
    a("s_mul_i32 s78, s29, 36")
    a("s_add_u32 s78, s78, s3")
    a("s_lshl_b32 s77, s78, 14")
    a(f"s_add_u32 s77, s77, {WS_PART}")
    a("s_lshl_b32 s78, s78, 11")
    a(f"s_add_u32 s78, s78, {WS_HRES}")
    a("s_lshl_b32 s79, s28, 11")
    a("s_add_u32 s79, s79, s77")
    a("s_lshl_b32 s84, s28, 16")
    a("s_add_u32 s84, s84, s77")
    a("s_lshl_b32 s62, s28, 7")
    a("s_lshl_b32 s63, s3, 5")
    a("s_add_u32 s82, s62, s63")
    a("s_add_u32 s83, s63, 1024")
    a("s_and_b32 s73, s28, 1")
    a("s_lshl_b32 s73, s73, 10")
    a("s_add_u32 s85, s73, s77")
    a(f"s_add_u32 s85, s85, {8*65536}")
    a("s_lshr_b32 s62, s28, 1")
    a("s_cmp_eq_u32 s62, s3")
    a("s_cselect_b32 s80, 1, 0")
    a("s_lshl_b32 s74, s80, 8")
    a("s_or_b32 s74, s74, 0xfe")
    def unpack(src, dst):
        return [f"v_lshlrev_b32 v{dst}, 16, v{src}", f"v_and_b32 v{dst+1}, 0xffff0000, v{src}",
                f"v_lshlrev_b32 v{dst+2}, 16, v{src+1}", f"v_and_b32 v{dst+3}, 0xffff0000, v{src+1}"]
    def g1_epilogue(n):
        acc = ACC[n % 2]
        L = [f"s_lshr_b32 s63, s{50+n}, 1", f"s_lshl_b32 s63, s63, 12", f"s_and_b32 s62, s{50+n}, 1",
             f"s_lshl_b32 s62, s62, 3", f"s_add_u32 s62, s62, s63", f"v_add_u32 v{TMP}, s62, v11"]
        for tt in range(4):
            for r in range(4):
                L.append(f"v_mul_f32 v{acc+4*tt+r}, v{acc+4*tt+r}, abs(v{acc+4*tt+r})")
            L.append(f"v_cvt_pk_bf16_f32 v{acc+4*tt}, v{acc+4*tt}, v{acc+4*tt+1}")
            L.append(f"v_cvt_pk_bf16_f32 v{acc+4*tt+1}, v{acc+4*tt+2}, v{acc+4*tt+3}")
            L.append(f"v_pk_max_i16 v{acc+4*tt}, v{acc+4*tt}, 0")
            L.append(f"v_pk_max_i16 v{acc+4*tt+1}, v{acc+4*tt+1}, 0")
            L.append(f"ds_write_b64 v{TMP}, {vr(acc+4*tt,2)} offset:{1024*tt}")
        return L
    def g2_epilogue(n):
        acc = ACC[(9 + n) % 2]
        L = [f"s_lshl_b32 s62, s{64+n}, 16", f"s_add_u32 s62, s62, s79"]
        for hf in range(2):
            for tt in (2 * hf, 2 * hf + 1):
                L.append(f"v_cvt_pk_bf16_f32 v{TMP+2*tt}, v{acc+4*tt}, v{acc+4*tt+1}")
                L.append(f"v_cvt_pk_bf16_f32 v{TMP+2*tt+1}, v{acc+4*tt+2}, v{acc+4*tt+3}")
            L.append(("vm", "st", f"buffer_store_dwordx4 {vr(TMP+4*hf)}, v5, s[8:11], s62 offen offset:{1024*hf}{Opt.PST}"))
        return L
    def fetch(n, lz, track=True):
        L = [f"s_lshl_b32 s63, s{64+8-n}, 11", "s_add_u32 s63, s63, s84"]
        for hf in range(2):
            s_ = f"buffer_load_dwordx4 {vr(lz+4*hf)}, v5, s[8:11], s63 offen offset:{1024*hf} sc1"
            L.append(("vm", ("P", n), s_) if track else s_)
        return L
    vC = 14
    def check(regs, bit):
        L = [f"v_max3_i32 v{vC}, v{regs[0]}, v{regs[1]}, v{regs[2]}"]
        k = 3
        while k + 1 < len(regs):
            L.append(f"v_max3_i32 v{vC}, v{vC}, v{regs[k]}, v{regs[k+1]}"); k += 2
        if k < len(regs):
            L.append(f"v_max_i32 v{vC}, v{vC}, v{regs[k]}")
        L.append(f"v_cmp_eq_i32 vcc, {POISON}, v{vC}")
        L.append("v_nop"); L.append("v_nop")
        L += ["s_cmp_eq_u64 vcc, 0", "s_cselect_b32 s86, s75, 0", "s_cselect_b32 s87, s76, 0",
              f"s_cselect_b32 s62, {1 << bit}, 0", "s_andn2_b32 s74, s74, s62"]
        return L
    def accum(lz, dst, n):
        L = []
        for q in range(n):
            L.append(f"v_dot2_f32_bf16 v{dst+2*q}, v{lz+q}, s86, v{dst+2*q}")
            L.append(f"v_dot2_f32_bf16 v{dst+2*q+1}, v{lz+q}, s87, v{dst+2*q+1}")
        return L
    def accum2(lz, dst, n):
        L = []
        for q in range(n):
            t_ = 10
            L += [f"v_lshlrev_b32 v{t_}, 16, v{lz+q}", f"v_and_b32 v{t_+1}, 0xffff0000, v{lz+q}",
                  f"v_fmac_f32 v{dst+2*q}, s87, v{t_}", f"v_fmac_f32 v{dst+2*q+1}, s87, v{t_+1}"]
        return L
    def take(n, lz, track=True, shadow=False):
        return ([("wait", ("P", n))] if track else []) + check(list(range(lz, lz + 8)), n) + (accum2 if shadow else accum)(lz, ACCP, 8)
    LZs = {1: slot(304), 2: LZ, 3: slot(288), 4: slot(296), 5: slot(298), 6: slot(300), 7: slot(302)}
    def dfetch(n):
        L = [f"s_lshl_b32 s63, s{64+8-n}, 11", "s_add_u32 s63, s63, s84", f"s_add_u32 s30, s31, {2048*(n-1)}", "s_mov_b32 m0, s30", "s_nop 0"]
        for hf in range(2):
            L.append(("vm", ("P", n), f"buffer_load_dwordx4 v5, s[8:11], s63 offen offset:{1024*hf} sc1 lds"))
        return L
    def dfetch_sh():
        L = ["s_cmp_eq_u32 s80, 0", "s_cbranch_scc1 K3_nosh0"]
        for k in range(8):
            L += [f"s_add_u32 s63, s85, {2048*k}", f"s_add_u32 s30, s31, {10240+1024*k}", "s_mov_b32 m0, s30", "s_nop 0",
                  "buffer_load_dwordx4 v5, s[8:11], s63 offen sc1 lds"]
        return L + [("label", "K3_nosh0")]
    def lread(n, lz):
        return [("wait", ("P", n))] + [f"ds_read_b128 {vr(lz+4*hf)}, v12 offset:{2048*(n-1)+1024*hf}" for hf in range(2)]
    def ltake(n, lz):
        return lread(n, lz) + [None] * 4 + ["s_waitcnt lgkmcnt(0)"] + take(n, lz, False, True)
    SH = slot(306)
    SX = slot(290)
    A8 = SX + 8
    def fetch_share(track=True):
        L = []
        for n in range(8):
            L += [f"s_add_u32 s63, s85, {2048*n}", f"buffer_load_dwordx4 {vr(SH+4*n)}, v5, s[8:11], s63 offen sc1"]
        return L

    a.waitvm(("b1", 1))
    E(unpack(b1reg(0), BIAS) + unpack(b1reg(1), BIAS + 4))
    def rdB(f, lo, hi):
        a(f"ds_read_b128 {bfrag(f)}, v{lo if f < 36 else hi} offset:{(f%36)*1024}")
    def rdX(f):
        a(f"ds_read2st64_b64 {bfrag(f)}, v{TMP+7} offset0:{2*f} offset1:{2*f+1}")
    seq = []
    for kk in range(12): seq += [kk, 18 + kk]
    seq += list(range(12, 18)) + list(range(30, NF))
    pend = []
    post = {}
    def addpost(i, L): post.setdefault(i, []).extend(L)
    for kk in range(12):
        addpost(kk, dmax(kk + 6) + load(kk + 3)); addpost(18 + kk, load(18 + kk + 3))
    for kk in range(9, 12):
        addpost(18 + kk, load(kk + 6))
    for kk in range(12, 15):
        addpost(kk, load(18 + kk + 3))
    rest = [36 + k for k in range(36)]
    for n_, fr in enumerate(list(range(12, 18)) + list(range(30, 36))):
        for k in sorted(rest):
            pass
    order_c = [x for kk in range(12) for x in (kk, 18 + kk)] + list(range(12, 18)) + list(range(30, 36))
    todo = list(range(36, 72))
    for pos, fr in enumerate(order_c):
        if pos < 24: continue
        done = set(order_c[:pos + 1])
        take_ = [x for x in todo if (x - 36) in done][:3]
        for x in take_:
            todo.remove(x); addpost(fr, load(x))
    assert not todo, todo
    for n in range(2, 9):
        addpost(18 + n, ldb1(n))
    for i in range(36, NF - RING):
        addpost(i, load(i + RING))
    addpost(9 * 18 + 2, [("vm", "b2", f"buffer_load_dwordx2 v[14:15], v12, s[16:19], s82 offen"),
                         "s_lshl_b32 s62, s28, 13", "s_add_u32 s62, s62, s78",
                         "v_lshrrev_b32 v2, 3, v3", "v_lshlrev_b32 v2, 8, v2", "v_lshl_add_u32 v2, v4, 6, v2",
                         "v_and_b32 v10, 7, v3", "v_lshl_add_u32 v2, v10, 3, v2"] +
                        [("vm", "hr", f"buffer_load_dwordx2 {vr(LZ+2*tt,2)}, v2, s[8:11], s62 offen offset:{512*tt}") for tt in range(4)])
    addpost(13 * 18, ["s_mul_i32 s31, s3, 18432", "v_add_u32 v12, s31, v5"])
    addpost(13 * 18 + 16, dfetch_sh())
    for n in range(1, 6):
        addpost((12 + n) * 18 + 16, dfetch(n))
    addpost(16 * 18 + 15, ["v_lshlrev_b32 v3, 3, v4", "s_add_u32 s62, s78, s73", f"s_add_u32 s62, s62, {8*8192}",
                          ("vm", "sh0", f"buffer_load_dwordx2 {vr(SX,2)}, v2, s[8:11], s62 offen"),
                          ("vm", "sh0", f"buffer_load_dwordx2 {vr(SX+2,2)}, v2, s[8:11], s62 offen offset:512"),
                          ("vm", "sh0", f"buffer_load_dwordx2 {vr(SX+4,2)}, v3, s[16:19], s83 offen")])
    def take_share():
        L = check(list(range(SH, SH + 32)), 8)
        for n in range(8):
            L += accum(SH + 4 * n, A8, 4)
        return L
    for i in seq:
        t, kk = divmod(i, 18)
        extra = ""
        if t == 0:
            if kk % 3 == 0:
                a.waitvm(("X", kk + 2))
                if kk == 0: a.stamp(1)
                a("s_barrier")
                if kk == 0: a.stamp(2)
                if kk == 12: a.stamp(3)
                for f in range(4 * kk, 4 * kk + 12):
                    rdX(f)
            extra = f" lgkmcnt({8 - 4 * (kk % 3)})"
        if t == 9:
            if kk == 0:
                a("s_nop 7")
                E(g1_epilogue(8))
                a("s_waitcnt lgkmcnt(0)")
                a.stamp(4)
                a("s_barrier")
                for f in range(12):
                    rdB(f, 11, 13)
            elif 4 * kk + 8 < 72:
                for f in range(4 * kk + 8, 4 * kk + 12):
                    rdB(f, 11, 13)
            rem = min(72, 4 * kk + 12) - (4 * kk + 4)
            extra = f" lgkmcnt({rem})"
        if Opt.DBG and kk == 0 and t not in (0, 1, 9):
            a("s_memtime s[100:101]")
        if Opt.DBG and kk == 9 and t not in (0, 1, 9):
            a("s_waitcnt lgkmcnt(0)")
            a(f"v_writelane_b32 v1, s100, {t}")
        a.waitvm(("A", i), extra)
        acc = ACC[t % 2]
        rate = 1
        if i == 30:
            pend = [None] + g1_epilogue(0) + [("wait", ("b1", 2))] + unpack(b1reg(2), BIAS)
        if t == 1: rate = 2
        if kk == 1 and t >= 2:
            assert not pend
            if t <= 8: pend += g1_epilogue(t - 1)
            if t >= 10: pend += g2_epilogue(t - 10)
            if t < 8: pend += unpack(b1reg(t + 1), BIAS + 4 * ((t + 1) % 2))
            if t == 11:
                pend += [("wait", "hr")] + unpack(14, 10)
                for q in range(0, 8, 2):
                    pend += unpack(LZ + q, ACCP + 2 * q)
            if t == 12:
                pend += [f"v_add_f32 v{ACCP+q}, v{ACCP+q}, v{10+q%4}" for q in range(16)]
            if t == 16: pend += ltake(1, LZ)
            if t == 17:
                pend += ltake(2, LZ) + [None] * 8 + ltake(3, LZs[3])
        if t >= 16: rate = 2 if kk >= 5 else 1
        for tt in range(4):
            if kk == 0:
                c = vr(BIAS + 4 * (t % 2)) if t < 9 else "0"
            else:
                c = vr(acc + 4 * tt)
            a(f"v_mfma_f32_16x16x32_bf16 {vr(acc+4*tt)}, {vr(slot(i))}, {bfrag(kk*4+tt)}, {c}")
            if (kk >= 2 and (tt < 3 or rate == 2)) or (kk == 1 and tt == 3 and t >= 10):
                for _ in range(rate):
                    while pend:
                        s = pend.pop(0)
                        if s is None: break
                        a.emit(s)
                        if not (isinstance(s, str) and s.startswith("s_")): break
        if kk == 17 and 1 <= t < 17:
            assert not pend, (t, pend)
        E(post.get(i, []))
    accO = ACC[17 % 2]
    a.stamp(5)
    for n in (6, 7):
        E(fetch(n, LZs[n]))
    E([x for x in pend if x is not None])
    a("v_and_b32 v3, 15, v0")
    a(f"v_mul_u32_u24 v10, {ROW}, v3")
    a("v_lshl_add_u32 v10, v4, 3, v10")
    a(f"s_mul_i32 s30, s29, {64*ROW}")
    a("s_add_u32 s82, s30, s82")
    a("s_and_b32 s62, s28, 1")
    a(f"s_mul_i32 s62, s62, {32*ROW}")
    a("s_add_u32 s62, s62, s30")
    a("s_add_u32 s83, s83, s62")
    E(lread(4, LZs[4]))
    a("s_cmp_eq_u32 s80, 0")
    a("s_cbranch_scc1 K3_nosh1")
    for k in range(8):
        a(f"ds_read_b128 {vr(SH+4*k)}, v12 offset:{10240+1024*k}")
    E(unpack(SX + 4, A8) + unpack(SX + 4, A8 + 4))
    for q in range(4):
        a(f"v_dot2_f32_bf16 v{A8+2*q}, v{SX+q}, s75, v{A8+2*q}")
        a(f"v_dot2_f32_bf16 v{A8+2*q+1}, v{SX+q}, s76, v{A8+2*q+1}")
    a("s_waitcnt lgkmcnt(0)")
    E(take_share())
    a.label("K3_nosh1")
    a("s_waitcnt lgkmcnt(0)")
    E(take(4, LZs[4], False))
    E(lread(5, LZs[5]))
    E(take(6, LZs[6]))
    a("s_waitcnt lgkmcnt(0)")
    E(take(5, LZs[5], False))
    E(take(7, LZs[7]))
    a.stamp(6)
    a(f"s_mov_b32 s88, {Opt.PBOUND}")
    LZt = LZs
    a.label("K3_poll")
    a("s_cmp_eq_u32 s74, 0")
    a("s_cbranch_scc1 K3_done")
    a("s_sub_u32 s88, s88, 1")
    a("s_cmp_eq_u32 s88, 0")
    a("s_cbranch_scc1 K3_done")
    a("s_mov_b32 s31, s74")
    for n in range(1, 9):
        a(f"s_bitcmp0_b32 s31, {n}")
        a(f"s_cbranch_scc1 K3_pf{n}")
        E(fetch(n, LZt[n], False) if n < 8 else fetch_share(False))
        a.label(f"K3_pf{n}")
    a("s_waitcnt vmcnt(0)")
    for n in range(1, 9):
        a(f"s_bitcmp0_b32 s31, {n}")
        a(f"s_cbranch_scc1 K3_pt{n}")
        E(take(n, LZt[n], False) if n < 8 else take_share())
        a.label(f"K3_pt{n}")
    a("s_branch K3_poll")
    a.label("K3_done")
    a.stamp(7)
    a("s_nop 1")
    for tt in range(4):
        for q in range(2):
            a(f"v_pk_add_f32 {vr(accO+4*tt+2*q,2)}, {vr(accO+4*tt+2*q,2)}, {vr(ACCP+4*tt+2*q,2)}")
        a(f"v_cvt_pk_bf16_f32 v{TMP+2*tt}, v{accO+4*tt}, v{accO+4*tt+1}")
        a(f"v_cvt_pk_bf16_f32 v{TMP+2*tt+1}, v{accO+4*tt+2}, v{accO+4*tt+3}")
        a(f"buffer_store_dwordx2 {vr(TMP+2*tt,2)}, v10, s[20:23], s82 offen")
        a(f"s_add_u32 s82, s82, {16*ROW}")
    a("s_cmp_eq_u32 s80, 0")
    a("s_cbranch_scc1 K3_nosh2")
    for tt in range(2):
        a(f"v_cvt_pk_bf16_f32 v{LZ+2*tt}, v{A8+4*tt}, v{A8+4*tt+1}")
        a(f"v_cvt_pk_bf16_f32 v{LZ+2*tt+1}, v{A8+4*tt+2}, v{A8+4*tt+3}")
        a(f"buffer_store_dwordx2 {vr(LZ+2*tt,2)}, v10, s[20:23], s83 offen")
        a(f"s_add_u32 s83, s83, {16*ROW}")
    a.label("K3_nosh2")
    if Opt.DBG:
        a("s_getreg_b32 s100, hwreg(HW_REG_XCC_ID)")
        a("v_writelane_b32 v1, s100, 0")
        a("v_writelane_b32 v1, s88, 1")
        a("s_lshl_b32 s100, s2, 2")
        a("s_add_u32 s100, s100, s3")
        a("s_lshl_b32 s100, s100, 8")
        a(f"s_add_u32 s100, s100, {WS_DBG + 6 * 4096 * 64}")
        a("v_lshrrev_b32 v2, 2, v5")
        a("buffer_store_dword v1, v2, s[8:11], s100 offen")
    a.end(4, 8, 4)
    a.label("K3_end")
    a("s_endpgm")
    return K, desc(K, 512, 256), (256, 256, LDS)
```

```python
from common import *
RING = 36
RB = 104
BV = 72
ACC = [40, 56]
TMP = 248
BIAS = 16
B1R = 24
ACCP = 16
LZ = 32
HOFF = 72 * 1024
LDS = HOFF + 72 * 1024
NF = 324

def bfrag(f):
    return ar(4 * f) if f < 64 else vr(BV + 4 * (f - 64))
def b1reg(n):
    return B1R + 2 * n if n < 8 else 14
def slot(i):
    return RB + (i % RING) * 4

def k3(a):
    K = "k3_kernel"
    a.begin(K)
    a("s_cmp_ge_u32 s2, 256")
    a("s_cbranch_scc1 K3_end")
    a.stamp(0); a.stampc(10)
    a(f"s_load_dwordx2 s[4:5], s[0:1], {A_WS}")
    a(f"s_load_dwordx2 s[6:7], s[0:1], {A_B1}")
    a(f"s_load_dwordx4 s[24:27], s[0:1], {A_B2}")
    a("v_lshrrev_b32 v1, 6, v0")
    a("v_and_b32 v2, 63, v0")
    a("v_readfirstlane_b32 s3, v1")
    a("v_and_b32 v3, 15, v0")
    a("v_bfe_u32 v4, v0, 4, 2")
    a("v_lshlrev_b32 v5, 4, v2")
    for k in range(1, 5):
        a(f"v_add_u32 v{5+k}, {4096*k}, v5")
    a("v_lshlrev_b32 v12, 3, v4")
    a("v_and_b32 v10, 0x23, v2")
    a("v_lshlrev_b32 v10, 4, v10")
    a("v_bfe_u32 v11, v2, 3, 2")
    a("v_lshl_add_u32 v10, v11, 6, v10")
    a("v_bfe_u32 v11, v2, 2, 1")
    a("v_lshl_add_u32 v10, v11, 8, v10")
    if Opt.EXP == "badmap":
        a("s_lshr_b32 s28, s2, 5")
        a("s_and_b32 s29, s2, 31")
    else:
        a("s_and_b32 s28, s2, 7")
        a("s_lshr_b32 s29, s2, 3")
    a("s_mul_i32 s31, s29, 73728")
    a("s_lshl_b32 s30, s3, 10")
    a("s_add_u32 s31, s31, s30")
    a(f"s_add_u32 s31, s31, {WS_XN}")
    a("s_mul_i32 s60, s28, 36")
    a("s_mul_i32 s59, s3, 9")
    a("s_mul_i32 s61, s29, 57")
    a("s_lshr_b32 s61, s61, 9")
    a("s_mul_i32 s61, s61, 9")
    a("s_sub_u32 s61, s29, s61")
    def g1par(n):
        a(f"s_add_u32 s{50+n}, s61, {n}")
        a(f"s_cmp_ge_u32 s{50+n}, 9")
        a(f"s_cselect_b32 s62, 9, 0")
        a(f"s_sub_u32 s{50+n}, s{50+n}, s62")
        a(f"s_add_u32 s{50+n}, s{50+n}, s59")
        a(f"s_add_u32 s62, s{50+n}, s60")
        a(f"s_mul_i32 s62, s62, {18*1024}")
        a(f"s_add_u32 s{32+n}, s62, {WS_W1F}")
    g1par(0); g1par(1)
    a("s_waitcnt lgkmcnt(0)")
    a.srd(8, 4, WS_SIZE)
    a.srd(12, 6, 4608 * 2)
    def load(i):
        t, kk = divmod(i, 18)
        return [("vm", ("A", i), f"buffer_load_dwordx4 {vr(slot(i))}, v{5 + kk // 4}, s[8:11], s{32+t} offen offset:{(kk%4)*1024}")]
    def dmax(kk):
        return ["s_mov_b32 m0, s30", "s_add_u32 s30, s30, 4096",
                ("vm", ("X", kk), "buffer_load_dwordx4 v10, s[8:11], s31 offen lds"), "s_add_u32 s31, s31, 4096"]
    def ldb1(n):
        return [f"s_add_u32 s62, s{50+n}, s60", f"s_lshl_b32 s62, s62, 5",
                ("vm", ("b1", n), f"buffer_load_dwordx2 {vr(b1reg(n),2)}, v12, s[12:15], s62 offen")]
    def E(L):
        for x in L: a.emit(x)
    a("s_cmp_lg_u32 s3, 3")
    a("s_cbranch_scc1 K3_nopf")
    a.codepf("k3_kernel", "K3_end", 29, 5, TMP, 86)
    a.vmq.pop()
    a.label("K3_nopf")
    for kk in range(3): E(dmax(kk))
    E(ldb1(0)); E(ldb1(1))
    E(load(0)); E(load(18))
    for kk in range(3, 6): E(dmax(kk))
    for kk in range(1, 3): E(load(kk)); E(load(18 + kk))
    for n in range(2, 9): g1par(n)
    a.srd(16, 24, 576 * 2)
    a.srd(20, 26, 2048 * ROW)
    a("s_add_u32 s28, s28, s29")
    a("s_and_b32 s28, s28, 7")
    for n in range(9):
        if n == 0:
            a(f"s_mov_b32 s{64+n}, 8")
        else:
            a(f"s_add_u32 s{64+n}, s28, {n}")
            a(f"s_and_b32 s{64+n}, s{64+n}, 7")
        a(f"s_lshl_b32 s62, s{64+n}, 2")
        a(f"s_add_u32 s62, s62, s3")
        a(f"s_add_u32 s62, s62, s60")
        a(f"s_mul_i32 s62, s62, {18*1024}")
        a(f"s_add_u32 s{41+n}, s62, {WS_W2F}")
    a("s_mov_b32 s75, 0x00003f80")
    a("s_mov_b32 s76, 0x3f800000")
    a(f"v_lshlrev_b32 v{TMP+7}, 3, v2")
    a(f"v_add_u32 v11, {HOFF}, v5")
    a(f"v_add_u32 v13, {HOFF+36864}, v5")
    a("s_mul_i32 s78, s29, 36")
    a("s_add_u32 s78, s78, s3")
    a("s_lshl_b32 s77, s78, 14")
    a(f"s_add_u32 s77, s77, {WS_PART}")
    a("s_lshl_b32 s78, s78, 11")
    a(f"s_add_u32 s78, s78, {WS_HRES}")
    a("s_lshl_b32 s79, s28, 11")
    a("s_add_u32 s79, s79, s77")
    a("s_lshl_b32 s84, s28, 16")
    a("s_add_u32 s84, s84, s77")
    a("s_lshl_b32 s62, s28, 7")
    a("s_lshl_b32 s63, s3, 5")
    a("s_add_u32 s82, s62, s63")
    a("s_add_u32 s83, s63, 1024")
    a("s_and_b32 s73, s28, 1")
    a("s_lshl_b32 s73, s73, 10")
    a("s_add_u32 s85, s73, s77")
    a(f"s_add_u32 s85, s85, {8*65536}")
    a("s_lshr_b32 s62, s28, 1")
    a("s_cmp_eq_u32 s62, s3")
    a("s_cselect_b32 s80, 1, 0")
    a("s_lshl_b32 s74, s80, 8")
    a("s_or_b32 s74, s74, 0xfe")
    def unpack(src, dst):
        return [f"v_lshlrev_b32 v{dst}, 16, v{src}", f"v_and_b32 v{dst+1}, 0xffff0000, v{src}",
                f"v_lshlrev_b32 v{dst+2}, 16, v{src+1}", f"v_and_b32 v{dst+3}, 0xffff0000, v{src+1}"]
    def g1_epilogue(n):
        acc = ACC[n % 2]
        L = [f"s_lshr_b32 s63, s{50+n}, 1", f"s_lshl_b32 s63, s63, 12", f"s_and_b32 s62, s{50+n}, 1",
             f"s_lshl_b32 s62, s62, 3", f"s_add_u32 s62, s62, s63", f"v_add_u32 v{TMP}, s62, v11"]
        for tt in range(4):
            for r in range(4):
                L.append(f"v_mul_f32 v{acc+4*tt+r}, v{acc+4*tt+r}, abs(v{acc+4*tt+r})")
            L.append(f"v_cvt_pk_bf16_f32 v{acc+4*tt}, v{acc+4*tt}, v{acc+4*tt+1}")
            L.append(f"v_cvt_pk_bf16_f32 v{acc+4*tt+1}, v{acc+4*tt+2}, v{acc+4*tt+3}")
            L.append(f"v_pk_max_i16 v{acc+4*tt}, v{acc+4*tt}, 0")
            L.append(f"v_pk_max_i16 v{acc+4*tt+1}, v{acc+4*tt+1}, 0")
            L.append(f"ds_write_b64 v{TMP}, {vr(acc+4*tt,2)} offset:{1024*tt}")
        return L
    def g2_epilogue(n):
        acc = ACC[(9 + n) % 2]
        L = [f"s_lshl_b32 s62, s{64+n}, 16", f"s_add_u32 s62, s62, s79"]
        for hf in range(2):
            for tt in (2 * hf, 2 * hf + 1):
                L.append(f"v_cvt_pk_bf16_f32 v{TMP+2*tt}, v{acc+4*tt}, v{acc+4*tt+1}")
                L.append(f"v_cvt_pk_bf16_f32 v{TMP+2*tt+1}, v{acc+4*tt+2}, v{acc+4*tt+3}")
            L.append(("vm", "st", f"buffer_store_dwordx4 {vr(TMP+4*hf)}, v5, s[8:11], s62 offen offset:{1024*hf}{Opt.PST}"))
        return L
    def fetch(n, lz, track=True):
        L = [f"s_lshl_b32 s63, s{64+8-n}, 11", "s_add_u32 s63, s63, s84"]
        for hf in range(2):
            s_ = f"buffer_load_dwordx4 {vr(lz+4*hf)}, v5, s[8:11], s63 offen offset:{1024*hf} sc1"
            L.append(("vm", ("P", n), s_) if track else s_)
        return L
    vC = 14
    def check(regs, bit):
        L = [f"v_max3_i32 v{vC}, v{regs[0]}, v{regs[1]}, v{regs[2]}"]
        k = 3
        while k + 1 < len(regs):
            L.append(f"v_max3_i32 v{vC}, v{vC}, v{regs[k]}, v{regs[k+1]}"); k += 2
        if k < len(regs):
            L.append(f"v_max_i32 v{vC}, v{vC}, v{regs[k]}")
        L.append(f"v_cmp_eq_i32 vcc, {POISON}, v{vC}")
        L.append("v_nop"); L.append("v_nop")
        L += ["s_cmp_eq_u64 vcc, 0", "s_cselect_b32 s86, s75, 0", "s_cselect_b32 s87, s76, 0",
              f"s_cselect_b32 s62, {1 << bit}, 0", "s_andn2_b32 s74, s74, s62"]
        return L
    def accum(lz, dst, n):
        L = []
        for q in range(n):
            L.append(f"v_dot2_f32_bf16 v{dst+2*q}, v{lz+q}, s86, v{dst+2*q}")
            L.append(f"v_dot2_f32_bf16 v{dst+2*q+1}, v{lz+q}, s87, v{dst+2*q+1}")
        return L
    def accum2(lz, dst, n):
        L = []
        for q in range(n):
            t_ = 10
            L += [f"v_lshlrev_b32 v{t_}, 16, v{lz+q}", f"v_and_b32 v{t_+1}, 0xffff0000, v{lz+q}",
                  f"v_fmac_f32 v{dst+2*q}, s87, v{t_}", f"v_fmac_f32 v{dst+2*q+1}, s87, v{t_+1}"]
        return L
    def take(n, lz, track=True, shadow=False):
        return ([("wait", ("P", n))] if track else []) + check(list(range(lz, lz + 8)), n) + (accum2 if shadow else accum)(lz, ACCP, 8)
    LZs = {1: slot(304), 2: LZ, 3: slot(288), 4: slot(296), 5: slot(298), 6: slot(300), 7: slot(302)}
    def dfetch(n):
        L = [f"s_lshl_b32 s63, s{64+8-n}, 11", "s_add_u32 s63, s63, s84", f"s_add_u32 s30, s31, {2048*(n-1)}", "s_mov_b32 m0, s30", "s_nop 0"]
        for hf in range(2):
            L.append(("vm", ("P", n), f"buffer_load_dwordx4 v5, s[8:11], s63 offen offset:{1024*hf} sc1 lds"))
        return L
    def dfetch_sh():
        L = ["s_cmp_eq_u32 s80, 0", "s_cbranch_scc1 K3_nosh0"]
        for k in range(8):
            L += [f"s_add_u32 s63, s85, {2048*k}", f"s_add_u32 s30, s31, {10240+1024*k}", "s_mov_b32 m0, s30", "s_nop 0",
                  "buffer_load_dwordx4 v5, s[8:11], s63 offen sc1 lds"]
        return L + [("label", "K3_nosh0")]
    def lread(n, lz):
        return [("wait", ("P", n))] + [f"ds_read_b128 {vr(lz+4*hf)}, v12 offset:{2048*(n-1)+1024*hf}" for hf in range(2)]
    def ltake(n, lz):
        return lread(n, lz) + [None] * 4 + ["s_waitcnt lgkmcnt(0)"] + take(n, lz, False, True)
    SH = slot(306)
    SX = slot(290)
    A8 = SX + 8
    def fetch_share(track=True):
        L = []
        for n in range(8):
            L += [f"s_add_u32 s63, s85, {2048*n}", f"buffer_load_dwordx4 {vr(SH+4*n)}, v5, s[8:11], s63 offen sc1"]
        return L

    a.waitvm(("b1", 1))
    E(unpack(b1reg(0), BIAS) + unpack(b1reg(1), BIAS + 4))
    def rdB(f, lo, hi):
        a(f"ds_read_b128 {bfrag(f)}, v{lo if f < 36 else hi} offset:{(f%36)*1024}")
    def rdX(f):
        a(f"ds_read2st64_b64 {bfrag(f)}, v{TMP+7} offset0:{2*f} offset1:{2*f+1}")
    seq = []
    for kk in range(12): seq += [kk, 18 + kk]
    seq += list(range(12, 18)) + list(range(30, NF))
    pend = []
    post = {}
    def addpost(i, L): post.setdefault(i, []).extend(L)
    for kk in range(12):
        addpost(kk, dmax(kk + 6) + load(kk + 3)); addpost(18 + kk, load(18 + kk + 3))
    for kk in range(9, 12):
        addpost(18 + kk, load(kk + 6))
    for kk in range(12, 15):
        addpost(kk, load(18 + kk + 3))
    rest = [36 + k for k in range(36)]
    for n_, fr in enumerate(list(range(12, 18)) + list(range(30, 36))):
        for k in sorted(rest):
            pass
    order_c = [x for kk in range(12) for x in (kk, 18 + kk)] + list(range(12, 18)) + list(range(30, 36))
    todo = list(range(36, 72))
    for pos, fr in enumerate(order_c):
        if pos < 24: continue
        done = set(order_c[:pos + 1])
        take_ = [x for x in todo if (x - 36) in done][:3]
        for x in take_:
            todo.remove(x); addpost(fr, load(x))
    assert not todo, todo
    for n in range(2, 9):
        addpost(18 + n, ldb1(n))
    for i in range(36, NF - RING):
        addpost(i, load(i + RING))
    addpost(9 * 18 + 2, [("vm", "b2", f"buffer_load_dwordx2 v[14:15], v12, s[16:19], s82 offen"),
                         "s_lshl_b32 s62, s28, 13", "s_add_u32 s62, s62, s78",
                         "v_lshrrev_b32 v2, 3, v3", "v_lshlrev_b32 v2, 8, v2", "v_lshl_add_u32 v2, v4, 6, v2",
                         "v_and_b32 v10, 7, v3", "v_lshl_add_u32 v2, v10, 3, v2"] +
                        [("vm", "hr", f"buffer_load_dwordx2 {vr(LZ+2*tt,2)}, v2, s[8:11], s62 offen offset:{512*tt}") for tt in range(4)])
    addpost(13 * 18, ["s_mul_i32 s31, s3, 18432", "v_add_u32 v12, s31, v5"])
    addpost(13 * 18 + 16, dfetch_sh())
    for n in range(1, 6):
        addpost((12 + n) * 18 + 16, dfetch(n))
    addpost(16 * 18 + 15, ["v_lshlrev_b32 v3, 3, v4", "s_add_u32 s62, s78, s73", f"s_add_u32 s62, s62, {8*8192}",
                          ("vm", "sh0", f"buffer_load_dwordx2 {vr(SX,2)}, v2, s[8:11], s62 offen"),
                          ("vm", "sh0", f"buffer_load_dwordx2 {vr(SX+2,2)}, v2, s[8:11], s62 offen offset:512"),
                          ("vm", "sh0", f"buffer_load_dwordx2 {vr(SX+4,2)}, v3, s[16:19], s83 offen")])
    def take_share():
        L = check(list(range(SH, SH + 32)), 8)
        for n in range(8):
            L += accum(SH + 4 * n, A8, 4)
        return L
    for i in seq:
        t, kk = divmod(i, 18)
        extra = ""
        if t == 0:
            if kk % 3 == 0:
                a.waitvm(("X", kk + 2))
                if kk == 0: a.stamp(1)
                a("s_barrier")
                if kk == 0: a.stamp(2)
                if kk == 12: a.stamp(3)
                for f in range(4 * kk, 4 * kk + 12):
                    rdX(f)
            extra = f" lgkmcnt({8 - 4 * (kk % 3)})"
        if t == 9:
            if kk == 0:
                a("s_nop 7")
                E(g1_epilogue(8))
                a("s_waitcnt lgkmcnt(0)")
                a.stamp(4)
                a("s_barrier")
                for f in range(12):
                    rdB(f, 11, 13)
            elif 4 * kk + 8 < 72:
                for f in range(4 * kk + 8, 4 * kk + 12):
                    rdB(f, 11, 13)
            rem = min(72, 4 * kk + 12) - (4 * kk + 4)
            extra = f" lgkmcnt({rem})"
        if Opt.DBG and kk == 0 and t not in (0, 1, 9):
            a("s_memtime s[100:101]")
        if Opt.DBG and kk == 9 and t not in (0, 1, 9):
            a("s_waitcnt lgkmcnt(0)")
            a(f"v_writelane_b32 v1, s100, {t}")
        a.waitvm(("A", i), extra)
        acc = ACC[t % 2]
        rate = 1
        if i == 30:
            pend = [None] + g1_epilogue(0) + [("wait", ("b1", 2))] + unpack(b1reg(2), BIAS)
        if t == 1: rate = 2
        if kk == 1 and t >= 2:
            assert not pend
            if t <= 8: pend += g1_epilogue(t - 1)
            if t >= 10: pend += g2_epilogue(t - 10)
            if t < 8: pend += unpack(b1reg(t + 1), BIAS + 4 * ((t + 1) % 2))
            if t == 11:
                pend += [("wait", "hr")] + unpack(14, 10)
                for q in range(0, 8, 2):
                    pend += unpack(LZ + q, ACCP + 2 * q)
            if t == 12:
                pend += [f"v_add_f32 v{ACCP+q}, v{ACCP+q}, v{10+q%4}" for q in range(16)]
            if t == 16: pend += ltake(1, LZ)
            if t == 17:
                pend += ltake(2, LZ) + [None] * 8 + ltake(3, LZs[3])
        if t >= 16: rate = 2 if kk >= 5 else 1
        for tt in range(4):
            if kk == 0:
                c = vr(BIAS + 4 * (t % 2)) if t < 9 else "0"
            else:
                c = vr(acc + 4 * tt)
            a(f"v_mfma_f32_16x16x32_bf16 {vr(acc+4*tt)}, {vr(slot(i))}, {bfrag(kk*4+tt)}, {c}")
            if (kk >= 2 and (tt < 3 or rate == 2)) or (kk == 1 and tt == 3 and t >= 10):
                for _ in range(rate):
                    while pend:
                        s = pend.pop(0)
                        if s is None: break
                        a.emit(s)
                        if not (isinstance(s, str) and s.startswith("s_")): break
        if kk == 17 and 1 <= t < 17:
            assert not pend, (t, pend)
        E(post.get(i, []))
    accO = ACC[17 % 2]
    a.stamp(5)
    for n in (6, 7):
        E(fetch(n, LZs[n]))
    E([x for x in pend if x is not None])
    a("v_and_b32 v3, 15, v0")
    a(f"v_mul_u32_u24 v10, {ROW}, v3")
    a("v_lshl_add_u32 v10, v4, 3, v10")
    a(f"s_mul_i32 s30, s29, {64*ROW}")
    a("s_add_u32 s82, s30, s82")
    a("s_and_b32 s62, s28, 1")
    a(f"s_mul_i32 s62, s62, {32*ROW}")
    a("s_add_u32 s62, s62, s30")
    a("s_add_u32 s83, s83, s62")
    E(lread(4, LZs[4]))
    a("s_cmp_eq_u32 s80, 0")
    a("s_cbranch_scc1 K3_nosh1")
    for k in range(8):
        a(f"ds_read_b128 {vr(SH+4*k)}, v12 offset:{10240+1024*k}")
    E(unpack(SX + 4, A8) + unpack(SX + 4, A8 + 4))
    for q in range(4):
        a(f"v_dot2_f32_bf16 v{A8+2*q}, v{SX+q}, s75, v{A8+2*q}")
        a(f"v_dot2_f32_bf16 v{A8+2*q+1}, v{SX+q}, s76, v{A8+2*q+1}")
    a("s_waitcnt lgkmcnt(0)")
    E(take_share())
    a.label("K3_nosh1")
    a("s_waitcnt lgkmcnt(0)")
    E(take(4, LZs[4], False))
    E(lread(5, LZs[5]))
    E(take(6, LZs[6]))
    a("s_waitcnt lgkmcnt(0)")
    E(take(5, LZs[5], False))
    E(take(7, LZs[7]))
    a.stamp(6)
    a(f"s_mov_b32 s88, {Opt.PBOUND}")
    LZt = LZs
    a.label("K3_poll")
    a("s_cmp_eq_u32 s74, 0")
    a("s_cbranch_scc1 K3_done")
    a("s_sub_u32 s88, s88, 1")
    a("s_cmp_eq_u32 s88, 0")
    a("s_cbranch_scc1 K3_done")
    a("s_mov_b32 s31, s74")
    for n in range(1, 9):
        a(f"s_bitcmp0_b32 s31, {n}")
        a(f"s_cbranch_scc1 K3_pf{n}")
        E(fetch(n, LZt[n], False) if n < 8 else fetch_share(False))
        a.label(f"K3_pf{n}")
    a("s_waitcnt vmcnt(0)")
    for n in range(1, 9):
        a(f"s_bitcmp0_b32 s31, {n}")
        a(f"s_cbranch_scc1 K3_pt{n}")
        E(take(n, LZt[n], False) if n < 8 else take_share())
        a.label(f"K3_pt{n}")
    a("s_branch K3_poll")
    a.label("K3_done")
    a.stamp(7)
    a("s_nop 1")
    for tt in range(4):
        for q in range(2):
            a(f"v_pk_add_f32 {vr(accO+4*tt+2*q,2)}, {vr(accO+4*tt+2*q,2)}, {vr(ACCP+4*tt+2*q,2)}")
        a(f"v_cvt_pk_bf16_f32 v{TMP+2*tt}, v{accO+4*tt}, v{accO+4*tt+1}")
        a(f"v_cvt_pk_bf16_f32 v{TMP+2*tt+1}, v{accO+4*tt+2}, v{accO+4*tt+3}")
        a(f"buffer_store_dwordx2 {vr(TMP+2*tt,2)}, v10, s[20:23], s82 offen")
        a(f"s_add_u32 s82, s82, {16*ROW}")
    a("s_cmp_eq_u32 s80, 0")
    a("s_cbranch_scc1 K3_nosh2")
    for tt in range(2):
        a(f"v_cvt_pk_bf16_f32 v{LZ+2*tt}, v{A8+4*tt}, v{A8+4*tt+1}")
        a(f"v_cvt_pk_bf16_f32 v{LZ+2*tt+1}, v{A8+4*tt+2}, v{A8+4*tt+3}")
        a(f"buffer_store_dwordx2 {vr(LZ+2*tt,2)}, v10, s[20:23], s83 offen")
        a(f"s_add_u32 s83, s83, {16*ROW}")
    a.label("K3_nosh2")
    if Opt.DBG:
        a("s_getreg_b32 s100, hwreg(HW_REG_XCC_ID)")
        a("v_writelane_b32 v1, s100, 0")
        a("v_writelane_b32 v1, s88, 1")
        a("s_lshl_b32 s100, s2, 2")
        a("s_add_u32 s100, s100, s3")
        a("s_lshl_b32 s100, s100, 8")
        a(f"s_add_u32 s100, s100, {WS_DBG + 6 * 4096 * 64}")
        a("v_lshrrev_b32 v2, 2, v5")
        a("buffer_store_dword v1, v2, s[8:11], s100 offen")
    a.end(4, 8, 4)
    a.label("K3_end")
    a("s_endpgm")
    return K, desc(K, 512, 256), (256, 256, LDS)
```

```python
import sys, math, struct

NAME = "sequential_preLN__grouped_kv_mqa__dense_activation_squared_relu__prompt"

ROW = 1152
KVB = 2304
K2OFF = 64 * KVB
KV_BYTES = K2OFF + 16 * 512
WS_Q    = 0
WS_XN   = WS_Q + 2048 * ROW
WS_KV   = WS_XN + 2048 * ROW
WS_FLAG = WS_KV + 160 * 1024
WS_WOF  = WS_FLAG + 128 * 128
WOF_BYTES = 36 * 18 * 1024
WS_W1F  = WS_WOF + WOF_BYTES
WS_W2F  = WS_W1F + 288 * 18 * 1024
WS_PART = WS_W2F + 288 * 18 * 1024
WS_HRES = WS_PART + 32 * 36 * 8 * 2048
WS_DBG  = WS_HRES + 32 * 36 * 2048
POISON  = 0x7f7f7f7f
WS_END  = WS_DBG + 8 * 4096 * 64 + 2048 * 256
WS_SIZE = 0x10000000
OOB = 0x7ff00000
class Opt:
    WST = ''
    IPF = 0
    WBL = 0
    LAM = 22
    LA0 = 12
    LAG = 4
    ABL = ''
    STEP = True
    CHAIN = 2
    XNT = ''
    QNT = ''
    WNT = ''
    K1BAR = 3
    PST = ' sc1'
    PBOUND = '0x8000'
    EXP = ''
    CPF = True
    XST = ''
    FOLD = True
    DBG = False
assert WS_END < WS_SIZE

QSCALE = (18 ** -0.5) * math.log2(math.e)
DMAP = [[0, 1, 2, 3, 8, 9, 10, 11, 16], [4, 5, 6, 7, 12, 13, 14, 15, 17]]

def f32bits(x):
    return "0x%08x" % struct.unpack("<I", struct.pack("<f", x))[0]

class Asm:
    def __init__(self):
        self.L = []
        self.vmq = []
    def __call__(self, s):
        for ln in s.split("\n"):
            self.L.append("    " + ln.strip())
    def label(self, s):
        self.L.append(s + ":")
    def raw(self, s):
        self.L.append(s)
    def vm(self, tag, s):
        self.vmq.append(tag)
        self(s)
    def vmn(self, tag):
        idx = len(self.vmq) - 1 - self.vmq[::-1].index(tag)
        n = len(self.vmq) - 1 - idx
        return min(n, 63)
    def waitvm(self, tag, extra=""):
        self(f"s_waitcnt vmcnt({self.vmn(tag)}){extra}")
    def emit(self, it):
        if isinstance(it, str):
            self(it)
        elif it[0] == "vm":
            self.vm(it[1], it[2])
        elif it[0] == "wait":
            self.waitvm(it[1], it[2] if len(it) > 2 else "")
        elif it[0] == "label":
            self.label(it[1])
        elif it[0] == "stamp":
            self.stamp(it[1])
        else:
            raise ValueError(it)
    def srd(self, d, p, size, off=0):
        if off:
            self(f"s_add_u32 s{d}, s{p}, {off}")
            self(f"s_addc_u32 s{d+1}, s{p+1}, 0")
        else:
            self(f"s_mov_b32 s{d}, s{p}")
            self(f"s_mov_b32 s{d+1}, s{p+1}")
        self(f"s_mov_b32 s{d+2}, {size}")
        self(f"s_mov_b32 s{d+3}, 0x00020000")
    def stamp(self, i):
        if not Opt.DBG: return
        self("s_memrealtime s[100:101]")
        self("s_waitcnt lgkmcnt(0)")
        self(f"s_mov_b32 s{89+i}, s100")
    def stampc(self, i):
        if not Opt.DBG: return
        self("s_memtime s[100:101]")
        self("s_waitcnt lgkmcnt(0)")
        self(f"s_mov_b32 s{89+i}, s100")
    def end(self, kid, srd, nwaves, n=10):
        if Opt.DBG:
            self.stamp(8)
            self.stampc(9)
            self("s_mov_b64 exec, 1")
            self(f"s_mul_i32 s100, s2, {nwaves}")
            self("s_add_u32 s100, s100, s3")
            self("s_lshl_b32 s100, s100, 6")
            self(f"s_add_u32 s100, s100, {WS_DBG + kid * 4096 * 64}")
            self("v_mov_b32 v1, 0")
            for i in range(n + 1):
                self(f"v_mov_b32 v2, s{89+i}")
                self(f"buffer_store_dword v2, v1, s[{srd}:{srd+3}], s100 offen offset:{4*i}")
        self("s_endpgm")
    def codepf(self, start, end, sidx, vlane16, vdst, sp, tag="cpf"):
        if not Opt.CPF: return
        self.n_pf = getattr(self, "n_pf", 0) + 1
        lb = f"Lpf{self.n_pf}"
        self(f"s_getpc_b64 s[{sp}:{sp+1}]")
        self.label(lb)
        self(f"s_lshl_b32 s{sp+2}, s{sidx}, 10")
        self(f"s_min_u32 s{sp+2}, s{sp+2}, {end}-{start}-1024")
        self(f"s_add_u32 s{sp}, s{sp}, s{sp+2}")
        self(f"s_addc_u32 s{sp+1}, s{sp+1}, 0")
        self(f"s_add_u32 s{sp}, s{sp}, {start}-{lb}")
        self(f"s_addc_u32 s{sp+1}, s{sp+1}, ({start}-{lb})>>32")
        self.vm(tag, f"global_load_dwordx4 v[{vdst}:{vdst+3}], v{vlane16}, s[{sp}:{sp+1}]")
    def guard(self, tag):
        self("s_cmp_lt_u32 s2, 256")
        self(f"s_cbranch_scc1 {tag}_run")
        self("s_endpgm")
        if Opt.IPF:
            self.label(f"{tag}_pad0")
            self("s_setpc_b64 s[100:101]")
        self.label(f"{tag}_run")
    def pad(self, tag, n):
        if n >= Opt.IPF: return
        self(f"s_branch {tag}_ov{n}")
        self.label(f"{tag}_pad{n}")
        self("s_setpc_b64 s[100:101]")
        self.label(f"{tag}_ov{n}")
    def touch(self, lbl):
        return [f"s_call_b64 s[100:101], {lbl}_pad{n}" for n in range(Opt.IPF)]
    def begin(self, k):
        self.vmq = []
        self.raw(f".globl {k}\n.p2align 8\n.type {k},@function\n{k}:")
    def text(self):
        return "\n".join(self.L) + "\n"

def vr(b, n=4):
    return f"v[{b}:{b+n-1}]"
def ar(b, n=4):
    return f"a[{b}:{b+n-1}]"

def desc(k, nv, acc=None, ns=102):
    if acc is None:
        acc = min(256, (nv + 3) // 4 * 4)
    return f""".p2align 6
.amdhsa_kernel {k}
  .amdhsa_next_free_vgpr {nv}
  .amdhsa_next_free_sgpr {ns}
  .amdhsa_accum_offset {acc}
  .amdhsa_group_segment_fixed_size 0
  .amdhsa_kernarg_size 104
  .amdhsa_user_sgpr_count 2
  .amdhsa_user_sgpr_kernarg_segment_ptr 1
  .amdhsa_system_sgpr_workgroup_id_x 1
.end_amdhsa_kernel
"""

A_X, A_WQ, A_WK, A_WV, A_WO, A_BX, A_W1, A_B1, A_W2, A_B2, A_OUT, A_DBG, A_WS = [8 * i for i in range(13)]

def weave(main, side):
    out = []
    for i, m in enumerate(main):
        out += side.get(i, [])
        out.append(m)
    out += side.get(len(main), [])
    return out

def cross_g_sum(a, v, t):
    a(f"v_mov_b32 v{t}, v{v}")
    a("s_nop 1")
    a(f"v_permlane16_swap_b32 v{v}, v{t}")
    a("s_nop 1")
    a(f"v_add_f32 v{v}, v{v}, v{t}")
    a(f"v_mov_b32 v{t}, v{v}")
    a("s_nop 1")
    a(f"v_permlane32_swap_b32 v{v}, v{t}")
    a("s_nop 1")
    a(f"v_add_f32 v{v}, v{v}, v{t}")

def build(kernels, out):
    a = Asm()
    metas = [k(a) for k in kernels]
    hdr = open("cdna_kernels/" + NAME + ".s.ref").read().split("\n")
    top = []
    for ln in hdr:
        if ln.startswith(";") and "@launch" not in ln and "Override launch" not in ln and "grid=ceil" not in ln:
            top.append(ln)
        if not ln.startswith(";"):
            break
    s = "\n".join(top) + "\n"
    for K, d, (g, b, l) in metas:
        s += f"; @launch kernel={K} grid=({g},1,1) block=({b},1,1) lds={l}\n"
    s += '.amdgcn_target "amdgcn-amd-amdhsa--gfx950"\n.text\n'
    s += a.text()
    s += '.section .rodata,"a"\n'
    for K, d, _ in metas:
        s += d
    open(out, "w").write(s)
```

```python
from common import *
import relayout as RL
QB   = 0
OB   = 8 * 1536
STAT = OB + 18 * 512
CP   = STAT + 640
CR   = CP + 32
MX   = STAT + 1024
PS   = MX + 1024
XS   = PS + 2 * 8 * 2560
STG  = XS + 8 * 1184
LDS  = STG + 8 * 10240

KF = [20 + 4 * s for s in range(8)]
K2F = 52
VF = [[60 + 8 * s, 64 + 8 * s] for s in range(8)]
S = [124, 140]
P = 156
O = [164, 180]
QR = [196, 204]
WACC = 212
WA = 232
WB = 252
vL16, vV, vK2, vL4, vOBr, vT0, vT1, vT2, vT3 = 5, 6, 7, 8, 9, 10, 11, 12, 13
vLo = 14
vX = 15
vSt, vStr = 16, 17
vPw, vPw8, vPr, vPr8 = 16, 17, 18, 19
vOw = 1

def k2(a):
    K = "k2_kernel"
    a.begin(K)
    a.guard("K2")
    a.stamp(0); a.stampc(10)
    a(f"s_load_dwordx2 s[4:5], s[0:1], {A_WS}")
    a(f"s_load_dwordx2 s[6:7], s[0:1], {A_X}")
    a(f"s_load_dwordx2 s[80:81], s[0:1], {A_W1}")
    a(f"s_load_dwordx2 s[82:83], s[0:1], {A_W2}")
    a("v_lshrrev_b32 v1, 6, v0")
    a("v_and_b32 v2, 63, v0")
    a("v_readfirstlane_b32 s3, v1")
    a("s_mov_b32 s22, 0")
    a.label("K2_main")
    a("v_and_b32 v3, 31, v0")
    a("v_bfe_u32 v4, v0, 5, 1")
    a(f"v_lshlrev_b32 v{vL16}, 4, v2")
    a(f"v_lshlrev_b32 v{vL4}, 2, v2")
    a(f"s_mul_i32 s16, s2, {8*ROW}")
    a(f"s_add_u32 s16, s16, {WS_Q}")
    a(f"s_mul_i32 s54, s3, {ROW}")
    a("s_add_u32 s54, s54, s16")
    a(f"v_lshl_or_b32 v{vT0}, v4, 30, v{vL4}")
    a(f"v_mul_u32_u24 v{vV}, 320, v4")
    a(f"v_lshl_add_u32 v{vV}, v3, 4, v{vV}")
    a(f"v_add_u32 v{vV}, 1024, v{vV}")
    a(f"v_subrev_u32 v18, 32, v{vV}")
    a(f"v_and_b32 v19, 30, v3")
    a("v_cmp_eq_u32 vcc, 20, v19")
    a("v_cmp_gt_u32 s[20:21], 18, v3")
    a(f"v_mov_b32 v19, {OOB}")
    a(f"v_cndmask_b32 v18, v19, v18, vcc")
    a(f"v_cndmask_b32_e64 v{vV}, v18, v{vV}, s[20:21]")
    a(f"v_lshl_or_b32 v{vK2}, v4, 30, v{vL16}")
    a("v_cmp_eq_u32 s[20:21], 0, v4")
    a("s_lshr_b32 s18, s2, 3")
    a("s_lshl_b32 s19, s3, 1")
    a("s_add_u32 s18, s18, s19")
    a("s_and_b32 s18, s18, 15")
    a("s_add_u32 s19, s18, 1")
    a("s_and_b32 s19, s19, 15")
    for s in range(8):
        a(f"s_mul_i32 s{24+s}, s{18 + s // 4}, {4*KVB}")
        if s % 4:
            a(f"s_add_u32 s{24+s}, s{24+s}, {(s % 4) * KVB}")
    for k in (18, 19):
        a(f"s_lshl_b32 s{k}, s{k}, 9")
        a(f"s_add_u32 s{k}, s{k}, {K2OFF}")
    a.pad("K2", 1)
    a("s_waitcnt lgkmcnt(0)")
    a.srd(8, 4, WS_SIZE)
    a.srd(12, 4, KV_BYTES, WS_KV)
    def ldK(s):
        L = [("vm", ("k", s), f"buffer_load_dwordx4 {vr(KF[s])}, v{vL16}, s[12:15], s{24+s} offen")]
        if s % 4 == 0:
            L.append(("vm", ("k", s), f"buffer_load_dwordx4 {vr(K2F+s)}, v{vK2}, s[12:15], s{18 + s // 4} offen"))
        return L
    def fixK2(b):
        return [f"v_cndmask_b32_e64 v{K2F+b+i}, v{vT2}, v{K2F+b+i}, s[20:21]" for i in range(4)]
    def ldV(s):
        return [("vm", ("v", s), f"buffer_load_dwordx4 {vr(VF[s][0])}, v{vV}, s[12:15], s{24+s} offen"),
                ("vm", ("v", s), f"buffer_load_dwordx4 {vr(VF[s][1])}, v{vV}, s[12:15], s{24+s} offen offset:640")]
    a.vm("q0", f"buffer_load_dwordx4 {vr(QR[0])}, v{vL16}, s[8:11], s16 offen")
    a.vm("q0", f"buffer_load_dword v{QR[0]+4}, v{vT0}, s[8:11], s16 offen offset:1024")
    for it in ldK(0) + ldK(1) + ldV(0):
        a.emit(it)
    a("s_mul_i32 s17, s3, 1536")
    a("s_cmp_eq_u32 s22, 0")
    a(f"s_cselect_b32 s17, s17, {XS}")
    a("s_mov_b32 m0, s17")
    a(f"v_add_u32 v{vPr}, s17, v{vL4}")
    a.vm("q", f"buffer_load_dwordx4 v{vL16}, s[8:11], s54 offen lds")
    a.vm("q", f"buffer_load_dword v{vT0}, s[8:11], s54 offen offset:1024 lds")
    a(f"v_mov_b32 v{QR[0]+5}, 0")
    a(f"ds_write_b32 v{vPr}, v{QR[0]+5} offset:1280")
    a(f"ds_write_b32 v{vL4}, v{QR[0]+5} offset:{CP}")
    a("s_lshr_b32 s41, s2, 3")
    a("s_cmp_lg_u32 s3, 7")
    a("s_cbranch_scc1 K2_nopf")
    a.codepf("k2_kernel", "K2_end", 41, vL16, WA, 42)
    a.vmq.pop()
    a.label("K2_nopf")
    a.srd(32, 4, WOF_BYTES, WS_WOF)
    a.srd(36, 6, 2048 * ROW)
    a.pad("K2", 2)
    a(f"v_bfe_u32 v{vT0}, v0, 4, 2")
    a(f"v_and_b32 v{vT3}, 7, v0")
    a(f"v_lshlrev_b32 v{vOBr}, 7, v{vT0}")
    a(f"v_lshl_add_u32 v{vOBr}, v{vT3}, 4, v{vOBr}")
    a(f"v_add_u32 v{vOBr}, {OB}, v{vOBr}")
    a(f"v_bfe_u32 v{vT1}, v0, 3, 2")
    a(f"v_lshl_add_u32 v{vT1}, v{vT1}, 1, v4")
    a(f"v_lshlrev_b32 v{vLo}, 4, v{vT3}")
    a(f"v_lshl_add_u32 v{vLo}, v{vT1}, 1, v{vLo}")
    a(f"v_add_u32 v{vLo}, {OB+8192}, v{vLo}")
    a(f"v_mul_u32_u24 v{vX}, 1184, v{vT3}")
    a(f"v_lshl_add_u32 v{vX}, v{vT0}, 3, v{vX}")
    a("s_lshl_b32 s17, s3, 5")
    a(f"s_add_u32 s17, s17, {XS}")
    a(f"v_add_u32 v{vX}, s17, v{vX}")
    a("s_mul_i32 s55, s3, 10240")
    a(f"s_add_u32 s55, s55, {STG}")
    a("s_mul_i32 s17, s3, 2560")
    a(f"s_add_u32 s17, s17, {PS}")
    a(f"v_add_u32 v{vPw}, s17, v{vL16}")
    a(f"v_lshlrev_b32 v{vPr8}, 3, v2")
    a(f"v_add_u32 v{vPw8}, s17, v{vPr8}")
    a(f"v_add_u32 v{vPr8}, {PS}, v{vPr8}")
    a("s_and_b32 s52, s3, 3")
    a("s_lshr_b32 s53, s3, 2")
    a("s_lshr_b32 s17, s52, 1")
    a("s_lshl_b32 s17, s17, 10")
    a("s_and_b32 s41, s52, 1")
    a("s_lshl_b32 s41, s41, 3")
    a("s_add_u32 s17, s17, s41")
    a(f"s_add_u32 s17, s17, {PS}")
    a(f"v_add_u32 v{vPr}, s17, v{vL16}")
    a("s_lshl_b32 s17, s52, 2")
    a(f"v_add_u32 v{vOw}, s17, v{vL16}")
    a("s_mov_b32 s23, 0")
    a(f"s_mul_i32 s40, s3, {18*1024}")
    a(f"v_mov_b32 v{QR[0]+6}, 0")
    a(f"v_mov_b32 v{vT2}, 0x3f803f80")
    def rdQ(p):
        o = (QB + 1536 * p + 1024) // 256
        return [f"ds_read_b128 {vr(QR[p&1])}, v{vL16} offset:{QB+1536*p}",
                f"ds_read2st64_b32 {vr(QR[p&1]+4,2)}, v{vL4} offset0:{o} offset1:{o+1}",
                f"ds_read2st64_b32 {vr(QR[p&1]+6,2)}, v{vL4} offset0:{o+1} offset1:{o}"]
    a.pad("K2", 3)
    a.stamp(1)
    a.waitvm(("k", 0))
    for it in fixK2(0): a(it)
    a(f"v_mov_b32 v{QR[0]+7}, v{QR[0]+4}")
    a("s_cmp_eq_u32 s22, 0")
    a("s_cbranch_scc1 K2_go")
    for it in rdQ(0):
        a(it)
    a("s_waitcnt lgkmcnt(0)")
    a.label("K2_go")
    def qk1(t):
        p, s = divmod(t, 8)
        return f"v_mfma_f32_32x32x16_bf16 {vr(S[t&1],16)}, {vr(KF[s])}, {vr(QR[p&1])}, 0"
    def qk2(t):
        p, s = divmod(t, 8)
        return f"v_mfma_f32_32x32x8_bf16 {vr(S[t&1],16)}, {vr(K2F+(s&~1),2)}, {vr(QR[p&1]+4+2*(s&1),2)}, {vr(S[t&1],16)}"
    def pv(t, half):
        p, s = divmod(t, 8)
        c = "0" if (s == 0 and half == 0) else vr(O[p & 1], 16)
        return f"v_mfma_f32_32x32x16_bf16 {vr(O[p&1],16)}, {vr(VF[s][half])}, {vr(P+4*half)}, {c}"
    def ex(t, i):
        return f"v_exp_f32 v{S[t&1]+i}, v{S[t&1]+i}"
    def cv(t, i):
        return f"v_cvt_pk_bf16_f32 v{P+i}, v{S[t&1]+2*i}, v{S[t&1]+2*i+1}"
    a.stamp(2)
    a(qk1(0)); a(qk2(0))
    for it in ldK(2) + ldK(3) + ldV(1):
        a.emit(it)
    a("s_and_b32 s84, s2, 7")
    a("s_andn2_b32 s85, s2, 7")
    a("s_add_u32 s85, s85, s3")
    RL.params_w12(a, 84, 85, 56, 64, 80, 82)
    a("s_lshr_b32 s85, s2, 3")
    a("s_lshl_b32 s17, s85, 1")
    a("s_add_u32 s17, s17, s3")
    a("s_add_u32 s17, s17, 256")
    a("s_add_u32 s85, s85, 320")
    a("s_cmp_lt_u32 s3, 2")
    a("s_cselect_b32 s85, s17, s85")
    a("s_cmp_gt_u32 s3, 2")
    a("s_cselect_b32 s85, 999, s85")
    RL.params_w12(a, 84, 85, 68, 76, 80, 82)

    def e1(p):
        o = O[p & 1]; b = (p & 1) * 20480
        return [f"ds_write_b128 v{vPw}, {vr(o)} offset:{b}", f"ds_write_b128 v{vPw}, {vr(o+4)} offset:{b+1024}",
                f"ds_write_b64 v{vPw8}, {vr(o+8,2)} offset:{b+2048}"]
    def guard(p, tag, body):
        return [f"s_cmp_lg_u32 s53, {p & 1}", f"s_cbranch_scc1 K2_{tag}"] + body + [("label", f"K2_{tag}")]
    def rdP(p, half):
        o = O[p & 1]; b = (p & 1) * 20480 + half * 4 * 2560
        L = []
        for k in range(4):
            L.append(f"ds_read_b64 {vr(o+4*k,2)}, v{vPr} offset:{b+2560*k}")
            L.append(f"ds_read_b64 {vr(o+4*k+2,2)}, v{vPr8} offset:{b+2560*k+2048}")
        return L
    def signal(off):
        return ["s_mov_b64 exec, 1", f"ds_add_u32 v{vL4}, v{vOBr} offset:{off}", "s_mov_b64 exec, -1"]
    def chk_issue(off, tmp):
        return [f"ds_read_b32 v{tmp}, v{vL4} offset:{off}"]
    def chk_wait(off, tmp, n, tag):
        return ["s_waitcnt lgkmcnt(0)", ("label", f"K2_c{tag}"), f"v_readfirstlane_b32 s41, v{tmp}", f"s_cmp_ge_u32 s41, {n*OB}",
                f"s_cbranch_scc1 K2_k{tag}", "s_sleep 2", f"ds_read_b32 v{tmp}, v{vL4} offset:{off}", "s_waitcnt lgkmcnt(0)",
                f"s_branch K2_c{tag}", ("label", f"K2_k{tag}")]
    def e2a(p, chk=False):
        return guard(p, f"e2a{p}", (chk_wait(CP + 4 * p, O[p & 1] + 15, 8, f"p{p}") if chk else []) + rdP(p, 0))
    def e2b(p):
        o = O[p & 1]
        L = ["s_waitcnt lgkmcnt(0)"]
        for q in range(2):
            L.append(f"v_pk_add_f32 {vr(o+2*q,2)}, {vr(o+2*q,2)}, {vr(o+4+2*q,2)}")
            L.append(f"v_pk_add_f32 {vr(o+8+2*q,2)}, {vr(o+8+2*q,2)}, {vr(o+12+2*q,2)}")
        for q in range(2):
            L.append(f"v_pk_add_f32 {vr(vT0+2*q,2)}, {vr(o+2*q,2)}, {vr(o+8+2*q,2)}")
        return guard(p, f"e2b{p}", L + rdP(p, 1))
    def e2c(p):
        o = O[p & 1]
        L = ["s_waitcnt lgkmcnt(0)"]
        for q in (1, 0):
            L.append(f"v_pk_add_f32 {vr(o+2*q,2)}, {vr(o+2*q,2)}, {vr(o+4+2*q,2)}")
            L.append(f"v_pk_add_f32 {vr(o+8+2*q,2)}, {vr(o+8+2*q,2)}, {vr(o+12+2*q,2)}")
            L.append(f"v_pk_add_f32 {vr(vT0+2*q,2)}, {vr(vT0+2*q,2)}, {vr(o+2*q,2)}")
            L.append(f"v_pk_add_f32 {vr(vT0+2*q,2)}, {vr(vT0+2*q,2)}, {vr(o+8+2*q,2)}")
            if q == 1:
                L.append(f"v_rcp_f32 v{o+6}, v{vT3}")
        L.append(f"v_subrev_u32 v{o+7}, {f32bits(2.0**-60)}, v{vT3}")
        L.append(f"v_pk_mul_f32 {vr(vT0,2)}, {vr(vT0,2)}, {vr(o+6,2)} op_sel_hi:[1,0]")
        L.append(f"v_cmp_lt_u32 vcc, {120 << 23}, v{o+7}")
        L.append(f"v_mul_f32 v{vT2}, v{o+6}, v{vT2}")
        L.append(f"v_cvt_pk_bf16_f32 v{vT0}, v{vT0}, v{vT1}")
        L.append(f"v_cvt_pk_bf16_f32 v{vT2}, v{vT2}, v{vT2}")
        L.append(f"ds_write_b32 v{vOw}, v{vT0} offset:{OB+1024*p}")
        L.append(f"ds_write_b16 v{vLo}, v{vT2} offset:{128*p}")
        L.append(f"s_or_b32 s23, s23, vcc_lo")
        L.append(f"s_or_b32 s23, s23, vcc_hi")
        if p < 7: L += signal(CR + 4 * p)
        return guard(p, f"e2c{p}", L)
    def ldWA(ks, base):
        L = []
        for t in range(5):
            L.append(f"s_add_u32 s41, s40, {t*8*18*1024 + ks*1024}")
            if Opt.EXP == "nold" or Opt.EXP == "none":
                L.append(("vm", ("wa", ks), f"s_nop 0 ; v[{base[t]}:"))
            else:
                L.append(("vm", ("wa", ks), f"buffer_load_dwordx4 {vr(base[t])}, v{vL16}, s[32:35], s41 offen"))
        return L
    def rdWB(ks, wb):
        return [f"ds_read_b128 {vr(wb)}, v{vOBr} offset:{512*ks}"]
    first_wo = [True]
    def woM(ks, base, wb):
        L = []
        for t in range(5):
            c = "0" if first_wo[0] else vr(WACC + 4 * t)
            if Opt.EXP in ("nomm", "none") and not first_wo[0]:
                L.append("s_nop 0")
            else:
                L.append(f"v_mfma_f32_16x16x32_bf16 {vr(WACC+4*t)}, {vr(base[t])}, {vr(wb)}, {c}")
        first_wo[0] = False
        return L
    WAb = [WA + 4 * t for t in range(5)]
    WA2 = [VF[0][0], VF[0][1], VF[1][0], VF[1][1], KF[0]]
    WA3 = [VF[2][0], VF[2][1], VF[3][0], VF[3][1], KF[1]]
    WA4 = [VF[4][0], VF[4][1], KF[2], KF[3], KF[4]]
    XR = VF[5][0]

    uses = {}
    order = []
    for tu, ks in ((22, 0), (25, 1), (28, 2), (31, 3), (34, 4), (37, 5), (40, 6), (43, 7), (46, 16), (49, 8), (52, 9), (55, 10), (58, 11), (62, 12)):
        uses[tu] = (ks, WAb)
        order.append((tu, ks))
    side_ld = {}
    side_ld[20] = ldWA(order[0][1], WAb)
    extra = {}
    def addx(t, groups):
        extra.setdefault(t, []).extend(groups)
    vSrc, vTr = vV, 4
    def rl_init(S_, vSrc):
        return [f"v_lshrrev_b32 v{vSrc}, 3, v2", f"v_mul_lo_u32 v{vSrc}, v{vSrc}, s{S_+2}", f"v_and_b32 v{vK2}, 7, v2",
                f"v_lshl_add_u32 v{vSrc}, v{vK2}, 4, v{vSrc}", f"s_lshl_b32 s{S_+6}, s{S_+2}, 3"]
    def rl_dma(S_, R_, ldsoff, tag, n, vSrc):
        ld = f"buffer_load_dwordx4 v{vSrc}, s[{R_}:{R_+3}], s{S_+1} offen{Opt.WNT} lds"
        return [f"s_add_u32 s41, s55, {ldsoff+1024*n}", "s_mov_b32 m0, s41", "s_nop 0",
                ("vm", tag, ld) if tag else ld, f"s_add_u32 s{S_+1}, s{S_+1}, s{S_+6}"]
    def rl_rd(ldsoff, q, d):
        return [f"ds_read_b64_tr_b16 {vr(d,2)}, v{vTr} offset:{ldsoff+32*q}",
                f"ds_read_b64_tr_b16 {vr(d+2,2)}, v{vTr} offset:{ldsoff+32*q+2048}"]
    def rl_st(S_, tag, d):
        st = f"buffer_store_dwordx4 {vr(d)}, v{vL16}, s[8:11], s{S_+5} offen{Opt.WST}"
        return ["s_waitcnt lgkmcnt(0)", ("vm", tag, st) if tag else st, f"s_add_u32 s{S_+5}, s{S_+5}, 18432"]
    def opt(tag, body):
        return ["s_cmp_ge_u32 s85, 324", f"s_cbranch_scc1 K2_{tag}"] + body + [("label", f"K2_{tag}")]
    if Opt.FOLD:
        for n, t_ in enumerate((6, 8, 11, 13)):
            addx(t_, [[], (rl_init(56, vV) if n == 0 else []) + rl_dma(56, 64, 0, "rl", n, vV)])
        for n, t_ in enumerate((5, 7, 10, 12)):
            addx(t_, [[], (rl_init(68, WACC) if n == 0 else []) + opt(f"rlb{n}", rl_dma(68, 76, 4096, None, n, WACC))])
        addx(15, [[f"v_lshrrev_b32 v{vTr}, 2, v2", f"v_lshlrev_b32 v{vTr}, 7, v{vTr}", f"v_and_b32 v{vK2}, 3, v2",
                   f"v_lshl_add_u32 v{vTr}, v{vK2}, 3, v{vTr}", f"v_add_u32 v{vTr}, s55, v{vTr}"]])
        addx(18, [[("wait", "rl")] + rl_rd(0, 0, WACC + 4)] + [rl_rd(0, q, WACC + 4 + 4 * q) for q in range(1, 4)])
        addx(19, [rl_st(56, "rs", WACC + 4 + 4 * q) for q in range(4)])
        addx(20, [[], opt("rlr", [x for q in range(4) for x in rl_rd(4096, q, WACC + 4 + 4 * q)])])
        addx(21, [opt(f"rls{q}", rl_st(68, None, WACC + 4 + 4 * q)) for q in range(4)])
    addx(36, [[f"s_lshl_b32 s41, s2, 3", "s_add_u32 s41, s41, s3", f"s_mul_i32 s41, s41, {ROW}", "s_mul_i32 s42, s3, 1184", f"s_add_u32 s42, s42, {XS}",
              "s_mov_b32 m0, s42", "s_nop 0", ("vm", "x", f"buffer_load_dwordx4 v{vL16}, s[36:39], s41 offen lds")],
             ["s_mov_b64 exec, 0xff", ("vm", "x", f"buffer_load_dwordx4 v{vL16}, s[36:39], s41 offen offset:1024 lds"), "s_mov_b64 exec, -1"]])
    for n, t_ in enumerate((15, 16, 17)):
        addx(t_, [["s_andn2_b32 s41, s2, 7", "s_add_u32 s41, s41, s3", "s_mul_i32 s41, s41, 2624", f"s_add_u32 s41, s41, {1024*n}",
                   "s_add_u32 s42, s55, 9216", "s_mov_b32 m0, s42", "s_nop 0",
                   ("vm", "pf", f"buffer_load_dwordx4 v{vL16}, s[32:35], s41 offen lds")]])
    addx(8, [["s_lshl_b32 s43, s2, 3", "s_add_u32 s43, s43, s3", "s_mul_i32 s43, s43, 9216", f"s_add_u32 s43, s43, {WS_PART}"]])
    for k, t_ in enumerate((24, 24, 30, 33, 39, 42, 45, 48, 54)):
        if t_ in (24, 30, 39, 45, 54) and k != 1:
            addx(t_, [[f"v_mov_b32 v{vT0+i}, {POISON}" for i in range(4)]])
        addx(t_, [[("vm", "po", f"buffer_store_dwordx4 {vr(vT0)}, v{vL16}, s[8:11], s43 offen sc1"), "s_add_u32 s43, s43, 1024"]])
    for n in range(10):
        ks, t_ = 14 + n // 5, n % 5
        addx((27, 36, 51, 51, 57)[n // 2],
             [[f"s_add_u32 s42, s55, {1024*n}", "s_mov_b32 m0, s42", f"s_add_u32 s41, s40, {t_*8*18*1024 + ks*1024}",
               ("vm", "stg", f"buffer_load_dwordx4 v{vL16}, s[32:35], s41 offen lds")]])
    if Opt.IPF:
        addx(45, [["s_cmp_lg_u32 s3, 3", "s_cbranch_scc1 K2_noti"] + a.touch("K3") + [("label", "K2_noti")]])
    addx(56, [["s_lshr_b32 s44, s2, 3", "s_bfe_u32 s45, s2, 0x20001", "s_and_b32 s46, s2, 1", "s_lshl_b32 s46, s46, 8",
               "s_mul_i32 s47, s44, 73728", "s_lshr_b32 s48, s3, 1", "s_lshl_b32 s48, s48, 12", "s_add_u32 s47, s47, s48"],
              ["s_lshl_b32 s48, s45, 10", "s_add_u32 s47, s47, s48", "s_and_b32 s48, s3, 1", "s_lshl_b32 s48, s48, 9",
               "s_add_u32 s47, s47, s48", "s_add_u32 s47, s47, s46", f"s_add_u32 s47, s47, {WS_XN}"],
              ["s_mul_i32 s49, s44, 36", "s_add_u32 s49, s49, s3", "s_lshl_b32 s49, s49, 11", "s_lshl_b32 s48, s45, 9",
               "s_add_u32 s49, s49, s48", "s_add_u32 s49, s49, s46", f"s_add_u32 s49, s49, {WS_HRES}"]])
    addx(63, [[f"ds_read_b64 {vr(S[0]+2*t_,2)}, v{vX} offset:{256*t_}"] for t_ in range(5)])
    addx(62, [[f"v_add_u32 v{vK2}, s55, v{vL16}"]] + [[f"ds_read_b128 {vr(WA4[n])}, v{vK2} offset:{1024*(5+n)}"] for n in range(5)])
    addx(63, [[]] + [[f"ds_read_b128 {vr(WAb[n])}, v{vK2} offset:{1024*n}"] for n in range(5)])
    for (tu, ks), (tn, kn) in zip(order[:-1], order[1:]):
        side_ld[tu + 1] = ldWA(kn, WAb)
    side_ld[60] = ldWA(17, WA2)
    side_ld[61] = ldWA(13, WA3)
    uses[63] = (13, WA3)
    PRIO = {2: 3, 5: 2, 0: 1, 1: 0}

    for t in range(64):
        p, s = divmod(t, 8)
        m = [ex(t, 0), ex(t, 1)]
        m += [pv(t - 1, 1)] if t > 0 else ["s_nop 0"]
        m += [ex(t, i) for i in range(2, 7)]
        m += [qk1(t + 1)] if t < 63 else ["s_nop 0"]
        m += [ex(t, 7)] + [cv(t, i) for i in range(4)] + [ex(t, 8), ex(t, 9)]
        m += [qk2(t + 1)] if t < 63 else ["s_nop 0"]
        m += [ex(t, i) for i in range(10, 15)]
        m += [pv(t, 0)]
        m += [ex(t, 15)] + [cv(t, i) for i in range(4, 8)]
        sd = {i: [] for i in range(29)}
        sd[0].append("s_nop 0")
        if Opt.DBG and Opt.STEP:
            sd[0].append("s_memtime s[86:87]")
            sd[27] += ["s_waitcnt lgkmcnt(0)", f"v_writelane_b32 v3, s86, {t}"]
        if p == 0:
            if t < 63 and s + 1 < 8:
                sd[8].append(("wait", ("k", s + 1)))
                if s == 3:
                    sd[8] += fixK2(4)
            sd[22].append(("wait", ("v", s)))
            L = []
            if s % 2 == 0 and s + 4 < 8:
                L += ldK(s + 4) + ldK(s + 5)
            if s + 2 < 8:
                L += ldV(s + 2)
            for i, it in enumerate(L):
                sd[1 + i * 26 // len(L)].append(it)
            if s == 3:
                sd[28] += ["s_waitcnt lgkmcnt(0)", "s_barrier"]
        if s == 4 and p < 7:
            sd[3] += rdQ(p + 1)
        if s == 7 and p < 7:
            sd[8].append("s_waitcnt lgkmcnt(0)")
        if p >= 1:
            if s == 0:
                for i, it in enumerate(e1(p - 1)):
                    sd[17 + 4 * i].append(it)
                sd[26] += signal(CP + 4 * (p - 1))
            if s == 2:
                sd[1] += chk_issue(CP + 4 * (p - 1), O[(p - 1) & 1] + 15)
                sd[15] += e2a(p - 1, True)
                if p in (1, 4, 7):
                    sd[0].append(("stamp", {1: 3, 4: 4, 7: 5}[p]))
            if s == 3:
                sd[10] += e2b(p - 1)
            if s == 4:
                sd[4] += e2c(p - 1)
        if t + 1 in uses:
            ks1 = uses[t + 1][0]
            if ks1 < 16 and ks1 % 2 == 0:
                sd[10] += chk_issue(CR + 2 * ks1, WB)
                sd[24] += chk_wait(CR + 2 * ks1, WB, 4, f"r{ks1}")
            sd[24] += rdWB(ks1, WB)
        if t in uses:
            ks, base = uses[t]
            sd[6] += [("wait", ("wa", ks), " lgkmcnt(0)")]
            for pos, it in zip((6, 13, 14, 20, 21), woM(ks, base, WB)):
                sd[pos].append(it)
        if t in side_ld:
            L = side_ld[t]
            n = len(L) // 2
            lo = 22 if (t in uses and uses[t][1][0] in [int(x[2].split("v[")[1].split(":")[0]) for x in L[1::2]]) else 1
            for i in range(n):
                pos = lo + i * (27 - lo) // n
                sd[pos] += L[2 * i:2 * i + 2]
        if t in extra:
            G_ = extra[t]
            for i, g_ in enumerate(G_):
                sd[3 + i * 24 // len(G_)] += g_
        pr = PRIO.get(s)
        if p == 0: pr = {0: 3, 2: 1, 3: 0, 4: 3, 6: 2}.get(s)
        if p == 7: pr = {2: 3, 4: 2, 6: 1, 7: 0, 0: 1, 1: 0}.get(s)
        if pr is not None:
            sd[0].insert(0, f"s_setprio {pr}")
        for it in weave(m, sd):
            if isinstance(it, str):
                if "nobar" in Opt.ABL and it == "s_barrier": continue
                if "noprio" in Opt.ABL and it.startswith("s_setprio"): continue
                if "noe1" in Opt.ABL and it.startswith("ds_write_b") and (f"v{vPw}," in it or f"v{vPw8}," in it): continue
                if "nored" in Opt.ABL and it.startswith("s_cmp_lg_u32 s53"): it = "s_cmp_lg_u32 s53, 5"
                if "nolgkm" in Opt.ABL and it == "s_waitcnt lgkmcnt(0)": continue
            elif it[0] == "vm" and "nopo" in Opt.ABL and it[1] == "po":
                it = ("vm", "po", "s_nop 0")
            a.emit(it)
    a("s_nop 1")
    a(pv(63, 1))
    if Opt.WBL:
        a("s_lshr_b32 s41, s2, 3")
        a("s_lshl_b32 s41, s41, 3")
        a("s_add_u32 s41, s41, s3")
        a(f"s_cmp_lt_u32 s41, {Opt.WBL}")
        a("s_cbranch_scc1 K2_wb")
        a.vm("wb", f"buffer_load_dword v{QR[0]}, v{vL4}, s[32:35], 0 offen")
        a("s_branch K2_wb2")
        a.label("K2_wb")
        a("buffer_wbl2 sc1")
        a.label("K2_wb2")
    XR = S[0]
    vG, vTok, vS2, vA, vB, vC_ = QR[0] + 1, QR[0] + 2, QR[0] + 3, QR[0] + 4, QR[0] + 5, QR[0] + 6
    a(f"v_bfe_u32 v{vG}, v0, 4, 2")
    a(f"v_and_b32 v{vTok}, 7, v0")
    a(f"v_lshlrev_b32 v{vS2}, 6, v{vG}")
    a(f"v_lshl_add_u32 v{vS2}, v{vTok}, 3, v{vS2}")
    a(f"v_and_b32 v{vA}, 8, v0")
    a(f"v_cmp_eq_u32 s[50:51], 0, v{vA}")
    a(f"v_mov_b32 v{vA}, s47")
    a(f"v_mov_b32 v{vB}, s49")
    a(f"v_cndmask_b32_e64 v{vA}, v{vA}, v{vB}, s[50:51]")
    a(f"v_add_u32 v{vS2}, v{vS2}, v{vA}")
    a(f"v_lshlrev_b32 v{vA}, 3, v{vTok}")
    a(f"v_add_u32 v{vA}, {STAT}, v{vA}")
    for it in e1(7):
        a(it)
    a("s_lshl_b32 s17, s3, 6")
    a(f"v_add_u32 v{vB}, s17, v{vA}")
    a(f"v_lshlrev_b32 v{vC_}, 2, v{vTok}")
    a("s_cmp_lt_u32 s3, 4")
    a("s_cselect_b32 s17, -1, 0")
    a("s_waitcnt lgkmcnt(0)")
    a("s_barrier")
    a.stamp(6)
    a("s_cbranch_scc1 K2_t1")
    for k in range(8):
        a(f"ds_read_b64 {vr(O[0]+4*k,2)}, v{vPr} offset:{20480+2560*k}")
        a(f"ds_read_b64 {vr(O[0]+4*k+2,2)}, v{vPr8} offset:{20480+2560*k+2048}")
    a.label("K2_t1")
    a(f"v_and_b32 v{XR+8}, s17, v{XR+8}")
    a(f"v_and_b32 v{XR+9}, s17, v{XR+9}")
    XF = S[1]
    for i in range(10):
        f_ = XF + 2 * (i % 4)
        a(f"v_lshlrev_b32 v{f_}, 16, v{XR+i}")
        a(f"v_and_b32 v{f_+1}, 0xffff0000, v{XR+i}")
        a(f"v_pk_add_f32 {vr(WACC+2*i,2)}, {vr(WACC+2*i,2)}, {vr(f_,2)}")
    a("s_cbranch_scc1 K2_t2")
    o = O[0]
    a("s_waitcnt lgkmcnt(0)")
    for st in (4, 8, 16):
        for q in (2, 0):
            for k in range(0, 32, 2 * st):
                a(f"v_pk_add_f32 {vr(o+k+q,2)}, {vr(o+k+q,2)}, {vr(o+k+q+st,2)}")
            if st == 16 and q == 2:
                a(f"v_rcp_f32 v{o+6}, v{o+3}")
    a(f"v_subrev_u32 v{o+7}, {f32bits(2.0**-60)}, v{o+3}")
    a(f"v_pk_mul_f32 {vr(o,2)}, {vr(o,2)}, {vr(o+6,2)} op_sel_hi:[1,0]")
    a(f"v_cmp_lt_u32 vcc, {120 << 23}, v{o+7}")
    a(f"v_mul_f32 v{o+2}, v{o+6}, v{o+2}")
    a(f"v_cvt_pk_bf16_f32 v{o}, v{o}, v{o+1}")
    a(f"v_cvt_pk_bf16_f32 v{o+2}, v{o+2}, v{o+2}")
    a(f"ds_write_b32 v{vOw}, v{o} offset:{OB+1024*7}")
    a(f"ds_write_b16 v{vLo}, v{o+2} offset:{128*7}")
    a(f"s_or_b32 s23, s23, vcc_lo")
    a(f"s_or_b32 s23, s23, vcc_hi")
    a("s_waitcnt lgkmcnt(0)")
    a.label("K2_t2")
    a("s_barrier")
    WBs = [WB, P, P + 4]
    for ks, wb in zip((14, 15, 17), WBs):
        a(rdWB(ks, wb)[0])
    a("s_lshl_b32 s17, s3, 2")
    a(f"s_add_u32 s17, s17, {STAT+512}")
    a(f"v_mov_b32 v{vT0}, s17")
    a(f"v_mov_b32 v{vT1}, s23")
    a("s_mov_b64 exec, 1")
    a(f"ds_write_b32 v{vT0}, v{vT1}")
    a("s_mov_b64 exec, -1")
    a.waitvm(("wa", 17), " lgkmcnt(1)")
    SS = O[0] + 8
    mm = [woM(ks, base, wb) for ks, base, wb in ((14, WAb, WBs[0]), (15, WA4, WBs[1]), (17, WA2, WBs[2]))]
    def stat(t):
        L = []
        for q in range(2):
            r = WACC + 4 * t + 2 * q
            if t == 0 and q == 0:
                L.append(f"v_pk_mul_f32 {vr(SS+2,2)}, {vr(r,2)}, {vr(r,2)}")
            else:
                L.append(f"v_pk_add_f32 {vr(SS,2)}, {vr(WACC if (t == 0) else SS,2)}, {vr(r,2)}")
                L.append(f"v_pk_fma_f32 {vr(SS+2,2)}, {vr(r,2)}, {vr(r,2)}, {vr(SS+2,2)}")
        return L
    for t in range(5):
        for k in range(3): a(mm[k][t])
    for t in range(3):
        for x_ in stat(t): a(x_)
    for t in range(3, 5):
        for x_ in stat(t): a(x_)
    a(f"v_add_f32 v{SS}, v{SS}, v{SS+1}")
    a(f"v_add_f32 v{SS+1}, v{SS+2}, v{SS+3}")
    for sw in ("v_permlane16_swap_b32", "v_permlane32_swap_b32"):
        a(f"v_mov_b32 v{SS+2}, v{SS}")
        a(f"v_mov_b32 v{SS+3}, v{SS+1}")
        a("s_nop 0")
        a(f"{sw} v{SS}, v{SS+2}")
        a(f"{sw} v{SS+1}, v{SS+3}")
        a("s_nop 0")
        a(f"v_pk_add_f32 {vr(SS,2)}, {vr(SS,2)}, {vr(SS+2,2)}")
    a("s_mov_b64 exec, 0xff")
    a(f"ds_write_b64 v{vB}, {vr(SS,2)}")
    a("s_mov_b64 exec, -1")
    a("s_waitcnt lgkmcnt(0)")
    a("s_barrier")
    a.stamp(7)
    RS = S[1]
    for k in range(8):
        a(f"ds_read_b64 {vr(RS+2*k,2)}, v{vA} offset:{64*k}")
    a(f"ds_read_b32 v{SS+4}, v{vC_} offset:{STAT+512}")
    a(f"v_mov_b32 v{SS+2}, {f32bits(1e-5)}")
    a("s_waitcnt lgkmcnt(0)")
    a(f"v_cmp_ne_u32 vcc, 0, v{SS+4}")
    for k in range(4):
        a(f"v_pk_add_f32 {vr(RS+4*k,2)}, {vr(RS+4*k,2)}, {vr(RS+4*k+2,2)}")
    a(f"v_pk_add_f32 {vr(RS,2)}, {vr(RS,2)}, {vr(RS+4,2)}")
    a(f"v_pk_add_f32 {vr(RS+8,2)}, {vr(RS+8,2)}, {vr(RS+12,2)}")
    a(f"v_pk_add_f32 {vr(SS,2)}, {vr(RS,2)}, {vr(RS+8,2)}")
    a("s_mov_b32 s23, vcc_lo")
    a(f"v_mul_f32 v{SS}, {f32bits(-1.0/576)}, v{SS}")
    a(f"v_fmac_f32 v{SS+2}, {f32bits(1.0/576)}, v{SS+1}")
    a(f"v_fma_f32 v{SS+2}, -v{SS}, v{SS}, v{SS+2}")
    a(f"v_max_f32 v{SS+2}, {f32bits(1e-5)}, v{SS+2}")
    a(f"v_rsq_f32 v{SS+2}, v{SS+2}")
    a("s_cmp_lg_u32 s22, 0")
    a("s_cselect_b32 s23, 0, s23")
    a("s_cmp_lg_u32 s23, 0")
    a("s_cbranch_scc1 K2_slow")
    a(f"v_mul_f32 v{SS}, v{SS}, v{SS+2}")
    a(f"v_cndmask_b32_e64 v{SS+2}, v{SS+2}, 1.0, s[50:51]")
    a(f"v_cndmask_b32_e64 v{SS}, v{SS}, 0, s[50:51]")
    a("s_cmp_ge_u32 s3, 4")
    HP = S[0]
    for t in range(5):
        if t == 4:
            a("s_cbranch_scc1 K2_fin")
        for q in range(2):
            r = WACC + 4 * t + 2 * q
            a(f"v_pk_fma_f32 {vr(r,2)}, {vr(r,2)}, {vr(SS+2,2)}, {vr(SS,2)} op_sel_hi:[1,0,0]")
        for q in range(2):
            r = WACC + 4 * t + 2 * q
            a(f"v_cvt_pk_bf16_f32 v{HP+2*t+q}, v{r}, v{r+1}")
        a(f"s_mov_b32 s17, {16384*t}")
        a(f"buffer_store_dwordx2 {vr(HP+2*t,2)}, v{vS2}, s[8:11], s17 offen{Opt.XST}")
    a.label("K2_fin")
    if Opt.DBG:
        a("s_lshl_b32 s100, s2, 3")
        a("s_add_u32 s100, s100, s3")
        a("s_lshl_b32 s100, s100, 8")
        a(f"s_add_u32 s100, s100, {WS_DBG + 8 * 4096 * 64}")
        a(f"buffer_store_dword v3, v{vL4}, s[8:11], s100 offen")
    a.end(2, 8, 8)
    a.label("K2_slow")
    for s in range(8):
        a(ldK(s)[0][2])
    a(f"v_lshlrev_b32 v{vT0}, 2, v3")
    a(f"v_add_u32 v{vT0}, {MX}, v{vT0}")
    a(f"v_mov_b32 v{vT1}, 0xff800000")
    a("s_lshl_b32 s17, s3, 7")
    a(f"v_add_u32 v{vT2}, s17, v{vT0}")
    a(f"ds_write_b32 v{vT2}, v{vT1}")
    a(f"v_mov_b32 v{vT3}, v{vL16}")
    a(f"v_mov_b32 v{vPr}, v{vL4}")
    a("s_mov_b32 s17, 0")
    a("s_waitcnt vmcnt(0) lgkmcnt(0)")
    a("s_barrier")
    a.label("K2_mx")
    a(f"ds_read_b128 {vr(QR[0])}, v{vT3} offset:{QB}")
    a(f"ds_read2st64_b32 {vr(QR[0]+4,2)}, v{vPr} offset0:4 offset1:5")
    a(f"ds_read2st64_b32 {vr(QR[0]+6,2)}, v{vPr} offset0:5 offset1:4")
    a(f"v_mov_b32 v{vT1}, 0xff800000")
    a("s_waitcnt lgkmcnt(0)")
    for s in range(8):
        a(qk1(s)); a(qk2(s))
        a("s_nop 7"); a("s_nop 7")
        for i in range(8):
            a(f"v_max3_f32 v{vT1}, v{vT1}, v{S[s&1]+2*i}, v{S[s&1]+2*i+1}")
    a(f"ds_max_f32 v{vT0}, v{vT1}")
    a(f"v_add_u32 v{vT0}, 128, v{vT0}")
    a(f"v_add_u32 v{vT3}, 1536, v{vT3}")
    a(f"v_add_u32 v{vPr}, 1536, v{vPr}")
    a("s_add_u32 s17, s17, 1")
    a("s_cmp_lt_u32 s17, 8")
    a("s_cbranch_scc1 K2_mx")
    a("s_waitcnt lgkmcnt(0)")
    a("s_barrier")
    a(f"ds_read_b32 v{vT1}, v{vT2}")
    a("s_mul_i32 s17, s3, 1536")
    a(f"v_add_u32 v{vT3}, s17, v{vL4}")
    a("s_waitcnt lgkmcnt(0)")
    T = S[0]
    a(f"v_sub_f32 v{vT1}, 0, v{vT1}")
    a(f"v_and_b32 v{T}, 0xffff0000, v{vT1}")
    a(f"v_sub_f32 v{vT1}, v{vT1}, v{T}")
    a(f"v_and_b32 v{T+1}, 0xffff0000, v{vT1}")
    a(f"v_sub_f32 v{vT1}, v{vT1}, v{T+1}")
    a(f"v_lshrrev_b32 v{T}, 16, v{T}")
    a(f"v_or_b32 v{T}, v{T}, v{T+1}")
    a(f"v_lshrrev_b32 v{T+1}, 16, v{vT1}")
    a("s_not_b64 exec, s[20:21]")
    a(f"ds_write_b32 v{vT3}, v{T} offset:{QB+1024}")
    a(f"ds_write_b32 v{vT3}, v{T+1} offset:{QB+1280}")
    a("s_mov_b64 exec, -1")
    a("s_mov_b32 s22, 1")
    a("s_waitcnt lgkmcnt(0)")
    a("s_barrier")
    a("s_branch K2_main")
    a.label("K2_end")
    a("s_endpgm")
    return K, desc(K, 256), (256, 512, LDS)
```

```python
from common import *
RING = 36
RB = 104
BV = 72
ACC = [40, 56]
TMP = 248
BIAS = 16
B1R = 24
ACCP = 16
LZ = 32
HOFF = 72 * 1024
LDS = HOFF + 72 * 1024
NF = 324

def bfrag(f):
    return ar(4 * f) if f < 64 else vr(BV + 4 * (f - 64))
def b1reg(n):
    return B1R + 2 * n if n < 8 else 14
def slot(i):
    return RB + (i % RING) * 4

def k3(a):
    K = "k3_kernel"
    a.begin(K)
    a.guard("K3")
    a.stamp(0); a.stampc(10)
    a(f"s_load_dwordx2 s[4:5], s[0:1], {A_WS}")
    a(f"s_load_dwordx2 s[6:7], s[0:1], {A_B1}")
    a(f"s_load_dwordx4 s[24:27], s[0:1], {A_B2}")
    a("v_lshrrev_b32 v1, 6, v0")
    a("v_and_b32 v2, 63, v0")
    a("v_readfirstlane_b32 s3, v1")
    a("v_and_b32 v3, 15, v0")
    a("v_bfe_u32 v4, v0, 4, 2")
    a("v_lshlrev_b32 v5, 4, v2")
    for k in range(1, 5):
        a(f"v_add_u32 v{5+k}, {4096*k}, v5")
    a("v_lshlrev_b32 v12, 3, v4")
    a("v_and_b32 v10, 0x23, v2")
    a("v_lshlrev_b32 v10, 4, v10")
    a("v_bfe_u32 v11, v2, 3, 2")
    a("v_lshl_add_u32 v10, v11, 6, v10")
    a("v_bfe_u32 v11, v2, 2, 1")
    a("v_lshl_add_u32 v10, v11, 8, v10")
    if Opt.EXP == "badmap":
        a("s_lshr_b32 s28, s2, 5")
        a("s_and_b32 s29, s2, 31")
    else:
        a("s_and_b32 s28, s2, 7")
        a("s_lshr_b32 s29, s2, 3")
    a("s_mul_i32 s31, s29, 73728")
    a("s_lshl_b32 s30, s3, 10")
    a("s_add_u32 s31, s31, s30")
    a(f"s_add_u32 s31, s31, {WS_XN}")
    a("s_mul_i32 s60, s28, 36")
    a("s_mul_i32 s59, s3, 9")
    a("s_mul_i32 s61, s29, 57")
    a("s_lshr_b32 s61, s61, 9")
    a("s_mul_i32 s61, s61, 9")
    a("s_sub_u32 s61, s29, s61")
    def g1par(n):
        a(f"s_add_u32 s{50+n}, s61, {n}")
        a(f"s_cmp_ge_u32 s{50+n}, 9")
        a(f"s_cselect_b32 s62, 9, 0")
        a(f"s_sub_u32 s{50+n}, s{50+n}, s62")
        a(f"s_add_u32 s{50+n}, s{50+n}, s59")
        a(f"s_add_u32 s62, s{50+n}, s60")
        a(f"s_mul_i32 s62, s62, {18*1024}")
        a(f"s_add_u32 s{32+n}, s62, {WS_W1F}")
    g1par(0); g1par(1)
    a.pad("K3", 1)
    a("s_waitcnt lgkmcnt(0)")
    a.srd(8, 4, WS_SIZE)
    a.srd(12, 6, 4608 * 2)
    def load(i):
        t, kk = divmod(i, 18)
        if Opt.EXP == "halfld" and i >= 36 and i % 2 == 0: return []
        if Opt.EXP == "nold3" and i >= 36 and i % 18 != 17: return []
        return [("vm", ("A", i), f"buffer_load_dwordx4 {vr(slot(i))}, v{5 + kk // 4}, s[8:11], s{32+t} offen offset:{(kk%4)*1024}")]
    def dmax(kk):
        return ["s_mov_b32 m0, s30", "s_add_u32 s30, s30, 4096",
                ("vm", ("X", kk), "buffer_load_dwordx4 v10, s[8:11], s31 offen lds"), "s_add_u32 s31, s31, 4096"]
    def ldb1(n):
        return [f"s_add_u32 s62, s{50+n}, s60", f"s_lshl_b32 s62, s62, 5",
                ("vm", ("b1", n), f"buffer_load_dwordx2 {vr(b1reg(n),2)}, v12, s[12:15], s62 offen")]
    def E(L):
        for x in L: a.emit(x)
    a("s_cmp_lg_u32 s3, 3")
    a("s_cbranch_scc1 K3_nopf")
    a.codepf("k3_kernel", "K3_end", 29, 5, TMP, 86)
    a.vmq.pop()
    a.label("K3_nopf")
    for kk in range(3): E(dmax(kk))
    E(ldb1(0)); E(ldb1(1))
    E(load(0)); E(load(18))
    for kk in range(3, 6): E(dmax(kk))
    for kk in range(1, 3): E(load(kk)); E(load(18 + kk))
    a.pad("K3", 2)
    for n in range(2, 9): g1par(n)
    a.srd(16, 24, 576 * 2)
    a.srd(20, 26, 2048 * ROW)
    a("s_add_u32 s28, s28, s29")
    a("s_and_b32 s28, s28, 7")
    for n in range(9):
        if n == 0:
            a(f"s_mov_b32 s{64+n}, 8")
        else:
            a(f"s_add_u32 s{64+n}, s28, {n}")
            a(f"s_and_b32 s{64+n}, s{64+n}, 7")
        a(f"s_lshl_b32 s62, s{64+n}, 2")
        a(f"s_add_u32 s62, s62, s3")
        a(f"s_add_u32 s62, s62, s60")
        a(f"s_mul_i32 s62, s62, {18*1024}")
        a(f"s_add_u32 s{41+n}, s62, {WS_W2F}")
    a.pad("K3", 3)
    a("s_mov_b32 s75, 0x00003f80")
    a("s_mov_b32 s76, 0x3f800000")
    a(f"v_lshlrev_b32 v{TMP+7}, 3, v2")
    a(f"v_add_u32 v11, {HOFF}, v5")
    a(f"v_add_u32 v13, {HOFF+36864}, v5")
    a("s_mul_i32 s78, s29, 36")
    a("s_add_u32 s78, s78, s3")
    a("s_lshl_b32 s77, s78, 14")
    a(f"s_add_u32 s77, s77, {WS_PART}")
    a("s_lshl_b32 s78, s78, 11")
    a(f"s_add_u32 s78, s78, {WS_HRES}")
    a("s_lshl_b32 s79, s28, 11")
    a("s_add_u32 s79, s79, s77")
    a("s_lshl_b32 s84, s28, 16")
    a("s_add_u32 s84, s84, s77")
    a("s_lshl_b32 s62, s28, 7")
    a("s_lshl_b32 s63, s3, 5")
    a("s_add_u32 s82, s62, s63")
    a("s_add_u32 s83, s63, 1024")
    a("s_and_b32 s73, s28, 1")
    a("s_lshl_b32 s73, s73, 10")
    a("s_add_u32 s85, s73, s77")
    a(f"s_add_u32 s85, s85, {8*65536}")
    a("s_lshr_b32 s62, s28, 1")
    a("s_cmp_eq_u32 s62, s3")
    a("s_cselect_b32 s80, 1, 0")
    a("s_lshl_b32 s74, s80, 8")
    a("s_or_b32 s74, s74, 0xfe")
    def unpack(src, dst):
        return [f"v_lshlrev_b32 v{dst}, 16, v{src}", f"v_and_b32 v{dst+1}, 0xffff0000, v{src}",
                f"v_lshlrev_b32 v{dst+2}, 16, v{src+1}", f"v_and_b32 v{dst+3}, 0xffff0000, v{src+1}"]
    def g1_epilogue(n):
        acc = ACC[n % 2]
        L = [f"s_lshr_b32 s63, s{50+n}, 1", f"s_lshl_b32 s63, s63, 12", f"s_and_b32 s62, s{50+n}, 1",
             f"s_lshl_b32 s62, s62, 3", f"s_add_u32 s62, s62, s63", f"v_add_u32 v{TMP}, s62, v11"]
        for tt in range(4):
            for r in range(4):
                L.append(f"v_mul_f32 v{acc+4*tt+r}, v{acc+4*tt+r}, abs(v{acc+4*tt+r})")
            L.append(f"v_cvt_pk_bf16_f32 v{acc+4*tt}, v{acc+4*tt}, v{acc+4*tt+1}")
            L.append(f"v_cvt_pk_bf16_f32 v{acc+4*tt+1}, v{acc+4*tt+2}, v{acc+4*tt+3}")
            L.append(f"v_pk_max_i16 v{acc+4*tt}, v{acc+4*tt}, 0")
            L.append(f"v_pk_max_i16 v{acc+4*tt+1}, v{acc+4*tt+1}, 0")
            L.append(f"ds_write_b64 v{TMP}, {vr(acc+4*tt,2)} offset:{1024*tt}")
        return L
    def g2_epilogue(n):
        acc = ACC[(9 + n) % 2]
        L = [f"s_lshl_b32 s62, s{64+n}, 16", f"s_add_u32 s62, s62, s79"]
        for hf in range(2):
            for tt in (2 * hf, 2 * hf + 1):
                L.append(f"v_cvt_pk_bf16_f32 v{TMP+2*tt}, v{acc+4*tt}, v{acc+4*tt+1}")
                L.append(f"v_cvt_pk_bf16_f32 v{TMP+2*tt+1}, v{acc+4*tt+2}, v{acc+4*tt+3}")
            L.append(("vm", "st", f"buffer_store_dwordx4 {vr(TMP+4*hf)}, v5, s[8:11], s62 offen offset:{1024*hf}{Opt.PST}"))
        return L
    def fetch(n, lz, track=True):
        L = [f"s_lshl_b32 s63, s{64+8-n}, 11", "s_add_u32 s63, s63, s84"]
        for hf in range(2):
            s_ = f"buffer_load_dwordx4 {vr(lz+4*hf)}, v5, s[8:11], s63 offen offset:{1024*hf} sc1"
            L.append(("vm", ("P", n), s_) if track else s_)
        return L
    vC = 14
    def check(regs, bit):
        L = [f"v_max3_i32 v{vC}, v{regs[0]}, v{regs[1]}, v{regs[2]}"]
        k = 3
        while k + 1 < len(regs):
            L.append(f"v_max3_i32 v{vC}, v{vC}, v{regs[k]}, v{regs[k+1]}"); k += 2
        if k < len(regs):
            L.append(f"v_max_i32 v{vC}, v{vC}, v{regs[k]}")
        L.append(f"v_cmp_eq_i32 vcc, {POISON}, v{vC}")
        L.append("v_nop"); L.append("v_nop")
        L += ["s_cmp_eq_u64 vcc, 0", "s_cselect_b32 s86, s75, 0", "s_cselect_b32 s87, s76, 0",
              f"s_cselect_b32 s62, {1 << bit}, 0", "s_andn2_b32 s74, s74, s62"]
        return L
    def accum(lz, dst, n):
        L = []
        for q in range(n):
            L.append(f"v_dot2_f32_bf16 v{dst+2*q}, v{lz+q}, s86, v{dst+2*q}")
            L.append(f"v_dot2_f32_bf16 v{dst+2*q+1}, v{lz+q}, s87, v{dst+2*q+1}")
        return L
    def accum2(lz, dst, n):
        L = []
        for q in range(n):
            t_ = 10
            L += [f"v_lshlrev_b32 v{t_}, 16, v{lz+q}", f"v_and_b32 v{t_+1}, 0xffff0000, v{lz+q}",
                  f"v_fmac_f32 v{dst+2*q}, s87, v{t_}", f"v_fmac_f32 v{dst+2*q+1}, s87, v{t_+1}"]
        return L
    def take(n, lz, track=True, shadow=False):
        return ([("wait", ("P", n))] if track else []) + check(list(range(lz, lz + 8)), n) + (accum2 if shadow else accum)(lz, ACCP, 8)
    LZs = {1: slot(304), 2: LZ, 3: slot(288), 4: slot(296), 5: slot(298), 6: slot(300), 7: slot(302)}
    def dfetch(n):
        L = [f"s_lshl_b32 s63, s{64+8-n}, 11", "s_add_u32 s63, s63, s84", f"s_add_u32 s30, s31, {2048*(n-1)}", "s_mov_b32 m0, s30", "s_nop 0"]
        for hf in range(2):
            L.append(("vm", ("P", n), f"buffer_load_dwordx4 v5, s[8:11], s63 offen offset:{1024*hf} sc1 lds"))
        return L
    def dfetch_sh():
        L = ["s_cmp_eq_u32 s80, 0", "s_cbranch_scc1 K3_nosh0"]
        for k in range(8):
            L += [f"s_add_u32 s63, s85, {2048*k}", f"s_add_u32 s30, s31, {10240+1024*k}", "s_mov_b32 m0, s30", "s_nop 0",
                  "buffer_load_dwordx4 v5, s[8:11], s63 offen sc1 lds"]
        return L + [("label", "K3_nosh0")]
    def lread(n, lz):
        return [("wait", ("P", n))] + [f"ds_read_b128 {vr(lz+4*hf)}, v12 offset:{2048*(n-1)+1024*hf}" for hf in range(2)]
    def ltake(n, lz):
        return lread(n, lz) + [None] * 4 + ["s_waitcnt lgkmcnt(0)"] + take(n, lz, False, True)
    SH = slot(306)
    SX = slot(290)
    A8 = SX + 8
    def fetch_share(track=True):
        L = []
        for n in range(8):
            L += [f"s_add_u32 s63, s85, {2048*n}", f"buffer_load_dwordx4 {vr(SH+4*n)}, v5, s[8:11], s63 offen sc1"]
        return L

    a.waitvm(("b1", 1))
    E(unpack(b1reg(0), BIAS) + unpack(b1reg(1), BIAS + 4))
    def rdB(f, lo, hi):
        a(f"ds_read_b128 {bfrag(f)}, v{lo if f < 36 else hi} offset:{(f%36)*1024}")
    def rdX(f):
        a(f"ds_read2st64_b64 {bfrag(f)}, v{TMP+7} offset0:{2*f} offset1:{2*f+1}")
    seq = []
    for kk in range(12): seq += [kk, 18 + kk]
    seq += list(range(12, 18)) + list(range(30, NF))
    pend = []
    post = {}
    def addpost(i, L): post.setdefault(i, []).extend(L)
    for kk in range(12):
        addpost(kk, dmax(kk + 6) + load(kk + 3)); addpost(18 + kk, load(18 + kk + 3))
    for kk in range(9, 12):
        addpost(18 + kk, load(kk + 6))
    for kk in range(12, 15):
        addpost(kk, load(18 + kk + 3))
    nxt = 36
    LA0, CH_ = Opt.LA0, Opt.CHAIN
    consumed = set()
    for pos, fr in enumerate(seq):
        consumed.add(fr)
        if pos < 36 - LA0: continue
        depth = min(RING - CH_ + 1, Opt.LAM, LA0 + max(0, pos - 36) // Opt.LAG)
        target = min(NF, pos + 1 + depth)
        k_ = 0
        while nxt < target and k_ < 2:
            old = nxt - RING
            ok = old in consumed and (old < 36 or (old - old % CH_ + CH_ - 1) in consumed)
            if not ok: break
            addpost(fr, load(nxt)); nxt += 1; k_ += 1
    assert nxt == NF, nxt
    for n in range(2, 9):
        addpost(18 + n, ldb1(n))
    addpost(9 * 18 + 2, [("vm", "b2", f"buffer_load_dwordx2 v[14:15], v12, s[16:19], s82 offen"),
                         "s_lshl_b32 s62, s28, 13", "s_add_u32 s62, s62, s78",
                         "v_lshrrev_b32 v2, 3, v3", "v_lshlrev_b32 v2, 8, v2", "v_lshl_add_u32 v2, v4, 6, v2",
                         "v_and_b32 v10, 7, v3", "v_lshl_add_u32 v2, v10, 3, v2"] +
                        [("vm", "hr", f"buffer_load_dwordx2 {vr(LZ+2*tt,2)}, v2, s[8:11], s62 offen offset:{512*tt}") for tt in range(4)])
    addpost(13 * 18, ["s_mul_i32 s31, s3, 18432", "v_add_u32 v12, s31, v5"])
    addpost(13 * 18 + 16, dfetch_sh())
    for n in range(1, 6):
        addpost((12 + n) * 18 + 16, dfetch(n))
    addpost(16 * 18 + 15, ["v_lshlrev_b32 v3, 3, v4", "s_add_u32 s62, s78, s73", f"s_add_u32 s62, s62, {8*8192}",
                          ("vm", "sh0", f"buffer_load_dwordx2 {vr(SX,2)}, v2, s[8:11], s62 offen"),
                          ("vm", "sh0", f"buffer_load_dwordx2 {vr(SX+2,2)}, v2, s[8:11], s62 offen offset:512"),
                          ("vm", "sh0", f"buffer_load_dwordx2 {vr(SX+4,2)}, v3, s[16:19], s83 offen")])
    def take_share():
        L = check(list(range(SH, SH + 32)), 8)
        for n in range(8):
            L += accum(SH + 4 * n, A8, 4)
        return L
    for i in seq:
        t, kk = divmod(i, 18)
        extra = ""
        if t == 0:
            if kk % 3 == 0:
                a.waitvm(("X", kk + 2))
                if kk == 0: a.stamp(1)
                a("s_barrier")
                if kk == 0: a.stamp(2)
                if kk == 12: a.stamp(3)
                for f in range(4 * kk, 4 * kk + 12):
                    rdX(f)
            extra = f" lgkmcnt({8 - 4 * (kk % 3)})"
        if t == 9:
            if kk == 0:
                a("s_nop 7")
                E(g1_epilogue(8))
                a("s_waitcnt lgkmcnt(0)")
                a.stamp(4)
                a("s_barrier")
                for f in range(12):
                    rdB(f, 11, 13)
            elif 4 * kk + 8 < 72:
                for f in range(4 * kk + 8, 4 * kk + 12):
                    rdB(f, 11, 13)
            rem = min(72, 4 * kk + 12) - (4 * kk + 4)
            extra = f" lgkmcnt({rem})"
        if Opt.DBG and kk == 0 and t not in (0, 1, 9):
            a("s_memtime s[100:101]")
        if Opt.DBG and kk == 9 and t not in (0, 1, 9):
            a("s_waitcnt lgkmcnt(0)")
            a(f"v_writelane_b32 v1, s100, {t}")
        CH = Opt.CHAIN
        chain = CH > 1 and t >= 2 and t != 9
        if Opt.EXP in ("halfld", "nold3") and ("A", i + (CH - 1 if chain else 0)) not in a.vmq:
            if extra: a("s_waitcnt" + extra)
        elif not chain: a.waitvm(("A", i), extra)
        elif kk % CH == 0: a.waitvm(("A", i + CH - 1), extra)
        acc = ACC[t % 2]
        rate = 1
        if i == 30:
            pend = [None] + g1_epilogue(0) + [("wait", ("b1", 2))] + unpack(b1reg(2), BIAS)
        if t == 1: rate = 2
        if kk == 1 and t >= 2:
            assert not pend
            if t <= 8: pend += g1_epilogue(t - 1)
            if t >= 10: pend += g2_epilogue(t - 10)
            if t < 8: pend += unpack(b1reg(t + 1), BIAS + 4 * ((t + 1) % 2))
            if t == 11:
                pend += [("wait", "hr")] + unpack(14, 10)
                for q in range(0, 8, 2):
                    pend += unpack(LZ + q, ACCP + 2 * q)
            if t == 12:
                pend += [f"v_add_f32 v{ACCP+q}, v{ACCP+q}, v{10+q%4}" for q in range(16)]
            if t == 16: pend += ltake(1, LZ)
            if t == 17:
                pend += ltake(2, LZ) + [None] * 8 + ltake(3, LZs[3])
        if t >= 16: rate = 2 if kk >= 5 else 1
        for tt in range(4):
            k2, t2 = kk, tt
            if chain:
                e_ = (kk % CH) * 4 + tt
                k2, t2 = kk - kk % CH + e_ % CH, e_ // CH
            if k2 == 0:
                c = vr(BIAS + 4 * (t % 2)) if t < 9 else "0"
            else:
                c = vr(acc + 4 * t2)
            if Opt.EXP == "halfmm" and k2 % 2 == 1: a("s_nop 0")
            else: a(f"v_mfma_f32_16x16x32_bf16 {vr(acc+4*t2)}, {vr(slot(18*t+k2))}, {bfrag(k2*4+t2)}, {c}")
            if (kk >= 2 and (tt < 3 or rate == 2)) or (kk == 1 and tt == 3 and t >= 10):
                for _ in range(rate):
                    while pend:
                        s = pend.pop(0)
                        if s is None: break
                        a.emit(s)
                        if not (isinstance(s, str) and s.startswith("s_")): break
        if kk == 17 and 1 <= t < 17:
            assert not pend, (t, pend)
        E(post.get(i, []))
    accO = ACC[17 % 2]
    a.stamp(5)
    for n in (6, 7):
        E(fetch(n, LZs[n]))
    E([x for x in pend if x is not None])
    a("v_and_b32 v3, 15, v0")
    a(f"v_mul_u32_u24 v10, {ROW}, v3")
    a("v_lshl_add_u32 v10, v4, 3, v10")
    a(f"s_mul_i32 s30, s29, {64*ROW}")
    a("s_add_u32 s82, s30, s82")
    a("s_and_b32 s62, s28, 1")
    a(f"s_mul_i32 s62, s62, {32*ROW}")
    a("s_add_u32 s62, s62, s30")
    a("s_add_u32 s83, s83, s62")
    E(lread(4, LZs[4]))
    a("s_cmp_eq_u32 s80, 0")
    a("s_cbranch_scc1 K3_nosh1")
    for k in range(8):
        a(f"ds_read_b128 {vr(SH+4*k)}, v12 offset:{10240+1024*k}")
    E(unpack(SX + 4, A8) + unpack(SX + 4, A8 + 4))
    for q in range(4):
        a(f"v_dot2_f32_bf16 v{A8+2*q}, v{SX+q}, s75, v{A8+2*q}")
        a(f"v_dot2_f32_bf16 v{A8+2*q+1}, v{SX+q}, s76, v{A8+2*q+1}")
    a("s_waitcnt lgkmcnt(0)")
    E(take_share())
    a.label("K3_nosh1")
    a("s_waitcnt lgkmcnt(0)")
    E(take(4, LZs[4], False))
    E(lread(5, LZs[5]))
    E(take(6, LZs[6]))
    a("s_waitcnt lgkmcnt(0)")
    E(take(5, LZs[5], False))
    E(take(7, LZs[7]))
    a.stamp(6)
    a(f"s_mov_b32 s88, {Opt.PBOUND}")
    LZt = LZs
    a.label("K3_poll")
    a("s_cmp_eq_u32 s74, 0")
    a("s_cbranch_scc1 K3_done")
    a("s_sub_u32 s88, s88, 1")
    a("s_cmp_eq_u32 s88, 0")
    a("s_cbranch_scc1 K3_done")
    a("s_mov_b32 s31, s74")
    for n in range(1, 9):
        a(f"s_bitcmp0_b32 s31, {n}")
        a(f"s_cbranch_scc1 K3_pf{n}")
        E(fetch(n, LZt[n], False) if n < 8 else fetch_share(False))
        a.label(f"K3_pf{n}")
    a("s_waitcnt vmcnt(0)")
    for n in range(1, 9):
        a(f"s_bitcmp0_b32 s31, {n}")
        a(f"s_cbranch_scc1 K3_pt{n}")
        E(take(n, LZt[n], False) if n < 8 else take_share())
        a.label(f"K3_pt{n}")
    a("s_branch K3_poll")
    a.label("K3_done")
    a.stamp(7)
    a("s_nop 1")
    for tt in range(4):
        for q in range(2):
            a(f"v_pk_add_f32 {vr(accO+4*tt+2*q,2)}, {vr(accO+4*tt+2*q,2)}, {vr(ACCP+4*tt+2*q,2)}")
        a(f"v_cvt_pk_bf16_f32 v{TMP+2*tt}, v{accO+4*tt}, v{accO+4*tt+1}")
        a(f"v_cvt_pk_bf16_f32 v{TMP+2*tt+1}, v{accO+4*tt+2}, v{accO+4*tt+3}")
        a(f"buffer_store_dwordx2 {vr(TMP+2*tt,2)}, v10, s[20:23], s82 offen")
        a(f"s_add_u32 s82, s82, {16*ROW}")
    a("s_cmp_eq_u32 s80, 0")
    a("s_cbranch_scc1 K3_nosh2")
    for tt in range(2):
        a(f"v_cvt_pk_bf16_f32 v{LZ+2*tt}, v{A8+4*tt}, v{A8+4*tt+1}")
        a(f"v_cvt_pk_bf16_f32 v{LZ+2*tt+1}, v{A8+4*tt+2}, v{A8+4*tt+3}")
        a(f"buffer_store_dwordx2 {vr(LZ+2*tt,2)}, v10, s[20:23], s83 offen")
        a(f"s_add_u32 s83, s83, {16*ROW}")
    a.label("K3_nosh2")
    if Opt.DBG:
        a("s_getreg_b32 s100, hwreg(HW_REG_XCC_ID)")
        a("v_writelane_b32 v1, s100, 0")
        a("v_writelane_b32 v1, s88, 1")
        a("s_lshl_b32 s100, s2, 2")
        a("s_add_u32 s100, s100, s3")
        a("s_lshl_b32 s100, s100, 8")
        a(f"s_add_u32 s100, s100, {WS_DBG + 6 * 4096 * 64}")
        a("v_lshrrev_b32 v2, 2, v5")
        a("buffer_store_dword v1, v2, s[8:11], s100 offen")
    a.end(4, 8, 4)
    a.label("K3_end")
    a("s_endpgm")
    return K, desc(K, 512, 256), (256, 256, LDS)
```

```python
import sys, math, struct

NAME = "sequential_preLN__grouped_kv_mqa__dense_activation_squared_relu__prompt"

ROW = 1152
KVB = 2304
K2OFF = 64 * KVB
KV_BYTES = K2OFF + 16 * 512
WS_Q    = 0
WS_XN   = WS_Q + 2048 * ROW
WS_KV   = WS_XN + 2048 * ROW
WS_FLAG = WS_KV + 160 * 1024
WS_WOF  = WS_FLAG + 128 * 128
WOF_BYTES = 36 * 18 * 1024
WS_W1F  = WS_WOF + WOF_BYTES
WS_W2F  = WS_W1F + 288 * 18 * 1024
WS_PART = WS_W2F + 288 * 18 * 1024
WS_HRES = WS_PART + 32 * 36 * 8 * 2048
WS_DBG  = WS_HRES + 32 * 36 * 2048
POISON  = 0x7f7f7f7f
WS_END  = WS_DBG + 8 * 4096 * 64 + 2048 * 256
WS_SIZE = 0x10000000
OOB = 0x7ff00000
class Opt:
    WST = ''
    PRI = 0
    WP = 0
    WF = 0
    SK4 = True
    NONOP = True
    WPOS = (6, 13, 14, 20, 21)
    PX = 3
    FUSE = False
    W8 = False
    W4 = False
    IPF = 0
    WBL = 0
    LAM = 22
    LA0 = 12
    LAG = 4
    ABL = ''
    STEP = True
    CHAIN = 2
    XNT = ''
    QNT = ''
    WNT = ''
    K1BAR = 3
    PST = ' sc1'
    PBOUND = '0x8000'
    EXP = ''
    CPF = True
    XST = ''
    FOLD = True
    DBG = False
assert WS_END < WS_SIZE

QSCALE = (18 ** -0.5) * math.log2(math.e)
DMAP = [[0, 1, 2, 3, 8, 9, 10, 11, 16], [4, 5, 6, 7, 12, 13, 14, 15, 17]]

def f32bits(x):
    return "0x%08x" % struct.unpack("<I", struct.pack("<f", x))[0]

class Asm:
    def __init__(self):
        self.L = []
        self.vmq = []
    def __call__(self, s):
        for ln in s.split("\n"):
            self.L.append("    " + ln.strip())
    def label(self, s):
        self.L.append(s + ":")
    def raw(self, s):
        self.L.append(s)
    def vm(self, tag, s):
        self.vmq.append(tag)
        self(s)
    def vmn(self, tag):
        idx = len(self.vmq) - 1 - self.vmq[::-1].index(tag)
        n = len(self.vmq) - 1 - idx
        return min(n, 63)
    def waitvm(self, tag, extra=""):
        self(f"s_waitcnt vmcnt({self.vmn(tag)}){extra}")
    def emit(self, it):
        if isinstance(it, str):
            self(it)
        elif it[0] == "vm":
            self.vm(it[1], it[2])
        elif it[0] == "wait":
            self.waitvm(it[1], it[2] if len(it) > 2 else "")
        elif it[0] == "label":
            self.label(it[1])
        elif it[0] == "stamp":
            self.stamp(it[1])
        else:
            raise ValueError(it)
    def srd(self, d, p, size, off=0):
        if off:
            self(f"s_add_u32 s{d}, s{p}, {off}")
            self(f"s_addc_u32 s{d+1}, s{p+1}, 0")
        else:
            self(f"s_mov_b32 s{d}, s{p}")
            self(f"s_mov_b32 s{d+1}, s{p+1}")
        self(f"s_mov_b32 s{d+2}, {size}")
        self(f"s_mov_b32 s{d+3}, 0x00020000")
    smap = None
    def stamp(self, i):
        if not Opt.DBG: return
        if self.smap is not None and i not in (0, 8):
            if i not in self.smap: return
            i = self.smap[i]
        self("s_memrealtime s[100:101]")
        self("s_waitcnt lgkmcnt(0)")
        self(f"s_mov_b32 s{89+i}, s100")
    def stampc(self, i):
        if not Opt.DBG: return
        self("s_memtime s[100:101]")
        self("s_waitcnt lgkmcnt(0)")
        self(f"s_mov_b32 s{89+i}, s100")
    def end(self, kid, srd, nwaves, n=10):
        if Opt.DBG:
            self.stamp(8)
            self.stampc(9)
            self("s_mov_b64 exec, 1")
            self(f"s_mul_i32 s100, s2, {nwaves}")
            self("s_add_u32 s100, s100, s3")
            self("s_lshl_b32 s100, s100, 6")
            self(f"s_add_u32 s100, s100, {WS_DBG + kid * 4096 * 64}")
            self("v_mov_b32 v1, 0")
            for i in range(n + 1):
                self(f"v_mov_b32 v2, s{89+i}")
                self(f"buffer_store_dword v2, v1, s[{srd}:{srd+3}], s100 offen offset:{4*i}")
        self("s_endpgm")
    def codepf(self, start, end, sidx, vlane16, vdst, sp, tag="cpf"):
        if not Opt.CPF: return
        self.n_pf = getattr(self, "n_pf", 0) + 1
        lb = f"Lpf{self.n_pf}"
        self(f"s_getpc_b64 s[{sp}:{sp+1}]")
        self.label(lb)
        self(f"s_lshl_b32 s{sp+2}, s{sidx}, 10")
        self(f"s_min_u32 s{sp+2}, s{sp+2}, {end}-{start}-1024")
        self(f"s_add_u32 s{sp}, s{sp}, s{sp+2}")
        self(f"s_addc_u32 s{sp+1}, s{sp+1}, 0")
        self(f"s_add_u32 s{sp}, s{sp}, {start}-{lb}")
        self(f"s_addc_u32 s{sp+1}, s{sp+1}, ({start}-{lb})>>32")
        self.vm(tag, f"global_load_dwordx4 v[{vdst}:{vdst+3}], v{vlane16}, s[{sp}:{sp+1}]")
    def guard(self, tag):
        self("s_cmp_lt_u32 s2, 256")
        self(f"s_cbranch_scc1 {tag}_run")
        self("s_endpgm")
        if Opt.IPF:
            self.label(f"{tag}_pad0")
            self("s_setpc_b64 s[100:101]")
        self.label(f"{tag}_run")
    def pad(self, tag, n):
        if n >= Opt.IPF: return
        self(f"s_branch {tag}_ov{n}")
        self.label(f"{tag}_pad{n}")
        self("s_setpc_b64 s[100:101]")
        self.label(f"{tag}_ov{n}")
    def touch(self, lbl):
        return [f"s_call_b64 s[100:101], {lbl}_pad{n}" for n in range(Opt.IPF)]
    def begin(self, k):
        self.vmq = []
        self.raw(f".globl {k}\n.p2align 8\n.type {k},@function\n{k}:")
    def text(self):
        return "\n".join(self.L) + "\n"

def vr(b, n=4):
    return f"v[{b}:{b+n-1}]"
def ar(b, n=4):
    return f"a[{b}:{b+n-1}]"

def desc(k, nv, acc=None, ns=102):
    if acc is None:
        acc = min(256, (nv + 3) // 4 * 4)
    return f""".p2align 6
.amdhsa_kernel {k}
  .amdhsa_next_free_vgpr {nv}
  .amdhsa_next_free_sgpr {ns}
  .amdhsa_accum_offset {acc}
  .amdhsa_group_segment_fixed_size 0
  .amdhsa_kernarg_size 104
  .amdhsa_user_sgpr_count 2
  .amdhsa_user_sgpr_kernarg_segment_ptr 1
  .amdhsa_system_sgpr_workgroup_id_x 1
.end_amdhsa_kernel
"""

A_X, A_WQ, A_WK, A_WV, A_WO, A_BX, A_W1, A_B1, A_W2, A_B2, A_OUT, A_DBG, A_WS = [8 * i for i in range(13)]

def weave(main, side):
    out = []
    for i, m in enumerate(main):
        out += side.get(i, [])
        out.append(m)
    out += side.get(len(main), [])
    return out

def cross_g_sum(a, v, t):
    a(f"v_mov_b32 v{t}, v{v}")
    a("s_nop 1")
    a(f"v_permlane16_swap_b32 v{v}, v{t}")
    a("s_nop 1")
    a(f"v_add_f32 v{v}, v{v}, v{t}")
    a(f"v_mov_b32 v{t}, v{v}")
    a("s_nop 1")
    a(f"v_permlane32_swap_b32 v{v}, v{t}")
    a("s_nop 1")
    a(f"v_add_f32 v{v}, v{v}, v{t}")

def build(kernels, out):
    a = Asm()
    metas = [k(a) for k in kernels]
    hdr = open("cdna_kernels/" + NAME + ".s.ref").read().split("\n")
    top = []
    for ln in hdr:
        if ln.startswith(";") and "@launch" not in ln and "Override launch" not in ln and "grid=ceil" not in ln:
            top.append(ln)
        if not ln.startswith(";"):
            break
    s = "\n".join(top) + "\n"
    for K, d, (g, b, l) in metas:
        s += f"; @launch kernel={K} grid=({g},1,1) block=({b},1,1) lds={l}\n"
    s += '.amdgcn_target "amdgcn-amd-amdhsa--gfx950"\n.text\n'
    s += a.text()
    s += '.section .rodata,"a"\n'
    for K, d, _ in metas:
        s += d
    open(out, "w").write(s)
```

```python
from common import *
import relayout as RL
WIMG = 0
KVIMG = 576 * 144
XIMG = KVIMG + 576 * 16
FL = XIMG + 4 * 17 * 1024
LDS = FL + 64

def k1(a):
    K = "k1_kernel"
    a.begin(K)
    a("s_cmp_ge_u32 s2, 256")
    a("s_cbranch_scc1 K1_end")
    a.stamp(0); a.stampc(10)
    a(f"s_load_dwordx4 s[4:7], s[0:1], {A_X}")
    a(f"s_load_dwordx4 s[8:11], s[0:1], {A_WK}")
    a(f"s_load_dwordx2 s[12:13], s[0:1], {A_WS}")
    a(f"s_load_dwordx2 s[52:53], s[0:1], {A_WO}")
    a("v_lshrrev_b32 v1, 6, v0")
    a("v_and_b32 v2, 63, v0")
    a("v_readfirstlane_b32 s3, v1")
    a("v_and_b32 v3, 15, v0")
    a("v_bfe_u32 v4, v0, 4, 2")
    a("s_and_b32 s14, s2, 31")
    a("s_lshr_b32 s15, s2, 5")
    a("s_lshr_b32 s48, s14, 3")
    a("s_lshl_b32 s48, s48, 1")
    a("s_add_u32 s48, s48, s15")
    a("s_cmp_ge_u32 s48, 9")
    a("s_cselect_b32 s49, 9, 0")
    a("s_sub_u32 s48, s48, s49")
    a("s_cmp_lt_u32 s3, 4")
    a("s_cbranch_scc1 K1_compute")
    a("s_sub_u32 s50, s3, 4")
    a("s_lshl_b32 s34, s50, 2")
    a(f"s_add_u32 s34, s34, {FL}")
    a("v_mov_b32 v21, s34")
    a("v_mov_b32 v22, 0")
    a("ds_write_b32 v21, v22")
    a("ds_write_b32 v21, v22 offset:16")
    def pattern(vq, vd, stride, usec):
        if usec:
            a(f"v_mul_u32_u24 v10, 7282, v{vq}")
            a("v_lshrrev_b32 v10, 16, v10")
            a("v_mul_u32_u24 v11, 9, v10")
            a(f"v_sub_u32 v11, v{vq}, v11")
        else:
            a(f"v_mov_b32 v10, v{vq}")
        a("v_and_b32 v12, 1, v10")
        a("v_bfe_u32 v13, v10, 1, 2")
        a("v_lshl_or_b32 v12, v12, 2, v13")
        a("v_and_or_b32 v10, v10, -8, v12")
        a(f"v_mul_u32_u24 v{vd}, {stride}, v10")
        if usec:
            a(f"v_lshl_add_u32 v{vd}, v11, 4, v{vd}")
    a("v_and_b32 v9, 255, v0")
    pattern(9, 6, ROW, True)
    a("v_add_u32 v9, 256, v9")
    pattern(9, 7, ROW, True)
    a("v_add_u32 v9, 512, v2")
    pattern(9, 8, ROW, True)
    pattern(2, 9, 36, False)
    a("s_cmp_eq_u32 s50, 1")
    a("s_cselect_b64 vcc, -1, 0")
    a("v_lshrrev_b32 v5, 2, v2")
    a(f"v_mul_u32_u24 v5, {ROW}, v5")
    a("v_sub_u32 v10, 0, v4")
    a("v_xor_b32 v10, v10, v2")
    a("v_and_b32 v10, 3, v10")
    a("v_lshl_add_u32 v5, v10, 4, v5")
    a("v_cndmask_b32 v8, v8, v9, vcc")
    a("s_mul_i32 s33, s15, 144")
    a("s_lshl_b32 s32, s14, 2")
    a("s_add_u32 s32, s32, s50")
    a(f"s_mul_i32 s32, s32, {16*ROW}")
    a("s_mul_i32 s44, s50, 17408")
    a(f"s_add_u32 s44, s44, {XIMG}")
    a("s_lshl_b32 s35, s50, 10")
    a("s_mov_b32 s42, 0")
    a("s_cmp_lt_u32 s15, 3")
    a("s_cselect_b32 s36, 0, 3")
    a("s_waitcnt lgkmcnt(0)")
    a("s_cselect_b32 s24, s8, s10")
    a("s_cselect_b32 s25, s9, s11")
    a("s_barrier")
    a.srd(16, 4, 2048 * ROW)
    a.srd(20, 6, 576 * ROW)
    a("s_sub_u32 s36, s15, s36")
    a("s_lshl_b32 s37, s36, 4")
    a("s_cmp_ge_u32 s36, 2")
    a("s_cselect_b32 s37, 20, s37")
    a("s_cmp_eq_u32 s50, 1")
    a("s_cselect_b32 s24, s24, s6")
    a("s_cselect_b32 s25, s25, s7")
    a(f"s_cselect_b32 s26, {576*36}, s22")
    a("s_mov_b32 s27, 0x00020000")
    a("s_cselect_b32 s37, s37, s33")
    a(f"s_mov_b32 s41, {64*ROW}")
    a(f"s_cselect_b32 s41, {64*36}, s41")
    a("s_mov_b32 s38, 8192")
    a(f"s_cselect_b32 s38, {KVIMG}, s38")
    a("s_mov_b32 s39, 9216")
    a("s_cselect_b32 s39, 1024, s39")
    a.stamp(1)
    a("s_lshl_b32 s45, s48, 7")
    a("s_mov_b32 s46, 9")
    if Opt.WF: a("s_branch K1_dma")
    a.label("K1_xl")
    a("s_add_u32 s34, s45, s32")
    a("s_mov_b32 m0, s44")
    a("s_add_u32 s40, s44, 960")
    a(f"buffer_load_dwordx4 v5, s[16:19], s34 offen{Opt.XNT} lds")
    a("s_sub_u32 s46, s46, 1")
    a("s_cmp_eq_u32 s46, 0")
    a("s_cbranch_scc1 K1_dma")
    a("s_mov_b32 m0, s40")
    a("s_add_u32 s44, s44, 2048")
    a(f"buffer_load_dwordx4 v5, s[16:19], s34 offen offset:64{Opt.XNT} lds")
    a("s_add_u32 s45, s45, 128")
    a(f"s_cmp_ge_u32 s45, {ROW}")
    a("s_cselect_b32 s45, 0, s45")
    a("s_branch K1_xl")
    a.label("K1_dma")
    a(f"s_mul_i32 s34, s48, {64*ROW}")
    a("s_add_u32 s34, s34, s33")
    a("s_mov_b32 m0, s35")
    a("s_add_u32 s40, s35, 4096")
    a(f"buffer_load_dwordx4 v6, s[20:23], s34 offen{Opt.QNT} lds")
    a("s_mov_b32 m0, s40")
    a("s_add_u32 s35, s35, 9216")
    a(f"buffer_load_dwordx4 v7, s[20:23], s34 offen{Opt.QNT} lds")
    a(f"s_cmp_lg_u32 s42, {Opt.WF}")
    a("s_cbranch_scc1 K1_nxf")
    a(f"v_mov_b32 v22, {Opt.WF + 2}")
    a("s_waitcnt vmcnt(2)")
    a("ds_write_b32 v21, v22 offset:16")
    a("ds_write_b32 v21, v22")
    a.label("K1_nxf")
    a("s_cmp_ge_u32 s50, 2")
    a("s_cbranch_scc1 K1_two")
    a("s_mul_i32 s34, s48, s41")
    a("s_add_u32 s34, s34, s37")
    a("s_mov_b32 m0, s38")
    a("s_add_u32 s38, s38, s39")
    a("buffer_load_dwordx4 v8, s[24:27], s34 offen lds")
    a.label("K1_two")
    a("s_add_u32 s48, s48, 1")
    a("s_cmp_ge_u32 s48, 9")
    a("s_cselect_b32 s48, 0, s48")
    a("s_add_u32 s42, s42, 1")
    if Opt.WF:
        a(f"s_cmp_lt_u32 s42, {Opt.WF}")
        a("s_cbranch_scc1 K1_dma")
        a(f"s_cmp_eq_u32 s42, {Opt.WF}")
        a("s_cbranch_scc1 K1_xl")
    a(f"s_max_u32 s40, s42, {Opt.WF + 2}")
    a("v_mov_b32 v22, s40")
    a("s_cmp_lt_u32 s42, 9")
    a("s_waitcnt vmcnt(4)")
    a("ds_write_b32 v21, v22")
    a("s_cbranch_scc1 K1_dma")
    a.stamp(2)
    a("v_mov_b32 v23, 10")
    a("v_mov_b32 v24, 11")
    a("s_waitcnt vmcnt(2)")
    a("ds_write_b32 v21, v23")
    a("s_waitcnt vmcnt(0)")
    a("ds_write_b32 v21, v24")
    a.stamp(4)
    for x_ in a.touch("K2"): a(x_)
    if Opt.DBG: a.srd(28, 12, WS_SIZE)
    a.end(1, 28, 8)
    a.label("K1_compute")
    X = 64
    RAW = 200
    a(f"v_mul_u32_u24 v5, {ROW}, v3")
    a("v_lshl_add_u32 v5, v4, 4, v5")
    a("s_lshl_b32 s32, s14, 2")
    a("s_add_u32 s32, s32, s3")
    a(f"s_mul_i32 s33, s32, {16*ROW}")
    a("s_lshl_b32 s34, s48, 7")
    a("s_sub_u32 s34, s34, 64")
    a("s_cmp_eq_u32 s48, 0")
    a(f"s_cselect_b32 s34, {ROW-64}, s34")
    a("s_add_u32 s36, s33, s34")
    a("s_waitcnt lgkmcnt(0)")
    a("s_barrier")
    a.srd(16, 4, 2048 * ROW)
    a.srd(28, 12, WS_SIZE)
    a.stamp(1)
    a("s_min_u32 s54, s2, 161")
    RL.params_wo(a, 54, 56, 64, 52)
    RL.voff_src(a, 196, 198, 56)
    RL.voff_dst(a, 197, 198)
    a("s_cmp_lt_u32 s2, 162")
    a("s_cselect_b32 s55, s3, 0")
    a(f"buffer_load_dwordx4 {vr(X+68)}, v5, s[16:19], s36 offen")
    a("v_lshrrev_b32 v7, 2, v3")
    a("v_sub_u32 v7, 0, v7")
    a("v_xor_b32 v7, v7, v4")
    a("v_and_b32 v7, 3, v7")
    a("v_lshlrev_b32 v7, 4, v7")
    a("v_lshl_add_u32 v7, v3, 6, v7")
    a("s_mul_i32 s35, s3, 17408")
    a(f"s_add_u32 s35, s35, {XIMG}")
    a("v_add_u32 v7, s35, v7")
    a("v_bfe_u32 v5, v0, 2, 2")
    a("v_and_b32 v6, 3, v0")
    a("v_lshlrev_b32 v12, 3, v4")
    a("v_lshl_add_u32 v12, v5, 1, v12")
    a("v_mul_u32_u24 v8, 144, v12")
    a("v_lshl_add_u32 v8, v6, 3, v8")
    TA = 232
    for t in range(4):
        a(f"s_add_u32 s{76+t}, s3, {t}")
        a(f"s_and_b32 s{76+t}, s{76+t}, 3")
        a(f"s_lshl_b32 s80, s{76+t}, 5")
        a(f"v_add_u32 v{TA+t}, s80, v8")
        a(f"v_add_u32 v{TA+4+t}, {9*4608}, v{TA+t}")
    a("v_lshlrev_b32 v10, 4, v12")
    a("v_lshl_add_u32 v10, v6, 3, v10")
    a(f"v_add_u32 v10, {KVIMG-16}, v10")
    a("v_add_u32 v11, 16, v10")
    a("v_add_u32 v15, 128, v8")
    a("v_cmp_gt_u32 vcc, 2, v6")
    a("v_mov_b32 v14, 512")
    a("v_mov_b32 v5, 4608")
    a("v_cndmask_b32 v10, v10, v15, vcc")
    a("v_add_u32 v15, 144, v15")
    a("v_cndmask_b32 v14, v14, v5, vcc")
    a("v_cndmask_b32 v11, v11, v15, vcc")
    ONES = 56
    for i in range(4):
        a(f"v_mov_b32 v{ONES+i}, 0x3f803f80")
    ACC, CSA, SM, GR, FT = 16, 36, 60, 188, 192
    QA = 176
    a(f"v_mov_b32 v5, {FL}")
    a("s_mov_b32 s43, 0")
    W = 136
    def need(blk):
        a.label(f"K1_w{blk+1}")
        a(f"s_cmp_ge_u32 s43, {blk+3}")
        a(f"s_cbranch_scc1 K1_ok{blk+1}")
        a(f"ds_read_b128 {vr(FT)}, v5")
        a("s_waitcnt lgkmcnt(0)")
        a(f"v_min3_u32 v{FT}, v{FT}, v{FT+1}, v{FT+2}")
        a(f"v_min_u32 v{FT}, v{FT}, v{FT+3}")
        a("s_nop 0")
        a(f"v_readfirstlane_b32 s43, v{FT}")
        a(f"s_branch K1_w{blk+1}")
        a.label(f"K1_ok{blk+1}")
    a("v_and_b32 v16, 7, v3")
    a("v_lshrrev_b32 v17, 3, v3")
    a("v_mul_u32_u24 v17, 9216, v17")
    a("v_lshl_add_u32 v18, v16, 4, v17")
    a("v_lshl_add_u32 v19, v16, 2, v17")
    a("v_add_u32 v19, 1024, v19")
    a("v_lshlrev_b32 v20, 2, v4")
    for t in range(5):
        for q in range(2):
            d = QA + 2 * t + q
            if t < 4:
                a(f"s_lshl_b32 s80, s{76+t}, 4")
                a(f"s_add_u32 s80, s80, {2*q}")
                a("v_add_u32 v21, s80, v20")
            else:
                a(f"v_add_u32 v21, {16*t+2*q}, v20")
            a("v_mul_u32_u24 v22, 57, v21")
            a("v_lshrrev_b32 v22, 10, v22")
            a("v_mad_i32_i24 v21, v22, -16, v21")
            a("v_mad_i32_i24 v21, v22, -2, v21")
            a("v_cmp_gt_u32 vcc, 16, v21")
            a("v_lshrrev_b32 v23, 3, v21")
            a(f"v_lshl_add_u32 v{d}, v23, 9, v18")
            a(f"v_lshl_add_u32 v{d}, v22, 7, v{d}")
            a("v_and_b32 v23, 7, v21")
            a(f"v_lshl_add_u32 v{d}, v23, 1, v{d}")
            a("v_lshl_add_u32 v23, v22, 5, v19")
            a(f"v_cndmask_b32 v{d}, v23, v{d}, vcc")
    def rd1(kk, t, h):
        wb = W + 20 * (kk & 1)
        o = (kk % 9) * 4608
        if t < 4:
            a(f"ds_read_b64_tr_b16 {vr(wb+4*t+2*h,2)}, v{TA + t + (4 if kk >= 9 else 0)} offset:{o+144*h}")
        else:
            a(f"ds_read_b64_tr_b16 {vr(wb+16+2*h,2)}, v{10+h}")
            a(f"v_add_u32 v{10+h}, v{10+h}, v14")
    a.stamp(2)
    a("s_lshl_b32 s80, s3, 2")
    a("v_add_u32 v6, s80, v5")
    a.label("K1_xw")
    a(f"ds_read_b32 v{FT}, v6 offset:16")
    a("s_waitcnt lgkmcnt(0)")
    a(f"v_readfirstlane_b32 s80, v{FT}")
    a("s_cmp_eq_u32 s80, 0")
    a("s_cbranch_scc1 K1_xw")
    a.stamp(3)
    for n in range(17):
        a(f"ds_read_b128 {vr(X+4*n)}, v7 offset:{1024*n}")
    a("s_waitcnt vmcnt(0)")
    a("s_cmp_lg_u32 s55, 3")
    a("s_cbranch_scc1 K1_nowo")
    for it in RL.loads(RAW, 196, 56, 64, "raw"):
        a.emit(it)
    a.label("K1_nowo")
    a("v_lshlrev_b32 v199, 4, v2")
    a("s_lshr_b32 s70, s2, 3")
    a("s_lshl_b32 s71, s3, 5")
    a("s_add_u32 s70, s70, s71")
    a("s_cmp_ge_u32 s3, 3")
    a("s_cbranch_scc1 K1_nopf")
    a.codepf("k1_kernel", "K3_end", 70, 199, RAW, 72)
    a.label("K1_nopf")
    for n in range(18):
        if n < 17 and n % 4 == 0: a(f"s_waitcnt lgkmcnt({max(17 - n - 4, 0)})")
        z = n == 0
        a(f"v_mfma_f32_16x16x32_bf16 {vr(SM)}, {vr(ONES)}, {vr(X+4*n)}, {'0' if z else vr(SM)}")
        a(f"v_mfma_f32_16x16x32_bf16 {vr(GR)}, {vr(X+4*n)}, {vr(X+4*n)}, {'0' if z else vr(GR)}")
    vMean, vRstd = 12, 13
    a("v_and_b32 v16, 3, v3")
    a("v_lshrrev_b32 v17, 2, v3")
    a("v_cmp_eq_u32 vcc, 1, v16")
    a("v_cmp_eq_u32 s[44:45], 2, v16")
    a("v_cmp_eq_u32 s[46:47], 3, v16")
    a(f"v_lshlrev_b32 v6, 4, v4")
    a(f"v_add_u32 v6, {XIMG}, v6")
    a("s_nop 1")
    a(f"v_mul_f32 v{vMean}, {f32bits(-1.0/576)}, v{SM}")
    a(f"v_cndmask_b32 v{GR}, v{GR}, v{GR+1}, vcc")
    a("v_cmp_eq_u32 vcc, v17, v4")
    a(f"v_cndmask_b32_e64 v{GR}, v{GR}, v{GR+2}, s[44:45]")
    a(f"v_cndmask_b32_e64 v{GR}, v{GR}, v{GR+3}, s[46:47]")
    a(f"v_cndmask_b32 v{GR}, 0, v{GR}, vcc")
    cross_g_sum(a, GR, GR + 1)
    a(f"v_mov_b32 v{GR+1}, {f32bits(1e-5)}")
    a(f"v_fmac_f32 v{GR+1}, {f32bits(1.0/576)}, v{GR}")
    a(f"v_fma_f32 v{GR+1}, -v{vMean}, v{vMean}, v{GR+1}")
    a(f"v_max_f32 v{GR+1}, {f32bits(1e-5)}, v{GR+1}")
    a(f"v_rsq_f32 v{vRstd}, v{GR+1}")
    for t in range(4):
        a(f"s_mul_i32 s80, s{76+t}, 17408")
        a(f"v_add_u32 v{SM+t}, s80, v6")
    need(0)
    for t in range(5):
        rd1(0, t, 0); rd1(0, t, 1)
    for kk in range(18):
        wb = W + 20 * (kk & 1)
        last = kk == 17
        if kk % 2 == 1 and not last:
            need((kk + 1) // 2)
        z = kk == 0
        for t in range(5):
            a(f"s_waitcnt lgkmcnt({8 - 2 * t if last else 8})")
            if t in (0, 4):
                a(f"v_mfma_f32_16x16x32_bf16 {vr(CSA+4*t)}, {vr(wb+4*t)}, {vr(ONES)}, {'0' if z else vr(CSA+4*t)}")
                if not last: rd1(kk + 1, t, 0)
            a(f"v_mfma_f32_16x16x32_bf16 {vr(ACC+4*t)}, {vr(wb+4*t)}, {vr(X+4*kk)}, {'0' if z else vr(ACC+4*t)}")
            if not last:
                if t not in (0, 4): rd1(kk + 1, t, 0)
                rd1(kk + 1, t, 1)
        if kk == 8: a.stamp(4)
        if kk == 6:
            a("s_cmp_lg_u32 s55, 3")
            a("s_cbranch_scc1 K1_aend")
            a("s_mov_b32 s68, 0x05040100")
            a("s_mov_b32 s69, 0x07060302")
            a("s_waitcnt vmcnt(0)")
            for it in RL.perms_stores(RAW, [216, 220, 224, 228], 197, 56, 28, 68, 69, "st"):
                a.emit(it)
            a.label("K1_aend")
    a.stamp(5)
    a(f"ds_write_b128 v{SM}, {vr(CSA)}")
    a("v_cmp_gt_u32 vcc, 2, v4")
    a("s_waitcnt lgkmcnt(0)")
    a("s_barrier")
    for t in range(1, 4):
        a(f"ds_read_b128 {vr(CSA+4*t)}, v{SM+t}")
    for r in list(range(4)) + list(range(16, 20)):
        a(f"v_fmac_f32 v{ACC+r}, v{vMean}, v{CSA+r}")
    a.stamp(6)
    a(f"v_mul_f32 v14, {f32bits(QSCALE)}, v{vRstd}")
    a("s_lshl_b32 s34, s32, 4")
    a("s_add_u32 s34, s34, s15")
    a(f"s_mul_i32 s34, s34, {ROW}")
    a(f"s_add_u32 s34, s34, {WS_Q}")
    a("s_lshr_b32 s35, s32, 1")
    a(f"s_mul_i32 s35, s35, {KVB}")
    a(f"v_cndmask_b32 v15, v{vRstd}, v14, vcc")
    a(f"s_add_u32 s35, s35, {WS_KV}")
    a("s_and_b32 s37, s32, 1")
    PK = X
    for t in (4, 0, 1, 2, 3):
        sc = 14 if t < 4 else 15
        if t == 1: a("s_waitcnt lgkmcnt(0)")
        if 1 <= t <= 3:
            for r in range(4):
                a(f"v_fmac_f32 v{ACC+4*t+r}, v{vMean}, v{CSA+4*t+r}")
        for r in range(4):
            a(f"v_mul_f32 v{ACC+4*t+r}, v{sc}, v{ACC+4*t+r}")
        a(f"v_cvt_pk_bf16_f32 v{PK+2*t}, v{ACC+4*t}, v{ACC+4*t+1}")
        a(f"v_cvt_pk_bf16_f32 v{PK+1+2*t}, v{ACC+4*t+2}, v{ACC+4*t+3}")
        if t < 4:
            for q in range(2):
                a(f"buffer_store_dword v{PK+2*t+q}, v{QA+2*t+q}, s[28:31], s34 offen")
    a("s_mov_b64 exec, vcc")
    for q in range(2):
        a(f"buffer_store_dword v{PK+8+q}, v{QA+8+q}, s[28:31], s34 offen")
    a("s_not_b64 exec, vcc")
    a("s_cmp_ge_u32 s15, 6")
    a("s_cbranch_scc1 K1_ones")
    a("s_cmp_ge_u32 s15, 3")
    a("s_cbranch_scc1 K1_v")
    a("s_lshl_b32 s38, s37, 4")
    a("v_add_u32 v8, s38, v3")
    a("v_lshlrev_b32 v9, 4, v8")
    a("s_cmp_eq_u32 s15, 2")
    a("s_cbranch_scc1 K1_k2")
    a("s_lshl_b32 s38, s15, 9")
    a("s_add_u32 s38, s38, s35")
    a("s_sub_u32 s38, s38, 16")
    a("v_lshl_add_u32 v9, v4, 3, v9")
    a(f"buffer_store_dwordx2 {vr(PK+8,2)}, v9, s[28:31], s38 offen")
    a("s_branch K1_fin")
    a.label("K1_k2")
    a("s_lshr_b32 s38, s32, 3")
    a("s_lshl_b32 s38, s38, 9")
    a("s_and_b32 s39, s32, 6")
    a("s_lshl_b32 s39, s39, 1")
    a("s_add_u32 s38, s38, s39")
    a(f"s_add_u32 s38, s38, {WS_KV + K2OFF}")
    a("s_mov_b32 exec_hi, 0xffff0000")
    a(f"buffer_store_dword v{PK+9}, v9, s[28:31], s38 offen")
    a("s_branch K1_fin")
    a.label("K1_v")
    a("v_bfe_u32 v6, v3, 2, 1")
    a("v_mul_u32_u24 v6, 320, v6")
    a("v_and_b32 v7, 3, v3")
    a("v_lshl_add_u32 v6, v7, 1, v6")
    a("v_lshrrev_b32 v7, 3, v3")
    a("v_lshl_add_u32 v6, v7, 3, v6")
    a("v_lshl_add_u32 v6, v4, 6, v6")
    a("s_mul_i32 s38, s37, 640")
    a("s_add_u32 s38, s38, s35")
    a("s_sub_u32 s36, s15, 3")
    a("s_lshl_b32 s39, s36, 7")
    a("s_cmp_ge_u32 s36, 2")
    a("s_cselect_b32 s39, 160, s39")
    a("s_cselect_b32 s36, 16, 0")
    a("s_add_u32 s38, s38, s39")
    a("s_add_u32 s38, s38, 896")
    a("v_and_b32 v7, 1, v4")
    a("v_mul_u32_u24 v7, s36, v7")
    a("v_add_u32 v7, v7, v6")
    for r in range(4):
        op = "buffer_store_short" if r % 2 == 0 else "buffer_store_short_d16_hi"
        a(f"{op} v{PK + 8 + r // 2}, v{6 if r < 3 else 7}, s[28:31], s38 offen offset:{16*r}")
    a("s_branch K1_fin")
    a.label("K1_ones")
    a("s_mov_b64 exec, 15")
    a("s_cmp_eq_u32 s15, 6")
    a("s_cbranch_scc1 K1_on2")
    a("s_lshl_b32 s38, s32, 7")
    a(f"s_add_u32 s38, s38, {WS_FLAG}")
    a("v_mov_b32 v6, 0")
    a("buffer_store_dword v6, v6, s[28:31], s38 offen")
    a("s_branch K1_fin")
    a.label("K1_on2")
    a("s_mul_i32 s38, s37, 640")
    a("s_add_u32 s38, s38, s35")
    a("v_lshrrev_b32 v6, 1, v2")
    a("v_mul_u32_u24 v6, 320, v6")
    a("v_and_b32 v7, 1, v2")
    a("v_lshl_add_u32 v6, v7, 5, v6")
    a(f"buffer_store_dwordx4 {vr(ONES)}, v6, s[28:31], s38 offen offset:{1024+17*16}")
    a.label("K1_fin")
    a.end(1, 28, 8)
    a.label("K1_end")
    a("s_endpgm")
    return K, desc(K, 240), (256, 512, LDS)
```

```python
from common import *
import relayout as RL
QB   = 0
OB   = 8 * 1536
STAT = OB + 18 * 512
CP   = STAT + 640
CR   = CP + 32
MX   = STAT + 1024
PS   = MX + 1024
XS   = PS + 2 * 8 * 2560
STG  = XS + 8 * 1184
LDS  = STG + 8 * 10240

KF = [20 + 4 * s for s in range(8)]
K2F = 52
VF = [[60 + 8 * s, 64 + 8 * s] for s in range(8)]
S = [124, 140]
P = 156
O = [164, 180]
QR = [196, 204]
WACC = 212
WA = 232
WB = 252
vL16, vV, vK2, vL4, vOBr, vT0, vT1, vT2, vT3 = 3, 6, 7, 8, 9, 10, 11, 12, 13
POI = 4
vLo = 14
vX = 15
vSt, vStr = 16, 17
vPw, vPw8, vPr, vPr8 = 16, 17, 18, 19
vOw = 1

def attn(a, fused):
    a(f"s_load_dwordx2 s[4:5], s[0:1], {A_WS}")
    a(f"s_load_dwordx2 s[6:7], s[0:1], {A_X}")
    a(f"s_load_dwordx2 s[80:81], s[0:1], {A_W1}")
    a(f"s_load_dwordx2 s[82:83], s[0:1], {A_W2}")
    a("v_lshrrev_b32 v1, 6, v0")
    a("v_and_b32 v2, 63, v0")
    a("v_readfirstlane_b32 s3, v1")
    a("s_mov_b32 s22, 0")
    a.label("K2_main")
    a("v_and_b32 v2, 63, v0")
    a("v_and_b32 v5, 31, v0")
    a("v_bfe_u32 v4, v0, 5, 1")
    a(f"v_lshlrev_b32 v{vL16}, 4, v2")
    a(f"v_lshlrev_b32 v{vL4}, 2, v2")
    a(f"s_mul_i32 s16, s2, {8*ROW}")
    a(f"s_add_u32 s16, s16, {WS_Q}")
    a(f"s_mul_i32 s54, s3, {ROW}")
    a("s_add_u32 s54, s54, s16")
    a(f"v_lshl_or_b32 v{vT0}, v4, 30, v{vL4}")
    a(f"v_mul_u32_u24 v{vV}, 320, v4")
    a(f"v_lshl_add_u32 v{vV}, v5, 4, v{vV}")
    a(f"v_add_u32 v{vV}, 1024, v{vV}")
    a(f"v_subrev_u32 v18, 32, v{vV}")
    a(f"v_and_b32 v19, 30, v5")
    a("v_cmp_eq_u32 vcc, 20, v19")
    a("v_cmp_gt_u32 s[20:21], 18, v5")
    a(f"v_mov_b32 v19, {OOB}")
    a(f"v_cndmask_b32 v18, v19, v18, vcc")
    a(f"v_cndmask_b32_e64 v{vV}, v18, v{vV}, s[20:21]")
    a(f"v_lshl_or_b32 v{vK2}, v4, 30, v{vL16}")
    a("v_cmp_eq_u32 s[20:21], 0, v4")
    a("s_lshr_b32 s18, s2, 3")
    a("s_lshl_b32 s19, s3, 1")
    a("s_add_u32 s18, s18, s19")
    a("s_and_b32 s18, s18, 15")
    a("s_add_u32 s19, s18, 1")
    a("s_and_b32 s19, s19, 15")
    for s in range(8):
        a(f"s_mul_i32 s{24+s}, s{18 + s // 4}, {4*KVB}")
        if s % 4:
            a(f"s_add_u32 s{24+s}, s{24+s}, {(s % 4) * KVB}")
    for k in (18, 19):
        a(f"s_lshl_b32 s{k}, s{k}, 9")
        a(f"s_add_u32 s{k}, s{k}, {K2OFF}")
    a.pad("K2", 1)
    a("s_waitcnt lgkmcnt(0)")
    a.srd(8, 4, WS_SIZE)
    a.srd(12, 4, KV_BYTES, WS_KV)
    def ldK(s):
        L = [("vm", ("k", s), f"buffer_load_dwordx4 {vr(KF[s])}, v{vL16}, s[12:15], s{24+s} offen")]
        if s % 4 == 0:
            L.append(("vm", ("k", s), f"buffer_load_dwordx4 {vr(K2F+s)}, v{vK2}, s[12:15], s{18 + s // 4} offen"))
        return L
    def fixK2(b):
        return [f"v_cndmask_b32_e64 v{K2F+b+i}, v{vT2}, v{K2F+b+i}, s[20:21]" for i in range(4)]
    def ldV(s):
        return [("vm", ("v", s), f"buffer_load_dwordx4 {vr(VF[s][0])}, v{vV}, s[12:15], s{24+s} offen"),
                ("vm", ("v", s), f"buffer_load_dwordx4 {vr(VF[s][1])}, v{vV}, s[12:15], s{24+s} offen offset:640")]
    a.vm("q0", f"buffer_load_dwordx4 {vr(QR[0])}, v{vL16}, s[8:11], s16 offen")
    a.vm("q0", f"buffer_load_dword v{QR[0]+4}, v{vT0}, s[8:11], s16 offen offset:1024")
    for it in ldK(0) + ldK(1) + ldV(0):
        a.emit(it)
    a("s_mul_i32 s17, s3, 1536")
    a("s_cmp_eq_u32 s22, 0")
    a(f"s_cselect_b32 s17, s17, {XS}")
    a("s_mov_b32 m0, s17")
    a(f"v_add_u32 v{vPr}, s17, v{vL4}")
    a.vm("q", f"buffer_load_dwordx4 v{vL16}, s[8:11], s54 offen lds")
    a.vm("q", f"buffer_load_dword v{vT0}, s[8:11], s54 offen offset:1024 lds")
    a(f"v_mov_b32 v{QR[0]+5}, 0")
    a(f"ds_write_b32 v{vPr}, v{QR[0]+5} offset:1280")
    a(f"ds_write_b32 v{vL4}, v{QR[0]+5} offset:{CP}")
    a("s_lshr_b32 s41, s2, 3")
    a("s_and_b32 s42, s3, 1")
    a("s_lshl_b32 s42, s42, 5")
    a("s_add_u32 s41, s41, s42")
    a("s_cmp_lt_u32 s3, 6")
    a("s_cbranch_scc1 K2_nopf")
    a.codepf("k2_kernel", "K3_end" if fused else "K2_end", 41, vL16, WA, 42)
    a.vmq.pop()
    a.label("K2_nopf")
    a.srd(32, 4, WOF_BYTES, WS_WOF)
    a.srd(36, 6, 2048 * ROW)
    a.pad("K2", 2)
    a(f"v_bfe_u32 v{vT0}, v0, 4, 2")
    a(f"v_and_b32 v{vT3}, 7, v0")
    a(f"v_lshlrev_b32 v{vOBr}, 7, v{vT0}")
    a(f"v_lshl_add_u32 v{vOBr}, v{vT3}, 4, v{vOBr}")
    a(f"v_add_u32 v{vOBr}, {OB}, v{vOBr}")
    a(f"v_bfe_u32 v{vT1}, v0, 3, 2")
    a(f"v_lshl_add_u32 v{vT1}, v{vT1}, 1, v4")
    a(f"v_lshlrev_b32 v{vLo}, 4, v{vT3}")
    a(f"v_lshl_add_u32 v{vLo}, v{vT1}, 1, v{vLo}")
    a(f"v_add_u32 v{vLo}, {OB+8192}, v{vLo}")
    a(f"v_mul_u32_u24 v{vX}, 1184, v{vT3}")
    a(f"v_lshl_add_u32 v{vX}, v{vT0}, 3, v{vX}")
    a("s_lshl_b32 s17, s3, 5")
    a(f"s_add_u32 s17, s17, {XS}")
    a(f"v_add_u32 v{vX}, s17, v{vX}")
    a("s_mul_i32 s55, s3, 10240")
    a(f"s_add_u32 s55, s55, {STG}")
    a("s_mul_i32 s17, s3, 2560")
    a(f"s_add_u32 s17, s17, {PS}")
    a(f"v_add_u32 v{vPw}, s17, v{vL16}")
    a(f"v_lshlrev_b32 v{vPr8}, 3, v2")
    a(f"v_add_u32 v{vPw8}, s17, v{vPr8}")
    a(f"v_add_u32 v{vPr8}, {PS}, v{vPr8}")
    a("s_and_b32 s52, s3, 3")
    a("s_lshr_b32 s53, s3, 2")
    a("s_lshr_b32 s17, s52, 1")
    a("s_lshl_b32 s17, s17, 10")
    a("s_and_b32 s41, s52, 1")
    a("s_lshl_b32 s41, s41, 3")
    a("s_add_u32 s17, s17, s41")
    a(f"s_add_u32 s17, s17, {PS}")
    a(f"v_add_u32 v{vPr}, s17, v{vL16}")
    a("s_lshl_b32 s17, s52, 2")
    a(f"v_add_u32 v{vOw}, s17, v{vL16}")
    a("s_mov_b32 s23, 0")
    a(f"s_mul_i32 s40, s3, {18*1024}")
    a(f"v_mov_b32 v{QR[0]+6}, 0")
    a(f"v_mov_b32 v{vT2}, 0x3f803f80")
    def rdQ(p):
        o = (QB + 1536 * p + 1024) // 256
        return [f"ds_read_b128 {vr(QR[p&1])}, v{vL16} offset:{QB+1536*p}",
                f"ds_read2st64_b32 {vr(QR[p&1]+4,2)}, v{vL4} offset0:{o} offset1:{o+1}",
                f"ds_read2st64_b32 {vr(QR[p&1]+6,2)}, v{vL4} offset0:{o+1} offset1:{o}"]
    a.pad("K2", 3)
    a.stamp(1)
    a.waitvm(("k", 0))
    for it in fixK2(0): a(it)
    a(f"v_mov_b32 v{QR[0]+7}, v{QR[0]+4}")
    a("s_cmp_eq_u32 s22, 0")
    a("s_cbranch_scc1 K2_go")
    for it in rdQ(0):
        a(it)
    a("s_waitcnt lgkmcnt(0)")
    a.label("K2_go")
    def qk1(t):
        p, s = divmod(t, 8)
        return f"v_mfma_f32_32x32x16_bf16 {vr(S[t&1],16)}, {vr(KF[s])}, {vr(QR[p&1])}, 0"
    def qk2(t):
        p, s = divmod(t, 8)
        return f"v_mfma_f32_32x32x8_bf16 {vr(S[t&1],16)}, {vr(K2F+(s&~1),2)}, {vr(QR[p&1]+4+2*(s&1),2)}, {vr(S[t&1],16)}"
    def pv(t, half):
        p, s = divmod(t, 8)
        c = "0" if (s == 0 and half == 0) else vr(O[p & 1], 16)
        return f"v_mfma_f32_32x32x16_bf16 {vr(O[p&1],16)}, {vr(VF[s][half])}, {vr(P+4*half)}, {c}"
    def ex(t, i):
        return f"v_exp_f32 v{S[t&1]+i}, v{S[t&1]+i}"
    def cv(t, i):
        return f"v_cvt_pk_bf16_f32 v{P+i}, v{S[t&1]+2*i}, v{S[t&1]+2*i+1}"
    a.stamp(2)
    a(qk1(0)); a(qk2(0))
    for it in ldK(2) + ldK(3) + ldV(1):
        a.emit(it)
    a("s_and_b32 s84, s2, 7")
    a("s_andn2_b32 s85, s2, 7")
    a("s_add_u32 s85, s85, s3")
    RL.params_w12(a, 84, 85, 56, 64, 80, 82)
    a("s_lshr_b32 s85, s2, 3")
    a("s_lshl_b32 s17, s85, 1")
    a("s_add_u32 s17, s17, s3")
    a("s_add_u32 s17, s17, 256")
    a("s_add_u32 s85, s85, 320")
    a("s_cmp_lt_u32 s3, 2")
    a("s_cselect_b32 s85, s17, s85")
    a("s_cmp_gt_u32 s3, 2")
    a("s_cselect_b32 s85, 999, s85")
    RL.params_w12(a, 84, 85, 68, 76, 80, 82)

    def e1(p):
        o = O[p & 1]; b = (p & 1) * 20480
        return [f"ds_write_b128 v{vPw}, {vr(o)} offset:{b}", f"ds_write_b128 v{vPw}, {vr(o+4)} offset:{b+1024}",
                f"ds_write_b64 v{vPw8}, {vr(o+8,2)} offset:{b+2048}"]
    def guard(p, tag, body):
        return [f"s_cmp_lg_u32 s53, {p & 1}", f"s_cbranch_scc1 K2_{tag}"] + body + [("label", f"K2_{tag}")]
    def rdP(p, half):
        o = O[p & 1]; b = (p & 1) * 20480 + half * 4 * 2560
        L = []
        for k in range(4):
            L.append(f"ds_read_b64 {vr(o+4*k,2)}, v{vPr} offset:{b+2560*k}")
            L.append(f"ds_read_b64 {vr(o+4*k+2,2)}, v{vPr8} offset:{b+2560*k+2048}")
        return L
    def signal(off):
        return ["s_mov_b64 exec, 1", f"ds_add_u32 v{vL4}, v{vOBr} offset:{off}", "s_mov_b64 exec, -1"]
    def chk_issue(off, tmp):
        return [f"ds_read_b32 v{tmp}, v{vL4} offset:{off}"]
    def chk_wait(off, tmp, n, tag):
        return ["s_waitcnt lgkmcnt(0)", ("label", f"K2_c{tag}"), f"v_readfirstlane_b32 s41, v{tmp}", f"s_cmp_ge_u32 s41, {n*OB}",
                f"s_cbranch_scc1 K2_k{tag}", "s_sleep 2", f"ds_read_b32 v{tmp}, v{vL4} offset:{off}", "s_waitcnt lgkmcnt(0)",
                f"s_branch K2_c{tag}", ("label", f"K2_k{tag}")]
    def e2a(p, chk=False):
        return guard(p, f"e2a{p}", (chk_wait(CP + 4 * p, O[p & 1] + 15, 8, f"p{p}") if chk else []) + rdP(p, 0))
    def e2b(p):
        o = O[p & 1]
        L = ["s_waitcnt lgkmcnt(0)"]
        for q in range(2):
            L.append(f"v_pk_add_f32 {vr(o+2*q,2)}, {vr(o+2*q,2)}, {vr(o+4+2*q,2)}")
            L.append(f"v_pk_add_f32 {vr(o+8+2*q,2)}, {vr(o+8+2*q,2)}, {vr(o+12+2*q,2)}")
        for q in range(2):
            L.append(f"v_pk_add_f32 {vr(vT0+2*q,2)}, {vr(o+2*q,2)}, {vr(o+8+2*q,2)}")
        return guard(p, f"e2b{p}", L + rdP(p, 1))
    def e2c(p):
        o = O[p & 1]
        L = ["s_waitcnt lgkmcnt(0)"]
        for q in (1, 0):
            L.append(f"v_pk_add_f32 {vr(o+2*q,2)}, {vr(o+2*q,2)}, {vr(o+4+2*q,2)}")
            L.append(f"v_pk_add_f32 {vr(o+8+2*q,2)}, {vr(o+8+2*q,2)}, {vr(o+12+2*q,2)}")
            L.append(f"v_pk_add_f32 {vr(vT0+2*q,2)}, {vr(vT0+2*q,2)}, {vr(o+2*q,2)}")
            L.append(f"v_pk_add_f32 {vr(vT0+2*q,2)}, {vr(vT0+2*q,2)}, {vr(o+8+2*q,2)}")
            if q == 1:
                L.append(f"v_rcp_f32 v{o+6}, v{vT3}")
        L.append(f"v_subrev_u32 v{o+7}, {f32bits(2.0**-60)}, v{vT3}")
        L.append(f"v_pk_mul_f32 {vr(vT0,2)}, {vr(vT0,2)}, {vr(o+6,2)} op_sel_hi:[1,0]")
        L.append(f"v_cmp_lt_u32 vcc, {120 << 23}, v{o+7}")
        L.append(f"v_mul_f32 v{vT2}, v{o+6}, v{vT2}")
        L.append(f"v_cvt_pk_bf16_f32 v{vT0}, v{vT0}, v{vT1}")
        L.append(f"v_cvt_pk_bf16_f32 v{vT2}, v{vT2}, v{vT2}")
        L.append(f"ds_write_b32 v{vOw}, v{vT0} offset:{OB+1024*p}")
        L.append(f"ds_write_b16 v{vLo}, v{vT2} offset:{128*p}")
        L.append(f"s_or_b32 s23, s23, vcc_lo")
        L.append(f"s_or_b32 s23, s23, vcc_hi")
        if p < 7: L += signal(CR + 4 * p)
        return guard(p, f"e2c{p}", L)
    SKIP = set(range(1, 14)) | {16}
    def only03(tag, body):
        return ["s_cmp_lg_u32 s53, 0", f"s_cbranch_scc1 K2_{tag}"] + body + [("label", f"K2_{tag}")]
    def ldWA(ks, base):
        G = []
        for t in (4, 0, 1, 2, 3):
            ad = f"s_add_u32 s41, s40, {t*8*18*1024 + ks*1024}"
            ld = f"buffer_load_dwordx4 {vr(base[t])}, v{vL16}, s[32:35], s41 offen"
            if t == 4 and ks in SKIP and Opt.SK4: G.append(only03(f"l4_{ks}", [ad, ld]))
            else: G.append([ad, ("vm", ("wa", ks), ld)])
        return G
    def rdWB(ks, wb):
        return [f"ds_read_b128 {vr(wb)}, v{vOBr} offset:{512*ks}"]
    first_wo = [True]
    def woM(ks, base, wb):
        L = []
        for t in range(5):
            c = "0" if first_wo[0] else vr(WACC + 4 * t)
            L.append(f"v_mfma_f32_16x16x32_bf16 {vr(WACC+4*t)}, {vr(base[t])}, {vr(wb)}, {c}")
        first_wo[0] = False
        return L
    WAb = [WA + 4 * t for t in range(5)]
    WA2 = [VF[0][0], VF[0][1], VF[1][0], VF[1][1], KF[0]]
    WA3 = [VF[2][0], VF[2][1], VF[3][0], VF[3][1], KF[1]]
    WA4 = [VF[4][0], VF[4][1], KF[2], KF[3], KF[4]]
    XR = VF[5][0]

    uses = {}
    order = []
    for tu, ks in ((22, 0), (25, 1), (28, 2), (31, 3), (34, 4), (37, 5), (40, 6), (43, 7), (46, 16), (49, 8), (52, 9), (55, 10), (58, 11), (62, 12)):
        uses[tu] = (ks, WAb)
        order.append((tu, ks))
    side_ld = {}
    side_ld[20] = ldWA(order[0][1], WAb)
    extra = {}
    def addx(t, groups):
        extra.setdefault(t, []).extend(groups)
    vTr = 2
    SC = ' sc1' if fused else ''
    def rl_init(S_, vSrc):
        return [f"v_lshrrev_b32 v{vSrc}, 3, v2", f"v_mul_lo_u32 v{vSrc}, v{vSrc}, s{S_+2}", f"v_and_b32 v{vK2}, 7, v2",
                f"v_lshl_add_u32 v{vSrc}, v{vK2}, 4, v{vSrc}", f"s_lshl_b32 s{S_+6}, s{S_+2}, 3"]
    def rl_dma(S_, R_, ldsoff, tag, n, vSrc):
        ld = f"buffer_load_dwordx4 v{vSrc}, s[{R_}:{R_+3}], s{S_+1} offen{Opt.WNT} lds"
        return [f"s_add_u32 s41, s55, {ldsoff+1024*n}", "s_mov_b32 m0, s41", "s_nop 0",
                ("vm", tag, ld) if tag else ld, f"s_add_u32 s{S_+1}, s{S_+1}, s{S_+6}"]
    def rl_rd(ldsoff, q, d):
        return [f"ds_read_b64_tr_b16 {vr(d,2)}, v{vTr} offset:{ldsoff+32*q}",
                f"ds_read_b64_tr_b16 {vr(d+2,2)}, v{vTr} offset:{ldsoff+32*q+2048}"]
    def rl_st(S_, tag, d):
        st = f"buffer_store_dwordx4 {vr(d)}, v{vL16}, s[8:11], s{S_+5} offen{SC or Opt.WST}"
        return ["s_waitcnt lgkmcnt(0)", ("vm", tag, st) if tag else st, f"s_add_u32 s{S_+5}, s{S_+5}, 18432"]
    def opt(tag, body):
        return ["s_cmp_ge_u32 s85, 324", f"s_cbranch_scc1 K2_{tag}"] + body + [("label", f"K2_{tag}")]
    if Opt.FOLD:
        for n, t_ in enumerate((6, 8, 11, 13)):
            addx(t_, [[], (rl_init(56, vV) if n == 0 else []) + rl_dma(56, 64, 0, "rl", n, vV)])
        for n, t_ in enumerate((5, 7, 10, 12)):
            addx(t_, [[], (rl_init(68, WACC) if n == 0 else []) + opt(f"rlb{n}", rl_dma(68, 76, 4096, None, n, WACC))])
        addx(15, [[f"v_and_b32 v{vK2}, 3, v2", f"v_lshrrev_b32 v{vTr}, 2, v2", f"v_lshlrev_b32 v{vTr}, 7, v{vTr}",
                   f"v_lshl_add_u32 v{vTr}, v{vK2}, 3, v{vTr}", f"v_add_u32 v{vTr}, s55, v{vTr}"]])
        addx(19, [[("wait", "rl")], opt("rlr", [x for q in range(4) for x in rl_rd(4096, q, WACC + 4 + 4 * q)])])
        addx(21, [opt(f"rls{q}", rl_st(68, None, WACC + 4 + 4 * q)) for q in range(4)])
        for q, t_ in enumerate((24, 26, 30, 33)):
            addx(t_ - 1, [[], rl_rd(0, q, vT0)])
            addx(t_, [rl_st(56, "rs", vT0)])
    addx(36, [[f"s_lshl_b32 s41, s2, 3", "s_add_u32 s41, s41, s3", f"s_mul_i32 s41, s41, {ROW}", "s_mul_i32 s42, s3, 1184", f"s_add_u32 s42, s42, {XS}",
              "s_mov_b32 m0, s42", "s_nop 0", ("vm", "x", f"buffer_load_dwordx4 v{vL16}, s[36:39], s41 offen lds")],
             ["s_mov_b64 exec, 0xff", ("vm", "x", f"buffer_load_dwordx4 v{vL16}, s[36:39], s41 offen offset:1024 lds"), "s_mov_b64 exec, -1"]])
    for n, t_ in enumerate((15, 16, 17)):
        addx(t_, [["s_andn2_b32 s41, s2, 7", "s_add_u32 s41, s41, s3", "s_mul_i32 s41, s41, 2624", f"s_add_u32 s41, s41, {1024*n}",
                   "s_add_u32 s42, s55, 9216", "s_mov_b32 m0, s42", "s_nop 0",
                   ("vm", "pf", f"buffer_load_dwordx4 v{vL16}, s[32:35], s41 offen lds")]])
    addx(8, [["s_lshr_b32 s17, s2, 3", "s_add_u32 s43, s17, s2", "s_and_b32 s43, s43, 7", "s_lshl_b32 s43, s43, 1", "s_add_u32 s43, s43, s53",
              "s_lshl_b32 s43, s43, 10", "s_mul_i32 s17, s17, 36", "s_add_u32 s17, s17, s52", "s_lshl_b32 s17, s17, 14",
              "s_add_u32 s43, s43, s17", f"s_add_u32 s43, s43, {WS_PART}"]])
    addx(16, [[f"v_mov_b32 v{POI+i}, {POISON}" for i in range(4)]])
    for k, t_ in enumerate((27, 36, 39, 42, 45, 48, 51, 54, 57)):
        addx(t_, [[("vm", "po", f"buffer_store_dwordx4 {vr(POI)}, v{vL16}, s[8:11], s43 offen sc1"), "s_add_u32 s43, s43, 65536"]])
    if fused:
        addx(56, [[("vm", "wc0", f"buffer_load_dword v{vTr}, v{vL4}, s[8:11], s56 offen sc1")]])
        pf = ["s_and_b32 s41, s2, 7", f"s_mul_i32 s41, s41, {36*18*1024}", "s_andn2_b32 s42, s2, 7", "s_add_u32 s42, s42, s3", "s_mul_i32 s42, s42, 2624",
              "s_add_u32 s57, s41, s42", f"s_add_u32 s57, s57, {WS_W1F}", ("wait", "wc0"), f"v_readfirstlane_b32 s58, v{vTr}"]
        addx(59, [pf])
        for n in range(3):
            addx(60 + n, [["s_cmp_lt_u32 s58, 32", f"s_cbranch_scc1 K2_npw{n}", f"s_mov_b32 m0, {MX}", "s_nop 0",
                           f"buffer_load_dwordx4 v{vL16}, s[8:11], s57 offen sc1 lds", "s_add_u32 s57, s57, 1024", ("label", f"K2_npw{n}")]])
        addx(49, [["s_and_b32 s56, s2, 7", "s_lshl_b32 s56, s56, 7", f"s_add_u32 s56, s56, {WS_FLAG + 32 * 128}", f"v_mov_b32 v{vT0}, 1",
                   "s_or_b32 s41, s3, s22", "s_cmp_lg_u32 s41, 0", "s_cbranch_scc1 K2_nosig", "s_mov_b64 exec, 1",
                   f"buffer_atomic_add v{vT0}, v{vL4}, s[8:11], s56 offen sc1", "s_mov_b64 exec, -1", ("label", "K2_nosig")]])
    for n in range(10):
        ks, t_ = 14 + n // 5, n % 5
        addx((48, 51, 27, 36, 57)[n // 2],
             [[f"s_add_u32 s42, s55, {1024*n}", "s_mov_b32 m0, s42", f"s_add_u32 s41, s40, {t_*8*18*1024 + ks*1024}",
               ("vm", "stg", f"buffer_load_dwordx4 v{vL16}, s[32:35], s41 offen lds")]])
    if Opt.IPF:
        addx(45, [["s_cmp_lg_u32 s3, 3", "s_cbranch_scc1 K2_noti"] + a.touch("K3") + [("label", "K2_noti")]])
    addx(56, [["s_lshr_b32 s44, s2, 3", "s_bfe_u32 s45, s2, 0x20001", "s_and_b32 s46, s2, 1", "s_lshl_b32 s46, s46, 8",
               "s_mul_i32 s47, s44, 73728", "s_lshr_b32 s48, s3, 1", "s_lshl_b32 s48, s48, 12", "s_add_u32 s47, s47, s48"],
              ["s_lshl_b32 s48, s45, 10", "s_add_u32 s47, s47, s48", "s_and_b32 s48, s3, 1", "s_lshl_b32 s48, s48, 9",
               "s_add_u32 s47, s47, s48", "s_add_u32 s47, s47, s46", f"s_add_u32 s47, s47, {WS_XN}"],
              ["s_mul_i32 s49, s44, 36", "s_add_u32 s49, s49, s3", "s_lshl_b32 s49, s49, 11", "s_lshl_b32 s48, s45, 9",
               "s_add_u32 s49, s49, s48", "s_add_u32 s49, s49, s46", f"s_add_u32 s49, s49, {WS_HRES}"]])
    addx(63, [[f"ds_read_b64 {vr(S[0]+2*t_,2)}, v{vX} offset:{256*t_}"] for t_ in range(5)])
    addx(62, [[f"v_add_u32 v{vK2}, s55, v{vL16}"]] + [[f"ds_read_b128 {vr(WA4[n])}, v{vK2} offset:{1024*(5+n)}"] for n in range(5)])
    addx(63, [[]] + [[f"ds_read_b128 {vr(WAb[n])}, v{vK2} offset:{1024*n}"] for n in range(5)])
    for (tu, ks), (tn, kn) in zip(order[:-1], order[1:]):
        side_ld[tu + 1] = ldWA(kn, WAb)
    side_ld[60] = ldWA(17, WA2)
    side_ld[61] = ldWA(13, WA3)
    uses[63] = (13, WA3)
    PRIO = {2: 3, 5: 2, 0: 1, 1: 0}

    for t in range(64):
        p, s = divmod(t, 8)
        m = [ex(t, 0), ex(t, 1)]
        m += [pv(t - 1, 1)] if t > 0 else ["s_nop 0"]
        m += [ex(t, i) for i in range(2, 7)]
        m += [qk1(t + 1)] if t < 63 else ["s_nop 0"]
        nq = 9 if Opt.NONOP else 10
        m += [ex(t, 7)] + [cv(t, i) for i in range(4)] + [ex(t, i) for i in range(8, nq)]
        m += [qk2(t + 1)] if t < 63 else ["s_nop 0"]
        m += [ex(t, i) for i in range(nq, 15)]
        m += [pv(t, 0)]
        m += [ex(t, 15)] + [cv(t, i) for i in range(4, 8)]
        sd = {i: [] for i in range(29)}
        if not Opt.NONOP: sd[0].append("s_nop 0")
        if p == 0:
            if t < 63 and s + 1 < 8:
                sd[8].append(("wait", ("k", s + 1)))
                if s == 3:
                    sd[8] += fixK2(4)
            sd[22].append(("wait", ("v", s)))
            L = []
            if s % 2 == 0 and s + 4 < 8:
                L += ldK(s + 4) + ldK(s + 5)
            if s + 2 < 8:
                L += ldV(s + 2)
            for i, it in enumerate(L):
                sd[1 + i * 26 // len(L)].append(it)
            if s == 3:
                sd[28] += ["s_waitcnt lgkmcnt(0)", "s_barrier"]
        if s == 4 and p < 7:
            sd[3] += rdQ(p + 1)
        if s == 7 and p < 7:
            sd[8].append("s_waitcnt lgkmcnt(0)")
        if p >= 1:
            if s == 0:
                for i, it in enumerate(e1(p - 1)):
                    sd[17 + 4 * i].append(it)
                sd[26] += signal(CP + 4 * (p - 1))
            if s == 2:
                sd[1] += chk_issue(CP + 4 * (p - 1), O[(p - 1) & 1] + 15)
                sd[15] += e2a(p - 1, True)
                if p in (1, 4, 7):
                    sd[0].append(("stamp", {1: 3, 4: 4, 7: 5}[p]))
            if s == 3:
                sd[10] += e2b(p - 1)
            if s == 4:
                sd[4] += e2c(p - 1)
        if t + 1 in uses:
            ks1 = uses[t + 1][0]
            if ks1 < 16 and ks1 % 2 == 0:
                sd[10] += chk_issue(CR + 2 * ks1, WB)
                sd[24] += chk_wait(CR + 2 * ks1, WB, 4, f"r{ks1}")
            sd[24] += rdWB(ks1, WB)
        if t in uses:
            ks, base = uses[t]
            sd[6] += [("wait", ("wa", ks), " lgkmcnt(0)")]
            for n_, (pos, it) in enumerate(zip(Opt.WPOS, woM(ks, base, WB))):
                sd[pos] += only03(f"m4_{ks}", [it]) if (n_ == 4 and ks in SKIP and Opt.SK4) else [it]
        if t in side_ld:
            L = side_ld[t]
            for i, g_ in enumerate(L):
                sd[1 + i * 26 // len(L)] += g_
        if t in extra:
            G_ = extra[t]
            for i, g_ in enumerate(G_):
                sd[3 + i * 24 // len(G_)] += g_
        pr = PRIO.get(s)
        if p == 0: pr = {0: 3, 2: 1, 3: 0, 4: 3, 6: 2}.get(s)
        if p == 7: pr = {2: 3, 4: 2, 6: 1, 7: 0, 0: 1, 1: 0}.get(s)
        if pr is not None:
            sd[0].insert(0, f"s_setprio {pr}")
        for it in weave(m, sd):
            if isinstance(it, str):
                if "nobar" in Opt.ABL and it == "s_barrier": continue
                if "noprio" in Opt.ABL and it.startswith("s_setprio"): continue
                if "noe1" in Opt.ABL and it.startswith("ds_write_b") and (f"v{vPw}," in it or f"v{vPw8}," in it): continue
                if "nored" in Opt.ABL and it.startswith("s_cmp_lg_u32 s53"): it = "s_cmp_lg_u32 s53, 5"
                if "nolgkm" in Opt.ABL and it == "s_waitcnt lgkmcnt(0)": continue
            elif it[0] == "vm" and "nopo" in Opt.ABL and it[1] == "po":
                it = ("vm", "po", "s_nop 0")
            a.emit(it)
    a("s_nop 1")
    a(pv(63, 1))
    if fused:
        a.vm("wc", f"buffer_load_dword v{QR[0]}, v{vL4}, s[8:11], s56 offen sc1")
    XR = S[0]
    vG, vTok, vS2, vA, vB, vC_ = QR[0] + 1, QR[0] + 2, QR[0] + 3, QR[0] + 4, QR[0] + 5, QR[0] + 6
    a(f"v_bfe_u32 v{vG}, v0, 4, 2")
    a(f"v_and_b32 v{vTok}, 7, v0")
    a(f"v_lshlrev_b32 v{vS2}, 6, v{vG}")
    a(f"v_lshl_add_u32 v{vS2}, v{vTok}, 3, v{vS2}")
    a(f"v_and_b32 v{vA}, 8, v0")
    a(f"v_cmp_eq_u32 s[50:51], 0, v{vA}")
    a(f"v_mov_b32 v{vA}, s47")
    a(f"v_mov_b32 v{vB}, s49")
    a(f"v_cndmask_b32_e64 v{vA}, v{vA}, v{vB}, s[50:51]")
    a(f"v_add_u32 v{vS2}, v{vS2}, v{vA}")
    a(f"v_lshlrev_b32 v{vA}, 3, v{vTok}")
    a(f"v_add_u32 v{vA}, {STAT}, v{vA}")
    for it in e1(7):
        a(it)
    a("s_lshl_b32 s17, s3, 6")
    a(f"v_add_u32 v{vB}, s17, v{vA}")
    a(f"v_lshlrev_b32 v{vC_}, 2, v{vTok}")
    a("s_cmp_lt_u32 s3, 4")
    a("s_cselect_b32 s17, -1, 0")
    a("s_waitcnt lgkmcnt(0)")
    a("s_barrier")
    a.stamp(6)
    a("s_cbranch_scc1 K2_t1")
    for k in range(8):
        a(f"ds_read_b64 {vr(O[0]+4*k,2)}, v{vPr} offset:{20480+2560*k}")
        a(f"ds_read_b64 {vr(O[0]+4*k+2,2)}, v{vPr8} offset:{20480+2560*k+2048}")
    a.label("K2_t1")
    a(f"v_and_b32 v{XR+8}, s17, v{XR+8}")
    a(f"v_and_b32 v{XR+9}, s17, v{XR+9}")
    XF = S[1]
    for i in range(10):
        f_ = XF + 2 * (i % 4)
        a(f"v_lshlrev_b32 v{f_}, 16, v{XR+i}")
        a(f"v_and_b32 v{f_+1}, 0xffff0000, v{XR+i}")
        a(f"v_pk_add_f32 {vr(WACC+2*i,2)}, {vr(WACC+2*i,2)}, {vr(f_,2)}")
    a("s_cbranch_scc1 K2_t2")
    o = O[0]
    a("s_waitcnt lgkmcnt(0)")
    for st in (4, 8, 16):
        for q in (2, 0):
            for k in range(0, 32, 2 * st):
                a(f"v_pk_add_f32 {vr(o+k+q,2)}, {vr(o+k+q,2)}, {vr(o+k+q+st,2)}")
            if st == 16 and q == 2:
                a(f"v_rcp_f32 v{o+6}, v{o+3}")
    a(f"v_subrev_u32 v{o+7}, {f32bits(2.0**-60)}, v{o+3}")
    a(f"v_pk_mul_f32 {vr(o,2)}, {vr(o,2)}, {vr(o+6,2)} op_sel_hi:[1,0]")
    a(f"v_cmp_lt_u32 vcc, {120 << 23}, v{o+7}")
    a(f"v_mul_f32 v{o+2}, v{o+6}, v{o+2}")
    a(f"v_cvt_pk_bf16_f32 v{o}, v{o}, v{o+1}")
    a(f"v_cvt_pk_bf16_f32 v{o+2}, v{o+2}, v{o+2}")
    a(f"ds_write_b32 v{vOw}, v{o} offset:{OB+1024*7}")
    a(f"ds_write_b16 v{vLo}, v{o+2} offset:{128*7}")
    a(f"s_or_b32 s23, s23, vcc_lo")
    a(f"s_or_b32 s23, s23, vcc_hi")
    a("s_waitcnt lgkmcnt(0)")
    a.label("K2_t2")
    a("s_barrier")
    WBs = [WB, P, P + 4]
    for ks, wb in zip((14, 15, 17), WBs):
        a(rdWB(ks, wb)[0])
    a("s_lshl_b32 s17, s3, 2")
    a(f"s_add_u32 s17, s17, {STAT+512}")
    a(f"v_mov_b32 v{vT0}, s17")
    a(f"v_mov_b32 v{vT1}, s23")
    a("s_mov_b64 exec, 1")
    a(f"ds_write_b32 v{vT0}, v{vT1}")
    a("s_mov_b64 exec, -1")
    a.waitvm(("wa", 17), " lgkmcnt(1)")
    SS = O[0] + 8
    mm = [woM(ks, base, wb) for ks, base, wb in ((14, WAb, WBs[0]), (15, WA4, WBs[1]), (17, WA2, WBs[2]))]
    def stat(t):
        L = []
        for q in range(2):
            r = WACC + 4 * t + 2 * q
            if t == 0 and q == 0:
                L.append(f"v_pk_mul_f32 {vr(SS+2,2)}, {vr(r,2)}, {vr(r,2)}")
            else:
                L.append(f"v_pk_add_f32 {vr(SS,2)}, {vr(WACC if (t == 0) else SS,2)}, {vr(r,2)}")
                L.append(f"v_pk_fma_f32 {vr(SS+2,2)}, {vr(r,2)}, {vr(r,2)}, {vr(SS+2,2)}")
        return L
    for t in range(5):
        for k in range(3): a(mm[k][t])
    for t in range(3):
        for x_ in stat(t): a(x_)
    for t in range(3, 5):
        for x_ in stat(t): a(x_)
    a(f"v_add_f32 v{SS}, v{SS}, v{SS+1}")
    a(f"v_add_f32 v{SS+1}, v{SS+2}, v{SS+3}")
    for sw in ("v_permlane16_swap_b32", "v_permlane32_swap_b32"):
        a(f"v_mov_b32 v{SS+2}, v{SS}")
        a(f"v_mov_b32 v{SS+3}, v{SS+1}")
        a("s_nop 0")
        a(f"{sw} v{SS}, v{SS+2}")
        a(f"{sw} v{SS+1}, v{SS+3}")
        a("s_nop 0")
        a(f"v_pk_add_f32 {vr(SS,2)}, {vr(SS,2)}, {vr(SS+2,2)}")
    a("s_mov_b64 exec, 0xff")
    a(f"ds_write_b64 v{vB}, {vr(SS,2)}")
    a("s_mov_b64 exec, -1")
    a("s_waitcnt lgkmcnt(0)")
    a("s_barrier")
    a.stamp(7)
    RS = S[1]
    for k in range(8):
        a(f"ds_read_b64 {vr(RS+2*k,2)}, v{vA} offset:{64*k}")
    a(f"ds_read_b32 v{SS+4}, v{vC_} offset:{STAT+512}")
    a(f"v_mov_b32 v{SS+2}, {f32bits(1e-5)}")
    a("s_waitcnt lgkmcnt(0)")
    a(f"v_cmp_ne_u32 vcc, 0, v{SS+4}")
    for k in range(4):
        a(f"v_pk_add_f32 {vr(RS+4*k,2)}, {vr(RS+4*k,2)}, {vr(RS+4*k+2,2)}")
    a(f"v_pk_add_f32 {vr(RS,2)}, {vr(RS,2)}, {vr(RS+4,2)}")
    a(f"v_pk_add_f32 {vr(RS+8,2)}, {vr(RS+8,2)}, {vr(RS+12,2)}")
    a(f"v_pk_add_f32 {vr(SS,2)}, {vr(RS,2)}, {vr(RS+8,2)}")
    a("s_mov_b32 s23, vcc_lo")
    a(f"v_mul_f32 v{SS}, {f32bits(-1.0/576)}, v{SS}")
    a(f"v_fmac_f32 v{SS+2}, {f32bits(1.0/576)}, v{SS+1}")
    a(f"v_fma_f32 v{SS+2}, -v{SS}, v{SS}, v{SS+2}")
    a(f"v_max_f32 v{SS+2}, {f32bits(1e-5)}, v{SS+2}")
    a(f"v_rsq_f32 v{SS+2}, v{SS+2}")
    a("s_cmp_lg_u32 s22, 0")
    a("s_cselect_b32 s23, 0, s23")
    a("s_cmp_lg_u32 s23, 0")
    a("s_cbranch_scc1 K2_slow")
    a(f"v_mul_f32 v{SS}, v{SS}, v{SS+2}")
    a(f"v_cndmask_b32_e64 v{SS+2}, v{SS+2}, 1.0, s[50:51]")
    a(f"v_cndmask_b32_e64 v{SS}, v{SS}, 0, s[50:51]")
    a("s_cmp_ge_u32 s3, 4")
    HP = S[0]
    for t in (4, 0, 1, 2, 3):
        if t == 4:
            a("s_cbranch_scc1 K2_no4")
        for q in range(2):
            r = WACC + 4 * t + 2 * q
            a(f"v_pk_fma_f32 {vr(r,2)}, {vr(r,2)}, {vr(SS+2,2)}, {vr(SS,2)} op_sel_hi:[1,0,0]")
        for q in range(2):
            r = WACC + 4 * t + 2 * q
            a(f"v_cvt_pk_bf16_f32 v{HP+2*t+q}, v{r}, v{r+1}")
        a(f"s_mov_b32 s17, {16384*t}")
        st = f"buffer_store_dwordx2 {vr(HP+2*t,2)}, v{vS2}, s[8:11], s17 offen{SC or Opt.XST}"
        if t == 4:
            a(st)
            a.label("K2_no4")
        else:
            a.vm("xs", st)
    return lambda: slow_path(a, ldK, qk1, qk2)

def slow_path(a, ldK, qk1, qk2):
    a.label("K2_slow")
    a("s_waitcnt vmcnt(0)")
    a("s_barrier")
    for s in range(8):
        a(ldK(s)[0][2])
    a(f"v_and_b32 v{vT0}, 31, v0")
    a(f"v_lshlrev_b32 v{vT0}, 2, v{vT0}")
    a(f"v_add_u32 v{vT0}, {MX}, v{vT0}")
    a(f"v_mov_b32 v{vT1}, 0xff800000")
    a("s_lshl_b32 s17, s3, 7")
    a(f"v_add_u32 v{vT2}, s17, v{vT0}")
    a(f"ds_write_b32 v{vT2}, v{vT1}")
    a(f"v_mov_b32 v{vT3}, v{vL16}")
    a(f"v_mov_b32 v{vPr}, v{vL4}")
    a("s_mov_b32 s17, 0")
    a("s_waitcnt vmcnt(0) lgkmcnt(0)")
    a("s_barrier")
    a.label("K2_mx")
    a(f"ds_read_b128 {vr(QR[0])}, v{vT3} offset:{QB}")
    a(f"ds_read2st64_b32 {vr(QR[0]+4,2)}, v{vPr} offset0:4 offset1:5")
    a(f"ds_read2st64_b32 {vr(QR[0]+6,2)}, v{vPr} offset0:5 offset1:4")
    a(f"v_mov_b32 v{vT1}, 0xff800000")
    a("s_waitcnt lgkmcnt(0)")
    for s in range(8):
        a(qk1(s)); a(qk2(s))
        a("s_nop 7"); a("s_nop 7")
        for i in range(8):
            a(f"v_max3_f32 v{vT1}, v{vT1}, v{S[s&1]+2*i}, v{S[s&1]+2*i+1}")
    a(f"ds_max_f32 v{vT0}, v{vT1}")
    a(f"v_add_u32 v{vT0}, 128, v{vT0}")
    a(f"v_add_u32 v{vT3}, 1536, v{vT3}")
    a(f"v_add_u32 v{vPr}, 1536, v{vPr}")
    a("s_add_u32 s17, s17, 1")
    a("s_cmp_lt_u32 s17, 8")
    a("s_cbranch_scc1 K2_mx")
    a("s_waitcnt lgkmcnt(0)")
    a("s_barrier")
    a(f"ds_read_b32 v{vT1}, v{vT2}")
    a("s_mul_i32 s17, s3, 1536")
    a(f"v_add_u32 v{vT3}, s17, v{vL4}")
    a("s_waitcnt lgkmcnt(0)")
    T = S[0]
    a(f"v_sub_f32 v{vT1}, 0, v{vT1}")
    a(f"v_and_b32 v{T}, 0xffff0000, v{vT1}")
    a(f"v_sub_f32 v{vT1}, v{vT1}, v{T}")
    a(f"v_and_b32 v{T+1}, 0xffff0000, v{vT1}")
    a(f"v_sub_f32 v{vT1}, v{vT1}, v{T+1}")
    a(f"v_lshrrev_b32 v{T}, 16, v{T}")
    a(f"v_or_b32 v{T}, v{T}, v{T+1}")
    a(f"v_lshrrev_b32 v{T+1}, 16, v{vT1}")
    a("s_not_b64 exec, s[20:21]")
    a(f"ds_write_b32 v{vT3}, v{T} offset:{QB+1024}")
    a(f"ds_write_b32 v{vT3}, v{T+1} offset:{QB+1280}")
    a("s_mov_b64 exec, -1")
    a("s_mov_b32 s22, 1")
    a("s_waitcnt lgkmcnt(0)")
    a("s_barrier")
    a("s_branch K2_main")

def k2(a):
    K = "k2_kernel"
    a.begin(K)
    a.guard("K2")
    a.stamp(0); a.stampc(10)
    slow = attn(a, False)
    a.end(2, 8, 8)
    slow()
    a.label("K2_end")
    a("s_endpgm")
    return K, desc(K, 256), (256, 512, LDS)

def k23(a):
    import k3w8
    K = "k2_kernel"
    a.begin(K)
    a.guard("K2")
    a.stamp(0); a.stampc(10)
    a.smap = {5: 1, 6: 2, 9: 3}
    slow = attn(a, True)
    a.stamp(9)
    a.smap = {1: 4, 2: 5, 3: 6, 4: 7}
    k3w8.ffn(a, True, QR[0])
    a.smap = None
    a.end(4, 8, 8)
    slow()
    a.label("K3_end")
    a("s_endpgm")
    return K, desc(K, 256), (256, 512, k3w8.LDS)
```

```python
from common import *
import relayout as RL
QB   = 0
OB   = 8 * 1536
STAT = OB + 18 * 512
CP   = STAT + 640
CR   = CP + 32
MX   = STAT + 1024
PS   = MX + 1024
XS   = PS + 2 * 4 * 2560
STG  = XS + 8 * 1184
LDS  = STG + 4 * 13312

NS = 16
def VF(s, h): return ar(8 * s + 4 * h)
def KF(s): return ar(128 + 4 * s)
K2F = 20
S = [36, 52]
P = 68
O = [76, 92]
QR = [108, 116]
WACC = 124
WBB = [160, 164]
WAv = [[vr(168 + 4 * t) for t in range(9)], [vr(204 + 4 * t) for t in range(9)], [ar(192 + 4 * t) for t in range(9)]]
RO = 228
POI = 244
vL16, vV, vK2, vL4, vOBr, vT0, vT1, vT2, vT3 = 5, 6, 7, 8, 9, 10, 11, 12, 13
vLo, vX = 14, 15
vPw, vPw8, vPr, vPr8 = 16, 17, 18, 19
vOw = 1
vSrc = [240, 241, 242]
vTr = 243
vCk = 244

def attn(a, fused):
    a(f"s_load_dwordx2 s[4:5], s[0:1], {A_WS}")
    a(f"s_load_dwordx2 s[6:7], s[0:1], {A_X}")
    a(f"s_load_dwordx2 s[84:85], s[0:1], {A_W1}")
    a(f"s_load_dwordx2 s[86:87], s[0:1], {A_W2}")
    a("v_lshrrev_b32 v1, 6, v0")
    a("v_and_b32 v2, 63, v0")
    a("v_readfirstlane_b32 s3, v1")
    a("s_mov_b32 s22, 0")
    a.label("K2_main")
    a("v_and_b32 v3, 31, v0")
    a("v_bfe_u32 v4, v0, 5, 1")
    a(f"v_lshlrev_b32 v{vL16}, 4, v2")
    a(f"v_lshlrev_b32 v{vL4}, 2, v2")
    a(f"s_mul_i32 s16, s2, {8*ROW}")
    a(f"s_add_u32 s16, s16, {WS_Q}")
    a(f"s_mul_i32 s17, s3, {2*ROW}")
    a("s_add_u32 s17, s17, s16")
    a(f"v_lshl_or_b32 v{vT0}, v4, 30, v{vL4}")
    a(f"v_mul_u32_u24 v{vV}, 320, v4")
    a(f"v_lshl_add_u32 v{vV}, v3, 4, v{vV}")
    a(f"v_add_u32 v{vV}, 1024, v{vV}")
    a(f"v_subrev_u32 v18, 32, v{vV}")
    a(f"v_and_b32 v19, 30, v3")
    a("v_cmp_eq_u32 vcc, 20, v19")
    a("v_cmp_gt_u32 s[20:21], 18, v3")
    a(f"v_mov_b32 v19, {OOB}")
    a(f"v_cndmask_b32 v18, v19, v18, vcc")
    a(f"v_cndmask_b32_e64 v{vV}, v18, v{vV}, s[20:21]")
    a(f"v_lshl_or_b32 v{vK2}, v4, 30, v{vL16}")
    a("v_cmp_eq_u32 s[20:21], 0, v4")
    a("s_lshr_b32 s18, s2, 3")
    a("s_lshl_b32 s19, s3, 2")
    a("s_add_u32 s18, s18, s19")
    for g in range(4):
        a(f"s_add_u32 s19, s18, {g}")
        a("s_and_b32 s19, s19, 15")
        a(f"s_mul_i32 s{24+g}, s19, {4*KVB}")
        a(f"s_lshl_b32 s{28+g}, s19, 9")
        a(f"s_add_u32 s{28+g}, s{28+g}, {K2OFF}")
    a("s_waitcnt lgkmcnt(0)")
    a.srd(8, 4, WS_SIZE)
    a.srd(12, 4, KV_BYTES, WS_KV)
    def base(s):
        if s % 4 == 0: return [], 24 + s // 4
        return [f"s_add_u32 s41, s{24 + s // 4}, {(s % 4) * KVB}"], 41
    def ldK(s):
        pre, so = base(s)
        L = [pre + [("vm", ("k", s), f"buffer_load_dwordx4 {KF(s)}, v{vL16}, s[12:15], s{so} offen")]]
        if s % 4 == 0:
            L.append([("vm", ("k", s), f"buffer_load_dwordx4 {vr(K2F+s)}, v{vK2}, s[12:15], s{28 + s // 4} offen")])
        return L
    def ldV(s):
        pre, so = base(s)
        return [pre + [("vm", ("v", s), f"buffer_load_dwordx4 {VF(s,h)}, v{vV}, s[12:15], s{so} offen offset:{640*h}")] for h in range(2)]
    def fixK2(b):
        return [f"v_cndmask_b32_e64 v{K2F+b+i}, v{vT2}, v{K2F+b+i}, s[20:21]" for i in range(4)]
    def EG(G):
        for g in G:
            for x in g: a.emit(x)
    a.vm("q0", f"buffer_load_dwordx4 {vr(QR[0])}, v{vL16}, s[8:11], s16 offen")
    a.vm("q0", f"buffer_load_dword v{QR[0]+4}, v{vT0}, s[8:11], s16 offen offset:1024")
    EG(ldK(0) + ldK(1) + ldV(0) + ldK(2) + ldV(1) + ldK(3) + ldV(2))
    a("s_mul_i32 s18, s3, 3072")
    a("s_cmp_eq_u32 s22, 0")
    a(f"s_cselect_b32 s18, s18, {XS}")
    a(f"v_add_u32 v{vPr}, s18, v{vL4}")
    a(f"v_mov_b32 v{QR[0]+5}, 0")
    for k in range(2):
        a("s_mov_b32 m0, s18")
        a("s_add_u32 s18, s18, 1536")
        a.vm("q", f"buffer_load_dwordx4 v{vL16}, s[8:11], s17 offen lds")
        a.vm("q", f"buffer_load_dword v{vT0}, s[8:11], s17 offen offset:1024 lds")
        a(f"s_add_u32 s17, s17, {ROW}")
        a(f"ds_write_b32 v{vPr}, v{QR[0]+5} offset:{1280+1536*k}")
    a(f"ds_write_b32 v{vL4}, v{QR[0]+5} offset:{CP}")
    a("s_lshr_b32 s41, s2, 3")
    a("s_and_b32 s42, s3, 1")
    a("s_lshl_b32 s42, s42, 5")
    a("s_add_u32 s41, s41, s42")
    a("s_cmp_lt_u32 s3, 2")
    a("s_cbranch_scc1 K2_nopf")
    a.codepf("k2_kernel", "K3_end" if fused else "K2_end", 41, vL16, 248, 42)
    a.vmq.pop()
    a.label("K2_nopf")
    a.srd(32, 4, WOF_BYTES, WS_WOF)
    a.srd(36, 6, 2048 * ROW)
    a(f"v_bfe_u32 v{vT0}, v0, 4, 2")
    a(f"v_and_b32 v{vT3}, 7, v0")
    a(f"v_lshlrev_b32 v{vOBr}, 7, v{vT0}")
    a(f"v_lshl_add_u32 v{vOBr}, v{vT3}, 4, v{vOBr}")
    a(f"v_add_u32 v{vOBr}, {OB}, v{vOBr}")
    a(f"v_bfe_u32 v{vT1}, v0, 3, 2")
    a(f"v_lshl_add_u32 v{vT1}, v{vT1}, 1, v4")
    a(f"v_lshlrev_b32 v{vLo}, 4, v{vT3}")
    a(f"v_lshl_add_u32 v{vLo}, v{vT1}, 1, v{vLo}")
    a(f"v_add_u32 v{vLo}, {OB+8192}, v{vLo}")
    a(f"v_mul_u32_u24 v{vX}, 1184, v{vT3}")
    a(f"v_lshl_add_u32 v{vX}, v{vT0}, 3, v{vX}")
    a("s_lshl_b32 s17, s3, 5")
    a(f"s_add_u32 s17, s17, {XS}")
    a(f"v_add_u32 v{vX}, s17, v{vX}")
    a("s_mul_i32 s55, s3, 13312")
    a(f"s_add_u32 s55, s55, {STG}")
    a("s_mul_i32 s17, s3, 2560")
    a(f"s_add_u32 s17, s17, {PS}")
    a(f"v_add_u32 v{vPw}, s17, v{vL16}")
    a(f"v_lshlrev_b32 v{vPr8}, 3, v2")
    a(f"v_add_u32 v{vPw8}, s17, v{vPr8}")
    a(f"v_add_u32 v{vPr8}, {PS}, v{vPr8}")
    a("s_lshr_b32 s17, s3, 1")
    a("s_lshl_b32 s17, s17, 10")
    a("s_and_b32 s41, s3, 1")
    a("s_lshl_b32 s41, s41, 3")
    a("s_add_u32 s17, s17, s41")
    a(f"s_add_u32 s17, s17, {PS}")
    a(f"v_add_u32 v{vPr}, s17, v{vL16}")
    a("s_lshl_b32 s17, s3, 2")
    a(f"v_add_u32 v{vOw}, s17, v{vL16}")
    a("s_mov_b32 s23, 0")
    a(f"s_mul_i32 s40, s3, {18*1024}")
    a(f"v_mov_b32 v{QR[0]+6}, 0")
    a(f"v_mov_b32 v{vT2}, 0x3f803f80")
    def rdQ(p):
        o = (QB + 1536 * p + 1024) // 256
        return [f"ds_read_b128 {vr(QR[p&1])}, v{vL16} offset:{QB+1536*p}",
                f"ds_read2st64_b32 {vr(QR[p&1]+4,2)}, v{vL4} offset0:{o} offset1:{o+1}",
                f"ds_read2st64_b32 {vr(QR[p&1]+6,2)}, v{vL4} offset0:{o+1} offset1:{o}"]
    a.stamp(1)
    a.waitvm(("k", 0))
    for it in fixK2(0): a(it)
    a(f"v_mov_b32 v{QR[0]+7}, v{QR[0]+4}")
    a("s_cmp_eq_u32 s22, 0")
    a("s_cbranch_scc1 K2_go")
    for it in rdQ(0):
        a(it)
    a("s_waitcnt lgkmcnt(0)")
    a.label("K2_go")
    def qk1(t):
        p, s = divmod(t, NS)
        return f"v_mfma_f32_32x32x16_bf16 {vr(S[t&1],16)}, {KF(s)}, {vr(QR[p&1])}, 0"
    def qk2(t):
        p, s = divmod(t, NS)
        return f"v_mfma_f32_32x32x8_bf16 {vr(S[t&1],16)}, {vr(K2F+(s&~1),2)}, {vr(QR[p&1]+4+2*(s&1),2)}, {vr(S[t&1],16)}"
    def pv(t, half):
        p, s = divmod(t, NS)
        c = "0" if (s == 0 and half == 0) else vr(O[p & 1], 16)
        return f"v_mfma_f32_32x32x16_bf16 {vr(O[p&1],16)}, {VF(s,half)}, {vr(P+4*half)}, {c}"
    def ex(t, i):
        return f"v_exp_f32 v{S[t&1]+i}, v{S[t&1]+i}"
    def cv(t, i):
        return f"v_cvt_pk_bf16_f32 v{P+i}, v{S[t&1]+2*i}, v{S[t&1]+2*i+1}"
    a.stamp(2)
    a(qk1(0)); a(qk2(0))
    EG(ldK(4) + ldV(3))
    a("s_nop 7")

    extra = {}
    def addx(t, groups):
        extra.setdefault(t, []).extend(groups)
    def chunks(L, n):
        return [L[i:i + n] for i in range(0, len(L), n)]
    class Rec:
        def __init__(self): self.L = []
        def __call__(self, s): self.L.append(s)
    US = [56, 68, 44]
    UR = [64, 76, 80]
    r = Rec()
    r("s_and_b32 s52, s2, 7"); r("s_lshr_b32 s53, s2, 3"); r("s_lshl_b32 s54, s53, 2"); r("s_add_u32 s54, s54, s3")
    RL.params_w12(r, 52, 54, US[0], UR[0], 84, 86)
    addx(1, [r.L[:18]]); addx(2, [r.L[18:]]); r = Rec()
    r("s_add_u32 s54, s54, 128")
    RL.params_w12(r, 52, 54, US[1], UR[1], 84, 86)
    addx(3, [r.L[:16]]); addx(4, [r.L[16:]]); r = Rec()
    r("s_lshl_b32 s17, s53, 1"); r("s_add_u32 s17, s17, s3"); r("s_add_u32 s17, s17, 256"); r("s_add_u32 s54, s53, 320")
    r("s_cmp_lt_u32 s3, 2"); r("s_cselect_b32 s54, s17, s54"); r("s_cmp_gt_u32 s3, 2"); r("s_cselect_b32 s54, 999, s54")
    RL.params_w12(r, 52, 54, US[2], UR[2], 84, 86)
    addx(5, [r.L[:8]]); addx(6, [r.L[8:24]]); addx(8, [r.L[24:]])
    def opt(tag, body):
        return ["s_cmp_ge_u32 s54, 324", f"s_cbranch_scc1 K2_{tag}"] + body + [("label", f"K2_{tag}")]
    def rl_init(u):
        S_, v_ = US[u], vSrc[u]
        return [f"v_lshrrev_b32 v{v_}, 3, v2", f"v_mul_lo_u32 v{v_}, v{v_}, s{S_+2}", f"v_and_b32 v{vCk}, 7, v2",
                f"v_lshl_add_u32 v{v_}, v{vCk}, 4, v{v_}", f"s_lshl_b32 s{S_+6}, s{S_+2}, 3"]
    def rl_dma(u, n):
        S_, R_ = US[u], UR[u]
        ld = f"buffer_load_dwordx4 v{vSrc[u]}, s[{R_}:{R_+3}], s{S_+1} offen lds"
        L = [f"s_add_u32 s41, s55, {4096*u+1024*n}", "s_mov_b32 m0, s41", "s_nop 0",
             ("vm", "rl", ld) if u < 2 else ld, f"s_add_u32 s{S_+1}, s{S_+1}, s{S_+6}"]
        return L if u < 2 else opt(f"rd{n}", L)
    def rl_rd(u, q):
        L = [f"ds_read_b64_tr_b16 {ar(RO+4*q,2)}, v{vTr} offset:{4096*u+32*q}",
             f"ds_read_b64_tr_b16 {ar(RO+4*q+2,2)}, v{vTr} offset:{4096*u+32*q+2048}"]
        return L
    def rl_st(u, q):
        S_ = US[u]
        st = f"buffer_store_dwordx4 {ar(RO+4*q)}, v{vL16}, s[8:11], s{S_+5} offen{' sc1' if fused else Opt.WST}"
        L = ["s_waitcnt lgkmcnt(0)", ("vm", "rs", st) if u < 2 else st, f"s_add_u32 s{S_+5}, s{S_+5}, 18432"]
        return L if u < 2 else opt(f"rs{q}", L)
    addx(12, [rl_init(u) for u in range(3)])
    addx(13, [[f"v_lshrrev_b32 v{vTr}, 2, v2", f"v_lshlrev_b32 v{vTr}, 7, v{vTr}", f"v_and_b32 v{vCk}, 3, v2",
               f"v_lshl_add_u32 v{vTr}, v{vCk}, 3, v{vTr}", f"v_add_u32 v{vTr}, s55, v{vTr}"],
              [f"v_mov_b32 v{vCk}, {POISON}"] + [f"v_accvgpr_write_b32 a{POI+i}, v{vCk}" for i in range(4)]])
    dm = [(u, n) for n in range(4) for u in (2, 0, 1)]
    for k, (u, n) in enumerate(dm):
        addx(14 + 2 * k, [[], rl_dma(u, n)])
    for n in range(6):
        addx(33 + n, [["s_lshl_b32 s41, s53, 2", "s_add_u32 s41, s41, s3", "s_mul_i32 s41, s41, 5248", f"s_add_u32 s41, s41, {1024*n}",
                       "s_add_u32 s42, s55, 12288", "s_mov_b32 m0, s42", "s_nop 0",
                       ("vm", "pf", f"buffer_load_dwordx4 v{vL16}, s[32:35], s41 offen lds")]])
    seqw = [(u, q) for u in range(3) for q in range(4)]
    for k, (u, q) in enumerate(seqw):
        t_ = 46 + 4 * k
        addx(t_ - 1, [([("wait", "rl")] if k == 0 else []) + rl_rd(u, q)])
        addx(t_, [[], rl_st(u, q)])
    addx(40, [["s_add_u32 s43, s52, s53", "s_and_b32 s43, s43, 7", "s_lshl_b32 s43, s43, 11", "s_mul_i32 s17, s53, 36",
               "s_add_u32 s17, s17, s3", "s_lshl_b32 s17, s17, 14", "s_add_u32 s43, s43, s17", f"s_add_u32 s43, s43, {WS_PART}"]])
    pst = [44 + 4 * k for k in range(13)] + [94, 98, 100, 102, 104]
    for k, t_ in enumerate(pst):
        addx(t_, [[], [("vm", "po", f"buffer_store_dwordx4 {ar(POI)}, v{vL16}, s[8:11], s43 offen offset:{1024*(k&1)} sc1")] +
                      (["s_add_u32 s43, s43, 65536"] if k & 1 else [])])
    for k in range(2):
        addx(71 + 4 * k, [[f"s_lshl_b32 s41, s2, 2", "s_add_u32 s41, s41, s3", f"s_mul_i32 s41, s41, {2*ROW}", f"s_add_u32 s41, s41, {ROW*k}",
                           "s_mul_i32 s42, s3, 2368", f"s_add_u32 s42, s42, {XS+1184*k}", "s_mov_b32 m0, s42", "s_nop 0",
                           ("vm", "x", f"buffer_load_dwordx4 v{vL16}, s[36:39], s41 offen lds")],
                          ["s_mov_b64 exec, 0xff", ("vm", "x", f"buffer_load_dwordx4 v{vL16}, s[36:39], s41 offen offset:1024 lds"), "s_mov_b64 exec, -1"]])
    addx(112, [["s_bfe_u32 s45, s2, 0x20001", "s_and_b32 s46, s2, 1", "s_lshl_b32 s46, s46, 8",
                "s_mul_i32 s47, s53, 73728", "s_lshr_b32 s48, s3, 1", "s_lshl_b32 s48, s48, 12", "s_add_u32 s47, s47, s48"],
               ["s_lshl_b32 s48, s45, 10", "s_add_u32 s47, s47, s48", "s_and_b32 s48, s3, 1", "s_lshl_b32 s48, s48, 9",
                "s_add_u32 s47, s47, s48", "s_add_u32 s47, s47, s46", f"s_add_u32 s47, s47, {WS_XN}"],
               ["s_mul_i32 s49, s53, 36", "s_add_u32 s49, s49, s3", "s_lshl_b32 s49, s49, 11", "s_lshl_b32 s48, s45, 9",
                "s_add_u32 s49, s49, s48", "s_add_u32 s49, s49, s46", f"s_add_u32 s49, s49, {WS_HRES}"]])
    if fused:
        addx(108, [[("wait", "po"), "s_lshl_b32 s56, s52, 7", f"s_add_u32 s56, s56, {WS_FLAG + 32 * 128}", f"v_mov_b32 v{vSrc[0]}, 1", f"v_mov_b32 v{vSrc[1]}, 0",
                    "s_cmp_lg_u32 s22, 0", "s_cbranch_scc1 K2_nosig", "s_mov_b64 exec, 1",
                    f"buffer_atomic_add v{vSrc[0]}, v{vSrc[1]}, s[8:11], s56 offen sc1", "s_mov_b64 exec, -1", ("label", "K2_nosig")]])

    def e1(p):
        o = O[p & 1]; b = (p & 1) * 10240
        return [f"ds_write_b128 v{vPw}, {vr(o)} offset:{b}", f"ds_write_b128 v{vPw}, {vr(o+4)} offset:{b+1024}",
                f"ds_write_b64 v{vPw8}, {vr(o+8,2)} offset:{b+2048}"]
    def signal(off):
        return ["s_mov_b64 exec, 1", f"ds_add_u32 v{vL4}, v{vOBr} offset:{off}", "s_mov_b64 exec, -1"]
    def chk_issue(off):
        return [f"ds_read_b32 v{vCk}, v{vL4} offset:{off}"]
    def chk_wait(off, tag):
        return ["s_waitcnt lgkmcnt(0)", ("label", f"K2_c{tag}"), f"v_readfirstlane_b32 s19, v{vCk}", f"s_cmp_ge_u32 s19, {4*OB}",
                f"s_cbranch_scc1 K2_k{tag}", f"ds_read_b32 v{vCk}, v{vL4} offset:{off}", "s_waitcnt lgkmcnt(0)",
                f"s_branch K2_c{tag}", ("label", f"K2_k{tag}")]
    def rdP(p):
        o = O[p & 1]; b = (p & 1) * 10240
        L = []
        for k in range(4):
            L.append(f"ds_read_b64 {vr(o+4*k,2)}, v{vPr} offset:{b+2560*k}")
            L.append(f"ds_read_b64 {vr(o+4*k+2,2)}, v{vPr8} offset:{b+2560*k+2048}")
        return L
    def red(p):
        o = O[p & 1]
        L = ["s_waitcnt lgkmcnt(0)"]
        for q in (2, 0):
            L.append(f"v_pk_add_f32 {vr(o+q,2)}, {vr(o+q,2)}, {vr(o+4+q,2)}")
            L.append(f"v_pk_add_f32 {vr(o+8+q,2)}, {vr(o+8+q,2)}, {vr(o+12+q,2)}")
            L.append(f"v_pk_add_f32 {vr(o+q,2)}, {vr(o+q,2)}, {vr(o+8+q,2)}")
            if q == 2:
                L.append(f"v_rcp_f32 v{o+6}, v{o+3}")
        L.append(f"v_subrev_u32 v{o+7}, {f32bits(2.0**-60)}, v{o+3}")
        L.append(f"v_pk_mul_f32 {vr(o,2)}, {vr(o,2)}, {vr(o+6,2)} op_sel_hi:[1,0]")
        L.append(f"v_cmp_lt_u32 vcc, {120 << 23}, v{o+7}")
        L.append(f"v_mul_f32 v{o+2}, v{o+6}, v{o+2}")
        L.append(f"v_cvt_pk_bf16_f32 v{o}, v{o}, v{o+1}")
        L.append(f"v_cvt_pk_bf16_f32 v{o+2}, v{o+2}, v{o+2}")
        L.append(f"ds_write_b32 v{vOw}, v{o} offset:{OB+1024*p}")
        L.append(f"ds_write_b16 v{vLo}, v{o+2} offset:{128*p}")
        L.append(f"s_or_b32 s23, s23, vcc_lo")
        L.append(f"s_or_b32 s23, s23, vcc_hi")
        return L
    def ldWA(ks, buf):
        return [[f"s_add_u32 s41, s40, {t*4*18*1024 + ks*1024}",
                 ("vm", ("wa", ks), f"buffer_load_dwordx4 {WAv[buf][t]}, v{vL16}, s[32:35], s41 offen")] for t in range(9)]
    def rdWB(ks, wb):
        return [f"ds_read_b128 {vr(wb)}, v{vOBr} offset:{512*ks}"]
    first_wo = [True]
    def woM(ks, buf, wb):
        L = []
        for t in range(9):
            c = "0" if first_wo[0] else vr(WACC + 4 * t)
            L.append(f"v_mfma_f32_16x16x32_bf16 {vr(WACC+4*t)}, {WAv[buf][t]}, {vr(wb)}, {c}")
        first_wo[0] = False
        return L
    kso = [0, 1, 2, 3, 4, 5, 6, 7, 16, 8, 9, 10, 11, 12, 13, 14, 15, 17]
    ust = [50, 55, 60, 65, 70, 75, 80, 85, 90, 96, 101, 107, 112, 120, 123]
    womf = {}
    for n, tu in enumerate(ust):
        ks = kso[n]
        if ks < 16: assert tu >= 16 * (ks // 2) + 23, (ks, tu)
        mf = woM(ks, n % 3, WBB[n & 1])
        for k in range(3):
            womf[tu + k] = (mf[3 * k:3 * k + 3], ks if k == 0 else None)
        pre = []
        if ks < 16 and ks % 2 == 0:
            addx(tu - 2, [chk_issue(CR + 2 * ks)])
            pre = chk_wait(CR + 2 * ks, f"r{ks}")
        addx(tu - 1, [pre, rdWB(ks, WBB[n & 1])])
    for n in range(18):
        t0 = [40, 43, 46][n] if n < 3 else ust[n - 3] + 3
        G = ldWA(kso[n], n % 3)
        nst = 3 if n < 16 else 2
        per = -(-9 // nst)
        for k in range(nst):
            if t0 + k < 128: addx(t0 + k, G[per * k:per * k + per])
            else: extra.setdefault("tail", []).extend(G[per * k:per * k + per])
    addx(127, [[f"ds_read_b64 {vr(S[0]+2*t_,2)}, v{vX} offset:{128*t_}" for t_ in range(4 * k, min(4 * k + 4, 8))] for k in range(2)] +
              [[f"ds_read_b64 {vr(K2F,2)}, v{vX} offset:{128*8}"]])

    NT = 8 * NS
    for t in range(NT):
        p, s = divmod(t, NS)
        m = [ex(t, 0), ex(t, 1)]
        m += [pv(t - 1, 1)] if t > 0 else ["s_nop 0"]
        m += [ex(t, i) for i in range(2, 7)]
        m += [qk1(t + 1)] if t < NT - 1 else ["s_nop 0"]
        m += [ex(t, 7)] + [cv(t, i) for i in range(4)] + [ex(t, 8), ex(t, 9)]
        m += [qk2(t + 1)] if t < NT - 1 else ["s_nop 0"]
        m += [ex(t, i) for i in range(10, 15)]
        m += [pv(t, 0)]
        m += [ex(t, 15)] + [cv(t, i) for i in range(4, 8)]
        sd = {i: [] for i in range(29)}
        sd[0].append("s_nop 0")
        if Opt.DBG and Opt.STEP and t % 2 == 0:
            sd[0].append("s_memtime s[88:89]" if False else "s_memtime s[100:101]")
            sd[27] += ["s_waitcnt lgkmcnt(0)", f"v_writelane_b32 v3, s100, {t // 2}"]
        G = []
        if p == 0:
            if s + 1 < NS:
                sd[8].append(("wait", ("k", s + 1)))
                if (s + 1) % 4 == 0:
                    sd[8] += fixK2(s + 1)
            sd[22].append(("wait", ("v", s)))
            if s + 5 < NS: G += ldK(s + 5)
            if s + 4 < NS: G += ldV(s + 4)
            if s == 7:
                sd[28] += ["s_waitcnt lgkmcnt(0)", "s_barrier"]
        if s == 10 and p < 7:
            G += [[x] for x in rdQ(p + 1)]
        if s == NS - 1 and p < 7:
            sd[8].append("s_waitcnt lgkmcnt(0)")
        if p >= 1:
            if s == 0:
                for i, it in enumerate(e1(p - 1)):
                    sd[17 + 4 * i].append(it)
                sd[27] += signal(CP + 4 * (p - 1))
            if s == 2:
                sd[10] += chk_issue(CP + 4 * (p - 1))
                if p in (1, 4, 7):
                    sd[0].append(("stamp", {1: 3, 4: 4, 7: 5}[p]))
            if s == 3:
                sd[1] += chk_wait(CP + 4 * (p - 1), f"p{p}")
                G += chunks(rdP(p - 1), 2)
            if s == 4:
                sd[12] += red(p - 1)[:-4]
                G = [[None]] * 0 + G
                for k_, x_ in enumerate(red(p - 1)[-4:]): sd[18 + k_].append(x_)
                sd[24] += signal(CR + 4 * (p - 1))
        if t in womf:
            mf, ks = womf[t]
            if ks is not None:
                sd[6] += [("wait", ("wa", ks), " lgkmcnt(0)")]
            for pos, it in zip((6, 14, 20), mf):
                sd[pos].append(it)
        G += extra.get(t, [])
        atoms = []
        for g_ in G:
            solid = any((not isinstance(x, str) and x[0] == "label") or (isinstance(x, str) and "exec" in x) for x in g_)
            if solid: atoms.append(g_)
            else: atoms += [[x] for x in g_]
        slots = [1, 2, 4, 5, 6, 7, 8, 10, 15, 16, 18, 19, 20, 21, 22, 24] if len(atoms) <= 16 else list(range(1, 28))
        for i, g_ in enumerate(atoms):
            sd[slots[i * len(slots) // len(atoms)]] += g_
        for it in weave(m, sd):
            a.emit(it)
    a("s_nop 1")
    a(pv(NT - 1, 1))
    EG(extra.get("tail", []))
    XR = [S[0] + i for i in range(16)] + [K2F, K2F + 1]
    vG, vTok, vS2, vA, vB, vC_ = QR[0] + 1, QR[0] + 2, QR[0] + 3, QR[0] + 4, QR[0] + 5, QR[0] + 6
    a(f"v_bfe_u32 v{vG}, v0, 4, 2")
    a(f"v_and_b32 v{vTok}, 7, v0")
    a(f"v_lshlrev_b32 v{vS2}, 6, v{vG}")
    a(f"v_lshl_add_u32 v{vS2}, v{vTok}, 3, v{vS2}")
    a(f"v_and_b32 v{vA}, 8, v0")
    a(f"v_cmp_eq_u32 s[50:51], 0, v{vA}")
    a(f"v_mov_b32 v{vA}, s47")
    a(f"v_mov_b32 v{vB}, s49")
    a(f"v_cndmask_b32_e64 v{vA}, v{vA}, v{vB}, s[50:51]")
    a(f"v_add_u32 v{vS2}, v{vS2}, v{vA}")
    a(f"v_lshlrev_b32 v{vA}, 3, v{vTok}")
    a(f"v_add_u32 v{vA}, {STAT}, v{vA}")
    for it in e1(7):
        a(it)
    a("s_lshl_b32 s17, s3, 6")
    a(f"v_add_u32 v{vB}, s17, v{vA}")
    a(f"v_and_b32 v{vC_}, 3, v0")
    a(f"v_lshlrev_b32 v{vC_}, 2, v{vC_}")
    a("s_waitcnt lgkmcnt(0)")
    a("s_barrier")
    a.stamp(6)
    for it in rdP(7): a(it)
    XF = S[1]
    def xadd(lo, hi):
        for i in range(lo, hi):
            f_ = XF + 2 * (i % 4)
            a(f"v_lshlrev_b32 v{f_}, 16, v{XR[i]}")
            a(f"v_and_b32 v{f_+1}, 0xffff0000, v{XR[i]}")
            a(f"v_pk_add_f32 {vr(WACC+2*i,2)}, {vr(WACC+2*i,2)}, {vr(f_,2)}")
    xadd(0, 7)
    for it in red(7): a(it)
    xadd(7, 12)
    a("s_waitcnt lgkmcnt(0)")
    a("s_barrier")
    WBs = [WBB[0], WBB[1], P]
    for ks, wb in zip((14, 15, 17), WBs):
        a(rdWB(ks, wb)[0])
    a("s_lshl_b32 s17, s3, 2")
    a(f"s_add_u32 s17, s17, {STAT+512}")
    a(f"v_mov_b32 v{vT0}, s17")
    a(f"v_mov_b32 v{vT1}, s23")
    a("s_mov_b64 exec, 1")
    a(f"ds_write_b32 v{vT0}, v{vT1}")
    a("s_mov_b64 exec, -1")
    xadd(12, 18)
    a.waitvm(("wa", 17), " lgkmcnt(1)")
    SS = O[0]
    mm = [woM(kso[n], n % 3, wb) for n, wb in zip((15, 16, 17), WBs)]
    def stat(t):
        L = []
        for q in range(2):
            r_ = WACC + 4 * t + 2 * q
            if t == 0 and q == 0:
                L.append(f"v_pk_mul_f32 {vr(SS+2,2)}, {vr(r_,2)}, {vr(r_,2)}")
            else:
                L.append(f"v_pk_add_f32 {vr(SS,2)}, {vr(WACC if (t == 0) else SS,2)}, {vr(r_,2)}")
                L.append(f"v_pk_fma_f32 {vr(SS+2,2)}, {vr(r_,2)}, {vr(r_,2)}, {vr(SS+2,2)}")
        return L
    for t in range(9):
        st = stat(t - 3) if t >= 3 else []
        for k in range(3):
            a(mm[k][t])
            for x_ in ([], st[:2], st[2:])[k]: a(x_)
    a("s_nop 1")
    for t in range(6, 9):
        for x_ in stat(t): a(x_)
    a(f"v_add_f32 v{SS}, v{SS}, v{SS+1}")
    a(f"v_add_f32 v{SS+1}, v{SS+2}, v{SS+3}")
    for sw in ("v_permlane16_swap_b32", "v_permlane32_swap_b32"):
        a(f"v_mov_b32 v{SS+2}, v{SS}")
        a(f"v_mov_b32 v{SS+3}, v{SS+1}")
        a("s_nop 0")
        a(f"{sw} v{SS}, v{SS+2}")
        a(f"{sw} v{SS+1}, v{SS+3}")
        a("s_nop 0")
        a(f"v_pk_add_f32 {vr(SS,2)}, {vr(SS,2)}, {vr(SS+2,2)}")
    a("s_mov_b64 exec, 0xff")
    a(f"ds_write_b64 v{vB}, {vr(SS,2)}")
    a("s_mov_b64 exec, -1")
    a("s_waitcnt lgkmcnt(0)")
    a("s_barrier")
    a.stamp(7)
    RS = S[1]
    for k in range(4):
        a(f"ds_read_b64 {vr(RS+2*k,2)}, v{vA} offset:{64*k}")
    a(f"ds_read_b32 v{SS+4}, v{vC_} offset:{STAT+512}")
    a(f"v_mov_b32 v{SS+2}, {f32bits(1e-5)}")
    a("s_waitcnt lgkmcnt(0)")
    a(f"v_cmp_ne_u32 vcc, 0, v{SS+4}")
    a(f"v_pk_add_f32 {vr(RS,2)}, {vr(RS,2)}, {vr(RS+2,2)}")
    a(f"v_pk_add_f32 {vr(RS+4,2)}, {vr(RS+4,2)}, {vr(RS+6,2)}")
    a(f"v_pk_add_f32 {vr(SS,2)}, {vr(RS,2)}, {vr(RS+4,2)}")
    a(f"v_mul_f32 v{SS}, {f32bits(-1.0/576)}, v{SS}")
    a(f"v_fmac_f32 v{SS+2}, {f32bits(1.0/576)}, v{SS+1}")
    a("s_mov_b32 s23, vcc_lo")
    a(f"v_fma_f32 v{SS+2}, -v{SS}, v{SS}, v{SS+2}")
    a(f"v_max_f32 v{SS+2}, {f32bits(1e-5)}, v{SS+2}")
    a(f"v_rsq_f32 v{SS+2}, v{SS+2}")
    a("s_cmp_lg_u32 s22, 0")
    a("s_cselect_b32 s23, 0, s23")
    a("s_cmp_lg_u32 s23, 0")
    a("s_cbranch_scc1 K2_slow")
    a(f"v_mul_f32 v{SS}, v{SS}, v{SS+2}")
    a(f"v_cndmask_b32_e64 v{SS+2}, v{SS+2}, 1.0, s[50:51]")
    a(f"v_cndmask_b32_e64 v{SS}, v{SS}, 0, s[50:51]")
    HP = S[0]
    for t in range(9):
        for q in range(2):
            r_ = WACC + 4 * t + 2 * q
            a(f"v_pk_fma_f32 {vr(r_,2)}, {vr(r_,2)}, {vr(SS+2,2)}, {vr(SS,2)} op_sel_hi:[1,0,0]")
        for q in range(2):
            r_ = WACC + 4 * t + 2 * q
            a(f"v_cvt_pk_bf16_f32 v{HP+2*t+q}, v{r_}, v{r_+1}")
        a(f"s_mov_b32 s17, {8192*t}")
        a.vm("xs", f"buffer_store_dwordx2 {vr(HP+2*t,2)}, v{vS2}, s[8:11], s17 offen{' sc1' if fused else Opt.XST}")
    if Opt.DBG:
        a("s_lshl_b32 s100, s2, 3")
        a("s_add_u32 s100, s100, s3")
        a("s_lshl_b32 s100, s100, 8")
        a(f"s_add_u32 s100, s100, {WS_DBG + 8 * 4096 * 64}")
        a(f"buffer_store_dword v3, v{vL4}, s[8:11], s100 offen")

    def slow():
        a.label("K2_slow")
        a("v_and_b32 v3, 31, v0")
        a(f"buffer_load_dwordx4 {vr(K2F)}, v{vK2}, s[12:15], s28 offen")
        a(f"v_lshlrev_b32 v{vT0}, 2, v3")
        a(f"v_add_u32 v{vT0}, {MX}, v{vT0}")
        a(f"v_mov_b32 v{vT1}, 0xff800000")
        a("s_lshl_b32 s17, s3, 8")
        a(f"v_add_u32 v{vCk}, s17, v{vT0}")
        a(f"ds_write_b32 v{vCk}, v{vT1}")
        a(f"ds_write_b32 v{vCk}, v{vT1} offset:128")
        a(f"v_mov_b32 v{vT3}, v{vL16}")
        a(f"v_mov_b32 v{vPr}, v{vL4}")
        a(f"v_mov_b32 v{vT2}, 0x3f803f80")
        a("s_mov_b32 s17, 0")
        a("s_waitcnt vmcnt(0) lgkmcnt(0)")
        for it in fixK2(0): a(it)
        a("s_barrier")
        a.label("K2_mx")
        a(f"ds_read_b128 {vr(QR[0])}, v{vT3} offset:{QB}")
        a(f"ds_read2st64_b32 {vr(QR[0]+4,2)}, v{vPr} offset0:4 offset1:5")
        a(f"ds_read2st64_b32 {vr(QR[0]+6,2)}, v{vPr} offset0:5 offset1:4")
        a(f"v_mov_b32 v{vT1}, 0xff800000")
        a("s_waitcnt lgkmcnt(0)")
        for s in range(NS):
            a(qk1(s)); a(qk2(s))
            a("s_nop 7"); a("s_nop 7")
            for i in range(8):
                a(f"v_max3_f32 v{vT1}, v{vT1}, v{S[s&1]+2*i}, v{S[s&1]+2*i+1}")
        a(f"ds_max_f32 v{vT0}, v{vT1}")
        a(f"v_add_u32 v{vT0}, 128, v{vT0}")
        a(f"v_add_u32 v{vT3}, 1536, v{vT3}")
        a(f"v_add_u32 v{vPr}, 1536, v{vPr}")
        a("s_add_u32 s17, s17, 1")
        a("s_cmp_lt_u32 s17, 8")
        a("s_cbranch_scc1 K2_mx")
        a("s_waitcnt lgkmcnt(0)")
        a("s_barrier")
        a("s_mul_i32 s17, s3, 3072")
        a(f"v_add_u32 v{vT3}, s17, v{vL4}")
        T = S[0]
        for k in range(2):
            a(f"ds_read_b32 v{vT1}, v{vCk} offset:{128*k}")
            a("s_waitcnt lgkmcnt(0)")
            a(f"v_sub_f32 v{vT1}, 0, v{vT1}")
            a(f"v_and_b32 v{T}, 0xffff0000, v{vT1}")
            a(f"v_sub_f32 v{vT1}, v{vT1}, v{T}")
            a(f"v_and_b32 v{T+1}, 0xffff0000, v{vT1}")
            a(f"v_sub_f32 v{vT1}, v{vT1}, v{T+1}")
            a(f"v_lshrrev_b32 v{T}, 16, v{T}")
            a(f"v_or_b32 v{T}, v{T}, v{T+1}")
            a(f"v_lshrrev_b32 v{T+1}, 16, v{vT1}")
            a("s_not_b64 exec, s[20:21]")
            a(f"ds_write_b32 v{vT3}, v{T} offset:{QB+1024+1536*k}")
            a(f"ds_write_b32 v{vT3}, v{T+1} offset:{QB+1280+1536*k}")
            a("s_mov_b64 exec, -1")
            a("s_waitcnt lgkmcnt(0)")
        a("s_mov_b32 s22, 1")
        a("s_barrier")
        a("s_branch K2_main")
    return slow

def k2(a):
    K = "k2_kernel"
    a.begin(K)
    a.guard("K2")
    a.stamp(0); a.stampc(10)
    slow = attn(a, False)
    a.end(2, 8, 8)
    slow()
    a.label("K2_end")
    a("s_endpgm")
    return K, desc(K, 512, 256), (256, 256, LDS)
```

```python
from common import *
RING = 36
RB = 104
BV = 72
ACC = [40, 56]
TMP = 248
BIAS = 16
B1R = 24
ACCP = 16
LZ = 32
HOFF = 72 * 1024
LDS = HOFF + 72 * 1024
NF = 324

def bfrag(f):
    return ar(4 * f) if f < 64 else vr(BV + 4 * (f - 64))
def b1reg(n):
    return B1R + 2 * n if n < 8 else 14
def slot(i):
    return RB + (i % RING) * 4

def k3(a):
    K = "k3_kernel"
    a.begin(K)
    a.guard("K3")
    a.stamp(0); a.stampc(10)
    a(f"s_load_dwordx2 s[4:5], s[0:1], {A_WS}")
    a(f"s_load_dwordx2 s[6:7], s[0:1], {A_B1}")
    a(f"s_load_dwordx4 s[24:27], s[0:1], {A_B2}")
    a("v_lshrrev_b32 v1, 6, v0")
    a("v_and_b32 v2, 63, v0")
    a("v_readfirstlane_b32 s3, v1")
    a("v_and_b32 v3, 15, v0")
    a("v_bfe_u32 v4, v0, 4, 2")
    a("v_lshlrev_b32 v5, 4, v2")
    for k in range(1, 5):
        a(f"v_add_u32 v{5+k}, {4096*k}, v5")
    a("v_lshlrev_b32 v12, 3, v4")
    a("v_and_b32 v10, 0x23, v2")
    a("v_lshlrev_b32 v10, 4, v10")
    a("v_bfe_u32 v11, v2, 3, 2")
    a("v_lshl_add_u32 v10, v11, 6, v10")
    a("v_bfe_u32 v11, v2, 2, 1")
    a("v_lshl_add_u32 v10, v11, 8, v10")
    if Opt.EXP == "badmap":
        a("s_lshr_b32 s28, s2, 5")
        a("s_and_b32 s29, s2, 31")
    else:
        a("s_and_b32 s28, s2, 7")
        a("s_lshr_b32 s29, s2, 3")
    a("s_mul_i32 s31, s29, 73728")
    a("s_lshl_b32 s30, s3, 10")
    a("s_add_u32 s31, s31, s30")
    a(f"s_add_u32 s31, s31, {WS_XN}")
    a("s_mul_i32 s60, s28, 36")
    a("s_mul_i32 s59, s3, 9")
    a("s_mul_i32 s61, s29, 57")
    a("s_lshr_b32 s61, s61, 9")
    a("s_mul_i32 s61, s61, 9")
    a("s_sub_u32 s61, s29, s61")
    def g1par(n):
        a(f"s_add_u32 s{50+n}, s61, {n}")
        a(f"s_cmp_ge_u32 s{50+n}, 9")
        a(f"s_cselect_b32 s62, 9, 0")
        a(f"s_sub_u32 s{50+n}, s{50+n}, s62")
        a(f"s_add_u32 s{50+n}, s{50+n}, s59")
        a(f"s_add_u32 s62, s{50+n}, s60")
        a(f"s_mul_i32 s62, s62, {18*1024}")
        a(f"s_add_u32 s{32+n}, s62, {WS_W1F}")
    g1par(0); g1par(1)
    a.pad("K3", 1)
    a("s_waitcnt lgkmcnt(0)")
    a.srd(8, 4, WS_SIZE)
    a.srd(12, 6, 4608 * 2)
    def load(i):
        t, kk = divmod(i, 18)
        if Opt.EXP == "halfld" and i >= 36 and i % 2 == 0: return []
        if Opt.EXP == "nold3" and i >= 36 and i % 18 != 17: return []
        return [("vm", ("A", i), f"buffer_load_dwordx4 {vr(slot(i))}, v{5 + kk // 4}, s[8:11], s{32+t} offen offset:{(kk%4)*1024}")]
    def dmax(kk):
        return ["s_mov_b32 m0, s30", "s_add_u32 s30, s30, 4096",
                ("vm", ("X", kk), "buffer_load_dwordx4 v10, s[8:11], s31 offen lds"), "s_add_u32 s31, s31, 4096"]
    def ldb1(n):
        return [f"s_add_u32 s62, s{50+n}, s60", f"s_lshl_b32 s62, s62, 5",
                ("vm", ("b1", n), f"buffer_load_dwordx2 {vr(b1reg(n),2)}, v12, s[12:15], s62 offen")]
    def E(L):
        for x in L: a.emit(x)
    a("s_cmp_lg_u32 s3, 3")
    a("s_cbranch_scc1 K3_nopf")
    a.codepf("k3_kernel", "K3_end", 29, 5, TMP, 86)
    a.vmq.pop()
    a.label("K3_nopf")
    for kk in range(3): E(dmax(kk))
    E(ldb1(0)); E(ldb1(1))
    E(load(0)); E(load(18))
    for kk in range(3, 6): E(dmax(kk))
    for kk in range(1, 3): E(load(kk)); E(load(18 + kk))
    a.pad("K3", 2)
    for n in range(2, 9): g1par(n)
    a.srd(16, 24, 576 * 2)
    a.srd(20, 26, 2048 * ROW)
    a("s_add_u32 s28, s28, s29")
    a("s_and_b32 s28, s28, 7")
    for n in range(9):
        if n == 0:
            a(f"s_mov_b32 s{64+n}, 8")
        else:
            a(f"s_add_u32 s{64+n}, s28, {n}")
            a(f"s_and_b32 s{64+n}, s{64+n}, 7")
        a(f"s_lshl_b32 s62, s{64+n}, 2")
        a(f"s_add_u32 s62, s62, s3")
        a(f"s_add_u32 s62, s62, s60")
        a(f"s_mul_i32 s62, s62, {18*1024}")
        a(f"s_add_u32 s{41+n}, s62, {WS_W2F}")
    a.pad("K3", 3)
    a("s_mov_b32 s75, 0x00003f80")
    a("s_mov_b32 s76, 0x3f800000")
    a(f"v_lshlrev_b32 v{TMP+7}, 3, v2")
    a(f"v_add_u32 v11, {HOFF}, v5")
    a(f"v_add_u32 v13, {HOFF+36864}, v5")
    a("s_mul_i32 s78, s29, 36")
    a("s_add_u32 s78, s78, s3")
    a("s_lshl_b32 s77, s78, 14")
    a(f"s_add_u32 s77, s77, {WS_PART}")
    a("s_lshl_b32 s78, s78, 11")
    a(f"s_add_u32 s78, s78, {WS_HRES}")
    a("s_lshl_b32 s79, s28, 11")
    a("s_add_u32 s79, s79, s77")
    a("s_lshl_b32 s84, s28, 16")
    a("s_add_u32 s84, s84, s77")
    a("s_lshl_b32 s62, s28, 7")
    a("s_lshl_b32 s63, s3, 5")
    a("s_add_u32 s82, s62, s63")
    a("s_add_u32 s83, s63, 1024")
    a("s_and_b32 s73, s28, 1")
    a("s_lshl_b32 s73, s73, 10")
    a("s_add_u32 s85, s73, s77")
    a(f"s_add_u32 s85, s85, {8*65536}")
    a("s_lshr_b32 s62, s28, 1")
    a("s_cmp_eq_u32 s62, s3")
    a("s_cselect_b32 s80, 1, 0")
    a("s_lshl_b32 s74, s80, 8")
    a("s_or_b32 s74, s74, 0xfe")
    def unpack(src, dst):
        return [f"v_lshlrev_b32 v{dst}, 16, v{src}", f"v_and_b32 v{dst+1}, 0xffff0000, v{src}",
                f"v_lshlrev_b32 v{dst+2}, 16, v{src+1}", f"v_and_b32 v{dst+3}, 0xffff0000, v{src+1}"]
    def g1_epilogue(n):
        acc = ACC[n % 2]
        L = [f"s_lshr_b32 s63, s{50+n}, 1", f"s_lshl_b32 s63, s63, 12", f"s_and_b32 s62, s{50+n}, 1",
             f"s_lshl_b32 s62, s62, 3", f"s_add_u32 s62, s62, s63", f"v_add_u32 v{TMP}, s62, v11"]
        for tt in range(4):
            for r in range(4):
                L.append(f"v_mul_f32 v{acc+4*tt+r}, v{acc+4*tt+r}, abs(v{acc+4*tt+r})")
            L.append(f"v_cvt_pk_bf16_f32 v{acc+4*tt}, v{acc+4*tt}, v{acc+4*tt+1}")
            L.append(f"v_cvt_pk_bf16_f32 v{acc+4*tt+1}, v{acc+4*tt+2}, v{acc+4*tt+3}")
            L.append(f"v_pk_max_i16 v{acc+4*tt}, v{acc+4*tt}, 0")
            L.append(f"v_pk_max_i16 v{acc+4*tt+1}, v{acc+4*tt+1}, 0")
            L.append(f"ds_write_b64 v{TMP}, {vr(acc+4*tt,2)} offset:{1024*tt}")
        return L
    def g2_epilogue(n):
        acc = ACC[(9 + n) % 2]
        L = [f"s_lshl_b32 s62, s{64+n}, 16", f"s_add_u32 s62, s62, s79"]
        for hf in range(2):
            for tt in (2 * hf, 2 * hf + 1):
                L.append(f"v_cvt_pk_bf16_f32 v{TMP+2*tt}, v{acc+4*tt}, v{acc+4*tt+1}")
                L.append(f"v_cvt_pk_bf16_f32 v{TMP+2*tt+1}, v{acc+4*tt+2}, v{acc+4*tt+3}")
            L.append(("vm", "st", f"buffer_store_dwordx4 {vr(TMP+4*hf)}, v5, s[8:11], s62 offen offset:{1024*hf}{Opt.PST}"))
        return L
    def fetch(n, lz, track=True):
        L = [f"s_lshl_b32 s63, s{64+8-n}, 11", "s_add_u32 s63, s63, s84"]
        for hf in range(2):
            s_ = f"buffer_load_dwordx4 {vr(lz+4*hf)}, v5, s[8:11], s63 offen offset:{1024*hf} sc1"
            L.append(("vm", ("P", n), s_) if track else s_)
        return L
    vC = 14
    def check(regs, bit):
        L = [f"v_max3_i32 v{vC}, v{regs[0]}, v{regs[1]}, v{regs[2]}"]
        k = 3
        while k + 1 < len(regs):
            L.append(f"v_max3_i32 v{vC}, v{vC}, v{regs[k]}, v{regs[k+1]}"); k += 2
        if k < len(regs):
            L.append(f"v_max_i32 v{vC}, v{vC}, v{regs[k]}")
        L.append(f"v_cmp_eq_i32 vcc, {POISON}, v{vC}")
        L.append("v_nop"); L.append("v_nop")
        L += ["s_cmp_eq_u64 vcc, 0", "s_cselect_b32 s86, s75, 0", "s_cselect_b32 s87, s76, 0",
              f"s_cselect_b32 s62, {1 << bit}, 0", "s_andn2_b32 s74, s74, s62"]
        return L
    def accum(lz, dst, n):
        L = []
        for q in range(n):
            L.append(f"v_dot2_f32_bf16 v{dst+2*q}, v{lz+q}, s86, v{dst+2*q}")
            L.append(f"v_dot2_f32_bf16 v{dst+2*q+1}, v{lz+q}, s87, v{dst+2*q+1}")
        return L
    def accum2(lz, dst, n):
        L = []
        for q in range(n):
            t_ = 10
            L += [f"v_lshlrev_b32 v{t_}, 16, v{lz+q}", f"v_and_b32 v{t_+1}, 0xffff0000, v{lz+q}",
                  f"v_fmac_f32 v{dst+2*q}, s87, v{t_}", f"v_fmac_f32 v{dst+2*q+1}, s87, v{t_+1}"]
        return L
    def take(n, lz, track=True, shadow=False):
        return ([("wait", ("P", n))] if track else []) + check(list(range(lz, lz + 8)), n) + (accum2 if shadow else accum)(lz, ACCP, 8)
    LZs = {1: slot(304), 2: LZ, 3: slot(288), 4: slot(296), 5: slot(298), 6: slot(300), 7: slot(302)}
    def dfetch(n):
        L = [f"s_lshl_b32 s63, s{64+8-n}, 11", "s_add_u32 s63, s63, s84", f"s_add_u32 s30, s31, {2048*(n-1)}", "s_mov_b32 m0, s30", "s_nop 0"]
        for hf in range(2):
            L.append(("vm", ("P", n), f"buffer_load_dwordx4 v5, s[8:11], s63 offen offset:{1024*hf} sc1 lds"))
        return L
    def dfetch_sh():
        L = ["s_cmp_eq_u32 s80, 0", "s_cbranch_scc1 K3_nosh0"]
        for k in range(8):
            L += [f"s_add_u32 s63, s85, {2048*k}", f"s_add_u32 s30, s31, {10240+1024*k}", "s_mov_b32 m0, s30", "s_nop 0",
                  "buffer_load_dwordx4 v5, s[8:11], s63 offen sc1 lds"]
        return L + [("label", "K3_nosh0")]
    def lread(n, lz):
        return [("wait", ("P", n))] + [f"ds_read_b128 {vr(lz+4*hf)}, v12 offset:{2048*(n-1)+1024*hf}" for hf in range(2)]
    def ltake(n, lz):
        return lread(n, lz) + [None] * 4 + ["s_waitcnt lgkmcnt(0)"] + take(n, lz, False, True)
    SH = slot(306)
    SX = slot(290)
    A8 = SX + 8
    def fetch_share(track=True):
        L = []
        for n in range(8):
            L += [f"s_add_u32 s63, s85, {2048*n}", f"buffer_load_dwordx4 {vr(SH+4*n)}, v5, s[8:11], s63 offen sc1"]
        return L

    a.waitvm(("b1", 1))
    E(unpack(b1reg(0), BIAS) + unpack(b1reg(1), BIAS + 4))
    def rdB(f, lo, hi):
        a(f"ds_read_b128 {bfrag(f)}, v{lo if f < 36 else hi} offset:{(f%36)*1024}")
    def rdX(f):
        a(f"ds_read2st64_b64 {bfrag(f)}, v{TMP+7} offset0:{2*f} offset1:{2*f+1}")
    seq = []
    for kk in range(12): seq += [kk, 18 + kk]
    seq += list(range(12, 18)) + list(range(30, NF))
    pend = []
    post = {}
    def addpost(i, L): post.setdefault(i, []).extend(L)
    for kk in range(12):
        addpost(kk, dmax(kk + 6) + load(kk + 3)); addpost(18 + kk, load(18 + kk + 3))
    for kk in range(9, 12):
        addpost(18 + kk, load(kk + 6))
    for kk in range(12, 15):
        addpost(kk, load(18 + kk + 3))
    nxt = 36
    LA0, CH_ = Opt.LA0, Opt.CHAIN
    consumed = set()
    for pos, fr in enumerate(seq):
        consumed.add(fr)
        if pos < 36 - LA0: continue
        depth = min(RING - CH_ + 1, Opt.LAM, LA0 + max(0, pos - 36) // Opt.LAG)
        target = min(NF, pos + 1 + depth)
        k_ = 0
        while nxt < target and k_ < 2:
            old = nxt - RING
            ok = old in consumed and (old < 36 or (old - old % CH_ + CH_ - 1) in consumed)
            if not ok: break
            addpost(fr, load(nxt)); nxt += 1; k_ += 1
    assert nxt == NF, nxt
    for n in range(2, 9):
        addpost(18 + n, ldb1(n))
    addpost(9 * 18 + 2, [("vm", "b2", f"buffer_load_dwordx2 v[14:15], v12, s[16:19], s82 offen"),
                         "s_lshl_b32 s62, s28, 13", "s_add_u32 s62, s62, s78",
                         "v_lshrrev_b32 v2, 3, v3", "v_lshlrev_b32 v2, 8, v2", "v_lshl_add_u32 v2, v4, 6, v2",
                         "v_and_b32 v10, 7, v3", "v_lshl_add_u32 v2, v10, 3, v2"] +
                        [("vm", "hr", f"buffer_load_dwordx2 {vr(LZ+2*tt,2)}, v2, s[8:11], s62 offen offset:{512*tt}") for tt in range(4)])
    addpost(13 * 18, ["s_mul_i32 s31, s3, 18432", "v_add_u32 v12, s31, v5"])
    addpost(13 * 18 + 16, dfetch_sh())
    for n in range(1, 6):
        addpost((12 + n) * 18 + 16, dfetch(n))
    addpost(16 * 18 + 15, ["v_lshlrev_b32 v3, 3, v4", "s_add_u32 s62, s78, s73", f"s_add_u32 s62, s62, {8*8192}",
                          ("vm", "sh0", f"buffer_load_dwordx2 {vr(SX,2)}, v2, s[8:11], s62 offen"),
                          ("vm", "sh0", f"buffer_load_dwordx2 {vr(SX+2,2)}, v2, s[8:11], s62 offen offset:512"),
                          ("vm", "sh0", f"buffer_load_dwordx2 {vr(SX+4,2)}, v3, s[16:19], s83 offen")])
    def take_share():
        L = check(list(range(SH, SH + 32)), 8)
        for n in range(8):
            L += accum(SH + 4 * n, A8, 4)
        return L
    for i in seq:
        t, kk = divmod(i, 18)
        extra = ""
        if t == 0:
            if kk % 3 == 0:
                a.waitvm(("X", kk + 2))
                if kk == 0: a.stamp(1)
                a("s_barrier")
                if kk == 0: a.stamp(2)
                if kk == 12: a.stamp(3)
                for f in range(4 * kk, 4 * kk + 12):
                    rdX(f)
            extra = f" lgkmcnt({8 - 4 * (kk % 3)})"
        if t == 9:
            if kk == 0:
                a("s_nop 7")
                E(g1_epilogue(8))
                a("s_waitcnt lgkmcnt(0)")
                a.stamp(4)
                a("s_barrier")
                for f in range(12):
                    rdB(f, 11, 13)
            elif 4 * kk + 8 < 72:
                for f in range(4 * kk + 8, 4 * kk + 12):
                    rdB(f, 11, 13)
            rem = min(72, 4 * kk + 12) - (4 * kk + 4)
            extra = f" lgkmcnt({rem})"
        if Opt.DBG and kk == 0 and t not in (0, 1, 9):
            a("s_memtime s[100:101]")
        if Opt.DBG and kk == 9 and t not in (0, 1, 9):
            a("s_waitcnt lgkmcnt(0)")
            a(f"v_writelane_b32 v1, s100, {t}")
        CH = Opt.CHAIN
        chain = CH > 1 and t >= 2 and t != 9
        if Opt.EXP in ("halfld", "nold3") and ("A", i + (CH - 1 if chain else 0)) not in a.vmq:
            if extra: a("s_waitcnt" + extra)
        elif not chain: a.waitvm(("A", i), extra)
        elif kk % CH == 0: a.waitvm(("A", i + CH - 1), extra)
        acc = ACC[t % 2]
        rate = 1
        if i == 30:
            pend = [None] + g1_epilogue(0) + [("wait", ("b1", 2))] + unpack(b1reg(2), BIAS)
        if t == 1: rate = 2
        if kk == 1 and t >= 2:
            assert not pend
            if t <= 8: pend += g1_epilogue(t - 1)
            if t >= 10: pend += g2_epilogue(t - 10)
            if t < 8: pend += unpack(b1reg(t + 1), BIAS + 4 * ((t + 1) % 2))
            if t == 11:
                pend += [("wait", "hr")] + unpack(14, 10)
                for q in range(0, 8, 2):
                    pend += unpack(LZ + q, ACCP + 2 * q)
            if t == 12:
                pend += [f"v_add_f32 v{ACCP+q}, v{ACCP+q}, v{10+q%4}" for q in range(16)]
            if t == 16: pend += ltake(1, LZ)
            if t == 17:
                pend += ltake(2, LZ) + [None] * 8 + ltake(3, LZs[3])
        if t >= 16: rate = 2 if kk >= 5 else 1
        for tt in range(4):
            k2, t2 = kk, tt
            if chain:
                e_ = (kk % CH) * 4 + tt
                k2, t2 = kk - kk % CH + e_ % CH, e_ // CH
            if k2 == 0:
                c = vr(BIAS + 4 * (t % 2)) if t < 9 else "0"
            else:
                c = vr(acc + 4 * t2)
            if Opt.EXP == "halfmm" and k2 % 2 == 1: a("s_nop 0")
            else: a(f"v_mfma_f32_16x16x32_bf16 {vr(acc+4*t2)}, {vr(slot(18*t+k2))}, {bfrag(k2*4+t2)}, {c}")
            if (kk >= 2 and (tt < 3 or rate == 2)) or (kk == 1 and tt == 3 and t >= 10):
                for _ in range(rate):
                    while pend:
                        s = pend.pop(0)
                        if s is None: break
                        a.emit(s)
                        if not (isinstance(s, str) and s.startswith("s_")): break
        if kk == 17 and 1 <= t < 17:
            assert not pend, (t, pend)
        E(post.get(i, []))
    accO = ACC[17 % 2]
    a.stamp(5)
    for n in (6, 7):
        E(fetch(n, LZs[n]))
    E([x for x in pend if x is not None])
    a("v_and_b32 v3, 15, v0")
    a("v_lshlrev_b32 v11, 5, v3")
    a("v_lshl_add_u32 v11, v4, 3, v11")
    a("v_add_u32 v11, s31, v11")
    a("v_bfe_u32 v10, v0, 1, 5")
    a(f"v_mul_u32_u24 v10, {ROW}, v10")
    a("v_and_b32 v13, 1, v0")
    a("v_lshl_add_u32 v10, v13, 4, v10")
    a(f"s_mul_i32 s30, s29, {64*ROW}")
    a("s_add_u32 s82, s30, s82")
    a("s_and_b32 s62, s28, 1")
    a(f"s_mul_i32 s62, s62, {32*ROW}")
    a("s_add_u32 s62, s62, s30")
    a("s_add_u32 s83, s83, s62")
    E(lread(4, LZs[4]))
    a("s_cmp_eq_u32 s80, 0")
    a("s_cbranch_scc1 K3_nosh1")
    for k in range(8):
        a(f"ds_read_b128 {vr(SH+4*k)}, v12 offset:{10240+1024*k}")
    E(unpack(SX + 4, A8) + unpack(SX + 4, A8 + 4))
    for q in range(4):
        a(f"v_dot2_f32_bf16 v{A8+2*q}, v{SX+q}, s75, v{A8+2*q}")
        a(f"v_dot2_f32_bf16 v{A8+2*q+1}, v{SX+q}, s76, v{A8+2*q+1}")
    a("s_waitcnt lgkmcnt(0)")
    E(take_share())
    a.label("K3_nosh1")
    a("s_waitcnt lgkmcnt(0)")
    E(take(4, LZs[4], False))
    E(lread(5, LZs[5]))
    E(take(6, LZs[6]))
    a("s_waitcnt lgkmcnt(0)")
    E(take(5, LZs[5], False))
    E(take(7, LZs[7]))
    a.stamp(6)
    a(f"s_mov_b32 s88, {Opt.PBOUND}")
    LZt = LZs
    a.label("K3_poll")
    a("s_cmp_eq_u32 s74, 0")
    a("s_cbranch_scc1 K3_done")
    a("s_sub_u32 s88, s88, 1")
    a("s_cmp_eq_u32 s88, 0")
    a("s_cbranch_scc1 K3_done")
    a("s_mov_b32 s31, s74")
    for n in range(1, 9):
        a(f"s_bitcmp0_b32 s31, {n}")
        a(f"s_cbranch_scc1 K3_pf{n}")
        E(fetch(n, LZt[n], False) if n < 8 else fetch_share(False))
        a.label(f"K3_pf{n}")
    a("s_waitcnt vmcnt(0)")
    for n in range(1, 9):
        a(f"s_bitcmp0_b32 s31, {n}")
        a(f"s_cbranch_scc1 K3_pt{n}")
        E(take(n, LZt[n], False) if n < 8 else take_share())
        a.label(f"K3_pt{n}")
    a("s_branch K3_poll")
    a.label("K3_done")
    a.stamp(7)
    a("s_nop 1")
    for tt in range(4):
        for q in range(2):
            a(f"v_pk_add_f32 {vr(accO+4*tt+2*q,2)}, {vr(accO+4*tt+2*q,2)}, {vr(ACCP+4*tt+2*q,2)}")
        a(f"v_cvt_pk_bf16_f32 v{TMP+2*tt}, v{accO+4*tt}, v{accO+4*tt+1}")
        a(f"v_cvt_pk_bf16_f32 v{TMP+2*tt+1}, v{accO+4*tt+2}, v{accO+4*tt+3}")
        a(f"ds_write_b64 v11, {vr(TMP+2*tt,2)} offset:{512*tt}")
        if tt & 1:
            a(f"ds_read_b128 {vr(LZ+2*(tt-1))}, v12 offset:{512*(tt-1)}")
    a("s_cmp_eq_u32 s80, 0")
    a("s_cbranch_scc1 K3_nosh3")
    for tt in range(2):
        a(f"v_cvt_pk_bf16_f32 v{A8+4*tt}, v{A8+4*tt}, v{A8+4*tt+1}")
        a(f"v_cvt_pk_bf16_f32 v{A8+4*tt+1}, v{A8+4*tt+2}, v{A8+4*tt+3}")
        a(f"ds_write_b64 v11, {vr(A8+4*tt,2)} offset:{2048+512*tt}")
    a(f"ds_read_b128 {vr(SX)}, v12 offset:2048")
    a("s_waitcnt lgkmcnt(0)")
    a(f"buffer_store_dwordx4 {vr(SX)}, v10, s[20:23], s83 offen")
    a.label("K3_nosh3")
    a(f"s_add_u32 s83, s82, {32*ROW}")
    a("s_waitcnt lgkmcnt(0)")
    a(f"buffer_store_dwordx4 {vr(LZ)}, v10, s[20:23], s82 offen")
    a(f"buffer_store_dwordx4 {vr(LZ+4)}, v10, s[20:23], s83 offen")
    if Opt.DBG:
        a("s_getreg_b32 s100, hwreg(HW_REG_XCC_ID)")
        a("v_writelane_b32 v1, s100, 0")
        a("v_writelane_b32 v1, s88, 1")
        a("s_lshl_b32 s100, s2, 2")
        a("s_add_u32 s100, s100, s3")
        a("s_lshl_b32 s100, s100, 8")
        a(f"s_add_u32 s100, s100, {WS_DBG + 6 * 4096 * 64}")
        a("v_lshrrev_b32 v2, 2, v5")
        a("buffer_store_dword v1, v2, s[8:11], s100 offen")
    a.end(4, 8, 4)
    a.label("K3_end")
    a("s_endpgm")
    return K, desc(K, 512, 256), (256, 256, LDS)
```

```python
from common import *
RING = 11
RB = 68
BF = 112
ACC = [36, 52]
EXL = 28
BIAS = 20
ACCP = 20
B1R = 16
TMP = 16
HOFF = 0
EX0 = 72 * 1024
XOFF = EX0 + 16384
LND = XOFF + 16384
LDS = XOFF + 72 * 1024
NF = 162
CH = 3

def bfrag(k, j): return vr(BF + 4 * (4 * k + j))
def slot(i): return RB + (i % RING) * 4

def ffn(a, fused, vWC=None):
    SC = " sc1" if fused else ""
    def E(L):
        for x in L: a.emit(x)
    a(f"s_load_dwordx2 s[6:7], s[0:1], {A_B1}")
    a(f"s_load_dwordx4 s[24:27], s[0:1], {A_B2}")
    if not fused:
        a(f"s_load_dwordx2 s[4:5], s[0:1], {A_WS}")
        a("v_lshrrev_b32 v1, 6, v0")
        a("s_nop 0")
        a("v_readfirstlane_b32 s3, v1")
    a("v_and_b32 v2, 63, v0")
    a("v_and_b32 v3, 15, v0")
    a("v_bfe_u32 v4, v0, 4, 2")
    a("v_lshlrev_b32 v5, 4, v2")
    a("v_add_u32 v6, 4096, v5")
    a("v_add_u32 v7, 8192, v5")
    a("v_lshlrev_b32 v12, 3, v4")
    a("v_and_b32 v10, 0x23, v2")
    a("v_lshlrev_b32 v10, 4, v10")
    a("v_bfe_u32 v11, v2, 3, 2")
    a("v_lshl_add_u32 v10, v11, 6, v10")
    a("v_bfe_u32 v11, v2, 2, 1")
    a("v_lshl_add_u32 v10, v11, 8, v10")
    a("s_and_b32 s28, s2, 7")
    a("s_lshr_b32 s29, s2, 3")
    a("s_and_b32 s52, s3, 3")
    a("s_lshr_b32 s53, s3, 2")
    a("s_mul_i32 s30, s53, 36864")
    a("s_lshl_b32 s62, s52, 10")
    a("s_add_u32 s30, s30, s62")
    a("s_mul_i32 s31, s29, 73728")
    a("s_add_u32 s31, s31, s30")
    a(f"s_add_u32 s31, s31, {WS_XN}")
    a(f"s_add_u32 s30, s30, {XOFF}")
    a("s_mul_i32 s60, s28, 36")
    a("s_mul_i32 s59, s52, 9")
    a("s_mul_i32 s61, s29, 57")
    a("s_lshr_b32 s61, s61, 9")
    a("s_mul_i32 s61, s61, 9")
    a("s_sub_u32 s61, s29, s61")
    a("s_mul_i32 s58, s53, 9216")
    def tloc(n, d):
        return [f"s_add_u32 s{d}, s61, {n}", f"s_cmp_ge_u32 s{d}, 9", "s_cselect_b32 s62, 9, 0", f"s_sub_u32 s{d}, s{d}, s62", f"s_add_u32 s{d}, s{d}, s59"]
    def g1par(n):
        E(tloc(n, 63))
        a("s_add_u32 s62, s63, s60")
        a(f"s_mul_i32 s62, s62, {18*1024}")
        a("s_add_u32 s62, s62, s58")
        a(f"s_add_u32 s{32+n}, s62, {WS_W1F}")
    g1par(0); g1par(1)
    a("s_waitcnt lgkmcnt(0)")
    if not fused: a.srd(8, 4, WS_SIZE)
    a.srd(12, 6, 4608 * 2)
    def load(i):
        t, k = divmod(i, 9)
        return [("vm", ("A", i), f"buffer_load_dwordx4 {vr(slot(i))}, v{5 + k // 4}, s[8:11], s{32+t} offen offset:{(k%4)*1024}{SC}")]
    def dmax(k):
        return ["s_mov_b32 m0, s30", "s_add_u32 s30, s30, 4096",
                ("vm", ("X", k), f"buffer_load_dwordx4 v10, s[8:11], s31 offen{SC} lds"), "s_add_u32 s31, s31, 4096"]
    def ldb1(n):
        return tloc(n, 63) + ["s_add_u32 s62, s63, s60", "s_lshl_b32 s62, s62, 5",
                ("vm", ("b1", n), f"buffer_load_dwordx2 {vr(B1R+2*(n&1),2)}, v12, s[12:15], s62 offen")]
    def setup():
        for n in range(2, 9): g1par(n)
        a.srd(16, 24, 576 * 2)
        a.srd(20, 26, 2048 * ROW)
        a("s_add_u32 s28, s28, s29")
        a("s_and_b32 s28, s28, 7")
        for n in range(9):
            if n == 0:
                a(f"s_mov_b32 s{64+n}, 8")
            else:
                a(f"s_add_u32 s{64+n}, s28, {n}")
                a(f"s_and_b32 s{64+n}, s{64+n}, 7")
            a(f"s_lshl_b32 s62, s{64+n}, 2")
            a("s_add_u32 s62, s62, s52")
            a("s_add_u32 s62, s62, s60")
            a(f"s_mul_i32 s62, s62, {18*1024}")
            a("s_add_u32 s62, s62, s58")
            a(f"s_add_u32 s{41+n}, s62, {WS_W2F}")
        a("s_mov_b32 s75, 0x00003f80")
        a("s_mov_b32 s76, 0x3f800000")
        a("s_mul_i32 s54, s53, 38912")
        a("s_mul_i32 s55, s53, 34816")
        a("s_add_u32 s55, s55, 2048")
        a("v_lshlrev_b32 v9, 3, v2")
        a(f"v_add_u32 v9, {XOFF}, v9")
        a("v_add_u32 v8, s54, v9")
        a("v_add_u32 v9, s55, v9")
        a("s_lshl_b32 s62, s3, 11")
        a(f"s_add_u32 s62, s62, {EX0}")
        a("v_add_u32 v13, s62, v5")
        a("s_xor_b32 s62, s3, 4")
        a("s_lshl_b32 s62, s62, 11")
        a(f"s_add_u32 s62, s62, {EX0}")
        a("v_add_u32 v14, s62, v5")
        a("s_lshl_b32 s56, s53, 10")
        a("s_mul_i32 s78, s29, 36")
        a("s_add_u32 s78, s78, s52")
        a("s_lshl_b32 s77, s78, 14")
        a("s_add_u32 s77, s77, s56")
        a(f"s_add_u32 s77, s77, {WS_PART}")
        a("s_lshl_b32 s78, s78, 11")
        a("s_add_u32 s78, s78, s56")
        a(f"s_add_u32 s78, s78, {WS_HRES}")
        a("s_lshl_b32 s79, s28, 11")
        a("s_add_u32 s79, s79, s77")
        a("s_lshl_b32 s84, s28, 16")
        a("s_add_u32 s84, s84, s77")
        a(f"s_add_u32 s85, s77, {8*65536}")
        a("s_lshl_b32 s62, s28, 7")
        a("s_lshl_b32 s63, s52, 5")
        a("s_add_u32 s82, s62, s63")
        a("s_add_u32 s83, s63, 1024")
        a("s_lshl_b32 s62, s52, 1")
        a("s_add_u32 s62, s62, s53")
        a("s_cmp_eq_u32 s62, s28")
        a("s_cselect_b32 s80, 1, 0")
        a("s_lshl_b32 s74, s80, 8")
        a("s_or_b32 s74, s74, 0xfe")
        a("s_mul_i32 s57, s3, 5120")
        a(f"s_add_u32 s57, s57, {LND}")
    if not fused:
        a("s_cmp_lg_u32 s3, 7")
        a("s_cbranch_scc1 K3_nopf")
        a.codepf("k3_kernel", "K3_end", 29, 5, EXL, 86)
        a.vmq.pop()
        a.label("K3_nopf")
        for k in range(3): E(dmax(k))
        E(ldb1(0))
        for i in range(3): E(load(i))
        for k in range(3, 6): E(dmax(k))
        setup()
        pre_x, pre_a = 6, 3
    else:
        a("s_lshl_b32 s63, s28, 7")
        a(f"s_add_u32 s63, s63, {WS_FLAG + 32 * 128}")
        a("v_mov_b32 v15, 0")
        a(f"s_mov_b32 s88, {Opt.PBOUND}")
        a.waitvm("wc")
        a.label("K3_wp")
        a(f"v_readfirstlane_b32 s62, v{vWC}")
        a("s_cmp_ge_u32 s62, 32")
        a("s_cbranch_scc1 K3_wok")
        a(f"buffer_load_dword v{vWC}, v15, s[8:11], s63 offen sc1")
        a("s_sub_u32 s88, s88, 1")
        a("s_cmp_lg_u32 s88, 0")
        a("s_waitcnt vmcnt(0)")
        a("s_cbranch_scc1 K3_wp")
        a.label("K3_wok")
        E(ldb1(0))
        for i in range(RING): E(load(i))
        setup()
        a("s_lshl_b32 s63, s29, 7")
        a(f"s_add_u32 s63, s63, {WS_FLAG}")
        a("v_mov_b32 v11, 1")
        a.waitvm("xs")
        a.stamp(1)
        a("s_barrier")
        a("s_cmp_lg_u32 s3, 0")
        a("s_cbranch_scc1 K3_nosig")
        a("s_mov_b64 exec, 1")
        a("buffer_atomic_add v11, v15, s[8:11], s63 offen sc1")
        a("s_mov_b64 exec, -1")
        a.label("K3_nosig")
        a(f"s_mov_b32 s88, {Opt.PBOUND}")
        a.label("K3_xp")
        a(f"buffer_load_dword v{EXL}, v15, s[8:11], s63 offen sc1")
        a("s_sub_u32 s88, s88, 1")
        a("s_waitcnt vmcnt(0)")
        a(f"v_readfirstlane_b32 s62, v{EXL}")
        a("s_cmp_ge_u32 s62, 8")
        a("s_cbranch_scc1 K3_xok")
        a("s_cmp_lg_u32 s88, 0")
        a("s_cbranch_scc1 K3_xp")
        a.label("K3_xok")
        a.stamp(2)
        for k in range(Opt.PX): E(dmax(k))
        pre_x, pre_a = Opt.PX, RING
    def unpack(src, dst):
        return [f"v_lshlrev_b32 v{dst}, 16, v{src}", f"v_and_b32 v{dst+1}, 0xffff0000, v{src}",
                f"v_lshlrev_b32 v{dst+2}, 16, v{src+1}", f"v_and_b32 v{dst+3}, 0xffff0000, v{src+1}"]
    def exw(t):
        acc = ACC[t % 2]
        return [f"ds_write_b128 v13, {vr(acc+8+4*h)} offset:{16384*(t&1)+1024*h}" for h in range(2)]
    def exr(t):
        return [f"ds_read_b128 {vr(EXL+4*h)}, v14 offset:{16384*(t&1)+1024*h}" for h in range(2)]
    def exadd(t):
        acc = ACC[t % 2]
        return ["s_waitcnt lgkmcnt(0)"] + [f"v_add_f32 v{acc+r}, v{acc+r}, v{EXL+r}" for r in range(8)]
    def g1_epilogue(n):
        acc = ACC[n % 2]
        L = tloc(n, 63) + ["s_lshr_b32 s62, s63, 1", "s_lshl_b32 s62, s62, 12", "s_and_b32 s63, s63, 1", "s_lshl_b32 s63, s63, 3",
                           "s_add_u32 s62, s62, s63", "s_add_u32 s62, s62, s56", "s_add_u32 s62, s62, s56", "v_add_u32 v15, s62, v5"]
        L += exadd(n)
        for j in range(2):
            for r in range(4):
                L.append(f"v_mul_f32 v{acc+4*j+r}, v{acc+4*j+r}, abs(v{acc+4*j+r})")
            L.append(f"v_cvt_pk_bf16_f32 v{acc+4*j}, v{acc+4*j}, v{acc+4*j+1}")
            L.append(f"v_cvt_pk_bf16_f32 v{acc+4*j+1}, v{acc+4*j+2}, v{acc+4*j+3}")
            L.append(f"v_pk_max_i16 v{acc+4*j}, v{acc+4*j}, 0")
            L.append(f"v_pk_max_i16 v{acc+4*j+1}, v{acc+4*j+1}, 0")
            L.append(f"ds_write_b64 v15, {vr(acc+4*j,2)} offset:{HOFF+1024*j}")
        return L
    def g2_epilogue(n):
        acc = ACC[(9 + n) % 2]
        L = exadd(9 + n) + [f"v_cvt_pk_bf16_f32 v{TMP+q}, v{acc+2*q}, v{acc+2*q+1}" for q in range(4)]
        L += [f"s_lshl_b32 s62, s{64+n}, 16", "s_add_u32 s62, s62, s79",
              ("vm", "st", f"buffer_store_dwordx4 {vr(TMP)}, v5, s[8:11], s62 offen sc1")]
        return L
    vC = 15
    def check(regs, bit):
        L = [f"v_max3_i32 v{vC}, v{regs[0]}, v{regs[1]}, v{regs[2]}"]
        k = 3
        while k + 1 < len(regs):
            L.append(f"v_max3_i32 v{vC}, v{vC}, v{regs[k]}, v{regs[k+1]}"); k += 2
        if k < len(regs):
            L.append(f"v_max_i32 v{vC}, v{vC}, v{regs[k]}")
        L.append(f"v_cmp_eq_i32 vcc, {POISON}, v{vC}")
        L.append("v_nop"); L.append("v_nop")
        L += ["s_cmp_eq_u64 vcc, 0", "s_cselect_b32 s86, s75, 0", "s_cselect_b32 s87, s76, 0",
              f"s_cselect_b32 s62, {1 << bit}, 0", "s_andn2_b32 s74, s74, s62"]
        return L
    def accum(lz, dst, n):
        L = []
        for q in range(n):
            L.append(f"v_dot2_f32_bf16 v{dst+2*q}, v{lz+q}, s86, v{dst+2*q}")
            L.append(f"v_dot2_f32_bf16 v{dst+2*q+1}, v{lz+q}, s87, v{dst+2*q+1}")
        return L
    def accum2(lz, dst, n):
        L = []
        for q in range(n):
            L += [f"v_lshlrev_b32 v10, 16, v{lz+q}", f"v_and_b32 v11, 0xffff0000, v{lz+q}",
                  f"v_fmac_f32 v{dst+2*q}, s87, v10", f"v_fmac_f32 v{dst+2*q+1}, s87, v11"]
        return L
    def take(n, lz, track=True, shadow=False):
        return ([("wait", ("P", n))] if track else []) + check(list(range(lz, lz + 4)), n) + (accum2 if shadow else accum)(lz, ACCP, 4)
    def fetch(n, lz, track=True):
        s_ = f"buffer_load_dwordx4 {vr(lz)}, v5, s[8:11], s63 offen sc1"
        return [f"s_lshl_b32 s63, s{64+8-n}, 11", "s_add_u32 s63, s63, s84", ("vm", ("P", n), s_) if track else s_]
    def dfetch(n):
        return [f"s_lshl_b32 s63, s{64+8-n}, 11", "s_add_u32 s63, s63, s84", f"s_add_u32 s30, s57, {1024*(n-1)}", "s_mov_b32 m0, s30", "s_nop 0",
                ("vm", ("P", n), "buffer_load_dwordx4 v5, s[8:11], s63 offen sc1 lds")]
    SHL = LND + 8 * 5120
    def dfetch_sh():
        L = ["s_cmp_eq_u32 s80, 0", "s_cbranch_scc1 K3_nosh0"]
        for k in range(8):
            L += [f"s_add_u32 s63, s85, {2048*k}", f"s_mov_b32 m0, {SHL+1024*k}", "s_nop 0", "buffer_load_dwordx4 v5, s[8:11], s63 offen sc1 lds"]
        return L + [("label", "K3_nosh0")]
    def lread(n, lz):
        return [("wait", ("P", n)), f"ds_read_b128 {vr(lz)}, v12 offset:{1024*(n-1)}"]
    def ltake(n):
        return lread(n, EXL) + [None] * 3 + ["s_waitcnt lgkmcnt(0)"] + take(n, EXL, False, True)
    LZs = {n: BF + 4 * n for n in range(1, 8)}
    SH = BF + 32
    SX = BF + 64
    A8 = BF + 72
    def fetch_share():
        L = []
        for n in range(8):
            L += [f"s_add_u32 s63, s85, {2048*n}", f"buffer_load_dwordx4 {vr(SH+4*n)}, v5, s[8:11], s63 offen sc1"]
        return L
    def take_share():
        L = check(list(range(SH, SH + 32)), 8)
        for n in range(8):
            L += accum(SH + 4 * n, A8, 4)
        return L
    def rdX(k, j):
        o = (k * 4096 + (j & 1) * 1024) // 512
        a(f"ds_read2st64_b64 {bfrag(k, j)}, v{8 + (j >> 1)} offset0:{o} offset1:{o+1}")
    def rdH(k, j):
        a(f"ds_read_b128 {bfrag(k, j)}, v{8 + (j >> 1)} offset:{k*4096+(j&1)*1024}")
    a.waitvm(("b1", 0))
    E(unpack(B1R, BIAS))
    post = {}
    def addpost(i, L): post.setdefault(i, []).extend(L)
    for k in range(pre_x, 9):
        addpost((k - pre_x) // 3 if fused else k - pre_x, dmax(k))
    nxt = pre_a
    for i in range(NF):
        t = i // 9
        k_ = 0
        while nxt < NF and k_ < 2:
            old = nxt - RING
            last_use = old if old // 9 in (0, 9) else old - old % CH + CH - 1
            if old >= 0 and last_use > i: break
            if fused and i < 3: break
            addpost(i, load(nxt)); nxt += 1; k_ += 1
    assert nxt == NF
    for n in range(1, 9):
        addpost(9 * (n - 1), ldb1(n))
    addpost(9 * 9 + 1, [("vm", "b2", f"buffer_load_dwordx2 v[10:11], v12, s[16:19], s82 offen"),
                        "s_lshl_b32 s62, s28, 13", "s_add_u32 s62, s62, s78",
                        "v_lshrrev_b32 v2, 3, v3", "v_lshlrev_b32 v2, 8, v2", "v_lshl_add_u32 v2, v4, 6, v2",
                        "v_and_b32 v15, 7, v3", "v_lshl_add_u32 v2, v15, 3, v2"] +
                       [("vm", "hr", f"buffer_load_dwordx2 {vr(TMP+2*j,2)}, v2, s[8:11], s62 offen offset:{512*j}{SC}") for j in range(2)])
    addpost(12 * 9, ["v_add_u32 v12, s57, v5"])
    addpost(13 * 9 + 8, dfetch_sh())
    for n in range(1, 6):
        addpost((12 + n) * 9 + 8, dfetch(n))
    pend = []
    for i in range(NF):
        t, k = divmod(i, 9)
        extra = ""
        first = t in (0, 9)
        if t == 0:
            cs = [0, 1, 3, 6, 9] if fused else [0, 3, 6, 9]
            if k in cs:
                ke = cs[cs.index(k) + 1]
                a.waitvm(("X", ke - 1))
                if k == 0 and not fused: a.stamp(1)
                a("s_barrier")
                if k == 0: a.stamp(3 if fused else 2)
                for kk in range(k, ke):
                    for j in range(4): rdX(kk, j)
            extra = f" lgkmcnt({4 * (ke - 1 - k)})"
        if t == 9:
            if k == 0:
                assert not pend
                a("v_add_u32 v8, s54, v5")
                a("v_add_u32 v9, s55, v5")
                a("s_nop 3")
                E(exw(8))
                a("s_waitcnt lgkmcnt(0)")
                a("s_barrier")
                E(exr(8) + g1_epilogue(8))
                a("s_waitcnt lgkmcnt(0)")
                a.stamp(4)
                a("s_barrier")
                for kk in range(3):
                    for j in range(4): rdH(kk, j)
            elif k + 2 < 9:
                for j in range(4): rdH(k + 2, j)
            extra = f" lgkmcnt({4 * min(2, 8 - k)})"
        if first: a.waitvm(("A", i), extra)
        elif k % CH == 0: a.waitvm(("A", i + CH - 1))
        acc = ACC[t % 2]
        if k == 0 and not first:
            assert not pend, (t, pend)
            pend = [None] * 4 + exw(t - 1) + [None] * 4 + ["BAR"] + exr(t - 1) + [None] * 3
            pend += g1_epilogue(t - 1) if t <= 8 else g2_epilogue(t - 10)
            if t == 10:
                pend = [("wait", "hr")] + unpack(TMP, ACCP) + unpack(TMP + 2, ACCP + 4) + unpack(10, EXL) + \
                       [f"v_add_f32 v{ACCP+q}, v{ACCP+q}, v{EXL+q%4}" for q in range(8)] + pend[4:]
            if t == 16: pend += ltake(1)
            if t == 17: pend += ltake(2)
        if k == 0 and t < 8:
            pend += ([None] * 30 if t == 0 else []) + [("wait", ("b1", t + 1))] + unpack(B1R + 2 * ((t + 1) & 1), BIAS + 4 * ((t + 1) % 2))
        for e4 in range(4):
            if first:
                k2, j2 = k, (2, 3, 0, 1)[e4]
            else:
                e_ = (k % CH) * 4 + e4
                k2, j2 = k - k % CH + e_ % CH, (2, 3, 0, 1)[e_ // CH]
            if k2 == 0:
                c = vr(BIAS + 4 * (t % 2)) if (t < 9 and j2 < 2) else "0"
            else:
                c = vr(acc + 4 * j2)
            a(f"v_mfma_f32_16x16x32_bf16 {vr(acc+4*j2)}, {vr(slot(9*t+k2))}, {bfrag(k2, j2)}, {c}")
            for _ in range(2):
                while pend:
                    s = pend.pop(0)
                    if s is None: break
                    if s == "BAR":
                        a("s_waitcnt lgkmcnt(0)"); a("s_barrier"); break
                    a.emit(s)
                    if not (isinstance(s, str) and s.startswith("s_")): break
        E(post.get(i, []))
    assert not pend, pend
    accO = ACC[17 % 2]
    a.stamp(5)
    for n in (6, 7):
        E(fetch(n, LZs[n]))
    E(exw(17))
    a("v_lshlrev_b32 v10, 3, v4")
    a(f"s_add_u32 s62, s78, {8*8192}")
    a.vm("sh0", f"buffer_load_dwordx2 {vr(SX,2)}, v2, s[8:11], s62 offen{SC}")
    a.vm("sh0", f"buffer_load_dwordx2 {vr(SX+2,2)}, v2, s[8:11], s62 offen offset:512{SC}")
    a.vm("sh0", f"buffer_load_dwordx2 {vr(SX+4,2)}, v10, s[16:19], s83 offen")
    E(lread(3, LZs[3]) + lread(4, LZs[4]))
    a(f"v_mul_u32_u24 v10, {ROW}, v3")
    a("v_lshl_add_u32 v10, v4, 3, v10")
    a(f"s_mul_i32 s30, s29, {64*ROW}")
    a(f"s_mul_i32 s62, s53, {32*ROW}")
    a("s_add_u32 s30, s30, s62")
    a("s_add_u32 s82, s30, s82")
    a("s_add_u32 s83, s30, s83")
    a("s_waitcnt lgkmcnt(0)")
    a("s_barrier")
    E(exr(17))
    E(take(3, LZs[3], False) + take(4, LZs[4], False))
    E(exadd(17))
    a("s_cmp_eq_u32 s80, 0")
    a("s_cbranch_scc1 K3_nosh1")
    a(f"v_add_u32 v11, {SHL}, v5")
    for k in range(8):
        a(f"ds_read_b128 {vr(SH+4*k)}, v11 offset:{1024*k}")
    for q in range(8):
        a(f"v_mov_b32 v{A8+q}, 0")
    a("s_waitcnt lgkmcnt(0)")
    E(take_share())
    a.label("K3_nosh1")
    E(lread(5, LZs[5]))
    E(take(6, LZs[6]))
    a("s_waitcnt lgkmcnt(0)")
    E(take(5, LZs[5], False))
    E(take(7, LZs[7]))
    a.stamp(6)
    a(f"s_mov_b32 s88, {Opt.PBOUND}")
    a.label("K3_poll")
    a("s_cmp_eq_u32 s74, 0")
    a("s_cbranch_scc1 K3_done")
    a("s_sub_u32 s88, s88, 1")
    a("s_cmp_eq_u32 s88, 0")
    a("s_cbranch_scc1 K3_done")
    a("s_mov_b32 s31, s74")
    for n in range(1, 9):
        a(f"s_bitcmp0_b32 s31, {n}")
        a(f"s_cbranch_scc1 K3_pf{n}")
        E(fetch(n, LZs[n], False) if n < 8 else fetch_share())
        a.label(f"K3_pf{n}")
    a("s_waitcnt vmcnt(0)")
    for n in range(1, 9):
        a(f"s_bitcmp0_b32 s31, {n}")
        a(f"s_cbranch_scc1 K3_pt{n}")
        E(take(n, LZs[n], False) if n < 8 else take_share())
        a.label(f"K3_pt{n}")
    a("s_branch K3_poll")
    a.label("K3_done")
    a.stamp(7)
    a("s_nop 1")
    for j in range(2):
        for q in range(2):
            a(f"v_pk_add_f32 {vr(accO+4*j+2*q,2)}, {vr(accO+4*j+2*q,2)}, {vr(ACCP+4*j+2*q,2)}")
        a(f"v_cvt_pk_bf16_f32 v{TMP+2*j}, v{accO+4*j}, v{accO+4*j+1}")
        a(f"v_cvt_pk_bf16_f32 v{TMP+2*j+1}, v{accO+4*j+2}, v{accO+4*j+3}")
        a(f"buffer_store_dwordx2 {vr(TMP+2*j,2)}, v10, s[20:23], s82 offen")
        a(f"s_add_u32 s82, s82, {16*ROW}")
    a("s_cmp_eq_u32 s80, 0")
    a("s_cbranch_scc1 K3_nosh2")
    a("s_waitcnt vmcnt(2)")
    for q in range(4):
        a(f"v_dot2_f32_bf16 v{A8+2*q}, v{SX+q}, s75, v{A8+2*q}")
        a(f"v_dot2_f32_bf16 v{A8+2*q+1}, v{SX+q}, s76, v{A8+2*q+1}")
    for q in range(4):
        a(f"v_dot2_f32_bf16 v{A8+2*q}, v{SX+4+(q&1)}, s75, v{A8+2*q}")
        a(f"v_dot2_f32_bf16 v{A8+2*q+1}, v{SX+4+(q&1)}, s76, v{A8+2*q+1}")
    a("s_nop 2")
    for j in range(2):
        a(f"v_cvt_pk_bf16_f32 v{EXL+2*j}, v{A8+4*j}, v{A8+4*j+1}")
        a(f"v_cvt_pk_bf16_f32 v{EXL+2*j+1}, v{A8+4*j+2}, v{A8+4*j+3}")
        a(f"buffer_store_dwordx2 {vr(EXL+2*j,2)}, v10, s[20:23], s83 offen")
        a(f"s_add_u32 s83, s83, {16*ROW}")
    a.label("K3_nosh2")

def k3(a):
    K = "k3_kernel"
    a.begin(K)
    a.guard("K3")
    a.stamp(0); a.stampc(10)
    ffn(a, False)
    a.end(4, 8, 8)
    a.label("K3_end")
    a("s_endpgm")
    return K, desc(K, 256), (256, 512, LDS)
```

```python
from common import *
import relayout as RL
WIMG = 0
KVIMG = 576 * 144
XIMG = KVIMG + 576 * 16
FL = XIMG + 4 * 17 * 1024
LDS = FL + 64

def k1(a):
    K = "k1_kernel"
    a.begin(K)
    a("s_cmp_ge_u32 s2, 256")
    a("s_cbranch_scc1 K1_end")
    a.stamp(0); a.stampc(10)
    a(f"s_load_dwordx4 s[4:7], s[0:1], {A_X}")
    a(f"s_load_dwordx4 s[8:11], s[0:1], {A_WK}")
    a(f"s_load_dwordx2 s[12:13], s[0:1], {A_WS}")
    a(f"s_load_dwordx2 s[52:53], s[0:1], {A_WO}")
    a("v_lshrrev_b32 v1, 6, v0")
    a("v_and_b32 v2, 63, v0")
    a("v_readfirstlane_b32 s3, v1")
    a("v_and_b32 v3, 15, v0")
    a("v_bfe_u32 v4, v0, 4, 2")
    a("s_and_b32 s14, s2, 31")
    a("s_lshr_b32 s15, s2, 5")
    a("s_lshr_b32 s48, s14, 3")
    a("s_lshl_b32 s48, s48, 1")
    a("s_add_u32 s48, s48, s15")
    a("s_cmp_ge_u32 s48, 9")
    a("s_cselect_b32 s49, 9, 0")
    a("s_sub_u32 s48, s48, s49")
    a("s_cmp_lt_u32 s3, 4")
    a("s_cbranch_scc1 K1_compute")
    a("s_sub_u32 s50, s3, 4")
    a("s_lshl_b32 s34, s50, 2")
    a(f"s_add_u32 s34, s34, {FL}")
    a("v_mov_b32 v21, s34")
    a("v_mov_b32 v22, 0")
    a("ds_write_b32 v21, v22")
    a("ds_write_b32 v21, v22 offset:16")
    def pattern(vq, vd, stride, usec):
        if usec:
            a(f"v_mul_u32_u24 v10, 7282, v{vq}")
            a("v_lshrrev_b32 v10, 16, v10")
            a("v_mul_u32_u24 v11, 9, v10")
            a(f"v_sub_u32 v11, v{vq}, v11")
        else:
            a(f"v_mov_b32 v10, v{vq}")
        a("v_and_b32 v12, 1, v10")
        a("v_bfe_u32 v13, v10, 1, 2")
        a("v_lshl_or_b32 v12, v12, 2, v13")
        a("v_and_or_b32 v10, v10, -8, v12")
        a(f"v_mul_u32_u24 v{vd}, {stride}, v10")
        if usec:
            a(f"v_lshl_add_u32 v{vd}, v11, 4, v{vd}")
    a("v_and_b32 v9, 255, v0")
    pattern(9, 6, ROW, True)
    a("v_add_u32 v9, 256, v9")
    pattern(9, 7, ROW, True)
    a("v_add_u32 v9, 512, v2")
    pattern(9, 8, ROW, True)
    pattern(2, 9, 36, False)
    a("s_cmp_eq_u32 s50, 1")
    a("s_cselect_b64 vcc, -1, 0")
    a("v_lshrrev_b32 v5, 2, v2")
    a(f"v_mul_u32_u24 v5, {ROW}, v5")
    a("v_sub_u32 v10, 0, v4")
    a("v_xor_b32 v10, v10, v2")
    a("v_and_b32 v10, 3, v10")
    a("v_lshl_add_u32 v5, v10, 4, v5")
    a("v_cndmask_b32 v8, v8, v9, vcc")
    a("s_mul_i32 s33, s15, 144")
    a("s_lshl_b32 s32, s14, 2")
    a("s_add_u32 s32, s32, s50")
    a(f"s_mul_i32 s32, s32, {16*ROW}")
    a("s_mul_i32 s44, s50, 17408")
    a(f"s_add_u32 s44, s44, {XIMG}")
    a("s_lshl_b32 s35, s50, 10")
    a("s_mov_b32 s42, 0")
    a("s_cmp_lt_u32 s15, 3")
    a("s_cselect_b32 s36, 0, 3")
    a("s_waitcnt lgkmcnt(0)")
    a("s_cselect_b32 s24, s8, s10")
    a("s_cselect_b32 s25, s9, s11")
    a("s_barrier")
    a.srd(16, 4, 2048 * ROW)
    a.srd(20, 6, 576 * ROW)
    a("s_sub_u32 s36, s15, s36")
    a("s_lshl_b32 s37, s36, 4")
    a("s_cmp_ge_u32 s36, 2")
    a("s_cselect_b32 s37, 20, s37")
    a("s_cmp_eq_u32 s50, 1")
    a("s_cselect_b32 s24, s24, s6")
    a("s_cselect_b32 s25, s25, s7")
    a(f"s_cselect_b32 s26, {576*36}, s22")
    a("s_mov_b32 s27, 0x00020000")
    a("s_cselect_b32 s37, s37, s33")
    a(f"s_mov_b32 s41, {64*ROW}")
    a(f"s_cselect_b32 s41, {64*36}, s41")
    a("s_mov_b32 s38, 8192")
    a(f"s_cselect_b32 s38, {KVIMG}, s38")
    a("s_mov_b32 s39, 9216")
    a("s_cselect_b32 s39, 1024, s39")
    a.stamp(1)
    a("s_lshl_b32 s45, s48, 7")
    a("s_mov_b32 s46, 9")
    if Opt.WF: a("s_branch K1_dma")
    a.label("K1_xl")
    a("s_add_u32 s34, s45, s32")
    a("s_mov_b32 m0, s44")
    a("s_add_u32 s40, s44, 960")
    a(f"buffer_load_dwordx4 v5, s[16:19], s34 offen{Opt.XNT} lds")
    a("s_sub_u32 s46, s46, 1")
    a("s_cmp_eq_u32 s46, 0")
    a("s_cbranch_scc1 K1_dma")
    a("s_mov_b32 m0, s40")
    a("s_add_u32 s44, s44, 2048")
    a(f"buffer_load_dwordx4 v5, s[16:19], s34 offen offset:64{Opt.XNT} lds")
    a("s_add_u32 s45, s45, 128")
    a(f"s_cmp_ge_u32 s45, {ROW}")
    a("s_cselect_b32 s45, 0, s45")
    a("s_branch K1_xl")
    a.label("K1_dma")
    a(f"s_mul_i32 s34, s48, {64*ROW}")
    a("s_add_u32 s34, s34, s33")
    a("s_mov_b32 m0, s35")
    a("s_add_u32 s40, s35, 4096")
    a(f"buffer_load_dwordx4 v6, s[20:23], s34 offen{Opt.QNT} lds")
    a("s_mov_b32 m0, s40")
    a("s_add_u32 s35, s35, 9216")
    a(f"buffer_load_dwordx4 v7, s[20:23], s34 offen{Opt.QNT} lds")
    a(f"s_cmp_lg_u32 s42, {Opt.WF}")
    a("s_cbranch_scc1 K1_nxf")
    a(f"v_mov_b32 v22, {Opt.WF + 2}")
    a("s_waitcnt vmcnt(2)")
    a("ds_write_b32 v21, v22 offset:16")
    a("ds_write_b32 v21, v22")
    a.label("K1_nxf")
    a("s_cmp_ge_u32 s50, 2")
    a("s_cbranch_scc1 K1_two")
    a("s_mul_i32 s34, s48, s41")
    a("s_add_u32 s34, s34, s37")
    a("s_mov_b32 m0, s38")
    a("s_add_u32 s38, s38, s39")
    a("buffer_load_dwordx4 v8, s[24:27], s34 offen lds")
    a.label("K1_two")
    a("s_add_u32 s48, s48, 1")
    a("s_cmp_ge_u32 s48, 9")
    a("s_cselect_b32 s48, 0, s48")
    a("s_add_u32 s42, s42, 1")
    if Opt.WF:
        a(f"s_cmp_lt_u32 s42, {Opt.WF}")
        a("s_cbranch_scc1 K1_dma")
        a(f"s_cmp_eq_u32 s42, {Opt.WF}")
        a("s_cbranch_scc1 K1_xl")
    a(f"s_max_u32 s40, s42, {Opt.WF + 2}")
    a("v_mov_b32 v22, s40")
    a("s_cmp_lt_u32 s42, 9")
    a("s_waitcnt vmcnt(4)")
    a("ds_write_b32 v21, v22")
    a("s_cbranch_scc1 K1_dma")
    a.stamp(2)
    a("v_mov_b32 v23, 10")
    a("v_mov_b32 v24, 11")
    a("s_waitcnt vmcnt(2)")
    a("ds_write_b32 v21, v23")
    a("s_waitcnt vmcnt(0)")
    a("ds_write_b32 v21, v24")
    a.stamp(4)
    for x_ in a.touch("K2"): a(x_)
    if Opt.DBG: a.srd(28, 12, WS_SIZE)
    a.end(1, 28, 8)
    a.label("K1_compute")
    X = 64
    RAW = 200
    a(f"v_mul_u32_u24 v5, {ROW}, v3")
    a("v_lshl_add_u32 v5, v4, 4, v5")
    a("s_lshl_b32 s32, s14, 2")
    a("s_add_u32 s32, s32, s3")
    a(f"s_mul_i32 s33, s32, {16*ROW}")
    a("s_lshl_b32 s34, s48, 7")
    a("s_sub_u32 s34, s34, 64")
    a("s_cmp_eq_u32 s48, 0")
    a(f"s_cselect_b32 s34, {ROW-64}, s34")
    a("s_add_u32 s36, s33, s34")
    a("s_waitcnt lgkmcnt(0)")
    a("s_barrier")
    a.srd(16, 4, 2048 * ROW)
    a.srd(28, 12, WS_SIZE)
    a.stamp(1)
    a("s_min_u32 s54, s2, 161")
    RL.params_wo(a, 54, 56, 64, 52)
    RL.voff_src(a, 196, 198, 56)
    RL.voff_dst(a, 197, 198)
    a("s_cmp_lt_u32 s2, 162")
    a("s_cselect_b32 s55, s3, 0")
    a(f"buffer_load_dwordx4 {vr(X+68)}, v5, s[16:19], s36 offen")
    a("v_lshrrev_b32 v7, 2, v3")
    a("v_sub_u32 v7, 0, v7")
    a("v_xor_b32 v7, v7, v4")
    a("v_and_b32 v7, 3, v7")
    a("v_lshlrev_b32 v7, 4, v7")
    a("v_lshl_add_u32 v7, v3, 6, v7")
    a("s_mul_i32 s35, s3, 17408")
    a(f"s_add_u32 s35, s35, {XIMG}")
    a("v_add_u32 v7, s35, v7")
    a("v_bfe_u32 v5, v0, 2, 2")
    a("v_and_b32 v6, 3, v0")
    a("v_lshlrev_b32 v12, 3, v4")
    a("v_lshl_add_u32 v12, v5, 1, v12")
    a("v_mul_u32_u24 v8, 144, v12")
    a("v_lshl_add_u32 v8, v6, 3, v8")
    TA = 232
    for t in range(4):
        a(f"s_add_u32 s{76+t}, s3, {t}")
        a(f"s_and_b32 s{76+t}, s{76+t}, 3")
        a(f"s_lshl_b32 s80, s{76+t}, 5")
        a(f"v_add_u32 v{TA+t}, s80, v8")
        a(f"v_add_u32 v{TA+4+t}, {9*4608}, v{TA+t}")
    a("v_lshlrev_b32 v10, 4, v12")
    a("v_lshl_add_u32 v10, v6, 3, v10")
    a(f"v_add_u32 v10, {KVIMG-16}, v10")
    a("v_add_u32 v11, 16, v10")
    a("v_add_u32 v15, 128, v8")
    a("v_cmp_gt_u32 vcc, 2, v6")
    a("v_mov_b32 v14, 512")
    a("v_mov_b32 v5, 4608")
    a("v_cndmask_b32 v10, v10, v15, vcc")
    a("v_add_u32 v15, 144, v15")
    a("v_cndmask_b32 v14, v14, v5, vcc")
    a("v_cndmask_b32 v11, v11, v15, vcc")
    ONES = 56
    for i in range(4):
        a(f"v_mov_b32 v{ONES+i}, 0x3f803f80")
    ACC, CSA, SM, GR, FT = 16, 36, 60, 188, 192
    QA = 176
    a(f"v_mov_b32 v5, {FL}")
    a("s_mov_b32 s43, 0")
    W = 136
    def need(blk):
        a.label(f"K1_w{blk+1}")
        a(f"s_cmp_ge_u32 s43, {blk+3}")
        a(f"s_cbranch_scc1 K1_ok{blk+1}")
        a(f"ds_read_b128 {vr(FT)}, v5")
        a("s_waitcnt lgkmcnt(0)")
        a(f"v_min3_u32 v{FT}, v{FT}, v{FT+1}, v{FT+2}")
        a(f"v_min_u32 v{FT}, v{FT}, v{FT+3}")
        a("s_nop 0")
        a(f"v_readfirstlane_b32 s43, v{FT}")
        a(f"s_branch K1_w{blk+1}")
        a.label(f"K1_ok{blk+1}")
    a("v_and_b32 v16, 7, v3")
    a("v_lshrrev_b32 v17, 3, v3")
    a("v_mul_u32_u24 v17, 9216, v17")
    a("v_lshl_add_u32 v18, v16, 4, v17")
    a("v_lshl_add_u32 v19, v16, 2, v17")
    a("v_add_u32 v19, 1024, v19")
    a("v_lshlrev_b32 v20, 2, v4")
    for t in range(5):
        for q in range(2):
            d = QA + 2 * t + q
            if t < 4:
                a(f"s_lshl_b32 s80, s{76+t}, 4")
                a(f"s_add_u32 s80, s80, {2*q}")
                a("v_add_u32 v21, s80, v20")
            else:
                a(f"v_add_u32 v21, {16*t+2*q}, v20")
            a("v_mul_u32_u24 v22, 57, v21")
            a("v_lshrrev_b32 v22, 10, v22")
            a("v_mad_i32_i24 v21, v22, -16, v21")
            a("v_mad_i32_i24 v21, v22, -2, v21")
            a("v_cmp_gt_u32 vcc, 16, v21")
            a("v_lshrrev_b32 v23, 3, v21")
            a(f"v_lshl_add_u32 v{d}, v23, 9, v18")
            a(f"v_lshl_add_u32 v{d}, v22, 7, v{d}")
            a("v_and_b32 v23, 7, v21")
            a(f"v_lshl_add_u32 v{d}, v23, 1, v{d}")
            a("v_lshl_add_u32 v23, v22, 5, v19")
            a(f"v_cndmask_b32 v{d}, v23, v{d}, vcc")
    def rd1(kk, t, h):
        wb = W + 20 * (kk & 1)
        o = (kk % 9) * 4608
        if t < 4:
            a(f"ds_read_b64_tr_b16 {vr(wb+4*t+2*h,2)}, v{TA + t + (4 if kk >= 9 else 0)} offset:{o+144*h}")
        else:
            a(f"ds_read_b64_tr_b16 {vr(wb+16+2*h,2)}, v{10+h}")
            a(f"v_add_u32 v{10+h}, v{10+h}, v14")
    a.stamp(2)
    a("s_lshl_b32 s80, s3, 2")
    a("v_add_u32 v6, s80, v5")
    a.label("K1_xw")
    a(f"ds_read_b32 v{FT}, v6 offset:16")
    a("s_waitcnt lgkmcnt(0)")
    a(f"v_readfirstlane_b32 s80, v{FT}")
    a("s_cmp_eq_u32 s80, 0")
    a("s_cbranch_scc1 K1_xw")
    a.stamp(3)
    for n in range(17):
        a(f"ds_read_b128 {vr(X+4*n)}, v7 offset:{1024*n}")
    a("s_waitcnt vmcnt(0)")
    a("s_cmp_lg_u32 s55, 3")
    a("s_cbranch_scc1 K1_nowo")
    for it in RL.loads(RAW, 196, 56, 64, "raw"):
        a.emit(it)
    a.label("K1_nowo")
    a("v_lshlrev_b32 v199, 4, v2")
    a("s_lshr_b32 s70, s2, 3")
    a("s_lshl_b32 s71, s3, 5")
    a("s_add_u32 s70, s70, s71")
    a("s_cmp_ge_u32 s3, 3")
    a("s_cbranch_scc1 K1_nopf")
    a.codepf("k1_kernel", "K3_end", 70, 199, RAW, 72)
    a.label("K1_nopf")
    for n in range(18):
        if n < 17 and n % 4 == 0: a(f"s_waitcnt lgkmcnt({max(17 - n - 4, 0)})")
        z = n == 0
        a(f"v_mfma_f32_16x16x32_bf16 {vr(SM)}, {vr(ONES)}, {vr(X+4*n)}, {'0' if z else vr(SM)}")
        a(f"v_mfma_f32_16x16x32_bf16 {vr(GR)}, {vr(X+4*n)}, {vr(X+4*n)}, {'0' if z else vr(GR)}")
    vMean, vRstd = 12, 13
    a("v_and_b32 v16, 3, v3")
    a("v_lshrrev_b32 v17, 2, v3")
    a("v_cmp_eq_u32 vcc, 1, v16")
    a("v_cmp_eq_u32 s[44:45], 2, v16")
    a("v_cmp_eq_u32 s[46:47], 3, v16")
    a(f"v_lshlrev_b32 v6, 4, v4")
    a(f"v_add_u32 v6, {XIMG}, v6")
    a("s_nop 1")
    a(f"v_mul_f32 v{vMean}, {f32bits(-1.0/576)}, v{SM}")
    a(f"v_cndmask_b32 v{GR}, v{GR}, v{GR+1}, vcc")
    a("v_cmp_eq_u32 vcc, v17, v4")
    a(f"v_cndmask_b32_e64 v{GR}, v{GR}, v{GR+2}, s[44:45]")
    a(f"v_cndmask_b32_e64 v{GR}, v{GR}, v{GR+3}, s[46:47]")
    a(f"v_cndmask_b32 v{GR}, 0, v{GR}, vcc")
    cross_g_sum(a, GR, GR + 1)
    a(f"v_mov_b32 v{GR+1}, {f32bits(1e-5)}")
    a(f"v_fmac_f32 v{GR+1}, {f32bits(1.0/576)}, v{GR}")
    a(f"v_fma_f32 v{GR+1}, -v{vMean}, v{vMean}, v{GR+1}")
    a(f"v_max_f32 v{GR+1}, {f32bits(1e-5)}, v{GR+1}")
    a(f"v_rsq_f32 v{vRstd}, v{GR+1}")
    for t in range(4):
        a(f"s_mul_i32 s80, s{76+t}, 17408")
        a(f"v_add_u32 v{SM+t}, s80, v6")
    need(0)
    for t in range(5):
        rd1(0, t, 0); rd1(0, t, 1)
    for kk in range(18):
        wb = W + 20 * (kk & 1)
        last = kk == 17
        if kk % 2 == 1 and not last:
            need((kk + 1) // 2)
        z = kk == 0
        for t in range(5):
            a(f"s_waitcnt lgkmcnt({8 - 2 * t if last else 8})")
            if t in (0, 4):
                a(f"v_mfma_f32_16x16x32_bf16 {vr(CSA+4*t)}, {vr(wb+4*t)}, {vr(ONES)}, {'0' if z else vr(CSA+4*t)}")
                if not last: rd1(kk + 1, t, 0)
            a(f"v_mfma_f32_16x16x32_bf16 {vr(ACC+4*t)}, {vr(wb+4*t)}, {vr(X+4*kk)}, {'0' if z else vr(ACC+4*t)}")
            if not last:
                if t not in (0, 4): rd1(kk + 1, t, 0)
                rd1(kk + 1, t, 1)
        if kk == 8: a.stamp(4)
        if kk == 6:
            a("s_cmp_lg_u32 s55, 3")
            a("s_cbranch_scc1 K1_aend")
            a("s_mov_b32 s68, 0x05040100")
            a("s_mov_b32 s69, 0x07060302")
            a("s_waitcnt vmcnt(0)")
            for it in RL.perms_stores(RAW, [216, 220, 224, 228], 197, 56, 28, 68, 69, "st"):
                a.emit(it)
            a.label("K1_aend")
    a.stamp(5)
    a(f"ds_write_b128 v{SM}, {vr(CSA)}")
    a("v_cmp_gt_u32 vcc, 2, v4")
    a("s_waitcnt lgkmcnt(0)")
    a("s_barrier")
    for t in range(1, 4):
        a(f"ds_read_b128 {vr(CSA+4*t)}, v{SM+t}")
    for r in list(range(4)) + list(range(16, 20)):
        a(f"v_fmac_f32 v{ACC+r}, v{vMean}, v{CSA+r}")
    a.stamp(6)
    a(f"v_mul_f32 v14, {f32bits(QSCALE)}, v{vRstd}")
    a("s_lshl_b32 s34, s32, 4")
    a("s_add_u32 s34, s34, s15")
    a(f"s_mul_i32 s34, s34, {ROW}")
    a(f"s_add_u32 s34, s34, {WS_Q}")
    a("s_lshr_b32 s35, s32, 1")
    a(f"s_mul_i32 s35, s35, {KVB}")
    a(f"v_cndmask_b32 v15, v{vRstd}, v14, vcc")
    a(f"s_add_u32 s35, s35, {WS_KV}")
    a("s_and_b32 s37, s32, 1")
    PK = X
    for t in (4, 0, 1, 2, 3):
        sc = 14 if t < 4 else 15
        if t == 1: a("s_waitcnt lgkmcnt(0)")
        if 1 <= t <= 3:
            for r in range(4):
                a(f"v_fmac_f32 v{ACC+4*t+r}, v{vMean}, v{CSA+4*t+r}")
        for r in range(4):
            a(f"v_mul_f32 v{ACC+4*t+r}, v{sc}, v{ACC+4*t+r}")
        a(f"v_cvt_pk_bf16_f32 v{PK+2*t}, v{ACC+4*t}, v{ACC+4*t+1}")
        a(f"v_cvt_pk_bf16_f32 v{PK+1+2*t}, v{ACC+4*t+2}, v{ACC+4*t+3}")
        if t < 4:
            for q in range(2):
                a(f"buffer_store_dword v{PK+2*t+q}, v{QA+2*t+q}, s[28:31], s34 offen")
    a("s_mov_b64 exec, vcc")
    for q in range(2):
        a(f"buffer_store_dword v{PK+8+q}, v{QA+8+q}, s[28:31], s34 offen")
    a("s_not_b64 exec, vcc")
    a("s_cmp_ge_u32 s15, 6")
    a("s_cbranch_scc1 K1_ones")
    a("s_cmp_ge_u32 s15, 3")
    a("s_cbranch_scc1 K1_v")
    a("s_lshl_b32 s38, s37, 4")
    a("v_add_u32 v8, s38, v3")
    a("v_lshlrev_b32 v9, 4, v8")
    a("s_cmp_eq_u32 s15, 2")
    a("s_cbranch_scc1 K1_k2")
    a("s_lshl_b32 s38, s15, 9")
    a("s_add_u32 s38, s38, s35")
    a("s_sub_u32 s38, s38, 16")
    a("v_lshl_add_u32 v9, v4, 3, v9")
    a(f"buffer_store_dwordx2 {vr(PK+8,2)}, v9, s[28:31], s38 offen")
    a("s_branch K1_fin")
    a.label("K1_k2")
    a("s_lshr_b32 s38, s32, 3")
    a("s_lshl_b32 s38, s38, 9")
    a("s_and_b32 s39, s32, 6")
    a("s_lshl_b32 s39, s39, 1")
    a("s_add_u32 s38, s38, s39")
    a(f"s_add_u32 s38, s38, {WS_KV + K2OFF}")
    a("s_mov_b32 exec_hi, 0xffff0000")
    a(f"buffer_store_dword v{PK+9}, v9, s[28:31], s38 offen")
    a("s_branch K1_fin")
    a.label("K1_v")
    a("v_bfe_u32 v6, v3, 2, 1")
    a("v_mul_u32_u24 v6, 320, v6")
    a("v_and_b32 v7, 3, v3")
    a("v_lshl_add_u32 v6, v7, 1, v6")
    a("v_lshrrev_b32 v7, 3, v3")
    a("v_lshl_add_u32 v6, v7, 3, v6")
    a("v_lshl_add_u32 v6, v4, 6, v6")
    a("s_mul_i32 s38, s37, 640")
    a("s_add_u32 s38, s38, s35")
    a("s_sub_u32 s36, s15, 3")
    a("s_lshl_b32 s39, s36, 7")
    a("s_cmp_ge_u32 s36, 2")
    a("s_cselect_b32 s39, 160, s39")
    a("s_cselect_b32 s36, 16, 0")
    a("s_add_u32 s38, s38, s39")
    a("s_add_u32 s38, s38, 896")
    a("v_and_b32 v7, 1, v4")
    a("v_mul_u32_u24 v7, s36, v7")
    a("v_add_u32 v7, v7, v6")
    for r in range(4):
        op = "buffer_store_short" if r % 2 == 0 else "buffer_store_short_d16_hi"
        a(f"{op} v{PK + 8 + r // 2}, v{6 if r < 3 else 7}, s[28:31], s38 offen offset:{16*r}")
    a("s_branch K1_fin")
    a.label("K1_ones")
    a("s_mov_b64 exec, 15")
    a("s_cmp_eq_u32 s15, 6")
    a("s_cbranch_scc1 K1_on2")
    a("s_lshl_b32 s38, s32, 7")
    a(f"s_add_u32 s38, s38, {WS_FLAG}")
    a("s_mov_b32 exec_lo, -1")
    a("v_mov_b32 v6, 0")
    a("v_lshlrev_b32 v7, 2, v2")
    a("buffer_store_dword v6, v7, s[28:31], s38 offen")
    a("s_branch K1_fin")
    a.label("K1_on2")
    a("s_mul_i32 s38, s37, 640")
    a("s_add_u32 s38, s38, s35")
    a("v_lshrrev_b32 v6, 1, v2")
    a("v_mul_u32_u24 v6, 320, v6")
    a("v_and_b32 v7, 1, v2")
    a("v_lshl_add_u32 v6, v7, 5, v6")
    a(f"buffer_store_dwordx4 {vr(ONES)}, v6, s[28:31], s38 offen offset:{1024+17*16}")
    a.label("K1_fin")
    a.end(1, 28, 8)
    a.label("K1_end")
    a("s_endpgm")
    return K, desc(K, 240), (256, 512, LDS)
```

```python
from common import *
import relayout as RL
QB   = 0
OB   = 8 * 1536
STAT = OB + 18 * 512
CP   = STAT + 640
CR   = CP + 32
MX   = STAT + 1024
PS   = MX + 1024
XS   = PS + 2 * 8 * 2560
STG  = XS + 8 * 1184
LDS  = STG + 8 * 10240

KF = [20 + 4 * s for s in range(8)]
K2F = 52
VF = [[60 + 8 * s, 64 + 8 * s] for s in range(8)]
S = [124, 140]
P = 156
O = [164, 180]
QR = [196, 204]
WACC = 212
WA = 232
WB = 252
vL16, vV, vK2, vL4, vOBr, vT0, vT1, vT2, vT3 = 3, 6, 7, 8, 9, 10, 11, 12, 13
POI = 4
vLo = 14
vX = 15
vSt, vStr = 16, 17
vPw, vPw8, vPr, vPr8 = 16, 17, 18, 19
vOw = 1

def attn(a, fused):
    a(f"s_load_dwordx2 s[4:5], s[0:1], {A_WS}")
    a(f"s_load_dwordx2 s[6:7], s[0:1], {A_X}")
    a(f"s_load_dwordx2 s[80:81], s[0:1], {A_W1}")
    a(f"s_load_dwordx2 s[82:83], s[0:1], {A_W2}")
    a("v_lshrrev_b32 v1, 6, v0")
    a("v_and_b32 v2, 63, v0")
    a("v_readfirstlane_b32 s3, v1")
    a("s_mov_b32 s22, 0")
    a.label("K2_main")
    a("v_and_b32 v2, 63, v0")
    a("v_and_b32 v5, 31, v0")
    a("v_bfe_u32 v4, v0, 5, 1")
    a(f"v_lshlrev_b32 v{vL16}, 4, v2")
    a(f"v_lshlrev_b32 v{vL4}, 2, v2")
    a(f"s_mul_i32 s16, s2, {8*ROW}")
    a(f"s_add_u32 s16, s16, {WS_Q}")
    a(f"s_mul_i32 s54, s3, {ROW}")
    a("s_add_u32 s54, s54, s16")
    a(f"v_lshl_or_b32 v{vT0}, v4, 30, v{vL4}")
    a(f"v_mul_u32_u24 v{vV}, 320, v4")
    a(f"v_lshl_add_u32 v{vV}, v5, 4, v{vV}")
    a(f"v_add_u32 v{vV}, 1024, v{vV}")
    a(f"v_subrev_u32 v18, 32, v{vV}")
    a(f"v_and_b32 v19, 30, v5")
    a("v_cmp_eq_u32 vcc, 20, v19")
    a("v_cmp_gt_u32 s[20:21], 18, v5")
    a(f"v_mov_b32 v19, {OOB}")
    a(f"v_cndmask_b32 v18, v19, v18, vcc")
    a(f"v_cndmask_b32_e64 v{vV}, v18, v{vV}, s[20:21]")
    a(f"v_lshl_or_b32 v{vK2}, v4, 30, v{vL16}")
    a("v_cmp_eq_u32 s[20:21], 0, v4")
    a("s_lshr_b32 s18, s2, 3")
    a("s_lshl_b32 s19, s3, 1")
    a("s_add_u32 s18, s18, s19")
    a("s_and_b32 s18, s18, 15")
    a("s_add_u32 s19, s18, 1")
    a("s_and_b32 s19, s19, 15")
    for s in range(8):
        a(f"s_mul_i32 s{24+s}, s{18 + s // 4}, {4*KVB}")
        if s % 4:
            a(f"s_add_u32 s{24+s}, s{24+s}, {(s % 4) * KVB}")
    for k in (18, 19):
        a(f"s_lshl_b32 s{k}, s{k}, 9")
        a(f"s_add_u32 s{k}, s{k}, {K2OFF}")
    a.pad("K2", 1)
    a("s_waitcnt lgkmcnt(0)")
    a.srd(8, 4, WS_SIZE)
    a.srd(12, 4, KV_BYTES, WS_KV)
    def ldK(s):
        L = [("vm", ("k", s), f"buffer_load_dwordx4 {vr(KF[s])}, v{vL16}, s[12:15], s{24+s} offen")]
        if s % 4 == 0:
            L.append(("vm", ("k", s), f"buffer_load_dwordx4 {vr(K2F+s)}, v{vK2}, s[12:15], s{18 + s // 4} offen"))
        return L
    def fixK2(b):
        return [f"v_cndmask_b32_e64 v{K2F+b+i}, v{vT2}, v{K2F+b+i}, s[20:21]" for i in range(4)]
    def ldV(s):
        return [("vm", ("v", s), f"buffer_load_dwordx4 {vr(VF[s][0])}, v{vV}, s[12:15], s{24+s} offen"),
                ("vm", ("v", s), f"buffer_load_dwordx4 {vr(VF[s][1])}, v{vV}, s[12:15], s{24+s} offen offset:640")]
    a.vm("q0", f"buffer_load_dwordx4 {vr(QR[0])}, v{vL16}, s[8:11], s16 offen")
    a.vm("q0", f"buffer_load_dword v{QR[0]+4}, v{vT0}, s[8:11], s16 offen offset:1024")
    for it in ldK(0) + ldK(1) + ldV(0):
        a.emit(it)
    a("s_mul_i32 s17, s3, 1536")
    a("s_cmp_eq_u32 s22, 0")
    a(f"s_cselect_b32 s17, s17, {XS}")
    a("s_mov_b32 m0, s17")
    a(f"v_add_u32 v{vPr}, s17, v{vL4}")
    a.vm("q", f"buffer_load_dwordx4 v{vL16}, s[8:11], s54 offen lds")
    a.vm("q", f"buffer_load_dword v{vT0}, s[8:11], s54 offen offset:1024 lds")
    a(f"v_mov_b32 v{QR[0]+5}, 0")
    a(f"ds_write_b32 v{vPr}, v{QR[0]+5} offset:1280")
    a(f"ds_write_b32 v{vL4}, v{QR[0]+5} offset:{CP}")
    a("s_lshr_b32 s41, s2, 3")
    a("s_and_b32 s42, s3, 1")
    a("s_lshl_b32 s42, s42, 5")
    a("s_add_u32 s41, s41, s42")
    a("s_cmp_lt_u32 s3, 6")
    a("s_cbranch_scc1 K2_nopf")
    a.codepf("k2_kernel", "K3_end" if fused else "K2_end", 41, vL16, WA, 42)
    a.vmq.pop()
    a.label("K2_nopf")
    a.srd(32, 4, WOF_BYTES, WS_WOF)
    a.srd(36, 6, 2048 * ROW)
    a.pad("K2", 2)
    a(f"v_bfe_u32 v{vT0}, v0, 4, 2")
    a(f"v_and_b32 v{vT3}, 7, v0")
    a(f"v_lshlrev_b32 v{vOBr}, 7, v{vT0}")
    a(f"v_lshl_add_u32 v{vOBr}, v{vT3}, 4, v{vOBr}")
    a(f"v_add_u32 v{vOBr}, {OB}, v{vOBr}")
    a(f"v_bfe_u32 v{vT1}, v0, 3, 2")
    a(f"v_lshl_add_u32 v{vT1}, v{vT1}, 1, v4")
    a(f"v_lshlrev_b32 v{vLo}, 4, v{vT3}")
    a(f"v_lshl_add_u32 v{vLo}, v{vT1}, 1, v{vLo}")
    a(f"v_add_u32 v{vLo}, {OB+8192}, v{vLo}")
    a(f"v_mul_u32_u24 v{vX}, 1184, v{vT3}")
    a(f"v_lshl_add_u32 v{vX}, v{vT0}, 3, v{vX}")
    a("s_lshl_b32 s17, s3, 5")
    a(f"s_add_u32 s17, s17, {XS}")
    a(f"v_add_u32 v{vX}, s17, v{vX}")
    a("s_mul_i32 s55, s3, 10240")
    a(f"s_add_u32 s55, s55, {STG}")
    a("s_mul_i32 s17, s3, 2560")
    a(f"s_add_u32 s17, s17, {PS}")
    a(f"v_add_u32 v{vPw}, s17, v{vL16}")
    a(f"v_lshlrev_b32 v{vPr8}, 3, v2")
    a(f"v_add_u32 v{vPw8}, s17, v{vPr8}")
    a(f"v_add_u32 v{vPr8}, {PS}, v{vPr8}")
    a("s_and_b32 s52, s3, 3")
    a("s_lshr_b32 s53, s3, 2")
    a("s_lshr_b32 s17, s52, 1")
    a("s_lshl_b32 s17, s17, 10")
    a("s_and_b32 s41, s52, 1")
    a("s_lshl_b32 s41, s41, 3")
    a("s_add_u32 s17, s17, s41")
    a(f"s_add_u32 s17, s17, {PS}")
    a(f"v_add_u32 v{vPr}, s17, v{vL16}")
    a("s_lshl_b32 s17, s52, 2")
    a(f"v_add_u32 v{vOw}, s17, v{vL16}")
    a("s_mov_b32 s23, 0")
    a(f"s_mul_i32 s40, s3, {18*1024}")
    a(f"v_mov_b32 v{QR[0]+6}, 0")
    a(f"v_mov_b32 v{vT2}, 0x3f803f80")
    def rdQ(p):
        o = (QB + 1536 * p + 1024) // 256
        return [f"ds_read_b128 {vr(QR[p&1])}, v{vL16} offset:{QB+1536*p}",
                f"ds_read2st64_b32 {vr(QR[p&1]+4,2)}, v{vL4} offset0:{o} offset1:{o+1}",
                f"ds_read2st64_b32 {vr(QR[p&1]+6,2)}, v{vL4} offset0:{o+1} offset1:{o}"]
    a.pad("K2", 3)
    a.stamp(1)
    a.waitvm(("k", 0))
    for it in fixK2(0): a(it)
    a(f"v_mov_b32 v{QR[0]+7}, v{QR[0]+4}")
    a("s_cmp_eq_u32 s22, 0")
    a("s_cbranch_scc1 K2_go")
    for it in rdQ(0):
        a(it)
    a("s_waitcnt lgkmcnt(0)")
    a.label("K2_go")
    def qk1(t):
        p, s = divmod(t, 8)
        return f"v_mfma_f32_32x32x16_bf16 {vr(S[t&1],16)}, {vr(KF[s])}, {vr(QR[p&1])}, 0"
    def qk2(t):
        p, s = divmod(t, 8)
        return f"v_mfma_f32_32x32x8_bf16 {vr(S[t&1],16)}, {vr(K2F+(s&~1),2)}, {vr(QR[p&1]+4+2*(s&1),2)}, {vr(S[t&1],16)}"
    def pv(t, half):
        p, s = divmod(t, 8)
        c = "0" if (s == 0 and half == 0) else vr(O[p & 1], 16)
        return f"v_mfma_f32_32x32x16_bf16 {vr(O[p&1],16)}, {vr(VF[s][half])}, {vr(P+4*half)}, {c}"
    def ex(t, i):
        return f"v_exp_f32 v{S[t&1]+i}, v{S[t&1]+i}"
    def cv(t, i):
        return f"v_cvt_pk_bf16_f32 v{P+i}, v{S[t&1]+2*i}, v{S[t&1]+2*i+1}"
    a.stamp(2)
    a(qk1(0)); a(qk2(0))
    for it in ldK(2) + ldK(3) + ldV(1):
        a.emit(it)
    a("s_and_b32 s84, s2, 7")
    a("s_andn2_b32 s85, s2, 7")
    a("s_add_u32 s85, s85, s3")
    RL.params_w12(a, 84, 85, 56, 64, 80, 82)
    a("s_lshr_b32 s85, s2, 3")
    a("s_lshl_b32 s17, s85, 1")
    a("s_add_u32 s17, s17, s3")
    a("s_add_u32 s17, s17, 256")
    a("s_add_u32 s85, s85, 320")
    a("s_cmp_lt_u32 s3, 2")
    a("s_cselect_b32 s85, s17, s85")
    a("s_cmp_gt_u32 s3, 2")
    a("s_cselect_b32 s85, 999, s85")
    RL.params_w12(a, 84, 85, 68, 76, 80, 82)

    def e1(p):
        o = O[p & 1]; b = (p & 1) * 20480
        return [f"ds_write_b128 v{vPw}, {vr(o)} offset:{b}", f"ds_write_b128 v{vPw}, {vr(o+4)} offset:{b+1024}",
                f"ds_write_b64 v{vPw8}, {vr(o+8,2)} offset:{b+2048}"]
    def guard(p, tag, body):
        return [f"s_cmp_lg_u32 s53, {p & 1}", f"s_cbranch_scc1 K2_{tag}"] + body + [("label", f"K2_{tag}")]
    def rdP(p, half):
        o = O[p & 1]; b = (p & 1) * 20480 + half * 4 * 2560
        L = []
        for k in range(4):
            L.append(f"ds_read_b64 {vr(o+4*k,2)}, v{vPr} offset:{b+2560*k}")
            L.append(f"ds_read_b64 {vr(o+4*k+2,2)}, v{vPr8} offset:{b+2560*k+2048}")
        return L
    def signal(off):
        return ["s_mov_b64 exec, 1", f"ds_add_u32 v{vL4}, v{vOBr} offset:{off}", "s_mov_b64 exec, -1"]
    def chk_issue(off, tmp):
        return [f"ds_read_b32 v{tmp}, v{vL4} offset:{off}"]
    def chk_wait(off, tmp, n, tag):
        return ["s_waitcnt lgkmcnt(0)", ("label", f"K2_c{tag}"), f"v_readfirstlane_b32 s41, v{tmp}", f"s_cmp_ge_u32 s41, {n*OB}",
                f"s_cbranch_scc1 K2_k{tag}", "s_sleep 2", f"ds_read_b32 v{tmp}, v{vL4} offset:{off}", "s_waitcnt lgkmcnt(0)",
                f"s_branch K2_c{tag}", ("label", f"K2_k{tag}")]
    def e2a(p, chk=False):
        return guard(p, f"e2a{p}", (chk_wait(CP + 4 * p, O[p & 1] + 15, 8, f"p{p}") if chk else []) + rdP(p, 0))
    def e2b(p):
        o = O[p & 1]
        L = ["s_waitcnt lgkmcnt(0)"]
        for q in range(2):
            L.append(f"v_pk_add_f32 {vr(o+2*q,2)}, {vr(o+2*q,2)}, {vr(o+4+2*q,2)}")
            L.append(f"v_pk_add_f32 {vr(o+8+2*q,2)}, {vr(o+8+2*q,2)}, {vr(o+12+2*q,2)}")
        for q in range(2):
            L.append(f"v_pk_add_f32 {vr(vT0+2*q,2)}, {vr(o+2*q,2)}, {vr(o+8+2*q,2)}")
        return guard(p, f"e2b{p}", L + rdP(p, 1))
    def e2c(p):
        o = O[p & 1]
        L = ["s_waitcnt lgkmcnt(0)"]
        for q in (1, 0):
            L.append(f"v_pk_add_f32 {vr(o+2*q,2)}, {vr(o+2*q,2)}, {vr(o+4+2*q,2)}")
            L.append(f"v_pk_add_f32 {vr(o+8+2*q,2)}, {vr(o+8+2*q,2)}, {vr(o+12+2*q,2)}")
            L.append(f"v_pk_add_f32 {vr(vT0+2*q,2)}, {vr(vT0+2*q,2)}, {vr(o+2*q,2)}")
            L.append(f"v_pk_add_f32 {vr(vT0+2*q,2)}, {vr(vT0+2*q,2)}, {vr(o+8+2*q,2)}")
            if q == 1:
                L.append(f"v_rcp_f32 v{o+6}, v{vT3}")
        L.append(f"v_subrev_u32 v{o+7}, {f32bits(2.0**-60)}, v{vT3}")
        L.append(f"v_pk_mul_f32 {vr(vT0,2)}, {vr(vT0,2)}, {vr(o+6,2)} op_sel_hi:[1,0]")
        L.append(f"v_cmp_lt_u32 vcc, {120 << 23}, v{o+7}")
        L.append(f"v_mul_f32 v{vT2}, v{o+6}, v{vT2}")
        L.append(f"v_cvt_pk_bf16_f32 v{vT0}, v{vT0}, v{vT1}")
        L.append(f"v_cvt_pk_bf16_f32 v{vT2}, v{vT2}, v{vT2}")
        L.append(f"ds_write_b32 v{vOw}, v{vT0} offset:{OB+1024*p}")
        L.append(f"ds_write_b16 v{vLo}, v{vT2} offset:{128*p}")
        L.append(f"s_or_b32 s23, s23, vcc_lo")
        L.append(f"s_or_b32 s23, s23, vcc_hi")
        if p < 7: L += signal(CR + 4 * p)
        return guard(p, f"e2c{p}", L)
    SKIP = set(range(1, 14)) | {16}
    def only03(tag, body):
        return ["s_cmp_lg_u32 s53, 0", f"s_cbranch_scc1 K2_{tag}"] + body + [("label", f"K2_{tag}")]
    def ldWA(ks, base):
        G = []
        for t in (4, 0, 1, 2, 3):
            ad = f"s_add_u32 s41, s40, {t*8*18*1024 + ks*1024}"
            ld = f"buffer_load_dwordx4 {vr(base[t])}, v{vL16}, s[32:35], s41 offen"
            if t == 4 and ks in SKIP and Opt.SK4: G.append(only03(f"l4_{ks}", [ad, ld]))
            else: G.append([ad, ("vm", ("wa", ks), ld)])
        return G
    def rdWB(ks, wb):
        return [f"ds_read_b128 {vr(wb)}, v{vOBr} offset:{512*ks}"]
    first_wo = [True]
    def woM(ks, base, wb):
        L = []
        for t in range(5):
            c = "0" if first_wo[0] else vr(WACC + 4 * t)
            L.append(f"v_mfma_f32_16x16x32_bf16 {vr(WACC+4*t)}, {vr(base[t])}, {vr(wb)}, {c}")
        first_wo[0] = False
        return L
    WAb = [WA + 4 * t for t in range(5)]
    WA2 = [VF[0][0], VF[0][1], VF[1][0], VF[1][1], KF[0]]
    WA3 = [VF[2][0], VF[2][1], VF[3][0], VF[3][1], KF[1]]
    WA4 = [VF[4][0], VF[4][1], KF[2], KF[3], KF[4]]
    XR = VF[5][0]

    uses = {}
    order = []
    for tu, ks in ((22, 0), (25, 1), (28, 2), (31, 3), (34, 4), (37, 5), (40, 6), (43, 7), (46, 16), (49, 8), (52, 9), (55, 10), (58, 11), (62, 12)):
        uses[tu] = (ks, WAb)
        order.append((tu, ks))
    side_ld = {}
    side_ld[20] = ldWA(order[0][1], WAb)
    extra = {}
    def addx(t, groups):
        extra.setdefault(t, []).extend(groups)
    vTr = 2
    SC = ' sc1' if fused else ''
    def rl_init(S_, vSrc):
        return [f"v_lshrrev_b32 v{vSrc}, 3, v2", f"v_mul_lo_u32 v{vSrc}, v{vSrc}, s{S_+2}", f"v_and_b32 v{vK2}, 7, v2",
                f"v_lshl_add_u32 v{vSrc}, v{vK2}, 4, v{vSrc}", f"s_lshl_b32 s{S_+6}, s{S_+2}, 3"]
    def rl_dma(S_, R_, ldsoff, tag, n, vSrc):
        ld = f"buffer_load_dwordx4 v{vSrc}, s[{R_}:{R_+3}], s{S_+1} offen{Opt.WNT} lds"
        return [f"s_add_u32 s41, s55, {ldsoff+1024*n}", "s_mov_b32 m0, s41", "s_nop 0",
                ("vm", tag, ld) if tag else ld, f"s_add_u32 s{S_+1}, s{S_+1}, s{S_+6}"]
    def rl_rd(ldsoff, q, d):
        return [f"ds_read_b64_tr_b16 {vr(d,2)}, v{vTr} offset:{ldsoff+32*q}",
                f"ds_read_b64_tr_b16 {vr(d+2,2)}, v{vTr} offset:{ldsoff+32*q+2048}"]
    def rl_st(S_, tag, d):
        st = f"buffer_store_dwordx4 {vr(d)}, v{vL16}, s[8:11], s{S_+5} offen{SC or Opt.WST}"
        return ["s_waitcnt lgkmcnt(0)", ("vm", tag, st) if tag else st, f"s_add_u32 s{S_+5}, s{S_+5}, 18432"]
    def opt(tag, body):
        return ["s_cmp_ge_u32 s85, 324", f"s_cbranch_scc1 K2_{tag}"] + body + [("label", f"K2_{tag}")]
    if Opt.FOLD:
        for n, t_ in enumerate((6, 8, 11, 13)):
            addx(t_, [[], (rl_init(56, vV) if n == 0 else []) + rl_dma(56, 64, 0, "rl", n, vV)])
        for n, t_ in enumerate((5, 7, 10, 12)):
            addx(t_, [[], (rl_init(68, WACC) if n == 0 else []) + opt(f"rlb{n}", rl_dma(68, 76, 4096, None, n, WACC))])
        addx(15, [[f"v_and_b32 v{vK2}, 3, v2", f"v_lshrrev_b32 v{vTr}, 2, v2", f"v_lshlrev_b32 v{vTr}, 7, v{vTr}",
                   f"v_lshl_add_u32 v{vTr}, v{vK2}, 3, v{vTr}", f"v_add_u32 v{vTr}, s55, v{vTr}"]])
        addx(19, [[("wait", "rl")], opt("rlr", [x for q in range(4) for x in rl_rd(4096, q, WACC + 4 + 4 * q)])])
        addx(21, [opt(f"rls{q}", rl_st(68, None, WACC + 4 + 4 * q)) for q in range(4)])
        for q, t_ in enumerate((24, 26, 30, 33)):
            addx(t_ - 1, [[], rl_rd(0, q, vT0)])
            addx(t_, [rl_st(56, "rs", vT0)])
    addx(36, [[f"s_lshl_b32 s41, s2, 3", "s_add_u32 s41, s41, s3", f"s_mul_i32 s41, s41, {ROW}", "s_mul_i32 s42, s3, 1184", f"s_add_u32 s42, s42, {XS}",
              "s_mov_b32 m0, s42", "s_nop 0", ("vm", "x", f"buffer_load_dwordx4 v{vL16}, s[36:39], s41 offen lds")],
             ["s_mov_b64 exec, 0xff", ("vm", "x", f"buffer_load_dwordx4 v{vL16}, s[36:39], s41 offen offset:1024 lds"), "s_mov_b64 exec, -1"]])
    for n, t_ in enumerate((15, 16, 17)):
        addx(t_, [["s_andn2_b32 s41, s2, 7", "s_add_u32 s41, s41, s3", "s_mul_i32 s41, s41, 2624", f"s_add_u32 s41, s41, {1024*n}",
                   "s_add_u32 s42, s55, 9216", "s_mov_b32 m0, s42", "s_nop 0",
                   ("vm", "pf", f"buffer_load_dwordx4 v{vL16}, s[32:35], s41 offen lds")]])
    addx(8, [["s_lshr_b32 s17, s2, 3", "s_add_u32 s43, s17, s2", "s_and_b32 s43, s43, 7", "s_lshl_b32 s43, s43, 1", "s_add_u32 s43, s43, s53",
              "s_lshl_b32 s43, s43, 10", "s_mul_i32 s17, s17, 36", "s_add_u32 s17, s17, s52", "s_lshl_b32 s17, s17, 14",
              "s_add_u32 s43, s43, s17", f"s_add_u32 s43, s43, {WS_PART}"]])
    addx(16, [[f"v_mov_b32 v{POI+i}, {POISON}" for i in range(4)]])
    for k, t_ in enumerate((27, 36, 39, 42, 45, 48, 51, 54, 57)):
        addx(t_, [[("vm", "po", f"buffer_store_dwordx4 {vr(POI)}, v{vL16}, s[8:11], s43 offen sc1"), "s_add_u32 s43, s43, 65536"]])
    if fused:
        addx(57, [[("vm", "wc0", f"buffer_load_dword v{vTr}, v{vL4}, s[8:11], s56 offen sc1")]])
        pf = ["s_and_b32 s41, s2, 7", f"s_mul_i32 s41, s41, {36*18*1024}", "s_andn2_b32 s42, s2, 7", "s_add_u32 s42, s42, s3", "s_mul_i32 s42, s42, 2624",
              "s_add_u32 s57, s41, s42", f"s_add_u32 s57, s57, {WS_W1F}", ("wait", "wc0"), f"v_cmp_eq_u32 s[58:59], 0, v{vTr}"]
        addx(61, [pf])
        for n in range(3):
            addx(62 + n // 2, [["s_cmp_lg_u32 s58, 0", f"s_cbranch_scc1 K2_npw{n}", f"s_mov_b32 m0, {MX}", "s_nop 0",
                           f"buffer_load_dwordx4 v{vL16}, s[8:11], s57 offen sc1 lds", "s_add_u32 s57, s57, 1024", ("label", f"K2_npw{n}")]])
        addx(51, [["s_and_b32 s56, s2, 7", "s_lshl_b32 s56, s56, 7", f"s_add_u32 s56, s56, {WS_FLAG + 32 * 128}",
                   "s_lshr_b32 s41, s2, 3", "s_lshl_b32 s41, s41, 2", "s_add_u32 s41, s41, s56",
                   "s_cmp_lg_u32 s3, 0", "s_cbranch_scc1 K2_nosig", "s_mov_b64 exec, 1",
                   f"buffer_store_dword v{POI}, v{vL4}, s[8:11], s41 offen sc1", "s_mov_b64 exec, -1", ("label", "K2_nosig")]])
    for n in range(10):
        ks, t_ = 14 + n // 5, n % 5
        addx((48, 51, 27, 36, 57)[n // 2],
             [[f"s_add_u32 s42, s55, {1024*n}", "s_mov_b32 m0, s42", f"s_add_u32 s41, s40, {t_*8*18*1024 + ks*1024}",
               ("vm", "stg", f"buffer_load_dwordx4 v{vL16}, s[32:35], s41 offen lds")]])
    if Opt.IPF:
        addx(45, [["s_cmp_lg_u32 s3, 3", "s_cbranch_scc1 K2_noti"] + a.touch("K3") + [("label", "K2_noti")]])
    addx(56, [["s_lshr_b32 s44, s2, 3", "s_bfe_u32 s45, s2, 0x20001", "s_and_b32 s46, s2, 1", "s_lshl_b32 s46, s46, 8",
               "s_mul_i32 s47, s44, 73728", "s_lshr_b32 s48, s3, 1", "s_lshl_b32 s48, s48, 12", "s_add_u32 s47, s47, s48"],
              ["s_lshl_b32 s48, s45, 10", "s_add_u32 s47, s47, s48", "s_and_b32 s48, s3, 1", "s_lshl_b32 s48, s48, 9",
               "s_add_u32 s47, s47, s48", "s_add_u32 s47, s47, s46", f"s_add_u32 s47, s47, {WS_XN}"],
              ["s_mul_i32 s49, s44, 36", "s_add_u32 s49, s49, s3", "s_lshl_b32 s49, s49, 11", "s_lshl_b32 s48, s45, 9",
               "s_add_u32 s49, s49, s48", "s_add_u32 s49, s49, s46", f"s_add_u32 s49, s49, {WS_HRES}"]])
    addx(63, [[f"ds_read_b64 {vr(S[0]+2*t_,2)}, v{vX} offset:{256*t_}"] for t_ in range(5)])
    addx(62, [[f"v_add_u32 v{vK2}, s55, v{vL16}"]] + [[f"ds_read_b128 {vr(WA4[n])}, v{vK2} offset:{1024*(5+n)}"] for n in range(5)])
    addx(63, [[]] + [[f"ds_read_b128 {vr(WAb[n])}, v{vK2} offset:{1024*n}"] for n in range(5)])
    for (tu, ks), (tn, kn) in zip(order[:-1], order[1:]):
        side_ld[tu + 1] = ldWA(kn, WAb)
    side_ld[60] = ldWA(17, WA2)
    side_ld[61] = ldWA(13, WA3)
    uses[63] = (13, WA3)
    PRIO = {0: {2: 3, 5: 2, 0: 1, 1: 0}, 1: {1: 3, 3: 2, 5: 1, 7: 0}, 2: {1: 3, 2: 2, 3: 1, 4: 0, 5: 3, 6: 2, 7: 1, 0: 0}, 3: {},
            4: {1: 3, 4: 2, 6: 1, 0: 0}}[Opt.PRI]

    for t in range(64):
        p, s = divmod(t, 8)
        m = [ex(t, 0), ex(t, 1)]
        m += [pv(t - 1, 1)] if t > 0 else ["s_nop 0"]
        m += [ex(t, i) for i in range(2, 7)]
        m += [qk1(t + 1)] if t < 63 else ["s_nop 0"]
        nq = 9 if Opt.NONOP else 10
        m += [ex(t, 7)] + [cv(t, i) for i in range(4)] + [ex(t, i) for i in range(8, nq)]
        m += [qk2(t + 1)] if t < 63 else ["s_nop 0"]
        m += [ex(t, i) for i in range(nq, 15)]
        m += [pv(t, 0)]
        m += [ex(t, 15)] + [cv(t, i) for i in range(4, 8)]
        sd = {i: [] for i in range(29)}
        if not Opt.NONOP: sd[0].append("s_nop 0")
        if p == 0:
            if t < 63 and s + 1 < 8:
                sd[8].append(("wait", ("k", s + 1)))
                if s == 3:
                    sd[8] += fixK2(4)
            sd[22].append(("wait", ("v", s)))
            L = []
            if s % 2 == 0 and s + 4 < 8:
                L += ldK(s + 4) + ldK(s + 5)
            if s + 2 < 8:
                L += ldV(s + 2)
            for i, it in enumerate(L):
                sd[1 + i * 26 // len(L)].append(it)
            if s == 3:
                sd[28] += ["s_waitcnt lgkmcnt(0)", "s_barrier"]
        if s == 4 and p < 7:
            sd[3] += rdQ(p + 1)
        if s == 7 and p < 7:
            sd[8].append("s_waitcnt lgkmcnt(0)")
        if p >= 1:
            if s == 0:
                for i, it in enumerate(e1(p - 1)):
                    sd[17 + 4 * i].append(it)
                sd[26] += signal(CP + 4 * (p - 1))
            if s == 2:
                sd[1] += chk_issue(CP + 4 * (p - 1), O[(p - 1) & 1] + 15)
                sd[15] += e2a(p - 1, True)
                if p in (1, 4, 7):
                    sd[0].append(("stamp", {1: 3, 4: 4, 7: 5}[p]))
            if s == 3:
                sd[10] += e2b(p - 1)
            if s == 4:
                sd[4] += e2c(p - 1)
        if t + 1 in uses:
            ks1 = uses[t + 1][0]
            if ks1 < 16 and ks1 % 2 == 0:
                sd[10] += chk_issue(CR + 2 * ks1, WB)
                sd[24] += chk_wait(CR + 2 * ks1, WB, 4, f"r{ks1}")
            sd[28 if t in uses else 24] += rdWB(ks1, WB)
        if t in uses:
            ks, base = uses[t]
            sd[6] += [("wait", ("wa", ks), " lgkmcnt(0)")]
            for n_, (pos, it) in enumerate(zip([(6, 13, 14, 20, 21), (6, 7, 13, 19, 20), (6, 13, 19, 20, 27), (6, 12, 18, 20, 26)][Opt.WP], woM(ks, base, WB))):
                sd[pos] += only03(f"m4_{ks}", [it]) if (n_ == 4 and ks in SKIP and Opt.SK4) else [it]
        if t in side_ld:
            L = side_ld[t]
            for i, g_ in enumerate(L):
                sd[1 + i * 26 // len(L)] += g_
        if t in extra:
            G_ = extra[t]
            for i, g_ in enumerate(G_):
                sd[3 + i * 24 // len(G_)] += g_
        pr = PRIO.get(s)
        if p == 0: pr = {0: 3, 2: 1, 3: 0, 4: 3, 6: 2}.get(s)
        if p == 7: pr = {2: 3, 4: 2, 6: 1, 7: 0, 0: 1, 1: 0}.get(s)
        if pr is not None:
            sd[0].insert(0, f"s_setprio {pr}")
        for it in weave(m, sd):
            if isinstance(it, str):
                if "nobar" in Opt.ABL and it == "s_barrier": continue
                if "noprio" in Opt.ABL and it.startswith("s_setprio"): continue
                if "noe1" in Opt.ABL and it.startswith("ds_write_b") and (f"v{vPw}," in it or f"v{vPw8}," in it): continue
                if "nored" in Opt.ABL and it.startswith("s_cmp_lg_u32 s53"): it = "s_cmp_lg_u32 s53, 5"
                if "nolgkm" in Opt.ABL and it == "s_waitcnt lgkmcnt(0)": continue
            elif it[0] == "vm" and "nopo" in Opt.ABL and it[1] == "po":
                it = ("vm", "po", "s_nop 0")
            a.emit(it)
    a("s_nop 1")
    a(pv(63, 1))
    if fused:
        a.vm("wc", f"buffer_load_dword v{QR[0]}, v{vL4}, s[8:11], s56 offen sc1")
    XR = S[0]
    vG, vTok, vS2, vA, vB, vC_ = QR[0] + 1, QR[0] + 2, QR[0] + 3, QR[0] + 4, QR[0] + 5, QR[0] + 6
    a(f"v_bfe_u32 v{vG}, v0, 4, 2")
    a(f"v_and_b32 v{vTok}, 7, v0")
    a(f"v_lshlrev_b32 v{vS2}, 6, v{vG}")
    a(f"v_lshl_add_u32 v{vS2}, v{vTok}, 3, v{vS2}")
    a(f"v_and_b32 v{vA}, 8, v0")
    a(f"v_cmp_eq_u32 s[50:51], 0, v{vA}")
    a(f"v_mov_b32 v{vA}, s47")
    a(f"v_mov_b32 v{vB}, s49")
    a(f"v_cndmask_b32_e64 v{vA}, v{vA}, v{vB}, s[50:51]")
    a(f"v_add_u32 v{vS2}, v{vS2}, v{vA}")
    a(f"v_lshlrev_b32 v{vA}, 3, v{vTok}")
    a(f"v_add_u32 v{vA}, {STAT}, v{vA}")
    for it in e1(7):
        a(it)
    a("s_lshl_b32 s17, s3, 6")
    a(f"v_add_u32 v{vB}, s17, v{vA}")
    a(f"v_lshlrev_b32 v{vC_}, 2, v{vTok}")
    a("s_cmp_lt_u32 s3, 4")
    a("s_cselect_b32 s17, -1, 0")
    a("s_waitcnt lgkmcnt(0)")
    a("s_barrier")
    a.stamp(6)
    a("s_cbranch_scc1 K2_t1")
    for k in range(8):
        a(f"ds_read_b64 {vr(O[0]+4*k,2)}, v{vPr} offset:{20480+2560*k}")
        a(f"ds_read_b64 {vr(O[0]+4*k+2,2)}, v{vPr8} offset:{20480+2560*k+2048}")
    a.label("K2_t1")
    a(f"v_and_b32 v{XR+8}, s17, v{XR+8}")
    a(f"v_and_b32 v{XR+9}, s17, v{XR+9}")
    XF = S[1]
    for i in range(10):
        f_ = XF + 2 * (i % 4)
        a(f"v_lshlrev_b32 v{f_}, 16, v{XR+i}")
        a(f"v_and_b32 v{f_+1}, 0xffff0000, v{XR+i}")
        a(f"v_pk_add_f32 {vr(WACC+2*i,2)}, {vr(WACC+2*i,2)}, {vr(f_,2)}")
    a("s_cbranch_scc1 K2_t2")
    o = O[0]
    a("s_waitcnt lgkmcnt(0)")
    for st in (4, 8, 16):
        for q in (2, 0):
            for k in range(0, 32, 2 * st):
                a(f"v_pk_add_f32 {vr(o+k+q,2)}, {vr(o+k+q,2)}, {vr(o+k+q+st,2)}")
            if st == 16 and q == 2:
                a(f"v_rcp_f32 v{o+6}, v{o+3}")
    a(f"v_subrev_u32 v{o+7}, {f32bits(2.0**-60)}, v{o+3}")
    a(f"v_pk_mul_f32 {vr(o,2)}, {vr(o,2)}, {vr(o+6,2)} op_sel_hi:[1,0]")
    a(f"v_cmp_lt_u32 vcc, {120 << 23}, v{o+7}")
    a(f"v_mul_f32 v{o+2}, v{o+6}, v{o+2}")
    a(f"v_cvt_pk_bf16_f32 v{o}, v{o}, v{o+1}")
    a(f"v_cvt_pk_bf16_f32 v{o+2}, v{o+2}, v{o+2}")
    a(f"ds_write_b32 v{vOw}, v{o} offset:{OB+1024*7}")
    a(f"ds_write_b16 v{vLo}, v{o+2} offset:{128*7}")
    a(f"s_or_b32 s23, s23, vcc_lo")
    a(f"s_or_b32 s23, s23, vcc_hi")
    a("s_waitcnt lgkmcnt(0)")
    a.label("K2_t2")
    a("s_barrier")
    WBs = [WB, P, P + 4]
    for ks, wb in zip((14, 15, 17), WBs):
        a(rdWB(ks, wb)[0])
    a("s_lshl_b32 s17, s3, 2")
    a(f"s_add_u32 s17, s17, {STAT+512}")
    a(f"v_mov_b32 v{vT0}, s17")
    a(f"v_mov_b32 v{vT1}, s23")
    a("s_mov_b64 exec, 1")
    a(f"ds_write_b32 v{vT0}, v{vT1}")
    a("s_mov_b64 exec, -1")
    a.waitvm(("wa", 17), " lgkmcnt(1)")
    SS = O[0] + 8
    mm = [woM(ks, base, wb) for ks, base, wb in ((14, WAb, WBs[0]), (15, WA4, WBs[1]), (17, WA2, WBs[2]))]
    def stat(t):
        L = []
        for q in range(2):
            r = WACC + 4 * t + 2 * q
            if t == 0 and q == 0:
                L.append(f"v_pk_mul_f32 {vr(SS+2,2)}, {vr(r,2)}, {vr(r,2)}")
            else:
                L.append(f"v_pk_add_f32 {vr(SS,2)}, {vr(WACC if (t == 0) else SS,2)}, {vr(r,2)}")
                L.append(f"v_pk_fma_f32 {vr(SS+2,2)}, {vr(r,2)}, {vr(r,2)}, {vr(SS+2,2)}")
        return L
    for t in range(5):
        for k in range(3): a(mm[k][t])
    for t in range(3):
        for x_ in stat(t): a(x_)
    for t in range(3, 5):
        for x_ in stat(t): a(x_)
    a(f"v_add_f32 v{SS}, v{SS}, v{SS+1}")
    a(f"v_add_f32 v{SS+1}, v{SS+2}, v{SS+3}")
    for sw in ("v_permlane16_swap_b32", "v_permlane32_swap_b32"):
        a(f"v_mov_b32 v{SS+2}, v{SS}")
        a(f"v_mov_b32 v{SS+3}, v{SS+1}")
        a("s_nop 0")
        a(f"{sw} v{SS}, v{SS+2}")
        a(f"{sw} v{SS+1}, v{SS+3}")
        a("s_nop 0")
        a(f"v_pk_add_f32 {vr(SS,2)}, {vr(SS,2)}, {vr(SS+2,2)}")
    a("s_mov_b64 exec, 0xff")
    a(f"ds_write_b64 v{vB}, {vr(SS,2)}")
    a("s_mov_b64 exec, -1")
    a("s_waitcnt lgkmcnt(0)")
    a("s_barrier")
    a.stamp(7)
    RS = S[1]
    for k in range(8):
        a(f"ds_read_b64 {vr(RS+2*k,2)}, v{vA} offset:{64*k}")
    a(f"ds_read_b32 v{SS+4}, v{vC_} offset:{STAT+512}")
    a(f"v_mov_b32 v{SS+2}, {f32bits(1e-5)}")
    a("s_waitcnt lgkmcnt(0)")
    a(f"v_cmp_ne_u32 vcc, 0, v{SS+4}")
    for k in range(4):
        a(f"v_pk_add_f32 {vr(RS+4*k,2)}, {vr(RS+4*k,2)}, {vr(RS+4*k+2,2)}")
    a(f"v_pk_add_f32 {vr(RS,2)}, {vr(RS,2)}, {vr(RS+4,2)}")
    a(f"v_pk_add_f32 {vr(RS+8,2)}, {vr(RS+8,2)}, {vr(RS+12,2)}")
    a(f"v_pk_add_f32 {vr(SS,2)}, {vr(RS,2)}, {vr(RS+8,2)}")
    a("s_mov_b32 s23, vcc_lo")
    a(f"v_mul_f32 v{SS}, {f32bits(-1.0/576)}, v{SS}")
    a(f"v_fmac_f32 v{SS+2}, {f32bits(1.0/576)}, v{SS+1}")
    a(f"v_fma_f32 v{SS+2}, -v{SS}, v{SS}, v{SS+2}")
    a(f"v_max_f32 v{SS+2}, {f32bits(1e-5)}, v{SS+2}")
    a(f"v_rsq_f32 v{SS+2}, v{SS+2}")
    a("s_cmp_lg_u32 s22, 0")
    a("s_cselect_b32 s23, 0, s23")
    a("s_cmp_lg_u32 s23, 0")
    a("s_cbranch_scc1 K2_slow")
    a(f"v_mul_f32 v{SS}, v{SS}, v{SS+2}")
    a(f"v_cndmask_b32_e64 v{SS+2}, v{SS+2}, 1.0, s[50:51]")
    a(f"v_cndmask_b32_e64 v{SS}, v{SS}, 0, s[50:51]")
    a("s_cmp_ge_u32 s3, 4")
    HP = S[0]
    for t in (4, 0, 1, 2, 3):
        if t == 4:
            a("s_cbranch_scc1 K2_no4")
        for q in range(2):
            r = WACC + 4 * t + 2 * q
            a(f"v_pk_fma_f32 {vr(r,2)}, {vr(r,2)}, {vr(SS+2,2)}, {vr(SS,2)} op_sel_hi:[1,0,0]")
        for q in range(2):
            r = WACC + 4 * t + 2 * q
            a(f"v_cvt_pk_bf16_f32 v{HP+2*t+q}, v{r}, v{r+1}")
        a(f"s_mov_b32 s17, {16384*t}")
        st = f"buffer_store_dwordx2 {vr(HP+2*t,2)}, v{vS2}, s[8:11], s17 offen{SC or Opt.XST}"
        if t == 4:
            a(st)
            a.label("K2_no4")
        else:
            a.vm("xs", st)
    return lambda: slow_path(a, ldK, qk1, qk2)

def slow_path(a, ldK, qk1, qk2):
    a.label("K2_slow")
    a("s_waitcnt vmcnt(0)")
    a("s_barrier")
    for s in range(8):
        a(ldK(s)[0][2])
    a(f"v_and_b32 v{vT0}, 31, v0")
    a(f"v_lshlrev_b32 v{vT0}, 2, v{vT0}")
    a(f"v_add_u32 v{vT0}, {MX}, v{vT0}")
    a(f"v_mov_b32 v{vT1}, 0xff800000")
    a("s_lshl_b32 s17, s3, 7")
    a(f"v_add_u32 v{vT2}, s17, v{vT0}")
    a(f"ds_write_b32 v{vT2}, v{vT1}")
    a(f"v_mov_b32 v{vT3}, v{vL16}")
    a(f"v_mov_b32 v{vPr}, v{vL4}")
    a("s_mov_b32 s17, 0")
    a("s_waitcnt vmcnt(0) lgkmcnt(0)")
    a("s_barrier")
    a.label("K2_mx")
    a(f"ds_read_b128 {vr(QR[0])}, v{vT3} offset:{QB}")
    a(f"ds_read2st64_b32 {vr(QR[0]+4,2)}, v{vPr} offset0:4 offset1:5")
    a(f"ds_read2st64_b32 {vr(QR[0]+6,2)}, v{vPr} offset0:5 offset1:4")
    a(f"v_mov_b32 v{vT1}, 0xff800000")
    a("s_waitcnt lgkmcnt(0)")
    for s in range(8):
        a(qk1(s)); a(qk2(s))
        a("s_nop 7"); a("s_nop 7")
        for i in range(8):
            a(f"v_max3_f32 v{vT1}, v{vT1}, v{S[s&1]+2*i}, v{S[s&1]+2*i+1}")
    a(f"ds_max_f32 v{vT0}, v{vT1}")
    a(f"v_add_u32 v{vT0}, 128, v{vT0}")
    a(f"v_add_u32 v{vT3}, 1536, v{vT3}")
    a(f"v_add_u32 v{vPr}, 1536, v{vPr}")
    a("s_add_u32 s17, s17, 1")
    a("s_cmp_lt_u32 s17, 8")
    a("s_cbranch_scc1 K2_mx")
    a("s_waitcnt lgkmcnt(0)")
    a("s_barrier")
    a(f"ds_read_b32 v{vT1}, v{vT2}")
    a("s_mul_i32 s17, s3, 1536")
    a(f"v_add_u32 v{vT3}, s17, v{vL4}")
    a("s_waitcnt lgkmcnt(0)")
    T = S[0]
    a(f"v_sub_f32 v{vT1}, 0, v{vT1}")
    a(f"v_and_b32 v{T}, 0xffff0000, v{vT1}")
    a(f"v_sub_f32 v{vT1}, v{vT1}, v{T}")
    a(f"v_and_b32 v{T+1}, 0xffff0000, v{vT1}")
    a(f"v_sub_f32 v{vT1}, v{vT1}, v{T+1}")
    a(f"v_lshrrev_b32 v{T}, 16, v{T}")
    a(f"v_or_b32 v{T}, v{T}, v{T+1}")
    a(f"v_lshrrev_b32 v{T+1}, 16, v{vT1}")
    a("s_not_b64 exec, s[20:21]")
    a(f"ds_write_b32 v{vT3}, v{T} offset:{QB+1024}")
    a(f"ds_write_b32 v{vT3}, v{T+1} offset:{QB+1280}")
    a("s_mov_b64 exec, -1")
    a("s_mov_b32 s22, 1")
    a("s_waitcnt lgkmcnt(0)")
    a("s_barrier")
    a("s_branch K2_main")

def k2(a):
    K = "k2_kernel"
    a.begin(K)
    a.guard("K2")
    a.stamp(0); a.stampc(10)
    slow = attn(a, False)
    a.end(2, 8, 8)
    slow()
    a.label("K2_end")
    a("s_endpgm")
    return K, desc(K, 256), (256, 512, LDS)

def k23(a):
    import k3w8
    K = "k2_kernel"
    a.begin(K)
    a.guard("K2")
    a.stamp(0); a.stampc(10)
    a.smap = {5: 1, 6: 2, 9: 3}
    slow = attn(a, True)
    a.stamp(9)
    a.smap = {1: 4, 2: 5, 3: 6, 4: 7}
    k3w8.ffn(a, True, QR[0])
    a.smap = None
    a.end(4, 8, 8)
    slow()
    a.label("K3_end")
    a("s_endpgm")
    return K, desc(K, 256), (256, 512, k3w8.LDS)
```

```python
from common import *
RING = 11
RB = 68
BF = 112
ACC = [36, 52]
EXL = 28
BIAS = 20
ACCP = 20
B1R = 16
TMP = 16
HOFF = 0
EX0 = 72 * 1024
XOFF = EX0 + 16384
LND = XOFF + 16384
LDS = XOFF + 72 * 1024
NF = 162
CH = 3

def bfrag(k, j): return vr(BF + 4 * (4 * k + j))
def slot(i): return RB + (i % RING) * 4

def ffn(a, fused, vWC=None):
    SC = " sc1" if fused else ""
    def E(L):
        for x in L: a.emit(x)
    a(f"s_load_dwordx2 s[6:7], s[0:1], {A_B1}")
    a(f"s_load_dwordx4 s[24:27], s[0:1], {A_B2}")
    if not fused:
        a(f"s_load_dwordx2 s[4:5], s[0:1], {A_WS}")
        a("v_lshrrev_b32 v1, 6, v0")
        a("s_nop 0")
        a("v_readfirstlane_b32 s3, v1")
    a("v_and_b32 v2, 63, v0")
    a("v_and_b32 v3, 15, v0")
    a("v_bfe_u32 v4, v0, 4, 2")
    a("v_lshlrev_b32 v5, 4, v2")
    a("v_add_u32 v6, 4096, v5")
    a("v_add_u32 v7, 8192, v5")
    a("v_lshlrev_b32 v12, 3, v4")
    a("v_and_b32 v10, 0x23, v2")
    a("v_lshlrev_b32 v10, 4, v10")
    a("v_bfe_u32 v11, v2, 3, 2")
    a("v_lshl_add_u32 v10, v11, 6, v10")
    a("v_bfe_u32 v11, v2, 2, 1")
    a("v_lshl_add_u32 v10, v11, 8, v10")
    a("s_and_b32 s28, s2, 7")
    a("s_lshr_b32 s29, s2, 3")
    a("s_and_b32 s52, s3, 3")
    a("s_lshr_b32 s53, s3, 2")
    a("s_mul_i32 s30, s53, 36864")
    a("s_lshl_b32 s62, s52, 10")
    a("s_add_u32 s30, s30, s62")
    a("s_mul_i32 s31, s29, 73728")
    a("s_add_u32 s31, s31, s30")
    a(f"s_add_u32 s31, s31, {WS_XN}")
    a(f"s_add_u32 s30, s30, {XOFF}")
    a("s_mul_i32 s60, s28, 36")
    a("s_mul_i32 s59, s52, 9")
    a("s_mul_i32 s61, s29, 57")
    a("s_lshr_b32 s61, s61, 9")
    a("s_mul_i32 s61, s61, 9")
    a("s_sub_u32 s61, s29, s61")
    a("s_mul_i32 s58, s53, 9216")
    def tloc(n, d):
        return [f"s_add_u32 s{d}, s61, {n}", f"s_cmp_ge_u32 s{d}, 9", "s_cselect_b32 s62, 9, 0", f"s_sub_u32 s{d}, s{d}, s62", f"s_add_u32 s{d}, s{d}, s59"]
    def g1par(n):
        E(tloc(n, 63))
        a("s_add_u32 s62, s63, s60")
        a(f"s_mul_i32 s62, s62, {18*1024}")
        a("s_add_u32 s62, s62, s58")
        a(f"s_add_u32 s{32+n}, s62, {WS_W1F}")
    g1par(0); g1par(1)
    a("s_waitcnt lgkmcnt(0)")
    if not fused: a.srd(8, 4, WS_SIZE)
    a.srd(12, 6, 4608 * 2)
    def load(i):
        t, k = divmod(i, 9)
        return [("vm", ("A", i), f"buffer_load_dwordx4 {vr(slot(i))}, v{5 + k // 4}, s[8:11], s{32+t} offen offset:{(k%4)*1024}{SC}")]
    def dmax(k):
        return ["s_mov_b32 m0, s30", "s_add_u32 s30, s30, 4096",
                ("vm", ("X", k), f"buffer_load_dwordx4 v10, s[8:11], s31 offen{SC} lds"), "s_add_u32 s31, s31, 4096"]
    def ldb1(n):
        return tloc(n, 63) + ["s_add_u32 s62, s63, s60", "s_lshl_b32 s62, s62, 5",
                ("vm", ("b1", n), f"buffer_load_dwordx2 {vr(B1R+2*(n&1),2)}, v12, s[12:15], s62 offen")]
    def setup():
        for n in range(2, 9): g1par(n)
        a.srd(16, 24, 576 * 2)
        a.srd(20, 26, 2048 * ROW)
        a("s_add_u32 s28, s28, s29")
        a("s_and_b32 s28, s28, 7")
        for n in range(9):
            if n == 0:
                a(f"s_mov_b32 s{64+n}, 8")
            else:
                a(f"s_add_u32 s{64+n}, s28, {n}")
                a(f"s_and_b32 s{64+n}, s{64+n}, 7")
            a(f"s_lshl_b32 s62, s{64+n}, 2")
            a("s_add_u32 s62, s62, s52")
            a("s_add_u32 s62, s62, s60")
            a(f"s_mul_i32 s62, s62, {18*1024}")
            a("s_add_u32 s62, s62, s58")
            a(f"s_add_u32 s{41+n}, s62, {WS_W2F}")
        a("s_mov_b32 s75, 0x00003f80")
        a("s_mov_b32 s76, 0x3f800000")
        a("s_mul_i32 s54, s53, 38912")
        a("s_mul_i32 s55, s53, 34816")
        a("s_add_u32 s55, s55, 2048")
        a("v_lshlrev_b32 v9, 3, v2")
        a(f"v_add_u32 v9, {XOFF}, v9")
        a("v_add_u32 v8, s54, v9")
        a("v_add_u32 v9, s55, v9")
        a("s_lshl_b32 s62, s3, 11")
        a(f"s_add_u32 s62, s62, {EX0}")
        a("v_add_u32 v13, s62, v5")
        a("s_xor_b32 s62, s3, 4")
        a("s_lshl_b32 s62, s62, 11")
        a(f"s_add_u32 s62, s62, {EX0}")
        a("v_add_u32 v14, s62, v5")
        a("s_lshl_b32 s56, s53, 10")
        a("s_mul_i32 s78, s29, 36")
        a("s_add_u32 s78, s78, s52")
        a("s_lshl_b32 s77, s78, 14")
        a("s_add_u32 s77, s77, s56")
        a(f"s_add_u32 s77, s77, {WS_PART}")
        a("s_lshl_b32 s78, s78, 11")
        a("s_add_u32 s78, s78, s56")
        a(f"s_add_u32 s78, s78, {WS_HRES}")
        a("s_lshl_b32 s79, s28, 11")
        a("s_add_u32 s79, s79, s77")
        a("s_lshl_b32 s84, s28, 16")
        a("s_add_u32 s84, s84, s77")
        a(f"s_add_u32 s85, s77, {8*65536}")
        a("s_lshl_b32 s62, s28, 7")
        a("s_lshl_b32 s63, s52, 5")
        a("s_add_u32 s82, s62, s63")
        a("s_add_u32 s83, s63, 1024")
        a("s_lshl_b32 s62, s52, 1")
        a("s_add_u32 s62, s62, s53")
        a("s_cmp_eq_u32 s62, s28")
        a("s_cselect_b32 s80, 1, 0")
        a("s_lshl_b32 s74, s80, 8")
        a("s_or_b32 s74, s74, 0xfe")
        a("s_mul_i32 s57, s3, 5120")
        a(f"s_add_u32 s57, s57, {LND}")
    if not fused:
        a("s_cmp_lg_u32 s3, 7")
        a("s_cbranch_scc1 K3_nopf")
        a.codepf("k3_kernel", "K3_end", 29, 5, EXL, 86)
        a.vmq.pop()
        a.label("K3_nopf")
        for k in range(3): E(dmax(k))
        E(ldb1(0))
        for i in range(3): E(load(i))
        for k in range(3, 6): E(dmax(k))
        setup()
        pre_x, pre_a = 6, 3
    else:
        a("s_lshl_b32 s63, s28, 7")
        a(f"s_add_u32 s63, s63, {WS_FLAG + 32 * 128}")
        a("v_lshlrev_b32 v15, 2, v2")
        a(f"s_mov_b32 s88, {Opt.PBOUND}")
        a.waitvm("wc")
        a.label("K3_wp")
        a(f"v_cmp_eq_u32 vcc, 0, v{vWC}")
        a("s_nop 3")
        a("s_cmp_eq_u32 vcc_lo, 0")
        a("s_cbranch_scc1 K3_wok")
        a(f"buffer_load_dword v{vWC}, v15, s[8:11], s63 offen sc1")
        a("s_sub_u32 s88, s88, 1")
        a("s_cmp_lg_u32 s88, 0")
        a("s_waitcnt vmcnt(0)")
        a("s_cbranch_scc1 K3_wp")
        a.label("K3_wok")
        E(ldb1(0))
        for i in range(RING): E(load(i))
        setup()
        a("s_lshl_b32 s63, s29, 7")
        a(f"s_add_u32 s63, s63, {WS_FLAG}")
        a("v_mov_b32 v11, 1")
        a("s_and_b32 s62, s2, 7")
        a("s_lshl_b32 s62, s62, 2")
        a("s_add_u32 s62, s62, s63")
        a.waitvm("xs")
        a.stamp(1)
        a("s_barrier")
        a("s_cmp_lg_u32 s3, 0")
        a("s_cbranch_scc1 K3_nosig")
        a("s_mov_b64 exec, 1")
        a("buffer_store_dword v11, v15, s[8:11], s62 offen sc1")
        a("s_mov_b64 exec, -1")
        a.label("K3_nosig")
        a(f"s_mov_b32 s88, {Opt.PBOUND}")
        a.label("K3_xp")
        a(f"buffer_load_dword v{EXL}, v15, s[8:11], s63 offen sc1")
        a("s_sub_u32 s88, s88, 1")
        a("s_waitcnt vmcnt(0)")
        a(f"v_cmp_eq_u32 vcc, 0, v{EXL}")
        a("s_nop 3")
        a("s_and_b32 s62, vcc_lo, 0xff")
        a("s_cbranch_scc0 K3_xok")
        a("s_cmp_lg_u32 s88, 0")
        a("s_cbranch_scc1 K3_xp")
        a.label("K3_xok")
        a.stamp(2)
        for k in range(Opt.PX): E(dmax(k))
        pre_x, pre_a = Opt.PX, RING
    def unpack(src, dst):
        return [f"v_lshlrev_b32 v{dst}, 16, v{src}", f"v_and_b32 v{dst+1}, 0xffff0000, v{src}",
                f"v_lshlrev_b32 v{dst+2}, 16, v{src+1}", f"v_and_b32 v{dst+3}, 0xffff0000, v{src+1}"]
    def exw(t):
        acc = ACC[t % 2]
        return [f"ds_write_b128 v13, {vr(acc+8+4*h)} offset:{16384*(t&1)+1024*h}" for h in range(2)]
    def exr(t):
        return [f"ds_read_b128 {vr(EXL+4*h)}, v14 offset:{16384*(t&1)+1024*h}" for h in range(2)]
    def exadd(t):
        acc = ACC[t % 2]
        return ["s_waitcnt lgkmcnt(0)"] + [f"v_add_f32 v{acc+r}, v{acc+r}, v{EXL+r}" for r in range(8)]
    def g1_epilogue(n):
        acc = ACC[n % 2]
        L = tloc(n, 63) + ["s_lshr_b32 s62, s63, 1", "s_lshl_b32 s62, s62, 12", "s_and_b32 s63, s63, 1", "s_lshl_b32 s63, s63, 3",
                           "s_add_u32 s62, s62, s63", "s_add_u32 s62, s62, s56", "s_add_u32 s62, s62, s56", "v_add_u32 v15, s62, v5"]
        L += exadd(n)
        for j in range(2):
            for r in range(4):
                L.append(f"v_mul_f32 v{acc+4*j+r}, v{acc+4*j+r}, abs(v{acc+4*j+r})")
            L.append(f"v_cvt_pk_bf16_f32 v{acc+4*j}, v{acc+4*j}, v{acc+4*j+1}")
            L.append(f"v_cvt_pk_bf16_f32 v{acc+4*j+1}, v{acc+4*j+2}, v{acc+4*j+3}")
            L.append(f"v_pk_max_i16 v{acc+4*j}, v{acc+4*j}, 0")
            L.append(f"v_pk_max_i16 v{acc+4*j+1}, v{acc+4*j+1}, 0")
            L.append(f"ds_write_b64 v15, {vr(acc+4*j,2)} offset:{HOFF+1024*j}")
        return L
    def g2_epilogue(n):
        acc = ACC[(9 + n) % 2]
        L = exadd(9 + n) + [f"v_cvt_pk_bf16_f32 v{TMP+q}, v{acc+2*q}, v{acc+2*q+1}" for q in range(4)]
        L += [f"s_lshl_b32 s62, s{64+n}, 16", "s_add_u32 s62, s62, s79",
              ("vm", "st", f"buffer_store_dwordx4 {vr(TMP)}, v5, s[8:11], s62 offen sc1")]
        return L
    vC = 15
    def check(regs, bit):
        L = [f"v_max3_i32 v{vC}, v{regs[0]}, v{regs[1]}, v{regs[2]}"]
        k = 3
        while k + 1 < len(regs):
            L.append(f"v_max3_i32 v{vC}, v{vC}, v{regs[k]}, v{regs[k+1]}"); k += 2
        if k < len(regs):
            L.append(f"v_max_i32 v{vC}, v{vC}, v{regs[k]}")
        L.append(f"v_cmp_eq_i32 vcc, {POISON}, v{vC}")
        L.append("v_nop"); L.append("v_nop")
        L += ["s_cmp_eq_u64 vcc, 0", "s_cselect_b32 s86, s75, 0", "s_cselect_b32 s87, s76, 0",
              f"s_cselect_b32 s62, {1 << bit}, 0", "s_andn2_b32 s74, s74, s62"]
        return L
    def accum(lz, dst, n):
        L = []
        for q in range(n):
            L.append(f"v_dot2_f32_bf16 v{dst+2*q}, v{lz+q}, s86, v{dst+2*q}")
            L.append(f"v_dot2_f32_bf16 v{dst+2*q+1}, v{lz+q}, s87, v{dst+2*q+1}")
        return L
    def accum2(lz, dst, n):
        L = []
        for q in range(n):
            L += [f"v_lshlrev_b32 v10, 16, v{lz+q}", f"v_and_b32 v11, 0xffff0000, v{lz+q}",
                  f"v_fmac_f32 v{dst+2*q}, s87, v10", f"v_fmac_f32 v{dst+2*q+1}, s87, v11"]
        return L
    def take(n, lz, track=True, shadow=False):
        return ([("wait", ("P", n))] if track else []) + check(list(range(lz, lz + 4)), n) + (accum2 if shadow else accum)(lz, ACCP, 4)
    def fetch(n, lz, track=True):
        s_ = f"buffer_load_dwordx4 {vr(lz)}, v5, s[8:11], s63 offen sc1"
        return [f"s_lshl_b32 s63, s{64+8-n}, 11", "s_add_u32 s63, s63, s84", ("vm", ("P", n), s_) if track else s_]
    def dfetch(n):
        return [f"s_lshl_b32 s63, s{64+8-n}, 11", "s_add_u32 s63, s63, s84", f"s_add_u32 s30, s57, {1024*(n-1)}", "s_mov_b32 m0, s30", "s_nop 0",
                ("vm", ("P", n), "buffer_load_dwordx4 v5, s[8:11], s63 offen sc1 lds")]
    SHL = LND + 8 * 5120
    def dfetch_sh():
        L = ["s_cmp_eq_u32 s80, 0", "s_cbranch_scc1 K3_nosh0"]
        for k in range(8):
            L += [f"s_add_u32 s63, s85, {2048*k}", f"s_mov_b32 m0, {SHL+1024*k}", "s_nop 0", "buffer_load_dwordx4 v5, s[8:11], s63 offen sc1 lds"]
        return L + [("label", "K3_nosh0")]
    def lread(n, lz):
        return [("wait", ("P", n)), f"ds_read_b128 {vr(lz)}, v12 offset:{1024*(n-1)}"]
    def ltake(n):
        return lread(n, EXL) + [None] * 3 + ["s_waitcnt lgkmcnt(0)"] + take(n, EXL, False, True)
    LZs = {n: BF + 4 * n for n in range(1, 8)}
    SH = BF + 32
    SX = BF + 64
    A8 = BF + 72
    def fetch_share():
        L = []
        for n in range(8):
            L += [f"s_add_u32 s63, s85, {2048*n}", f"buffer_load_dwordx4 {vr(SH+4*n)}, v5, s[8:11], s63 offen sc1"]
        return L
    def take_share():
        L = check(list(range(SH, SH + 32)), 8)
        for n in range(8):
            L += accum(SH + 4 * n, A8, 4)
        return L
    def rdX(k, j):
        o = (k * 4096 + (j & 1) * 1024) // 512
        a(f"ds_read2st64_b64 {bfrag(k, j)}, v{8 + (j >> 1)} offset0:{o} offset1:{o+1}")
    def rdH(k, j):
        a(f"ds_read_b128 {bfrag(k, j)}, v{8 + (j >> 1)} offset:{k*4096+(j&1)*1024}")
    a.waitvm(("b1", 0))
    E(unpack(B1R, BIAS))
    post = {}
    def addpost(i, L): post.setdefault(i, []).extend(L)
    for k in range(pre_x, 9):
        addpost((k - pre_x) // 3 if fused else k - pre_x, dmax(k))
    nxt = pre_a
    for i in range(NF):
        t = i // 9
        k_ = 0
        while nxt < NF and k_ < 2:
            old = nxt - RING
            last_use = old if old // 9 in (0, 9) else old - old % CH + CH - 1
            if old >= 0 and last_use > i: break
            if fused and i < 3: break
            addpost(i, load(nxt)); nxt += 1; k_ += 1
    assert nxt == NF
    for n in range(1, 9):
        addpost(9 * (n - 1), ldb1(n))
    addpost(9 * 9 + 1, [("vm", "b2", f"buffer_load_dwordx2 v[10:11], v12, s[16:19], s82 offen"),
                        "s_lshl_b32 s62, s28, 13", "s_add_u32 s62, s62, s78",
                        "v_lshrrev_b32 v2, 3, v3", "v_lshlrev_b32 v2, 8, v2", "v_lshl_add_u32 v2, v4, 6, v2",
                        "v_and_b32 v15, 7, v3", "v_lshl_add_u32 v2, v15, 3, v2"] +
                       [("vm", "hr", f"buffer_load_dwordx2 {vr(TMP+2*j,2)}, v2, s[8:11], s62 offen offset:{512*j}{SC}") for j in range(2)])
    addpost(12 * 9, ["v_add_u32 v12, s57, v5"])
    addpost(13 * 9 + 8, dfetch_sh())
    for n in range(1, 6):
        addpost((12 + n) * 9 + 8, dfetch(n))
    pend = []
    for i in range(NF):
        t, k = divmod(i, 9)
        extra = ""
        first = t in (0, 9)
        if t == 0:
            cs = [0, 1, 3, 6, 9] if fused else [0, 3, 6, 9]
            if k in cs:
                ke = cs[cs.index(k) + 1]
                a.waitvm(("X", ke - 1))
                if k == 0 and not fused: a.stamp(1)
                a("s_barrier")
                if k == 0: a.stamp(3 if fused else 2)
                for kk in range(k, ke):
                    for j in range(4): rdX(kk, j)
            extra = f" lgkmcnt({4 * (ke - 1 - k)})"
        if t == 9:
            if k == 0:
                assert not pend
                a("v_add_u32 v8, s54, v5")
                a("v_add_u32 v9, s55, v5")
                a("s_nop 3")
                E(exw(8))
                a("s_waitcnt lgkmcnt(0)")
                a("s_barrier")
                E(exr(8) + g1_epilogue(8))
                a("s_waitcnt lgkmcnt(0)")
                a.stamp(4)
                a("s_barrier")
                for kk in range(3):
                    for j in range(4): rdH(kk, j)
            elif k + 2 < 9:
                for j in range(4): rdH(k + 2, j)
            extra = f" lgkmcnt({4 * min(2, 8 - k)})"
        if first: a.waitvm(("A", i), extra)
        elif k % CH == 0: a.waitvm(("A", i + CH - 1))
        acc = ACC[t % 2]
        if k == 0 and not first:
            assert not pend, (t, pend)
            pend = [None] * 4 + exw(t - 1) + [None] * 4 + ["BAR"] + exr(t - 1) + [None] * 3
            pend += g1_epilogue(t - 1) if t <= 8 else g2_epilogue(t - 10)
            if t == 10:
                pend = [("wait", "hr")] + unpack(TMP, ACCP) + unpack(TMP + 2, ACCP + 4) + unpack(10, EXL) + \
                       [f"v_add_f32 v{ACCP+q}, v{ACCP+q}, v{EXL+q%4}" for q in range(8)] + pend[4:]
            if t == 16: pend += ltake(1)
            if t == 17: pend += ltake(2)
        if k == 0 and t < 8:
            pend += ([None] * 30 if t == 0 else []) + [("wait", ("b1", t + 1))] + unpack(B1R + 2 * ((t + 1) & 1), BIAS + 4 * ((t + 1) % 2))
        for e4 in range(4):
            if first:
                k2, j2 = k, (2, 3, 0, 1)[e4]
            else:
                e_ = (k % CH) * 4 + e4
                k2, j2 = k - k % CH + e_ % CH, (2, 3, 0, 1)[e_ // CH]
            if k2 == 0:
                c = vr(BIAS + 4 * (t % 2)) if (t < 9 and j2 < 2) else "0"
            else:
                c = vr(acc + 4 * j2)
            a(f"v_mfma_f32_16x16x32_bf16 {vr(acc+4*j2)}, {vr(slot(9*t+k2))}, {bfrag(k2, j2)}, {c}")
            for _ in range(2):
                while pend:
                    s = pend.pop(0)
                    if s is None: break
                    if s == "BAR":
                        a("s_waitcnt lgkmcnt(0)"); a("s_barrier"); break
                    a.emit(s)
                    if not (isinstance(s, str) and s.startswith("s_")): break
        E(post.get(i, []))
    assert not pend, pend
    accO = ACC[17 % 2]
    a.stamp(5)
    for n in (6, 7):
        E(fetch(n, LZs[n]))
    E(exw(17))
    a("v_lshlrev_b32 v10, 3, v4")
    a(f"s_add_u32 s62, s78, {8*8192}")
    a.vm("sh0", f"buffer_load_dwordx2 {vr(SX,2)}, v2, s[8:11], s62 offen{SC}")
    a.vm("sh0", f"buffer_load_dwordx2 {vr(SX+2,2)}, v2, s[8:11], s62 offen offset:512{SC}")
    a.vm("sh0", f"buffer_load_dwordx2 {vr(SX+4,2)}, v10, s[16:19], s83 offen")
    E(lread(3, LZs[3]) + lread(4, LZs[4]))
    a(f"v_mul_u32_u24 v10, {ROW}, v3")
    a("v_lshl_add_u32 v10, v4, 3, v10")
    a(f"s_mul_i32 s30, s29, {64*ROW}")
    a(f"s_mul_i32 s62, s53, {32*ROW}")
    a("s_add_u32 s30, s30, s62")
    a("s_add_u32 s82, s30, s82")
    a("s_add_u32 s83, s30, s83")
    a("s_waitcnt lgkmcnt(0)")
    a("s_barrier")
    E(exr(17))
    E(take(3, LZs[3], False) + take(4, LZs[4], False))
    E(exadd(17))
    a("s_cmp_eq_u32 s80, 0")
    a("s_cbranch_scc1 K3_nosh1")
    a(f"v_add_u32 v11, {SHL}, v5")
    for k in range(8):
        a(f"ds_read_b128 {vr(SH+4*k)}, v11 offset:{1024*k}")
    for q in range(8):
        a(f"v_mov_b32 v{A8+q}, 0")
    a("s_waitcnt lgkmcnt(0)")
    E(take_share())
    a.label("K3_nosh1")
    E(lread(5, LZs[5]))
    E(take(6, LZs[6]))
    a("s_waitcnt lgkmcnt(0)")
    E(take(5, LZs[5], False))
    E(take(7, LZs[7]))
    a.stamp(6)
    a(f"s_mov_b32 s88, {Opt.PBOUND}")
    a.label("K3_poll")
    a("s_cmp_eq_u32 s74, 0")
    a("s_cbranch_scc1 K3_done")
    a("s_sub_u32 s88, s88, 1")
    a("s_cmp_eq_u32 s88, 0")
    a("s_cbranch_scc1 K3_done")
    a("s_mov_b32 s31, s74")
    for n in range(1, 9):
        a(f"s_bitcmp0_b32 s31, {n}")
        a(f"s_cbranch_scc1 K3_pf{n}")
        E(fetch(n, LZs[n], False) if n < 8 else fetch_share())
        a.label(f"K3_pf{n}")
    a("s_waitcnt vmcnt(0)")
    for n in range(1, 9):
        a(f"s_bitcmp0_b32 s31, {n}")
        a(f"s_cbranch_scc1 K3_pt{n}")
        E(take(n, LZs[n], False) if n < 8 else take_share())
        a.label(f"K3_pt{n}")
    a("s_branch K3_poll")
    a.label("K3_done")
    a.stamp(7)
    a("s_nop 1")
    for j in range(2):
        for q in range(2):
            a(f"v_pk_add_f32 {vr(accO+4*j+2*q,2)}, {vr(accO+4*j+2*q,2)}, {vr(ACCP+4*j+2*q,2)}")
        a(f"v_cvt_pk_bf16_f32 v{TMP+2*j}, v{accO+4*j}, v{accO+4*j+1}")
        a(f"v_cvt_pk_bf16_f32 v{TMP+2*j+1}, v{accO+4*j+2}, v{accO+4*j+3}")
        a(f"buffer_store_dwordx2 {vr(TMP+2*j,2)}, v10, s[20:23], s82 offen")
        a(f"s_add_u32 s82, s82, {16*ROW}")
    a("s_cmp_eq_u32 s80, 0")
    a("s_cbranch_scc1 K3_nosh2")
    a("s_waitcnt vmcnt(2)")
    for q in range(4):
        a(f"v_dot2_f32_bf16 v{A8+2*q}, v{SX+q}, s75, v{A8+2*q}")
        a(f"v_dot2_f32_bf16 v{A8+2*q+1}, v{SX+q}, s76, v{A8+2*q+1}")
    for q in range(4):
        a(f"v_dot2_f32_bf16 v{A8+2*q}, v{SX+4+(q&1)}, s75, v{A8+2*q}")
        a(f"v_dot2_f32_bf16 v{A8+2*q+1}, v{SX+4+(q&1)}, s76, v{A8+2*q+1}")
    a("s_nop 2")
    for j in range(2):
        a(f"v_cvt_pk_bf16_f32 v{EXL+2*j}, v{A8+4*j}, v{A8+4*j+1}")
        a(f"v_cvt_pk_bf16_f32 v{EXL+2*j+1}, v{A8+4*j+2}, v{A8+4*j+3}")
        a(f"buffer_store_dwordx2 {vr(EXL+2*j,2)}, v10, s[20:23], s83 offen")
        a(f"s_add_u32 s83, s83, {16*ROW}")
    a.label("K3_nosh2")

def k3(a):
    K = "k3_kernel"
    a.begin(K)
    a.guard("K3")
    a.stamp(0); a.stampc(10)
    ffn(a, False)
    a.end(4, 8, 8)
    a.label("K3_end")
    a("s_endpgm")
    return K, desc(K, 256), (256, 512, LDS)
```

```python
import sys, math, struct

NAME = "sequential_preLN__grouped_kv_mqa__dense_activation_squared_relu__prompt"

ROW = 1152
KVB = 2304
K2OFF = 64 * KVB
KV_BYTES = K2OFF + 16 * 512
WS_Q    = 0
WS_XN   = WS_Q + 2048 * ROW
WS_KV   = WS_XN + 2048 * ROW
WS_FLAG = WS_KV + 160 * 1024
WS_WOF  = WS_FLAG + 128 * 128
WOF_BYTES = 36 * 18 * 1024
WS_W1F  = WS_WOF + WOF_BYTES
WS_W2F  = WS_W1F + 288 * 18 * 1024
WS_PART = WS_W2F + 288 * 18 * 1024
WS_HRES = WS_PART + 32 * 36 * 8 * 2048
WS_DBG  = WS_HRES + 32 * 36 * 2048
POISON  = 0x7f7f7f7f
WS_END  = WS_DBG + 8 * 4096 * 64 + 2048 * 256
WS_SIZE = 0x10000000
OOB = 0x7ff00000
class Opt:
    WST = ' sc1'
    S1 = ' sc1'
    XW = True
    OW = True
    OST = ''
    PA = 4
    PRI = 4
    WP = 1
    WF = 0
    SK4 = True
    NONOP = True
    WPOS = (6, 13, 14, 20, 21)
    PX = 3
    FUSE = False
    W8 = False
    W4 = False
    IPF = 0
    WBL = 0
    LAM = 22
    LA0 = 12
    LAG = 4
    ABL = ''
    STEP = True
    CHAIN = 2
    XNT = ''
    QNT = ''
    WNT = ''
    K1BAR = 3
    PST = ' sc1'
    PBOUND = '0x8000'
    EXP = ''
    CPF = True
    XST = ' sc1'
    FOLD = True
    DBG = False
assert WS_END < WS_SIZE

QSCALE = (18 ** -0.5) * math.log2(math.e)
DMAP = [[0, 1, 2, 3, 8, 9, 10, 11, 16], [4, 5, 6, 7, 12, 13, 14, 15, 17]]

def f32bits(x):
    return "0x%08x" % struct.unpack("<I", struct.pack("<f", x))[0]

class Asm:
    def __init__(self):
        self.L = []
        self.vmq = []
    def __call__(self, s):
        for ln in s.split("\n"):
            self.L.append("    " + ln.strip())
    def label(self, s):
        self.L.append(s + ":")
    def raw(self, s):
        self.L.append(s)
    def vm(self, tag, s):
        self.vmq.append(tag)
        self(s)
    def vmn(self, tag):
        idx = len(self.vmq) - 1 - self.vmq[::-1].index(tag)
        n = len(self.vmq) - 1 - idx
        return min(n, 63)
    def waitvm(self, tag, extra=""):
        self(f"s_waitcnt vmcnt({self.vmn(tag)}){extra}")
    def emit(self, it):
        if isinstance(it, str):
            self(it)
        elif it[0] == "vm":
            self.vm(it[1], it[2])
        elif it[0] == "wait":
            self.waitvm(it[1], it[2] if len(it) > 2 else "")
        elif it[0] == "label":
            self.label(it[1])
        elif it[0] == "stamp":
            self.stamp(it[1])
        else:
            raise ValueError(it)
    def srd(self, d, p, size, off=0):
        if off:
            self(f"s_add_u32 s{d}, s{p}, {off}")
            self(f"s_addc_u32 s{d+1}, s{p+1}, 0")
        else:
            self(f"s_mov_b32 s{d}, s{p}")
            self(f"s_mov_b32 s{d+1}, s{p+1}")
        self(f"s_mov_b32 s{d+2}, {size}")
        self(f"s_mov_b32 s{d+3}, 0x00020000")
    smap = None
    def stamp(self, i):
        if not Opt.DBG: return
        if self.smap is not None and i not in (0, 8):
            if i not in self.smap: return
            i = self.smap[i]
        self("s_memrealtime s[100:101]")
        self("s_waitcnt lgkmcnt(0)")
        self(f"s_mov_b32 s{89+i}, s100")
    def stampc(self, i):
        if not Opt.DBG: return
        self("s_memtime s[100:101]")
        self("s_waitcnt lgkmcnt(0)")
        self(f"s_mov_b32 s{89+i}, s100")
    def end(self, kid, srd, nwaves, n=10):
        if Opt.DBG:
            self.stamp(8)
            self.stampc(9)
            self("s_mov_b64 exec, 1")
            self(f"s_mul_i32 s100, s2, {nwaves}")
            self("s_add_u32 s100, s100, s3")
            self("s_lshl_b32 s100, s100, 6")
            self(f"s_add_u32 s100, s100, {WS_DBG + kid * 4096 * 64}")
            self("v_mov_b32 v1, 0")
            for i in range(n + 1):
                self(f"v_mov_b32 v2, s{89+i}")
                self(f"buffer_store_dword v2, v1, s[{srd}:{srd+3}], s100 offen offset:{4*i}")
        self("s_endpgm")
    def codepf(self, start, end, sidx, vlane16, vdst, sp, tag="cpf"):
        if not Opt.CPF: return
        self.n_pf = getattr(self, "n_pf", 0) + 1
        lb = f"Lpf{self.n_pf}"
        self(f"s_getpc_b64 s[{sp}:{sp+1}]")
        self.label(lb)
        self(f"s_lshl_b32 s{sp+2}, s{sidx}, 10")
        self(f"s_min_u32 s{sp+2}, s{sp+2}, {end}-{start}-1024")
        self(f"s_add_u32 s{sp}, s{sp}, s{sp+2}")
        self(f"s_addc_u32 s{sp+1}, s{sp+1}, 0")
        self(f"s_add_u32 s{sp}, s{sp}, {start}-{lb}")
        self(f"s_addc_u32 s{sp+1}, s{sp+1}, ({start}-{lb})>>32")
        self.vm(tag, f"global_load_dwordx4 v[{vdst}:{vdst+3}], v{vlane16}, s[{sp}:{sp+1}]")
    def guard(self, tag):
        self("s_cmp_lt_u32 s2, 256")
        self(f"s_cbranch_scc1 {tag}_run")
        self("s_endpgm")
        if Opt.IPF:
            self.label(f"{tag}_pad0")
            self("s_setpc_b64 s[100:101]")
        self.label(f"{tag}_run")
    def pad(self, tag, n):
        if n >= Opt.IPF: return
        self(f"s_branch {tag}_ov{n}")
        self.label(f"{tag}_pad{n}")
        self("s_setpc_b64 s[100:101]")
        self.label(f"{tag}_ov{n}")
    def touch(self, lbl):
        return [f"s_call_b64 s[100:101], {lbl}_pad{n}" for n in range(Opt.IPF)]
    def begin(self, k):
        self.vmq = []
        self.raw(f".globl {k}\n.p2align 8\n.type {k},@function\n{k}:")
    def text(self):
        return "\n".join(self.L) + "\n"

def vr(b, n=4):
    return f"v[{b}:{b+n-1}]"
def ar(b, n=4):
    return f"a[{b}:{b+n-1}]"

def desc(k, nv, acc=None, ns=102):
    if acc is None:
        acc = min(256, (nv + 3) // 4 * 4)
    return f""".p2align 6
.amdhsa_kernel {k}
  .amdhsa_next_free_vgpr {nv}
  .amdhsa_next_free_sgpr {ns}
  .amdhsa_accum_offset {acc}
  .amdhsa_group_segment_fixed_size 0
  .amdhsa_kernarg_size 104
  .amdhsa_user_sgpr_count 2
  .amdhsa_user_sgpr_kernarg_segment_ptr 1
  .amdhsa_system_sgpr_workgroup_id_x 1
.end_amdhsa_kernel
"""

A_X, A_WQ, A_WK, A_WV, A_WO, A_BX, A_W1, A_B1, A_W2, A_B2, A_OUT, A_DBG, A_WS = [8 * i for i in range(13)]

def weave(main, side):
    out = []
    for i, m in enumerate(main):
        out += side.get(i, [])
        out.append(m)
    out += side.get(len(main), [])
    return out

def cross_g_sum(a, v, t):
    a(f"v_mov_b32 v{t}, v{v}")
    a("s_nop 1")
    a(f"v_permlane16_swap_b32 v{v}, v{t}")
    a("s_nop 1")
    a(f"v_add_f32 v{v}, v{v}, v{t}")
    a(f"v_mov_b32 v{t}, v{v}")
    a("s_nop 1")
    a(f"v_permlane32_swap_b32 v{v}, v{t}")
    a("s_nop 1")
    a(f"v_add_f32 v{v}, v{v}, v{t}")

def build(kernels, out):
    a = Asm()
    metas = [k(a) for k in kernels]
    hdr = open("cdna_kernels/" + NAME + ".s.ref").read().split("\n")
    top = []
    for ln in hdr:
        if ln.startswith(";") and "@launch" not in ln and "Override launch" not in ln and "grid=ceil" not in ln:
            top.append(ln)
        if not ln.startswith(";"):
            break
    s = "\n".join(top) + "\n"
    for K, d, (g, b, l) in metas:
        s += f"; @launch kernel={K} grid=({g},1,1) block=({b},1,1) lds={l}\n"
    s += '.amdgcn_target "amdgcn-amd-amdhsa--gfx950"\n.text\n'
    s += a.text()
    s += '.section .rodata,"a"\n'
    for K, d, _ in metas:
        s += d
    open(out, "w").write(s)
```

```python
from common import *
import relayout as RL
WIMG = 0
KVIMG = 576 * 144
XIMG = KVIMG + 576 * 16
FL = XIMG + 4 * 17 * 1024
LDS = FL + 64

def k1(a):
    K = "k1_kernel"
    a.begin(K)
    a("s_cmp_ge_u32 s2, 256")
    a("s_cbranch_scc1 K1_end")
    a.stamp(0); a.stampc(10)
    a(f"s_load_dwordx4 s[4:7], s[0:1], {A_X}")
    a(f"s_load_dwordx4 s[8:11], s[0:1], {A_WK}")
    a(f"s_load_dwordx2 s[12:13], s[0:1], {A_WS}")
    a(f"s_load_dwordx2 s[52:53], s[0:1], {A_WO}")
    a("v_lshrrev_b32 v1, 6, v0")
    a("v_and_b32 v2, 63, v0")
    a("v_readfirstlane_b32 s3, v1")
    a("v_and_b32 v3, 15, v0")
    a("v_bfe_u32 v4, v0, 4, 2")
    a("s_and_b32 s14, s2, 31")
    a("s_lshr_b32 s15, s2, 5")
    a("s_lshr_b32 s48, s14, 3")
    a("s_lshl_b32 s48, s48, 1")
    a("s_add_u32 s48, s48, s15")
    a("s_cmp_ge_u32 s48, 9")
    a("s_cselect_b32 s49, 9, 0")
    a("s_sub_u32 s48, s48, s49")
    a("s_cmp_lt_u32 s3, 4")
    a("s_cbranch_scc1 K1_compute")
    a("s_sub_u32 s50, s3, 4")
    a("s_lshl_b32 s34, s50, 2")
    a(f"s_add_u32 s34, s34, {FL}")
    a("v_mov_b32 v21, s34")
    a("v_mov_b32 v22, 0")
    a("ds_write_b32 v21, v22")
    a("ds_write_b32 v21, v22 offset:16")
    def pattern(vq, vd, stride, usec):
        if usec:
            a(f"v_mul_u32_u24 v10, 7282, v{vq}")
            a("v_lshrrev_b32 v10, 16, v10")
            a("v_mul_u32_u24 v11, 9, v10")
            a(f"v_sub_u32 v11, v{vq}, v11")
        else:
            a(f"v_mov_b32 v10, v{vq}")
        a("v_and_b32 v12, 1, v10")
        a("v_bfe_u32 v13, v10, 1, 2")
        a("v_lshl_or_b32 v12, v12, 2, v13")
        a("v_and_or_b32 v10, v10, -8, v12")
        a(f"v_mul_u32_u24 v{vd}, {stride}, v10")
        if usec:
            a(f"v_lshl_add_u32 v{vd}, v11, 4, v{vd}")
    a("v_and_b32 v9, 255, v0")
    pattern(9, 6, ROW, True)
    a("v_add_u32 v9, 256, v9")
    pattern(9, 7, ROW, True)
    a("v_add_u32 v9, 512, v2")
    pattern(9, 8, ROW, True)
    pattern(2, 9, 36, False)
    a("s_cmp_eq_u32 s50, 1")
    a("s_cselect_b64 vcc, -1, 0")
    a("v_lshrrev_b32 v5, 2, v2")
    a(f"v_mul_u32_u24 v5, {ROW}, v5")
    a("v_sub_u32 v10, 0, v4")
    a("v_xor_b32 v10, v10, v2")
    a("v_and_b32 v10, 3, v10")
    a("v_lshl_add_u32 v5, v10, 4, v5")
    a("v_cndmask_b32 v8, v8, v9, vcc")
    a("s_mul_i32 s33, s15, 144")
    a("s_lshl_b32 s32, s14, 2")
    a("s_add_u32 s32, s32, s50")
    a(f"s_mul_i32 s32, s32, {16*ROW}")
    a("s_mul_i32 s44, s50, 17408")
    a(f"s_add_u32 s44, s44, {XIMG}")
    a("s_lshl_b32 s35, s50, 10")
    a("s_mov_b32 s42, 0")
    a("s_cmp_lt_u32 s15, 3")
    a("s_cselect_b32 s36, 0, 3")
    a("s_waitcnt lgkmcnt(0)")
    a("s_cselect_b32 s24, s8, s10")
    a("s_cselect_b32 s25, s9, s11")
    a("s_barrier")
    a.srd(16, 4, 2048 * ROW)
    a.srd(20, 6, 576 * ROW)
    a("s_sub_u32 s36, s15, s36")
    a("s_lshl_b32 s37, s36, 4")
    a("s_cmp_ge_u32 s36, 2")
    a("s_cselect_b32 s37, 20, s37")
    a("s_cmp_eq_u32 s50, 1")
    a("s_cselect_b32 s24, s24, s6")
    a("s_cselect_b32 s25, s25, s7")
    a(f"s_cselect_b32 s26, {576*36}, s22")
    a("s_mov_b32 s27, 0x00020000")
    a("s_cselect_b32 s37, s37, s33")
    a(f"s_mov_b32 s41, {64*ROW}")
    a(f"s_cselect_b32 s41, {64*36}, s41")
    a("s_mov_b32 s38, 8192")
    a(f"s_cselect_b32 s38, {KVIMG}, s38")
    a("s_mov_b32 s39, 9216")
    a("s_cselect_b32 s39, 1024, s39")
    a.stamp(1)
    a("s_lshl_b32 s45, s48, 7")
    a("s_mov_b32 s46, 9")
    if Opt.WF: a("s_branch K1_dma")
    a.label("K1_xl")
    a("s_add_u32 s34, s45, s32")
    a("s_mov_b32 m0, s44")
    a("s_add_u32 s40, s44, 960")
    a(f"buffer_load_dwordx4 v5, s[16:19], s34 offen{Opt.XNT} lds")
    a("s_sub_u32 s46, s46, 1")
    a("s_cmp_eq_u32 s46, 0")
    a("s_cbranch_scc1 K1_dma")
    a("s_mov_b32 m0, s40")
    a("s_add_u32 s44, s44, 2048")
    a(f"buffer_load_dwordx4 v5, s[16:19], s34 offen offset:64{Opt.XNT} lds")
    a("s_add_u32 s45, s45, 128")
    a(f"s_cmp_ge_u32 s45, {ROW}")
    a("s_cselect_b32 s45, 0, s45")
    a("s_branch K1_xl")
    a.label("K1_dma")
    a(f"s_mul_i32 s34, s48, {64*ROW}")
    a("s_add_u32 s34, s34, s33")
    a("s_mov_b32 m0, s35")
    a("s_add_u32 s40, s35, 4096")
    a(f"buffer_load_dwordx4 v6, s[20:23], s34 offen{Opt.QNT} lds")
    a("s_mov_b32 m0, s40")
    a("s_add_u32 s35, s35, 9216")
    a(f"buffer_load_dwordx4 v7, s[20:23], s34 offen{Opt.QNT} lds")
    a(f"s_cmp_lg_u32 s42, {Opt.WF}")
    a("s_cbranch_scc1 K1_nxf")
    a(f"v_mov_b32 v22, {Opt.WF + 2}")
    a("s_waitcnt vmcnt(2)")
    a("ds_write_b32 v21, v22 offset:16")
    a("ds_write_b32 v21, v22")
    a.label("K1_nxf")
    a("s_cmp_ge_u32 s50, 2")
    a("s_cbranch_scc1 K1_two")
    a("s_mul_i32 s34, s48, s41")
    a("s_add_u32 s34, s34, s37")
    a("s_mov_b32 m0, s38")
    a("s_add_u32 s38, s38, s39")
    a("buffer_load_dwordx4 v8, s[24:27], s34 offen lds")
    a.label("K1_two")
    a("s_add_u32 s48, s48, 1")
    a("s_cmp_ge_u32 s48, 9")
    a("s_cselect_b32 s48, 0, s48")
    a("s_add_u32 s42, s42, 1")
    if Opt.WF:
        a(f"s_cmp_lt_u32 s42, {Opt.WF}")
        a("s_cbranch_scc1 K1_dma")
        a(f"s_cmp_eq_u32 s42, {Opt.WF}")
        a("s_cbranch_scc1 K1_xl")
    a(f"s_max_u32 s40, s42, {Opt.WF + 2}")
    a("v_mov_b32 v22, s40")
    a("s_cmp_lt_u32 s42, 9")
    a("s_waitcnt vmcnt(4)")
    a("ds_write_b32 v21, v22")
    a("s_cbranch_scc1 K1_dma")
    a.stamp(2)
    a("v_mov_b32 v23, 10")
    a("v_mov_b32 v24, 11")
    a("s_waitcnt vmcnt(2)")
    a("ds_write_b32 v21, v23")
    a("s_waitcnt vmcnt(0)")
    a("ds_write_b32 v21, v24")
    a.stamp(4)
    for x_ in a.touch("K2"): a(x_)
    if Opt.DBG: a.srd(28, 12, WS_SIZE)
    a.end(1, 28, 8)
    a.label("K1_compute")
    X = 64
    RAW = 200
    a(f"v_mul_u32_u24 v5, {ROW}, v3")
    a("v_lshl_add_u32 v5, v4, 4, v5")
    a("s_lshl_b32 s32, s14, 2")
    a("s_add_u32 s32, s32, s3")
    a(f"s_mul_i32 s33, s32, {16*ROW}")
    a("s_lshl_b32 s34, s48, 7")
    a("s_sub_u32 s34, s34, 64")
    a("s_cmp_eq_u32 s48, 0")
    a(f"s_cselect_b32 s34, {ROW-64}, s34")
    a("s_add_u32 s36, s33, s34")
    a("s_waitcnt lgkmcnt(0)")
    a("s_barrier")
    a.srd(16, 4, 2048 * ROW)
    a.srd(28, 12, WS_SIZE)
    a.stamp(1)
    a("s_min_u32 s54, s2, 161")
    RL.params_wo(a, 54, 56, 64, 52)
    RL.voff_src(a, 196, 198, 56)
    RL.voff_dst(a, 197, 198)
    a("s_cmp_lt_u32 s2, 162")
    a("s_cselect_b32 s55, s3, 0")
    a(f"buffer_load_dwordx4 {vr(X+68)}, v5, s[16:19], s36 offen")
    a("v_lshrrev_b32 v7, 2, v3")
    a("v_sub_u32 v7, 0, v7")
    a("v_xor_b32 v7, v7, v4")
    a("v_and_b32 v7, 3, v7")
    a("v_lshlrev_b32 v7, 4, v7")
    a("v_lshl_add_u32 v7, v3, 6, v7")
    a("s_mul_i32 s35, s3, 17408")
    a(f"s_add_u32 s35, s35, {XIMG}")
    a("v_add_u32 v7, s35, v7")
    a("v_bfe_u32 v5, v0, 2, 2")
    a("v_and_b32 v6, 3, v0")
    a("v_lshlrev_b32 v12, 3, v4")
    a("v_lshl_add_u32 v12, v5, 1, v12")
    a("v_mul_u32_u24 v8, 144, v12")
    a("v_lshl_add_u32 v8, v6, 3, v8")
    TA = 232
    for t in range(4):
        a(f"s_add_u32 s{76+t}, s3, {t}")
        a(f"s_and_b32 s{76+t}, s{76+t}, 3")
        a(f"s_lshl_b32 s80, s{76+t}, 5")
        a(f"v_add_u32 v{TA+t}, s80, v8")
        a(f"v_add_u32 v{TA+4+t}, {9*4608}, v{TA+t}")
    a("v_lshlrev_b32 v10, 4, v12")
    a("v_lshl_add_u32 v10, v6, 3, v10")
    a(f"v_add_u32 v10, {KVIMG-16}, v10")
    a("v_add_u32 v11, 16, v10")
    a("v_add_u32 v15, 128, v8")
    a("v_cmp_gt_u32 vcc, 2, v6")
    a("v_mov_b32 v14, 512")
    a("v_mov_b32 v5, 4608")
    a("v_cndmask_b32 v10, v10, v15, vcc")
    a("v_add_u32 v15, 144, v15")
    a("v_cndmask_b32 v14, v14, v5, vcc")
    a("v_cndmask_b32 v11, v11, v15, vcc")
    ONES = 56
    for i in range(4):
        a(f"v_mov_b32 v{ONES+i}, 0x3f803f80")
    ACC, CSA, SM, GR, FT = 16, 36, 60, 188, 192
    QA = 176
    a(f"v_mov_b32 v5, {FL}")
    a("s_mov_b32 s43, 0")
    W = 136
    def need(blk):
        a.label(f"K1_w{blk+1}")
        a(f"s_cmp_ge_u32 s43, {blk+3}")
        a(f"s_cbranch_scc1 K1_ok{blk+1}")
        a(f"ds_read_b128 {vr(FT)}, v5")
        a("s_waitcnt lgkmcnt(0)")
        a(f"v_min3_u32 v{FT}, v{FT}, v{FT+1}, v{FT+2}")
        a(f"v_min_u32 v{FT}, v{FT}, v{FT+3}")
        a("s_nop 0")
        a(f"v_readfirstlane_b32 s43, v{FT}")
        a(f"s_branch K1_w{blk+1}")
        a.label(f"K1_ok{blk+1}")
    a("v_and_b32 v16, 7, v3")
    a("v_lshrrev_b32 v17, 3, v3")
    a(f"v_mul_u32_u24 v17, {ROW}, v17")
    a("s_add_u32 s81, s35, 256")
    a("v_add_u32 v17, s81, v17")
    a("v_lshl_add_u32 v18, v16, 4, v17")
    a("v_lshl_add_u32 v19, v16, 2, v17")
    a("v_add_u32 v19, 1024, v19")
    a("v_lshlrev_b32 v20, 2, v4")
    for t in range(5):
        for q in range(2):
            d = QA + 2 * t + q
            if t < 4:
                a(f"s_lshl_b32 s80, s{76+t}, 4")
                a(f"s_add_u32 s80, s80, {2*q}")
                a("v_add_u32 v21, s80, v20")
            else:
                a(f"v_add_u32 v21, {16*t+2*q}, v20")
            a("v_mul_u32_u24 v22, 57, v21")
            a("v_lshrrev_b32 v22, 10, v22")
            a("v_mad_i32_i24 v21, v22, -16, v21")
            a("v_mad_i32_i24 v21, v22, -2, v21")
            a("v_cmp_gt_u32 vcc, 16, v21")
            a("v_lshrrev_b32 v23, 3, v21")
            a(f"v_lshl_add_u32 v{d}, v23, 9, v18")
            a(f"v_lshl_add_u32 v{d}, v22, 7, v{d}")
            a("v_and_b32 v23, 7, v21")
            a(f"v_lshl_add_u32 v{d}, v23, 1, v{d}")
            a("v_lshl_add_u32 v23, v22, 5, v19")
            a(f"v_cndmask_b32 v{d}, v23, v{d}, vcc")
    VS = 240
    a("s_lshl_b32 s34, s32, 4")
    a("s_add_u32 s34, s34, s15")
    a(f"s_mul_i32 s34, s34, {ROW}")
    a(f"s_add_u32 s34, s34, {WS_Q}")
    a("s_lshr_b32 s35, s32, 1")
    a(f"s_mul_i32 s35, s35, {KVB}")
    a(f"s_add_u32 s35, s35, {WS_KV}")
    a("s_sub_u32 s35, s35, s34")
    a("s_and_b32 s37, s32, 1")
    a("v_lshlrev_b32 v16, 4, v2")
    a(f"v_add_u32 v{VS}, s81, v16")
    a("v_cmp_lt_u32 vcc, 7, v2")
    a("v_add_u32 v17, 1024, v16")
    a(f"v_add_u32 v18, {1024+8064}, v16")
    a(f"v_cndmask_b32 v{VS+1}, v17, v18, vcc")
    a("v_lshlrev_b32 v17, 4, v3")
    a("s_lshl_b32 s38, s15, 9")
    a("s_lshl_b32 s39, s37, 8")
    a("s_add_u32 s38, s38, s39")
    a("s_add_u32 s38, s38, s35")
    a("v_add_u32 v18, s38, v17")
    a("s_mul_i32 s38, s37, 640")
    a("s_add_u32 s38, s38, s35")
    a("s_add_u32 s38, s38, 1024")
    a("s_sub_u32 s36, s15, 3")
    a("s_lshl_b32 s39, s36, 7")
    a("s_cmp_eq_u32 s36, 2")
    a("s_cselect_b32 s39, 160, s39")
    a("s_cselect_b32 s36, 16, 0")
    a("s_add_u32 s39, s39, s38")
    a("v_lshrrev_b32 v19, 3, v3")
    a("v_mul_u32_u24 v19, 192, v19")
    a("v_add3_u32 v19, v19, v17, s39")
    a("v_and_b32 v20, 7, v3")
    a("v_cmp_eq_u32 vcc, 7, v20")
    a("v_add_u32 v20, s36, v19")
    a("v_lshrrev_b32 v21, 1, v3")
    a("v_cndmask_b32 v19, v19, v20, vcc")
    a("v_mul_u32_u24 v21, 320, v21")
    a("v_and_b32 v22, 1, v3")
    a("v_lshl_add_u32 v21, v22, 5, v21")
    a(f"s_add_u32 s38, s38, {17*16}")
    a("v_add_u32 v21, s38, v21")
    a("v_cmp_gt_u32 vcc, 4, v3")
    a(f"v_mov_b32 v22, {OOB}")
    a("s_cmp_lt_u32 s15, 2")
    a("s_cselect_b64 s[44:45], -1, 0")
    a("v_cndmask_b32 v21, v22, v21, vcc")
    a("s_sub_u32 s36, s15, 3")
    a("s_cmp_lt_u32 s36, 3")
    a("s_cselect_b64 s[46:47], -1, 0")
    a("s_cmp_eq_u32 s15, 6")
    a("s_cselect_b64 vcc, -1, 0")
    a("v_cndmask_b32_e64 v22, v22, v18, s[44:45]")
    a("v_cndmask_b32_e64 v22, v22, v19, s[46:47]")
    a("v_cndmask_b32 v22, v22, v21, vcc")
    a("v_cmp_eq_u32 vcc, 0, v4")
    a(f"v_add_u32 v18, {2048+8064}, v16")
    a("v_lshl_add_u32 v19, v4, 3, v17")
    a(f"v_cndmask_b32 v{VS+2}, v22, v18, vcc")
    a("v_subrev_u32 v19, 16, v19")
    a("v_bfe_u32 v20, v3, 2, 1")
    a("v_lshlrev_b32 v20, 7, v20")
    a("v_lshl_add_u32 v20, v4, 6, v20")
    a("v_and_b32 v21, 3, v3")
    a("v_lshl_add_u32 v20, v21, 1, v20")
    a("v_lshrrev_b32 v21, 3, v3")
    a("v_lshl_add_u32 v20, v21, 3, v20")
    a("v_subrev_u32 v20, 128, v20")
    a("v_cndmask_b32_e64 v19, v19, v20, s[46:47]")
    a("s_add_u32 s38, s81, 2304")
    a(f"v_add_u32 v{VS+3}, s38, v19")
    a("s_lshl_b32 s38, s37, 8")
    a(f"v_add_u32 v{VS+4}, s38, v17")
    a("s_lshr_b32 s38, s32, 3")
    a("s_lshl_b32 s38, s38, 9")
    a("s_and_b32 s39, s32, 6")
    a("s_lshl_b32 s39, s39, 1")
    a("s_add_u32 s38, s38, s39")
    a(f"s_add_u32 s82, s38, {WS_KV + K2OFF}")
    def rd1(kk, t, h):
        wb = W + 20 * (kk & 1)
        o = (kk % 9) * 4608
        if t < 4:
            a(f"ds_read_b64_tr_b16 {vr(wb+4*t+2*h,2)}, v{TA + t + (4 if kk >= 9 else 0)} offset:{o+144*h}")
        else:
            a(f"ds_read_b64_tr_b16 {vr(wb+16+2*h,2)}, v{10+h}")
            a(f"v_add_u32 v{10+h}, v{10+h}, v14")
    a.stamp(2)
    a("s_lshl_b32 s80, s3, 2")
    a("v_add_u32 v6, s80, v5")
    a.label("K1_xw")
    a(f"ds_read_b32 v{FT}, v6 offset:16")
    a("s_waitcnt lgkmcnt(0)")
    a(f"v_readfirstlane_b32 s80, v{FT}")
    a("s_cmp_eq_u32 s80, 0")
    a("s_cbranch_scc1 K1_xw")
    a.stamp(3)
    for n in range(17):
        a(f"ds_read_b128 {vr(X+4*n)}, v7 offset:{1024*n}")
    a("s_waitcnt vmcnt(0)")
    a("s_cmp_lg_u32 s55, 3")
    a("s_cbranch_scc1 K1_nowo")
    for it in RL.loads(RAW, 196, 56, 64, "raw"):
        a.emit(it)
    a.label("K1_nowo")
    a("v_lshlrev_b32 v199, 4, v2")
    a("s_lshr_b32 s70, s2, 3")
    a("s_lshl_b32 s71, s3, 5")
    a("s_add_u32 s70, s70, s71")
    a("s_cmp_ge_u32 s3, 3")
    a("s_cbranch_scc1 K1_nopf")
    a.codepf("k1_kernel", "K3_end", 70, 199, RAW, 72)
    a.label("K1_nopf")
    for n in range(18):
        if n < 17 and n % 4 == 0: a(f"s_waitcnt lgkmcnt({max(17 - n - 4, 0)})")
        z = n == 0
        a(f"v_mfma_f32_16x16x32_bf16 {vr(SM)}, {vr(ONES)}, {vr(X+4*n)}, {'0' if z else vr(SM)}")
        a(f"v_mfma_f32_16x16x32_bf16 {vr(GR)}, {vr(X+4*n)}, {vr(X+4*n)}, {'0' if z else vr(GR)}")
    vMean, vRstd = 12, 13
    a("v_and_b32 v16, 3, v3")
    a("v_lshrrev_b32 v17, 2, v3")
    a("v_cmp_eq_u32 vcc, 1, v16")
    a("v_cmp_eq_u32 s[44:45], 2, v16")
    a("v_cmp_eq_u32 s[46:47], 3, v16")
    a(f"v_lshlrev_b32 v6, 4, v4")
    a(f"v_add_u32 v6, {XIMG}, v6")
    a("s_nop 1")
    a(f"v_mul_f32 v{vMean}, {f32bits(-1.0/576)}, v{SM}")
    a(f"v_cndmask_b32 v{GR}, v{GR}, v{GR+1}, vcc")
    a("v_cmp_eq_u32 vcc, v17, v4")
    a(f"v_cndmask_b32_e64 v{GR}, v{GR}, v{GR+2}, s[44:45]")
    a(f"v_cndmask_b32_e64 v{GR}, v{GR}, v{GR+3}, s[46:47]")
    a(f"v_cndmask_b32 v{GR}, 0, v{GR}, vcc")
    cross_g_sum(a, GR, GR + 1)
    a(f"v_mov_b32 v{GR+1}, {f32bits(1e-5)}")
    a(f"v_fmac_f32 v{GR+1}, {f32bits(1.0/576)}, v{GR}")
    a(f"v_fma_f32 v{GR+1}, -v{vMean}, v{vMean}, v{GR+1}")
    a(f"v_max_f32 v{GR+1}, {f32bits(1e-5)}, v{GR+1}")
    a(f"v_rsq_f32 v{vRstd}, v{GR+1}")
    a("v_cmp_gt_u32 vcc, 2, v4")
    a(f"v_mul_f32 v245, {f32bits(QSCALE)}, v{vRstd}")
    a("s_nop 0")
    a(f"v_cndmask_b32 v15, v{vRstd}, v245, vcc")
    for t in range(4):
        a(f"s_mul_i32 s80, s{76+t}, 17408")
        a(f"v_add_u32 v{SM+t}, s80, v6")
    need(0)
    for t in range(5):
        rd1(0, t, 0); rd1(0, t, 1)
    for kk in range(18):
        wb = W + 20 * (kk & 1)
        last = kk == 17
        if kk % 2 == 1 and not last:
            need((kk + 1) // 2)
        z = kk == 0
        for t in range(5):
            a(f"s_waitcnt lgkmcnt({8 - 2 * t if last else 8})")
            if t in (0, 4):
                a(f"v_mfma_f32_16x16x32_bf16 {vr(CSA+4*t)}, {vr(wb+4*t)}, {vr(ONES)}, {'0' if z else vr(CSA+4*t)}")
                if not last: rd1(kk + 1, t, 0)
            a(f"v_mfma_f32_16x16x32_bf16 {vr(ACC+4*t)}, {vr(wb+4*t)}, {vr(X+4*kk)}, {'0' if z else vr(ACC+4*t)}")
            if not last:
                if t not in (0, 4): rd1(kk + 1, t, 0)
                rd1(kk + 1, t, 1)
        if kk == 8: a.stamp(4)
        if kk == 6:
            a("s_cmp_lg_u32 s55, 3")
            a("s_cbranch_scc1 K1_aend")
            a("s_mov_b32 s68, 0x05040100")
            a("s_mov_b32 s69, 0x07060302")
            a("s_waitcnt vmcnt(0)")
            for it in RL.perms_stores(RAW, [216, 220, 224, 228], 197, 56, 28, 68, 69, "st", Opt.S1):
                a.emit(it)
            a.label("K1_aend")
    a.stamp(5)
    a(f"ds_write_b128 v{SM}, {vr(CSA)}")
    a("v_cmp_gt_u32 vcc, 2, v4")
    a("s_waitcnt lgkmcnt(0)")
    a("s_barrier")
    for t in range(1, 4):
        a(f"ds_read_b128 {vr(CSA+4*t)}, v{SM+t}")
    for r in list(range(4)) + list(range(16, 20)):
        a(f"v_fmac_f32 v{ACC+r}, v{vMean}, v{CSA+r}")
    a.stamp(6)
    PK = X
    for t in (4, 0, 1, 2, 3):
        sc = 245 if t < 4 else 15
        if t == 1: a("s_waitcnt lgkmcnt(0)")
        if 1 <= t <= 3:
            for r in range(4):
                a(f"v_fmac_f32 v{ACC+4*t+r}, v{vMean}, v{CSA+4*t+r}")
        for r in range(4):
            a(f"v_mul_f32 v{ACC+4*t+r}, v{sc}, v{ACC+4*t+r}")
        a(f"v_cvt_pk_bf16_f32 v{PK+2*t}, v{ACC+4*t}, v{ACC+4*t+1}")
        a(f"v_cvt_pk_bf16_f32 v{PK+1+2*t}, v{ACC+4*t+2}, v{ACC+4*t+3}")
        if t == 4:
            a("s_mov_b64 exec, vcc")
        for q in range(2):
            a(f"ds_write_b32 v{QA+2*t+q}, v{PK+2*t+q}")
        if t == 4:
            a("s_not_b64 exec, vcc")
            a("s_cmp_lt_u32 s36, 3")
            a("s_cbranch_scc1 K1_v")
            a("s_cmp_eq_u32 s15, 6")
            a("s_cbranch_scc1 K1_on")
            a(f"ds_write_b64 v{VS+3}, {vr(PK+8,2)}")
            a("s_cmp_lg_u32 s15, 2")
            a("s_cbranch_scc1 K1_kvd")
            a("s_mov_b32 exec_hi, 0xffff0000")
            a(f"buffer_store_dword v{PK+9}, v{VS+4}, s[28:31], s82 offen{Opt.S1}")
            a("s_branch K1_kvd")
            a.label("K1_on")
            a(f"ds_write_b64 v{VS+3}, {vr(ONES,2)}")
            a("s_branch K1_kvd")
            a.label("K1_v")
            for r in range(4):
                op = "ds_write_b16" if r % 2 == 0 else "ds_write_b16_d16_hi"
                a(f"{op} v{VS+3}, v{PK + 8 + r // 2} offset:{16*r}")
            a.label("K1_kvd")
            a("s_mov_b64 exec, -1")
    for k in range(3):
        a(f"ds_read_b128 {vr(W+4*k)}, v{VS} offset:{1024*k}")
    a("v_lshlrev_b32 v16, 4, v2")
    for k in range(3):
        a(f"s_waitcnt lgkmcnt({2-k})")
        if k == 2: a("s_mov_b32 exec_hi, 0")
        a(f"buffer_store_dwordx4 {vr(W+4*k)}, v{(16, VS+1, VS+2)[k]}, s[28:31], s34 offen{Opt.S1}")
    if Opt.FUSE:
        a("s_cmp_lg_u32 s15, 7")
        a("s_cbranch_scc1 K1_fin")
        a("s_lshl_b32 s38, s32, 7")
        a(f"s_add_u32 s38, s38, {WS_FLAG}")
        a("v_mov_b32 v6, 0")
        a("v_lshlrev_b32 v7, 2, v2")
        a(f"buffer_store_dword v6, v7, s[28:31], s38 offen{Opt.S1}")
    a.label("K1_fin")
    a.end(1, 28, 8)
    a.label("K1_end")
    a("s_endpgm")
    return K, desc(K, 248), (256, 512, LDS)
```

```python
from common import *
import relayout as RL
QB   = 0
OB   = 8 * 1536
STAT = OB + 18 * 512
CP   = STAT + 640
CR   = CP + 32
MX   = STAT + 1024
PS   = MX + 1024
XS   = PS + 2 * 8 * 2560
STG  = XS + 8 * 1184
LDS  = STG + 8 * 10240

KF = [20 + 4 * s for s in range(8)]
K2F = 52
VF = [[60 + 8 * s, 64 + 8 * s] for s in range(8)]
S = [124, 140]
P = 156
O = [164, 180]
QR = [196, 204]
WACC = 212
WA = 232
WB = 252
vL16, vV, vK2, vL4, vOBr, vT0, vT1, vT2, vT3 = 3, 6, 7, 8, 9, 10, 11, 12, 13
POI = 4
vLo = 14
vX = 15
vSt, vStr = 16, 17
vPw, vPw8, vPr, vPr8 = 16, 17, 18, 19
vOw = 1

def attn(a, fused):
    a(f"s_load_dwordx2 s[4:5], s[0:1], {A_WS}")
    a(f"s_load_dwordx2 s[6:7], s[0:1], {A_X}")
    a(f"s_load_dwordx2 s[80:81], s[0:1], {A_W1}")
    a(f"s_load_dwordx2 s[82:83], s[0:1], {A_W2}")
    a("v_lshrrev_b32 v1, 6, v0")
    a("v_and_b32 v2, 63, v0")
    a("v_readfirstlane_b32 s3, v1")
    a("s_mov_b32 s22, 0")
    a.label("K2_main")
    a("v_and_b32 v2, 63, v0")
    a("v_and_b32 v5, 31, v0")
    a("v_bfe_u32 v4, v0, 5, 1")
    a(f"v_lshlrev_b32 v{vL16}, 4, v2")
    a(f"v_lshlrev_b32 v{vL4}, 2, v2")
    a(f"s_mul_i32 s16, s2, {8*ROW}")
    a(f"s_add_u32 s16, s16, {WS_Q}")
    a(f"s_mul_i32 s54, s3, {ROW}")
    a("s_add_u32 s54, s54, s16")
    a(f"v_lshl_or_b32 v{vT0}, v4, 30, v{vL4}")
    a(f"v_mul_u32_u24 v{vV}, 320, v4")
    a(f"v_lshl_add_u32 v{vV}, v5, 4, v{vV}")
    a(f"v_add_u32 v{vV}, 1024, v{vV}")
    a(f"v_subrev_u32 v18, 32, v{vV}")
    a(f"v_and_b32 v19, 30, v5")
    a("v_cmp_eq_u32 vcc, 20, v19")
    a("v_cmp_gt_u32 s[20:21], 18, v5")
    a(f"v_mov_b32 v19, {OOB}")
    a(f"v_cndmask_b32 v18, v19, v18, vcc")
    a(f"v_cndmask_b32_e64 v{vV}, v18, v{vV}, s[20:21]")
    a(f"v_lshl_or_b32 v{vK2}, v4, 30, v{vL16}")
    a("v_cmp_eq_u32 s[20:21], 0, v4")
    a("s_lshr_b32 s18, s2, 3")
    a("s_lshl_b32 s19, s3, 1")
    a("s_add_u32 s18, s18, s19")
    a("s_and_b32 s18, s18, 15")
    a("s_add_u32 s19, s18, 1")
    a("s_and_b32 s19, s19, 15")
    for s in range(8):
        a(f"s_mul_i32 s{24+s}, s{18 + s // 4}, {4*KVB}")
        if s % 4:
            a(f"s_add_u32 s{24+s}, s{24+s}, {(s % 4) * KVB}")
    for k in (18, 19):
        a(f"s_lshl_b32 s{k}, s{k}, 9")
        a(f"s_add_u32 s{k}, s{k}, {K2OFF}")
    a.pad("K2", 1)
    a("s_waitcnt lgkmcnt(0)")
    a.srd(8, 4, WS_SIZE)
    a.srd(12, 4, KV_BYTES, WS_KV)
    def ldK(s):
        L = [("vm", ("k", s), f"buffer_load_dwordx4 {vr(KF[s])}, v{vL16}, s[12:15], s{24+s} offen")]
        if s % 4 == 0:
            L.append(("vm", ("k", s), f"buffer_load_dwordx4 {vr(K2F+s)}, v{vK2}, s[12:15], s{18 + s // 4} offen"))
        return L
    def fixK2(b):
        return [f"v_cndmask_b32_e64 v{K2F+b+i}, v{vT2}, v{K2F+b+i}, s[20:21]" for i in range(4)]
    def ldV(s):
        return [("vm", ("v", s), f"buffer_load_dwordx4 {vr(VF[s][0])}, v{vV}, s[12:15], s{24+s} offen"),
                ("vm", ("v", s), f"buffer_load_dwordx4 {vr(VF[s][1])}, v{vV}, s[12:15], s{24+s} offen offset:640")]
    a.vm("q0", f"buffer_load_dwordx4 {vr(QR[0])}, v{vL16}, s[8:11], s16 offen")
    a.vm("q0", f"buffer_load_dword v{QR[0]+4}, v{vT0}, s[8:11], s16 offen offset:1024")
    for it in ldK(0) + ldK(1) + ldV(0):
        a.emit(it)
    a("s_mul_i32 s17, s3, 1536")
    a("s_cmp_eq_u32 s22, 0")
    a(f"s_cselect_b32 s17, s17, {XS}")
    a("s_mov_b32 m0, s17")
    a(f"v_add_u32 v{vPr}, s17, v{vL4}")
    a.vm("q", f"buffer_load_dwordx4 v{vL16}, s[8:11], s54 offen lds")
    a.vm("q", f"buffer_load_dword v{vT0}, s[8:11], s54 offen offset:1024 lds")
    a(f"v_mov_b32 v{QR[0]+5}, 0")
    a(f"ds_write_b32 v{vPr}, v{QR[0]+5} offset:1280")
    a(f"ds_write_b32 v{vL4}, v{QR[0]+5} offset:{CP}")
    a("s_lshr_b32 s41, s2, 3")
    a("s_and_b32 s42, s3, 1")
    a("s_lshl_b32 s42, s42, 5")
    a("s_add_u32 s41, s41, s42")
    a("s_cmp_lt_u32 s3, 6")
    a("s_cbranch_scc1 K2_nopf")
    a.codepf("k2_kernel", "K3_end" if fused else "K2_end", 41, vL16, WA, 42)
    a.vmq.pop()
    a.label("K2_nopf")
    a.srd(32, 4, WOF_BYTES, WS_WOF)
    a.srd(36, 6, 2048 * ROW)
    a.pad("K2", 2)
    a(f"v_bfe_u32 v{vT0}, v0, 4, 2")
    a(f"v_and_b32 v{vT3}, 7, v0")
    a(f"v_lshlrev_b32 v{vOBr}, 7, v{vT0}")
    a(f"v_lshl_add_u32 v{vOBr}, v{vT3}, 4, v{vOBr}")
    a(f"v_add_u32 v{vOBr}, {OB}, v{vOBr}")
    a(f"v_bfe_u32 v{vT1}, v0, 3, 2")
    a(f"v_lshl_add_u32 v{vT1}, v{vT1}, 1, v4")
    a(f"v_lshlrev_b32 v{vLo}, 4, v{vT3}")
    a(f"v_lshl_add_u32 v{vLo}, v{vT1}, 1, v{vLo}")
    a(f"v_add_u32 v{vLo}, {OB+8192}, v{vLo}")
    a(f"v_mul_u32_u24 v{vX}, 1184, v{vT3}")
    a(f"v_lshl_add_u32 v{vX}, v{vT0}, 3, v{vX}")
    a("s_lshl_b32 s17, s3, 5")
    a(f"s_add_u32 s17, s17, {XS}")
    a(f"v_add_u32 v{vX}, s17, v{vX}")
    a("s_mul_i32 s55, s3, 10240")
    a(f"s_add_u32 s55, s55, {STG}")
    a("s_mul_i32 s17, s3, 2560")
    a(f"s_add_u32 s17, s17, {PS}")
    a(f"v_add_u32 v{vPw}, s17, v{vL16}")
    a(f"v_lshlrev_b32 v{vPr8}, 3, v2")
    a(f"v_add_u32 v{vPw8}, s17, v{vPr8}")
    a(f"v_add_u32 v{vPr8}, {PS}, v{vPr8}")
    a("s_and_b32 s52, s3, 3")
    a("s_lshr_b32 s53, s3, 2")
    a("s_lshr_b32 s17, s52, 1")
    a("s_lshl_b32 s17, s17, 10")
    a("s_and_b32 s41, s52, 1")
    a("s_lshl_b32 s41, s41, 3")
    a("s_add_u32 s17, s17, s41")
    a(f"s_add_u32 s17, s17, {PS}")
    a(f"v_add_u32 v{vPr}, s17, v{vL16}")
    a("s_lshl_b32 s17, s52, 2")
    a(f"v_add_u32 v{vOw}, s17, v{vL16}")
    a("s_mov_b32 s23, 0")
    a(f"s_mul_i32 s40, s3, {18*1024}")
    a(f"v_mov_b32 v{QR[0]+6}, 0")
    a(f"v_mov_b32 v{vT2}, 0x3f803f80")
    def rdQ(p):
        o = (QB + 1536 * p + 1024) // 256
        return [f"ds_read_b128 {vr(QR[p&1])}, v{vL16} offset:{QB+1536*p}",
                f"ds_read2st64_b32 {vr(QR[p&1]+4,2)}, v{vL4} offset0:{o} offset1:{o+1}",
                f"ds_read2st64_b32 {vr(QR[p&1]+6,2)}, v{vL4} offset0:{o+1} offset1:{o}"]
    a.pad("K2", 3)
    a.stamp(1)
    a.waitvm(("k", 0))
    for it in fixK2(0): a(it)
    a(f"v_mov_b32 v{QR[0]+7}, v{QR[0]+4}")
    a("s_cmp_eq_u32 s22, 0")
    a("s_cbranch_scc1 K2_go")
    for it in rdQ(0):
        a(it)
    a("s_waitcnt lgkmcnt(0)")
    a.label("K2_go")
    def qk1(t):
        p, s = divmod(t, 8)
        return f"v_mfma_f32_32x32x16_bf16 {vr(S[t&1],16)}, {vr(KF[s])}, {vr(QR[p&1])}, 0"
    def qk2(t):
        p, s = divmod(t, 8)
        return f"v_mfma_f32_32x32x8_bf16 {vr(S[t&1],16)}, {vr(K2F+(s&~1),2)}, {vr(QR[p&1]+4+2*(s&1),2)}, {vr(S[t&1],16)}"
    def pv(t, half):
        p, s = divmod(t, 8)
        c = "0" if (s == 0 and half == 0) else vr(O[p & 1], 16)
        return f"v_mfma_f32_32x32x16_bf16 {vr(O[p&1],16)}, {vr(VF[s][half])}, {vr(P+4*half)}, {c}"
    def ex(t, i):
        return f"v_exp_f32 v{S[t&1]+i}, v{S[t&1]+i}"
    def cv(t, i):
        return f"v_cvt_pk_bf16_f32 v{P+i}, v{S[t&1]+2*i}, v{S[t&1]+2*i+1}"
    a.stamp(2)
    a(qk1(0)); a(qk2(0))
    for it in ldK(2) + ldK(3) + ldV(1):
        a.emit(it)
    a("s_and_b32 s84, s2, 7")
    a("s_andn2_b32 s85, s2, 7")
    a("s_add_u32 s85, s85, s3")
    RL.params_w12(a, 84, 85, 56, 64, 80, 82)
    a("s_lshr_b32 s85, s2, 3")
    a("s_lshl_b32 s17, s85, 1")
    a("s_add_u32 s17, s17, s3")
    a("s_add_u32 s17, s17, 256")
    a("s_add_u32 s85, s85, 320")
    a("s_cmp_lt_u32 s3, 2")
    a("s_cselect_b32 s85, s17, s85")
    a("s_cmp_gt_u32 s3, 2")
    a("s_cselect_b32 s85, 999, s85")
    RL.params_w12(a, 84, 85, 68, 76, 80, 82)

    def e1(p):
        o = O[p & 1]; b = (p & 1) * 20480
        return [f"ds_write_b128 v{vPw}, {vr(o)} offset:{b}", f"ds_write_b128 v{vPw}, {vr(o+4)} offset:{b+1024}",
                f"ds_write_b64 v{vPw8}, {vr(o+8,2)} offset:{b+2048}"]
    def guard(p, tag, body):
        return [f"s_cmp_lg_u32 s53, {p & 1}", f"s_cbranch_scc1 K2_{tag}"] + body + [("label", f"K2_{tag}")]
    def rdP(p, half):
        o = O[p & 1]; b = (p & 1) * 20480 + half * 4 * 2560
        L = []
        for k in range(4):
            L.append(f"ds_read_b64 {vr(o+4*k,2)}, v{vPr} offset:{b+2560*k}")
            L.append(f"ds_read_b64 {vr(o+4*k+2,2)}, v{vPr8} offset:{b+2560*k+2048}")
        return L
    def signal(off):
        return ["s_mov_b64 exec, 1", f"ds_add_u32 v{vL4}, v{vOBr} offset:{off}", "s_mov_b64 exec, -1"]
    def chk_issue(off, tmp):
        return [f"ds_read_b32 v{tmp}, v{vL4} offset:{off}"]
    def chk_wait(off, tmp, n, tag):
        return ["s_waitcnt lgkmcnt(0)", ("label", f"K2_c{tag}"), f"v_readfirstlane_b32 s41, v{tmp}", f"s_cmp_ge_u32 s41, {n*OB}",
                f"s_cbranch_scc1 K2_k{tag}", "s_sleep 2", f"ds_read_b32 v{tmp}, v{vL4} offset:{off}", "s_waitcnt lgkmcnt(0)",
                f"s_branch K2_c{tag}", ("label", f"K2_k{tag}")]
    def e2a(p, chk=False):
        return guard(p, f"e2a{p}", (chk_wait(CP + 4 * p, O[p & 1] + 15, 8, f"p{p}") if chk else []) + rdP(p, 0))
    def e2b(p):
        o = O[p & 1]
        L = ["s_waitcnt lgkmcnt(0)"]
        for q in range(2):
            L.append(f"v_pk_add_f32 {vr(o+2*q,2)}, {vr(o+2*q,2)}, {vr(o+4+2*q,2)}")
            L.append(f"v_pk_add_f32 {vr(o+8+2*q,2)}, {vr(o+8+2*q,2)}, {vr(o+12+2*q,2)}")
        for q in range(2):
            L.append(f"v_pk_add_f32 {vr(vT0+2*q,2)}, {vr(o+2*q,2)}, {vr(o+8+2*q,2)}")
        return guard(p, f"e2b{p}", L + rdP(p, 1))
    def e2c(p):
        o = O[p & 1]
        L = ["s_waitcnt lgkmcnt(0)"]
        for q in (1, 0):
            L.append(f"v_pk_add_f32 {vr(o+2*q,2)}, {vr(o+2*q,2)}, {vr(o+4+2*q,2)}")
            L.append(f"v_pk_add_f32 {vr(o+8+2*q,2)}, {vr(o+8+2*q,2)}, {vr(o+12+2*q,2)}")
            L.append(f"v_pk_add_f32 {vr(vT0+2*q,2)}, {vr(vT0+2*q,2)}, {vr(o+2*q,2)}")
            L.append(f"v_pk_add_f32 {vr(vT0+2*q,2)}, {vr(vT0+2*q,2)}, {vr(o+8+2*q,2)}")
            if q == 1:
                L.append(f"v_rcp_f32 v{o+6}, v{vT3}")
        L.append(f"v_subrev_u32 v{o+7}, {f32bits(2.0**-60)}, v{vT3}")
        L.append(f"v_pk_mul_f32 {vr(vT0,2)}, {vr(vT0,2)}, {vr(o+6,2)} op_sel_hi:[1,0]")
        L.append(f"v_cmp_lt_u32 vcc, {120 << 23}, v{o+7}")
        L.append(f"v_mul_f32 v{vT2}, v{o+6}, v{vT2}")
        L.append(f"v_cvt_pk_bf16_f32 v{vT0}, v{vT0}, v{vT1}")
        L.append(f"v_cvt_pk_bf16_f32 v{vT2}, v{vT2}, v{vT2}")
        L.append(f"ds_write_b32 v{vOw}, v{vT0} offset:{OB+1024*p}")
        L.append(f"ds_write_b16 v{vLo}, v{vT2} offset:{128*p}")
        L.append(f"s_or_b32 s23, s23, vcc_lo")
        L.append(f"s_or_b32 s23, s23, vcc_hi")
        if p < 7: L += signal(CR + 4 * p)
        return guard(p, f"e2c{p}", L)
    SKIP = set(range(1, 14)) | {16}
    def only03(tag, body):
        return ["s_cmp_lg_u32 s53, 0", f"s_cbranch_scc1 K2_{tag}"] + body + [("label", f"K2_{tag}")]
    def ldWA(ks, base):
        G = []
        for t in (4, 0, 1, 2, 3):
            ad = f"s_add_u32 s41, s40, {t*8*18*1024 + ks*1024}"
            ld = f"buffer_load_dwordx4 {vr(base[t])}, v{vL16}, s[32:35], s41 offen"
            if t == 4 and ks in SKIP and Opt.SK4: G.append(only03(f"l4_{ks}", [ad, ld]))
            else: G.append([ad, ("vm", ("wa", ks), ld)])
        return G
    def rdWB(ks, wb):
        return [f"ds_read_b128 {vr(wb)}, v{vOBr} offset:{512*ks}"]
    first_wo = [True]
    def woM(ks, base, wb):
        L = []
        for t in range(5):
            c = "0" if first_wo[0] else vr(WACC + 4 * t)
            L.append(f"v_mfma_f32_16x16x32_bf16 {vr(WACC+4*t)}, {vr(base[t])}, {vr(wb)}, {c}")
        first_wo[0] = False
        return L
    WAb = [WA + 4 * t for t in range(5)]
    WA2 = [VF[0][0], VF[0][1], VF[1][0], VF[1][1], KF[0]]
    WA3 = [VF[2][0], VF[2][1], VF[3][0], VF[3][1], KF[1]]
    WA4 = [VF[4][0], VF[4][1], KF[2], KF[3], KF[4]]
    XR = VF[5][0]

    uses = {}
    order = []
    for tu, ks in ((22, 0), (25, 1), (28, 2), (31, 3), (34, 4), (37, 5), (40, 6), (43, 7), (46, 16), (49, 8), (52, 9), (55, 10), (58, 11), (62, 12)):
        uses[tu] = (ks, WAb)
        order.append((tu, ks))
    side_ld = {}
    side_ld[20] = ldWA(order[0][1], WAb)
    extra = {}
    def addx(t, groups):
        extra.setdefault(t, []).extend(groups)
    vTr = 2
    SC = ' sc1' if fused else ''
    def rl_init(S_, vSrc):
        return [f"v_lshrrev_b32 v{vSrc}, 3, v2", f"v_mul_lo_u32 v{vSrc}, v{vSrc}, s{S_+2}", f"v_and_b32 v{vK2}, 7, v2",
                f"v_lshl_add_u32 v{vSrc}, v{vK2}, 4, v{vSrc}", f"s_lshl_b32 s{S_+6}, s{S_+2}, 3"]
    def rl_dma(S_, R_, ldsoff, tag, n, vSrc):
        ld = f"buffer_load_dwordx4 v{vSrc}, s[{R_}:{R_+3}], s{S_+1} offen{Opt.WNT} lds"
        return [f"s_add_u32 s41, s55, {ldsoff+1024*n}", "s_mov_b32 m0, s41", "s_nop 0",
                ("vm", tag, ld) if tag else ld, f"s_add_u32 s{S_+1}, s{S_+1}, s{S_+6}"]
    def rl_rd(ldsoff, q, d):
        return [f"ds_read_b64_tr_b16 {vr(d,2)}, v{vTr} offset:{ldsoff+32*q}",
                f"ds_read_b64_tr_b16 {vr(d+2,2)}, v{vTr} offset:{ldsoff+32*q+2048}"]
    def rl_st(S_, tag, d):
        st = f"buffer_store_dwordx4 {vr(d)}, v{vL16}, s[8:11], s{S_+5} offen{SC or Opt.WST}"
        return ["s_waitcnt lgkmcnt(0)", ("vm", tag, st) if tag else st, f"s_add_u32 s{S_+5}, s{S_+5}, 18432"]
    def opt(tag, body):
        return ["s_cmp_ge_u32 s85, 324", f"s_cbranch_scc1 K2_{tag}"] + body + [("label", f"K2_{tag}")]
    if Opt.FOLD:
        for n, t_ in enumerate((6, 8, 11, 13)):
            addx(t_, [[], (rl_init(56, vV) if n == 0 else []) + rl_dma(56, 64, 0, "rl", n, vV)])
        for n, t_ in enumerate((5, 7, 10, 12)):
            addx(t_, [[], (rl_init(68, WACC) if n == 0 else []) + opt(f"rlb{n}", rl_dma(68, 76, 4096, None, n, WACC))])
        addx(15, [[f"v_and_b32 v{vK2}, 3, v2", f"v_lshrrev_b32 v{vTr}, 2, v2", f"v_lshlrev_b32 v{vTr}, 7, v{vTr}",
                   f"v_lshl_add_u32 v{vTr}, v{vK2}, 3, v{vTr}", f"v_add_u32 v{vTr}, s55, v{vTr}"]])
        addx(19, [[("wait", "rl")], opt("rlr", [x for q in range(4) for x in rl_rd(4096, q, WACC + 4 + 4 * q)])])
        addx(21, [opt(f"rls{q}", rl_st(68, None, WACC + 4 + 4 * q)) for q in range(4)])
        for q, t_ in enumerate((24, 26, 30, 33)):
            addx(t_ - 1, [[], rl_rd(0, q, vT0)])
            addx(t_, [rl_st(56, "rs", vT0)])
    addx(36, [[f"s_lshl_b32 s41, s2, 3", "s_add_u32 s41, s41, s3", f"s_mul_i32 s41, s41, {ROW}", "s_mul_i32 s42, s3, 1184", f"s_add_u32 s42, s42, {XS}",
              "s_mov_b32 m0, s42", "s_nop 0", ("vm", "x", f"buffer_load_dwordx4 v{vL16}, s[36:39], s41 offen lds")],
             ["s_mov_b64 exec, 0xff", ("vm", "x", f"buffer_load_dwordx4 v{vL16}, s[36:39], s41 offen offset:1024 lds"), "s_mov_b64 exec, -1"]])
    for n, t_ in enumerate((15, 16, 17)):
        addx(t_, [["s_andn2_b32 s41, s2, 7", "s_add_u32 s41, s41, s3", "s_mul_i32 s41, s41, 2624", f"s_add_u32 s41, s41, {1024*n}",
                   "s_add_u32 s42, s55, 9216", "s_mov_b32 m0, s42", "s_nop 0",
                   ("vm", "pf", f"buffer_load_dwordx4 v{vL16}, s[32:35], s41 offen lds")]])
    addx(8, [["s_lshr_b32 s17, s2, 3", "s_add_u32 s43, s17, s2", "s_and_b32 s43, s43, 7", "s_lshl_b32 s43, s43, 1", "s_add_u32 s43, s43, s53",
              "s_lshl_b32 s43, s43, 10", "s_mul_i32 s17, s17, 36", "s_add_u32 s17, s17, s52", "s_lshl_b32 s17, s17, 14",
              "s_add_u32 s43, s43, s17", f"s_add_u32 s43, s43, {WS_PART}"]])
    addx(16, [[f"v_mov_b32 v{POI+i}, {POISON}" for i in range(4)]])
    for k, t_ in enumerate((27, 36, 39, 42, 45, 48, 51, 54, 57)):
        addx(t_, [[("vm", "po", f"buffer_store_dwordx4 {vr(POI)}, v{vL16}, s[8:11], s43 offen sc1"), "s_add_u32 s43, s43, 65536"]])
    if fused:
        addx(57, [[("vm", "wc0", f"buffer_load_dword v{vTr}, v{vL4}, s[8:11], s56 offen sc1")]])
        pf = ["s_and_b32 s41, s2, 7", f"s_mul_i32 s41, s41, {36*18*1024}", "s_andn2_b32 s42, s2, 7", "s_add_u32 s42, s42, s3", "s_mul_i32 s42, s42, 2624",
              "s_add_u32 s57, s41, s42", f"s_add_u32 s57, s57, {WS_W1F}", ("wait", "wc0"), f"v_cmp_eq_u32 s[58:59], 0, v{vTr}"]
        addx(61, [pf])
        for n in range(3):
            addx(62 + n // 2, [["s_cmp_lg_u32 s58, 0", f"s_cbranch_scc1 K2_npw{n}", f"s_mov_b32 m0, {MX}", "s_nop 0",
                           f"buffer_load_dwordx4 v{vL16}, s[8:11], s57 offen sc1 lds", "s_add_u32 s57, s57, 1024", ("label", f"K2_npw{n}")]])
        addx(51, [["s_and_b32 s56, s2, 7", "s_lshl_b32 s56, s56, 7", f"s_add_u32 s56, s56, {WS_FLAG + 64 * 128}",
                   "s_lshr_b32 s41, s2, 3", "s_lshl_b32 s41, s41, 2", "s_add_u32 s41, s41, s56",
                   "s_cmp_lg_u32 s3, 0", "s_cbranch_scc1 K2_nosig", "s_mov_b64 exec, 1",
                   f"buffer_store_dword v{POI}, v{vL4}, s[8:11], s41 offen sc1", "s_mov_b64 exec, -1", ("label", "K2_nosig")]])
    for n in range(10):
        ks, t_ = 14 + n // 5, n % 5
        addx((48, 51, 27, 36, 57)[n // 2],
             [[f"s_add_u32 s42, s55, {1024*n}", "s_mov_b32 m0, s42", f"s_add_u32 s41, s40, {t_*8*18*1024 + ks*1024}",
               ("vm", "stg", f"buffer_load_dwordx4 v{vL16}, s[32:35], s41 offen lds")]])
    if Opt.IPF:
        addx(45, [["s_cmp_lg_u32 s3, 3", "s_cbranch_scc1 K2_noti"] + a.touch("K3") + [("label", "K2_noti")]])
    addx(56, [["s_lshr_b32 s44, s2, 3", "s_bfe_u32 s45, s2, 0x20001", "s_and_b32 s46, s2, 1", "s_lshl_b32 s46, s46, 8",
               "s_mul_i32 s47, s44, 73728", "s_lshr_b32 s48, s3, 1", "s_lshl_b32 s48, s48, 12", "s_add_u32 s47, s47, s48"],
              ["s_lshl_b32 s48, s45, 10", "s_add_u32 s47, s47, s48", "s_and_b32 s48, s3, 1", "s_lshl_b32 s48, s48, 9",
               "s_add_u32 s47, s47, s48", "s_add_u32 s47, s47, s46", f"s_add_u32 s47, s47, {WS_XN}"],
              ["s_mul_i32 s49, s44, 36", "s_add_u32 s49, s49, s3", "s_lshl_b32 s49, s49, 11", "s_lshl_b32 s48, s45, 9",
               "s_add_u32 s49, s49, s48", "s_add_u32 s49, s49, s46", f"s_add_u32 s49, s49, {WS_HRES}"]])
    addx(63, [[f"ds_read_b64 {vr(S[0]+2*t_,2)}, v{vX} offset:{256*t_}"] for t_ in range(5)])
    addx(62, [[f"v_add_u32 v{vK2}, s55, v{vL16}"]] + [[f"ds_read_b128 {vr(WA4[n])}, v{vK2} offset:{1024*(5+n)}"] for n in range(5)])
    addx(63, [[]] + [[f"ds_read_b128 {vr(WAb[n])}, v{vK2} offset:{1024*n}"] for n in range(5)])
    for (tu, ks), (tn, kn) in zip(order[:-1], order[1:]):
        side_ld[tu + 1] = ldWA(kn, WAb)
    side_ld[60] = ldWA(17, WA2)
    side_ld[61] = ldWA(13, WA3)
    uses[63] = (13, WA3)
    PRIO = {0: {2: 3, 5: 2, 0: 1, 1: 0}, 1: {1: 3, 3: 2, 5: 1, 7: 0}, 2: {1: 3, 2: 2, 3: 1, 4: 0, 5: 3, 6: 2, 7: 1, 0: 0}, 3: {},
            4: {1: 3, 4: 2, 6: 1, 0: 0}}[Opt.PRI]

    for t in range(64):
        p, s = divmod(t, 8)
        m = [ex(t, 0), ex(t, 1)]
        m += [pv(t - 1, 1)] if t > 0 else ["s_nop 0"]
        m += [ex(t, i) for i in range(2, 7)]
        m += [qk1(t + 1)] if t < 63 else ["s_nop 0"]
        nq = 9 if Opt.NONOP else 10
        m += [ex(t, 7)] + [cv(t, i) for i in range(4)] + [ex(t, i) for i in range(8, nq)]
        m += [qk2(t + 1)] if t < 63 else ["s_nop 0"]
        m += [ex(t, i) for i in range(nq, 15)]
        m += [pv(t, 0)]
        m += [ex(t, 15)] + [cv(t, i) for i in range(4, 8)]
        sd = {i: [] for i in range(29)}
        if not Opt.NONOP: sd[0].append("s_nop 0")
        if p == 0:
            if t < 63 and s + 1 < 8:
                sd[8].append(("wait", ("k", s + 1)))
                if s == 3:
                    sd[8] += fixK2(4)
            sd[22].append(("wait", ("v", s)))
            L = []
            if s % 2 == 0 and s + 4 < 8:
                L += ldK(s + 4) + ldK(s + 5)
            if s + 2 < 8:
                L += ldV(s + 2)
            for i, it in enumerate(L):
                sd[1 + i * 26 // len(L)].append(it)
            if s == 3:
                sd[28] += ["s_waitcnt lgkmcnt(0)", "s_barrier"]
        if s == 4 and p < 7:
            sd[3] += rdQ(p + 1)
        if s == 7 and p < 7:
            sd[8].append("s_waitcnt lgkmcnt(0)")
        if p >= 1:
            if s == 0:
                for i, it in enumerate(e1(p - 1)):
                    sd[17 + 4 * i].append(it)
                sd[26] += signal(CP + 4 * (p - 1))
            if s == 2:
                sd[1] += chk_issue(CP + 4 * (p - 1), O[(p - 1) & 1] + 15)
                sd[15] += e2a(p - 1, True)
                if p in (1, 4, 7):
                    sd[0].append(("stamp", {1: 3, 4: 4, 7: 5}[p]))
            if s == 3:
                sd[10] += e2b(p - 1)
            if s == 4:
                sd[4] += e2c(p - 1)
        if t + 1 in uses:
            ks1 = uses[t + 1][0]
            if ks1 < 16 and ks1 % 2 == 0:
                sd[10] += chk_issue(CR + 2 * ks1, WB)
                sd[24] += chk_wait(CR + 2 * ks1, WB, 4, f"r{ks1}")
            sd[28 if t in uses else 24] += rdWB(ks1, WB)
        if t in uses:
            ks, base = uses[t]
            sd[6] += [("wait", ("wa", ks), " lgkmcnt(0)")]
            for n_, (pos, it) in enumerate(zip([(6, 13, 14, 20, 21), (6, 7, 13, 19, 20), (6, 13, 19, 20, 27), (6, 12, 18, 20, 26)][Opt.WP], woM(ks, base, WB))):
                sd[pos] += only03(f"m4_{ks}", [it]) if (n_ == 4 and ks in SKIP and Opt.SK4) else [it]
        if t in side_ld:
            L = side_ld[t]
            for i, g_ in enumerate(L):
                sd[1 + i * 26 // len(L)] += g_
        if t in extra:
            G_ = extra[t]
            for i, g_ in enumerate(G_):
                sd[3 + i * 24 // len(G_)] += g_
        pr = PRIO.get(s)
        if p == 0: pr = {0: 3, 2: 1, 3: 0, 4: 3, 6: 2}.get(s)
        if p == 7: pr = {2: 3, 4: 2, 6: 1, 7: 0, 0: 1, 1: 0}.get(s)
        if pr is not None:
            sd[0].insert(0, f"s_setprio {pr}")
        for it in weave(m, sd):
            if isinstance(it, str):
                if "nobar" in Opt.ABL and it == "s_barrier": continue
                if "noprio" in Opt.ABL and it.startswith("s_setprio"): continue
                if "noe1" in Opt.ABL and it.startswith("ds_write_b") and (f"v{vPw}," in it or f"v{vPw8}," in it): continue
                if "nored" in Opt.ABL and it.startswith("s_cmp_lg_u32 s53"): it = "s_cmp_lg_u32 s53, 5"
                if "nolgkm" in Opt.ABL and it == "s_waitcnt lgkmcnt(0)": continue
            elif it[0] == "vm" and "nopo" in Opt.ABL and it[1] == "po":
                it = ("vm", "po", "s_nop 0")
            a.emit(it)
    a("s_setprio 3")
    a("s_nop 0")
    a(pv(63, 1))
    if fused:
        a.vm("wc", f"buffer_load_dword v{QR[0]}, v{vL4}, s[8:11], s56 offen sc1")
    XR = S[0]
    vG, vTok, vS2, vA, vB, vC_ = QR[0] + 1, QR[0] + 2, QR[0] + 3, QR[0] + 4, QR[0] + 5, QR[0] + 6
    a(f"v_bfe_u32 v{vG}, v0, 4, 2")
    a(f"v_and_b32 v{vTok}, 7, v0")
    a(f"v_lshlrev_b32 v{vS2}, 6, v{vG}")
    a(f"v_lshl_add_u32 v{vS2}, v{vTok}, 3, v{vS2}")
    a(f"v_and_b32 v{vA}, 8, v0")
    a(f"v_cmp_eq_u32 s[50:51], 0, v{vA}")
    a(f"v_mov_b32 v{vA}, s47")
    a(f"v_mov_b32 v{vB}, s49")
    a(f"v_cndmask_b32_e64 v{vA}, v{vA}, v{vB}, s[50:51]")
    a(f"v_add_u32 v{vS2}, v{vS2}, v{vA}")
    a(f"v_lshlrev_b32 v{vA}, 3, v{vTok}")
    a(f"v_add_u32 v{vA}, {STAT}, v{vA}")
    for it in e1(7):
        a(it)
    a("s_lshl_b32 s17, s3, 6")
    a(f"v_add_u32 v{vB}, s17, v{vA}")
    a(f"v_lshlrev_b32 v{vC_}, 2, v{vTok}")
    a("s_cmp_lt_u32 s3, 4")
    a("s_cselect_b32 s17, -1, 0")
    a("s_waitcnt lgkmcnt(0)")
    a("s_barrier")
    a.stamp(6)
    a("s_cbranch_scc1 K2_t1")
    for k in range(8):
        a(f"ds_read_b64 {vr(O[0]+4*k,2)}, v{vPr} offset:{20480+2560*k}")
        a(f"ds_read_b64 {vr(O[0]+4*k+2,2)}, v{vPr8} offset:{20480+2560*k+2048}")
    a.label("K2_t1")
    vW, vS4 = QR[1], QR[1] + 1
    a(f"v_lshlrev_b32 v{vW}, 6, v{vG}")
    a(f"v_lshl_add_u32 v{vW}, v{vTok}, 3, v{vW}")
    a(f"v_and_b32 v{vS4}, 8, v0")
    a(f"v_lshl_add_u32 v{vW}, v{vS4}, 5, v{vW}")
    a(f"v_add_u32 v{vW}, s55, v{vW}")
    a(f"v_and_b32 v{vS4}, 16, v0")
    a(f"v_cmp_eq_u32 vcc, 0, v{vS4}")
    a(f"v_mov_b32 v{vS4}, s47")
    a(f"v_mov_b32 v{vS4+1}, s49")
    a(f"v_cndmask_b32 v{vS4}, v{vS4}, v{vS4+1}, vcc")
    a(f"v_bfe_u32 v{vS4+1}, v0, 5, 1")
    a(f"v_lshl_add_u32 v{vS4}, v{vS4+1}, 14, v{vS4}")
    a(f"v_and_b32 v{vS4+1}, 15, v0")
    a(f"v_lshl_add_u32 v{vS4}, v{vS4+1}, 4, v{vS4}")
    a(f"v_and_b32 v{XR+8}, s17, v{XR+8}")
    a(f"v_and_b32 v{XR+9}, s17, v{XR+9}")
    XF = S[1]
    for i in range(10):
        f_ = XF + 2 * (i % 4)
        a(f"v_lshlrev_b32 v{f_}, 16, v{XR+i}")
        a(f"v_and_b32 v{f_+1}, 0xffff0000, v{XR+i}")
        a(f"v_pk_add_f32 {vr(WACC+2*i,2)}, {vr(WACC+2*i,2)}, {vr(f_,2)}")
    a("s_cbranch_scc1 K2_t2")
    o = O[0]
    a("s_waitcnt lgkmcnt(0)")
    for st in (4, 8, 16):
        for q in (2, 0):
            for k in range(0, 32, 2 * st):
                a(f"v_pk_add_f32 {vr(o+k+q,2)}, {vr(o+k+q,2)}, {vr(o+k+q+st,2)}")
            if st == 16 and q == 2:
                a(f"v_rcp_f32 v{o+6}, v{o+3}")
    a(f"v_subrev_u32 v{o+7}, {f32bits(2.0**-60)}, v{o+3}")
    a(f"v_pk_mul_f32 {vr(o,2)}, {vr(o,2)}, {vr(o+6,2)} op_sel_hi:[1,0]")
    a(f"v_cmp_lt_u32 vcc, {120 << 23}, v{o+7}")
    a(f"v_mul_f32 v{o+2}, v{o+6}, v{o+2}")
    a(f"v_cvt_pk_bf16_f32 v{o}, v{o}, v{o+1}")
    a(f"v_cvt_pk_bf16_f32 v{o+2}, v{o+2}, v{o+2}")
    a(f"ds_write_b32 v{vOw}, v{o} offset:{OB+1024*7}")
    a(f"ds_write_b16 v{vLo}, v{o+2} offset:{128*7}")
    a(f"s_or_b32 s23, s23, vcc_lo")
    a(f"s_or_b32 s23, s23, vcc_hi")
    a("s_waitcnt lgkmcnt(0)")
    a.label("K2_t2")
    a("s_barrier")
    WBs = [WB, P, P + 4]
    for ks, wb in zip((14, 15, 17), WBs):
        a(rdWB(ks, wb)[0])
    a("s_lshl_b32 s17, s3, 2")
    a(f"s_add_u32 s17, s17, {STAT+512}")
    a(f"v_mov_b32 v{vT0}, s17")
    a(f"v_mov_b32 v{vT1}, s23")
    a("s_mov_b64 exec, 1")
    a(f"ds_write_b32 v{vT0}, v{vT1}")
    a("s_mov_b64 exec, -1")
    a.waitvm(("wa", 17), " lgkmcnt(1)")
    SS = O[0] + 8
    mm = [woM(ks, base, wb) for ks, base, wb in ((14, WAb, WBs[0]), (15, WA4, WBs[1]), (17, WA2, WBs[2]))]
    def stat(t):
        L = []
        for q in range(2):
            r = WACC + 4 * t + 2 * q
            if t == 0 and q == 0:
                L.append(f"v_pk_mul_f32 {vr(SS+2,2)}, {vr(r,2)}, {vr(r,2)}")
            else:
                L.append(f"v_pk_add_f32 {vr(SS,2)}, {vr(WACC if (t == 0) else SS,2)}, {vr(r,2)}")
                L.append(f"v_pk_fma_f32 {vr(SS+2,2)}, {vr(r,2)}, {vr(r,2)}, {vr(SS+2,2)}")
        return L
    for t in range(5):
        for k in range(3): a(mm[k][t])
    for t in range(3):
        for x_ in stat(t): a(x_)
    for t in range(3, 5):
        for x_ in stat(t): a(x_)
    a(f"v_add_f32 v{SS}, v{SS}, v{SS+1}")
    a(f"v_add_f32 v{SS+1}, v{SS+2}, v{SS+3}")
    for sw in ("v_permlane16_swap_b32", "v_permlane32_swap_b32"):
        a(f"v_mov_b32 v{SS+2}, v{SS}")
        a(f"v_mov_b32 v{SS+3}, v{SS+1}")
        a("s_nop 0")
        a(f"{sw} v{SS}, v{SS+2}")
        a(f"{sw} v{SS+1}, v{SS+3}")
        a("s_nop 0")
        a(f"v_pk_add_f32 {vr(SS,2)}, {vr(SS,2)}, {vr(SS+2,2)}")
    a("s_mov_b64 exec, 0xff")
    a(f"ds_write_b64 v{vB}, {vr(SS,2)}")
    a("s_mov_b64 exec, -1")
    a("s_waitcnt lgkmcnt(0)")
    a("s_barrier")
    a.stamp(7)
    RS = S[1]
    for k in range(8):
        a(f"ds_read_b64 {vr(RS+2*k,2)}, v{vA} offset:{64*k}")
    a(f"ds_read_b32 v{SS+4}, v{vC_} offset:{STAT+512}")
    a(f"v_mov_b32 v{SS+2}, {f32bits(1e-5)}")
    a("s_waitcnt lgkmcnt(0)")
    a(f"v_cmp_ne_u32 vcc, 0, v{SS+4}")
    for k in range(4):
        a(f"v_pk_add_f32 {vr(RS+4*k,2)}, {vr(RS+4*k,2)}, {vr(RS+4*k+2,2)}")
    a(f"v_pk_add_f32 {vr(RS,2)}, {vr(RS,2)}, {vr(RS+4,2)}")
    a(f"v_pk_add_f32 {vr(RS+8,2)}, {vr(RS+8,2)}, {vr(RS+12,2)}")
    a(f"v_pk_add_f32 {vr(SS,2)}, {vr(RS,2)}, {vr(RS+8,2)}")
    a("s_mov_b32 s23, vcc_lo")
    a(f"v_mul_f32 v{SS}, {f32bits(-1.0/576)}, v{SS}")
    a(f"v_fmac_f32 v{SS+2}, {f32bits(1.0/576)}, v{SS+1}")
    a(f"v_fma_f32 v{SS+2}, -v{SS}, v{SS}, v{SS+2}")
    a(f"v_max_f32 v{SS+2}, {f32bits(1e-5)}, v{SS+2}")
    a(f"v_rsq_f32 v{SS+2}, v{SS+2}")
    a("s_cmp_lg_u32 s22, 0")
    a("s_cselect_b32 s23, 0, s23")
    a("s_cmp_lg_u32 s23, 0")
    a("s_cbranch_scc1 K2_slow")
    a(f"v_mul_f32 v{SS}, v{SS}, v{SS+2}")
    a(f"v_cndmask_b32_e64 v{SS+2}, v{SS+2}, 1.0, s[50:51]")
    a(f"v_cndmask_b32_e64 v{SS}, v{SS}, 0, s[50:51]")
    if Opt.XW and not fused:
        HP = S[0]
        for t in range(5):
            for q in range(2):
                r = WACC + 4 * t + 2 * q
                a(f"v_pk_fma_f32 {vr(r,2)}, {vr(r,2)}, {vr(SS+2,2)}, {vr(SS,2)} op_sel_hi:[1,0,0]")
            for q in range(2):
                r = WACC + 4 * t + 2 * q
                a(f"v_cvt_pk_bf16_f32 v{HP+2*t+q}, v{r}, v{r+1}")
            a(f"ds_write_b64 v{vW}, {vr(HP+2*t,2)} offset:{512*t}")
            if t & 1 or t == 4:
                a(f"ds_read_b128 {vr(RS+4*(t//2))}, v{vK2} offset:{1024*(t//2)}")
        a("s_cmp_ge_u32 s3, 4")
        for k in range(3):
            if k == 2:
                a("s_cbranch_scc1 K2_no4")
                a("s_mov_b32 exec_hi, 0")
            a(f"s_mov_b32 s17, {32768*k}")
            a(f"s_waitcnt lgkmcnt({(5, 2, 0)[k]})")
            a(f"buffer_store_dwordx4 {vr(RS+4*k)}, v{vS4}, s[8:11], s17 offen{Opt.XST}")
        a.label("K2_no4")
    else:
        a("s_cmp_ge_u32 s3, 4")
        HP = S[0]
        for t in (4, 0, 1, 2, 3):
            if t == 4:
                a("s_cbranch_scc1 K2_no4")
            for q in range(2):
                r = WACC + 4 * t + 2 * q
                a(f"v_pk_fma_f32 {vr(r,2)}, {vr(r,2)}, {vr(SS+2,2)}, {vr(SS,2)} op_sel_hi:[1,0,0]")
            for q in range(2):
                r = WACC + 4 * t + 2 * q
                a(f"v_cvt_pk_bf16_f32 v{HP+2*t+q}, v{r}, v{r+1}")
            a(f"s_mov_b32 s17, {16384*t}")
            st = f"buffer_store_dwordx2 {vr(HP+2*t,2)}, v{vS2}, s[8:11], s17 offen{SC or Opt.XST}"
            if t == 4:
                a(st)
                a.label("K2_no4")
            else:
                a.vm("xs", st)
    return lambda: slow_path(a, ldK, qk1, qk2)

def slow_path(a, ldK, qk1, qk2):
    a.label("K2_slow")
    a("s_waitcnt vmcnt(0)")
    a("s_barrier")
    for s in range(8):
        a(ldK(s)[0][2])
    a(f"v_and_b32 v{vT0}, 31, v0")
    a(f"v_lshlrev_b32 v{vT0}, 2, v{vT0}")
    a(f"v_add_u32 v{vT0}, {MX}, v{vT0}")
    a(f"v_mov_b32 v{vT1}, 0xff800000")
    a("s_lshl_b32 s17, s3, 7")
    a(f"v_add_u32 v{vT2}, s17, v{vT0}")
    a(f"ds_write_b32 v{vT2}, v{vT1}")
    a(f"v_mov_b32 v{vT3}, v{vL16}")
    a(f"v_mov_b32 v{vPr}, v{vL4}")
    a("s_mov_b32 s17, 0")
    a("s_waitcnt vmcnt(0) lgkmcnt(0)")
    a("s_barrier")
    a.label("K2_mx")
    a(f"ds_read_b128 {vr(QR[0])}, v{vT3} offset:{QB}")
    a(f"ds_read2st64_b32 {vr(QR[0]+4,2)}, v{vPr} offset0:4 offset1:5")
    a(f"ds_read2st64_b32 {vr(QR[0]+6,2)}, v{vPr} offset0:5 offset1:4")
    a(f"v_mov_b32 v{vT1}, 0xff800000")
    a("s_waitcnt lgkmcnt(0)")
    for s in range(8):
        a(qk1(s)); a(qk2(s))
        a("s_nop 7"); a("s_nop 7")
        for i in range(8):
            a(f"v_max3_f32 v{vT1}, v{vT1}, v{S[s&1]+2*i}, v{S[s&1]+2*i+1}")
    a(f"ds_max_f32 v{vT0}, v{vT1}")
    a(f"v_add_u32 v{vT0}, 128, v{vT0}")
    a(f"v_add_u32 v{vT3}, 1536, v{vT3}")
    a(f"v_add_u32 v{vPr}, 1536, v{vPr}")
    a("s_add_u32 s17, s17, 1")
    a("s_cmp_lt_u32 s17, 8")
    a("s_cbranch_scc1 K2_mx")
    a("s_waitcnt lgkmcnt(0)")
    a("s_barrier")
    a(f"ds_read_b32 v{vT1}, v{vT2}")
    a("s_mul_i32 s17, s3, 1536")
    a(f"v_add_u32 v{vT3}, s17, v{vL4}")
    a("s_waitcnt lgkmcnt(0)")
    T = S[0]
    a(f"v_sub_f32 v{vT1}, 0, v{vT1}")
    a(f"v_and_b32 v{T}, 0xffff0000, v{vT1}")
    a(f"v_sub_f32 v{vT1}, v{vT1}, v{T}")
    a(f"v_and_b32 v{T+1}, 0xffff0000, v{vT1}")
    a(f"v_sub_f32 v{vT1}, v{vT1}, v{T+1}")
    a(f"v_lshrrev_b32 v{T}, 16, v{T}")
    a(f"v_or_b32 v{T}, v{T}, v{T+1}")
    a(f"v_lshrrev_b32 v{T+1}, 16, v{vT1}")
    a("s_not_b64 exec, s[20:21]")
    a(f"ds_write_b32 v{vT3}, v{T} offset:{QB+1024}")
    a(f"ds_write_b32 v{vT3}, v{T+1} offset:{QB+1280}")
    a("s_mov_b64 exec, -1")
    a("s_mov_b32 s22, 1")
    a("s_waitcnt lgkmcnt(0)")
    a("s_barrier")
    a("s_branch K2_main")

def k2(a):
    K = "k2_kernel"
    a.begin(K)
    a.guard("K2")
    a.stamp(0); a.stampc(10)
    slow = attn(a, False)
    a.end(2, 8, 8)
    slow()
    a.label("K2_end")
    a("s_endpgm")
    return K, desc(K, 256), (256, 512, LDS)

def k23(a):
    import k3w8
    K = "k2_kernel"
    a.begin(K)
    a.guard("K2")
    a.stamp(0); a.stampc(10)
    a.smap = {5: 1, 6: 2, 9: 3}
    slow = attn(a, True)
    a("s_setprio 0")
    a.stamp(9)
    a.smap = {1: 4, 2: 5, 3: 6, 4: 7}
    k3w8.ffn(a, True, QR[0])
    a.smap = None
    a.end(4, 8, 8)
    slow()
    a.label("K3_end")
    a("s_endpgm")
    return K, desc(K, 256), (256, 512, k3w8.LDS)
```

```python
from common import *
RING = 36
RB = 104
BV = 72
ACC = [40, 56]
TMP = 248
BIAS = 16
B1R = 24
ACCP = 16
LZ = 32
HOFF = 72 * 1024
LDS = HOFF + 72 * 1024
NF = 324

def bfrag(f):
    return ar(4 * f) if f < 64 else vr(BV + 4 * (f - 64))
def b1reg(n):
    return B1R + 2 * n if n < 8 else 14
def slot(i):
    return RB + (i % RING) * 4

def k3(a):
    K = "k3_kernel"
    a.begin(K)
    a.guard("K3")
    a.stamp(0); a.stampc(10)
    a(f"s_load_dwordx2 s[4:5], s[0:1], {A_WS}")
    a(f"s_load_dwordx2 s[6:7], s[0:1], {A_B1}")
    a(f"s_load_dwordx4 s[24:27], s[0:1], {A_B2}")
    a("v_lshrrev_b32 v1, 6, v0")
    a("v_and_b32 v2, 63, v0")
    a("v_readfirstlane_b32 s3, v1")
    a("v_and_b32 v3, 15, v0")
    a("v_bfe_u32 v4, v0, 4, 2")
    a("v_lshlrev_b32 v5, 4, v2")
    for k in range(1, 5):
        a(f"v_add_u32 v{5+k}, {4096*k}, v5")
    a("v_lshlrev_b32 v12, 3, v4")
    a("v_and_b32 v10, 0x23, v2")
    a("v_lshlrev_b32 v10, 4, v10")
    a("v_bfe_u32 v11, v2, 3, 2")
    a("v_lshl_add_u32 v10, v11, 6, v10")
    a("v_bfe_u32 v11, v2, 2, 1")
    a("v_lshl_add_u32 v10, v11, 8, v10")
    if Opt.EXP == "badmap":
        a("s_lshr_b32 s28, s2, 5")
        a("s_and_b32 s29, s2, 31")
    else:
        a("s_and_b32 s28, s2, 7")
        a("s_lshr_b32 s29, s2, 3")
    a("s_mul_i32 s31, s29, 73728")
    a("s_lshl_b32 s30, s3, 10")
    a("s_add_u32 s31, s31, s30")
    a(f"s_add_u32 s31, s31, {WS_XN}")
    a("s_mul_i32 s60, s28, 36")
    a("s_mul_i32 s59, s3, 9")
    a("s_mul_i32 s61, s29, 57")
    a("s_lshr_b32 s61, s61, 9")
    a("s_mul_i32 s61, s61, 9")
    a("s_sub_u32 s61, s29, s61")
    def g1par(n):
        a(f"s_add_u32 s{50+n}, s61, {n}")
        a(f"s_cmp_ge_u32 s{50+n}, 9")
        a(f"s_cselect_b32 s62, 9, 0")
        a(f"s_sub_u32 s{50+n}, s{50+n}, s62")
        a(f"s_add_u32 s{50+n}, s{50+n}, s59")
        a(f"s_add_u32 s62, s{50+n}, s60")
        a(f"s_mul_i32 s62, s62, {18*1024}")
        a(f"s_add_u32 s{32+n}, s62, {WS_W1F}")
    g1par(0); g1par(1)
    a.pad("K3", 1)
    a("s_waitcnt lgkmcnt(0)")
    a.srd(8, 4, WS_SIZE)
    a.srd(12, 6, 4608 * 2)
    def load(i):
        t, kk = divmod(i, 18)
        if Opt.EXP == "halfld" and i >= 36 and i % 2 == 0: return []
        if Opt.EXP == "nold3" and i >= 36 and i % 18 != 17: return []
        return [("vm", ("A", i), f"buffer_load_dwordx4 {vr(slot(i))}, v{5 + kk // 4}, s[8:11], s{32+t} offen offset:{(kk%4)*1024}")]
    def dmax(kk):
        return ["s_mov_b32 m0, s30", "s_add_u32 s30, s30, 4096",
                ("vm", ("X", kk), "buffer_load_dwordx4 v10, s[8:11], s31 offen lds"), "s_add_u32 s31, s31, 4096"]
    def ldb1(n):
        return [f"s_add_u32 s62, s{50+n}, s60", f"s_lshl_b32 s62, s62, 5",
                ("vm", ("b1", n), f"buffer_load_dwordx2 {vr(b1reg(n),2)}, v12, s[12:15], s62 offen")]
    def E(L):
        for x in L: a.emit(x)
    a("s_cmp_lg_u32 s3, 3")
    a("s_cbranch_scc1 K3_nopf")
    a.codepf("k3_kernel", "K3_end", 29, 5, TMP, 86)
    a.vmq.pop()
    a.label("K3_nopf")
    for kk in range(3): E(dmax(kk))
    E(ldb1(0)); E(ldb1(1))
    E(load(0)); E(load(18))
    for kk in range(3, 6): E(dmax(kk))
    for kk in range(1, 3): E(load(kk)); E(load(18 + kk))
    a.pad("K3", 2)
    for n in range(2, 9): g1par(n)
    a.srd(16, 24, 576 * 2)
    a.srd(20, 26, 2048 * ROW)
    a("s_add_u32 s28, s28, s29")
    a("s_and_b32 s28, s28, 7")
    for n in range(9):
        if n == 0:
            a(f"s_mov_b32 s{64+n}, 8")
        else:
            a(f"s_add_u32 s{64+n}, s28, {n}")
            a(f"s_and_b32 s{64+n}, s{64+n}, 7")
        a(f"s_lshl_b32 s62, s{64+n}, 2")
        a(f"s_add_u32 s62, s62, s3")
        a(f"s_add_u32 s62, s62, s60")
        a(f"s_mul_i32 s62, s62, {18*1024}")
        a(f"s_add_u32 s{41+n}, s62, {WS_W2F}")
    a.pad("K3", 3)
    a("s_mov_b32 s75, 0x00003f80")
    a("s_mov_b32 s76, 0x3f800000")
    a(f"v_lshlrev_b32 v{TMP+7}, 3, v2")
    a(f"v_add_u32 v11, {HOFF}, v5")
    a(f"v_add_u32 v13, {HOFF+36864}, v5")
    a("s_mul_i32 s78, s29, 36")
    a("s_add_u32 s78, s78, s3")
    a("s_lshl_b32 s77, s78, 14")
    a(f"s_add_u32 s77, s77, {WS_PART}")
    a("s_lshl_b32 s78, s78, 11")
    a(f"s_add_u32 s78, s78, {WS_HRES}")
    a("s_lshl_b32 s79, s28, 11")
    a("s_add_u32 s79, s79, s77")
    a("s_lshl_b32 s84, s28, 16")
    a("s_add_u32 s84, s84, s77")
    a("s_lshl_b32 s62, s28, 7")
    a("s_lshl_b32 s63, s3, 5")
    a("s_add_u32 s82, s62, s63")
    a("s_add_u32 s83, s63, 1024")
    a("s_and_b32 s73, s28, 1")
    a("s_lshl_b32 s73, s73, 10")
    a("s_add_u32 s85, s73, s77")
    a(f"s_add_u32 s85, s85, {8*65536}")
    a("s_lshr_b32 s62, s28, 1")
    a("s_cmp_eq_u32 s62, s3")
    a("s_cselect_b32 s80, 1, 0")
    a("s_lshl_b32 s74, s80, 8")
    a("s_or_b32 s74, s74, 0xfe")
    def unpack(src, dst):
        return [f"v_lshlrev_b32 v{dst}, 16, v{src}", f"v_and_b32 v{dst+1}, 0xffff0000, v{src}",
                f"v_lshlrev_b32 v{dst+2}, 16, v{src+1}", f"v_and_b32 v{dst+3}, 0xffff0000, v{src+1}"]
    def g1_epilogue(n):
        acc = ACC[n % 2]
        L = [f"s_lshr_b32 s63, s{50+n}, 1", f"s_lshl_b32 s63, s63, 12", f"s_and_b32 s62, s{50+n}, 1",
             f"s_lshl_b32 s62, s62, 3", f"s_add_u32 s62, s62, s63", f"v_add_u32 v{TMP}, s62, v11"]
        for tt in range(4):
            for r in range(4):
                L.append(f"v_mul_f32 v{acc+4*tt+r}, v{acc+4*tt+r}, abs(v{acc+4*tt+r})")
            L.append(f"v_cvt_pk_bf16_f32 v{acc+4*tt}, v{acc+4*tt}, v{acc+4*tt+1}")
            L.append(f"v_cvt_pk_bf16_f32 v{acc+4*tt+1}, v{acc+4*tt+2}, v{acc+4*tt+3}")
            L.append(f"v_pk_max_i16 v{acc+4*tt}, v{acc+4*tt}, 0")
            L.append(f"v_pk_max_i16 v{acc+4*tt+1}, v{acc+4*tt+1}, 0")
            L.append(f"ds_write_b64 v{TMP}, {vr(acc+4*tt,2)} offset:{1024*tt}")
        return L
    def g2_epilogue(n):
        acc = ACC[(9 + n) % 2]
        L = [f"s_lshl_b32 s62, s{64+n}, 16", f"s_add_u32 s62, s62, s79"]
        for hf in range(2):
            for tt in (2 * hf, 2 * hf + 1):
                L.append(f"v_cvt_pk_bf16_f32 v{TMP+2*tt}, v{acc+4*tt}, v{acc+4*tt+1}")
                L.append(f"v_cvt_pk_bf16_f32 v{TMP+2*tt+1}, v{acc+4*tt+2}, v{acc+4*tt+3}")
            L.append(("vm", "st", f"buffer_store_dwordx4 {vr(TMP+4*hf)}, v5, s[8:11], s62 offen offset:{1024*hf}{Opt.PST}"))
        return L
    def fetch(n, lz, track=True):
        L = [f"s_lshl_b32 s63, s{64+8-n}, 11", "s_add_u32 s63, s63, s84"]
        for hf in range(2):
            s_ = f"buffer_load_dwordx4 {vr(lz+4*hf)}, v5, s[8:11], s63 offen offset:{1024*hf} sc1"
            L.append(("vm", ("P", n), s_) if track else s_)
        return L
    vC = 14
    def check(regs, bit):
        L = [f"v_max3_i32 v{vC}, v{regs[0]}, v{regs[1]}, v{regs[2]}"]
        k = 3
        while k + 1 < len(regs):
            L.append(f"v_max3_i32 v{vC}, v{vC}, v{regs[k]}, v{regs[k+1]}"); k += 2
        if k < len(regs):
            L.append(f"v_max_i32 v{vC}, v{vC}, v{regs[k]}")
        L.append(f"v_cmp_eq_i32 vcc, {POISON}, v{vC}")
        L.append("v_nop"); L.append("v_nop")
        L += ["s_cmp_eq_u64 vcc, 0", "s_cselect_b32 s86, s75, 0", "s_cselect_b32 s87, s76, 0",
              f"s_cselect_b32 s62, {1 << bit}, 0", "s_andn2_b32 s74, s74, s62"]
        return L
    def accum(lz, dst, n):
        L = []
        for q in range(n):
            L.append(f"v_dot2_f32_bf16 v{dst+2*q}, v{lz+q}, s86, v{dst+2*q}")
            L.append(f"v_dot2_f32_bf16 v{dst+2*q+1}, v{lz+q}, s87, v{dst+2*q+1}")
        return L
    def accum2(lz, dst, n):
        L = []
        for q in range(n):
            t_ = 10
            L += [f"v_lshlrev_b32 v{t_}, 16, v{lz+q}", f"v_and_b32 v{t_+1}, 0xffff0000, v{lz+q}",
                  f"v_fmac_f32 v{dst+2*q}, s87, v{t_}", f"v_fmac_f32 v{dst+2*q+1}, s87, v{t_+1}"]
        return L
    def take(n, lz, track=True, shadow=False):
        return ([("wait", ("P", n))] if track else []) + check(list(range(lz, lz + 8)), n) + (accum2 if shadow else accum)(lz, ACCP, 8)
    LZs = {1: slot(304), 2: LZ, 3: slot(288), 4: slot(296), 5: slot(298), 6: slot(300), 7: slot(302)}
    def dfetch(n):
        L = [f"s_lshl_b32 s63, s{64+8-n}, 11", "s_add_u32 s63, s63, s84", f"s_add_u32 s30, s31, {2048*(n-1)}", "s_mov_b32 m0, s30", "s_nop 0"]
        for hf in range(2):
            L.append(("vm", ("P", n), f"buffer_load_dwordx4 v5, s[8:11], s63 offen offset:{1024*hf} sc1 lds"))
        return L
    def dfetch_sh():
        L = ["s_cmp_eq_u32 s80, 0", "s_cbranch_scc1 K3_nosh0"]
        for k in range(8):
            L += [f"s_add_u32 s63, s85, {2048*k}", f"s_add_u32 s30, s31, {10240+1024*k}", "s_mov_b32 m0, s30", "s_nop 0",
                  "buffer_load_dwordx4 v5, s[8:11], s63 offen sc1 lds"]
        return L + [("label", "K3_nosh0")]
    def lread(n, lz):
        return [("wait", ("P", n))] + [f"ds_read_b128 {vr(lz+4*hf)}, v12 offset:{2048*(n-1)+1024*hf}" for hf in range(2)]
    def ltake(n, lz):
        return lread(n, lz) + [None] * 4 + ["s_waitcnt lgkmcnt(0)"] + take(n, lz, False, True)
    SH = slot(306)
    SX = slot(290)
    A8 = SX + 8
    def fetch_share(track=True):
        L = []
        for n in range(8):
            L += [f"s_add_u32 s63, s85, {2048*n}", f"buffer_load_dwordx4 {vr(SH+4*n)}, v5, s[8:11], s63 offen sc1"]
        return L

    a.waitvm(("b1", 1))
    E(unpack(b1reg(0), BIAS) + unpack(b1reg(1), BIAS + 4))
    def rdB(f, lo, hi):
        a(f"ds_read_b128 {bfrag(f)}, v{lo if f < 36 else hi} offset:{(f%36)*1024}")
    def rdX(f):
        a(f"ds_read2st64_b64 {bfrag(f)}, v{TMP+7} offset0:{2*f} offset1:{2*f+1}")
    seq = []
    for kk in range(12): seq += [kk, 18 + kk]
    seq += list(range(12, 18)) + list(range(30, NF))
    pend = []
    post = {}
    def addpost(i, L): post.setdefault(i, []).extend(L)
    for kk in range(12):
        addpost(kk, dmax(kk + 6) + load(kk + 3)); addpost(18 + kk, load(18 + kk + 3))
    for kk in range(9, 12):
        addpost(18 + kk, load(kk + 6))
    for kk in range(12, 15):
        addpost(kk, load(18 + kk + 3))
    nxt = 36
    LA0, CH_ = Opt.LA0, Opt.CHAIN
    consumed = set()
    for pos, fr in enumerate(seq):
        consumed.add(fr)
        if pos < 36 - LA0: continue
        depth = min(RING - CH_ + 1, Opt.LAM, LA0 + max(0, pos - 36) // Opt.LAG)
        target = min(NF, pos + 1 + depth)
        k_ = 0
        while nxt < target and k_ < 2:
            old = nxt - RING
            ok = old in consumed and (old < 36 or (old - old % CH_ + CH_ - 1) in consumed)
            if not ok: break
            addpost(fr, load(nxt)); nxt += 1; k_ += 1
    assert nxt == NF, nxt
    for n in range(2, 9):
        addpost(18 + n, ldb1(n))
    addpost(9 * 18 + 2, [("vm", "b2", f"buffer_load_dwordx2 v[14:15], v12, s[16:19], s82 offen"),
                         "s_lshl_b32 s62, s28, 13", "s_add_u32 s62, s62, s78",
                         "v_lshrrev_b32 v2, 3, v3", "v_lshlrev_b32 v2, 8, v2", "v_lshl_add_u32 v2, v4, 6, v2",
                         "v_and_b32 v10, 7, v3", "v_lshl_add_u32 v2, v10, 3, v2"] +
                        [("vm", "hr", f"buffer_load_dwordx2 {vr(LZ+2*tt,2)}, v2, s[8:11], s62 offen offset:{512*tt}") for tt in range(4)])
    addpost(13 * 18, ["s_mul_i32 s31, s3, 18432", "v_add_u32 v12, s31, v5"])
    addpost(13 * 18 + 16, dfetch_sh())
    for n in range(1, 6):
        addpost((12 + n) * 18 + 16, dfetch(n))
    addpost(16 * 18 + 15, ["v_lshlrev_b32 v3, 3, v4", "s_add_u32 s62, s78, s73", f"s_add_u32 s62, s62, {8*8192}",
                          ("vm", "sh0", f"buffer_load_dwordx2 {vr(SX,2)}, v2, s[8:11], s62 offen"),
                          ("vm", "sh0", f"buffer_load_dwordx2 {vr(SX+2,2)}, v2, s[8:11], s62 offen offset:512"),
                          ("vm", "sh0", f"buffer_load_dwordx2 {vr(SX+4,2)}, v3, s[16:19], s83 offen")])
    def take_share():
        L = check(list(range(SH, SH + 32)), 8)
        for n in range(8):
            L += accum(SH + 4 * n, A8, 4)
        return L
    for i in seq:
        t, kk = divmod(i, 18)
        extra = ""
        if t == 0:
            if kk % 3 == 0:
                a.waitvm(("X", kk + 2))
                if kk == 0: a.stamp(1)
                a("s_barrier")
                if kk == 0: a.stamp(2)
                if kk == 12: a.stamp(3)
                for f in range(4 * kk, 4 * kk + 12):
                    rdX(f)
            extra = f" lgkmcnt({8 - 4 * (kk % 3)})"
        if t == 9:
            if kk == 0:
                a("s_nop 7")
                E(g1_epilogue(8))
                a("s_waitcnt lgkmcnt(0)")
                a.stamp(4)
                a("s_barrier")
                for f in range(12):
                    rdB(f, 11, 13)
            elif 4 * kk + 8 < 72:
                for f in range(4 * kk + 8, 4 * kk + 12):
                    rdB(f, 11, 13)
            rem = min(72, 4 * kk + 12) - (4 * kk + 4)
            extra = f" lgkmcnt({rem})"
        if Opt.DBG and kk == 0 and t not in (0, 1, 9):
            a("s_memtime s[100:101]")
        if Opt.DBG and kk == 9 and t not in (0, 1, 9):
            a("s_waitcnt lgkmcnt(0)")
            a(f"v_writelane_b32 v1, s100, {t}")
        CH = Opt.CHAIN
        chain = CH > 1 and t >= 2 and t != 9
        if Opt.EXP in ("halfld", "nold3") and ("A", i + (CH - 1 if chain else 0)) not in a.vmq:
            if extra: a("s_waitcnt" + extra)
        elif not chain: a.waitvm(("A", i), extra)
        elif kk % CH == 0: a.waitvm(("A", i + CH - 1), extra)
        acc = ACC[t % 2]
        rate = 1
        if i == 30:
            pend = [None] + g1_epilogue(0) + [("wait", ("b1", 2))] + unpack(b1reg(2), BIAS)
        if t == 1: rate = 2
        if kk == 1 and t >= 2:
            assert not pend
            if t <= 8: pend += g1_epilogue(t - 1)
            if t >= 10: pend += g2_epilogue(t - 10)
            if t < 8: pend += unpack(b1reg(t + 1), BIAS + 4 * ((t + 1) % 2))
            if t == 11:
                pend += [("wait", "hr")] + unpack(14, 10)
                for q in range(0, 8, 2):
                    pend += unpack(LZ + q, ACCP + 2 * q)
            if t == 12:
                pend += [f"v_add_f32 v{ACCP+q}, v{ACCP+q}, v{10+q%4}" for q in range(16)]
            if t == 16: pend += ltake(1, LZ)
            if t == 17:
                pend += ltake(2, LZ) + [None] * 8 + ltake(3, LZs[3])
        if t >= 16: rate = 2 if kk >= 5 else 1
        for tt in range(4):
            k2, t2 = kk, tt
            if chain:
                e_ = (kk % CH) * 4 + tt
                k2, t2 = kk - kk % CH + e_ % CH, e_ // CH
            if k2 == 0:
                c = vr(BIAS + 4 * (t % 2)) if t < 9 else "0"
            else:
                c = vr(acc + 4 * t2)
            if Opt.EXP == "halfmm" and k2 % 2 == 1: a("s_nop 0")
            else: a(f"v_mfma_f32_16x16x32_bf16 {vr(acc+4*t2)}, {vr(slot(18*t+k2))}, {bfrag(k2*4+t2)}, {c}")
            if (kk >= 2 and (tt < 3 or rate == 2)) or (kk == 1 and tt == 3 and t >= 10):
                for _ in range(rate):
                    while pend:
                        s = pend.pop(0)
                        if s is None: break
                        a.emit(s)
                        if not (isinstance(s, str) and s.startswith("s_")): break
        if kk == 17 and 1 <= t < 17:
            assert not pend, (t, pend)
        E(post.get(i, []))
    accO = ACC[17 % 2]
    a.stamp(5)
    for n in (6, 7):
        E(fetch(n, LZs[n]))
    E([x for x in pend if x is not None])
    a("v_and_b32 v3, 15, v0")
    a("v_lshlrev_b32 v11, 5, v3")
    a("v_lshl_add_u32 v11, v4, 3, v11")
    a("v_add_u32 v11, s31, v11")
    a("v_bfe_u32 v10, v0, 1, 5")
    a(f"v_mul_u32_u24 v10, {ROW}, v10")
    a("v_and_b32 v13, 1, v0")
    a("v_lshl_add_u32 v10, v13, 4, v10")
    a("v_mul_u32_u24 v6, 144, v3")
    a("v_lshl_add_u32 v6, v4, 3, v6")
    a("s_lshl_b32 s62, s3, 5")
    a(f"s_add_u32 s62, s62, {HOFF}")
    a("v_add_u32 v6, s62, v6")
    a("v_bfe_u32 v8, v0, 3, 3")
    a("v_and_b32 v9, 7, v0")
    a("v_mul_u32_u24 v7, 144, v8")
    a("v_lshl_add_u32 v7, v9, 4, v7")
    a(f"s_mul_i32 s62, s3, {16*144}")
    a(f"s_add_u32 s62, s62, {HOFF}")
    a("v_add_u32 v7, s62, v7")
    a(f"v_mul_u32_u24 v8, {ROW}, v8")
    a("v_lshl_add_u32 v8, v9, 4, v8")
    a(f"s_mul_i32 s30, s29, {64*ROW}")
    a(f"s_mul_i32 s81, s3, {16*ROW}")
    a("s_add_u32 s81, s81, s30")
    a("s_lshl_b32 s62, s28, 7")
    a("s_add_u32 s81, s81, s62")
    a("s_add_u32 s82, s30, s82")
    a("s_and_b32 s62, s28, 1")
    a(f"s_mul_i32 s62, s62, {32*ROW}")
    a("s_add_u32 s62, s62, s30")
    a("s_add_u32 s83, s83, s62")
    E(lread(4, LZs[4]))
    a("s_cmp_eq_u32 s80, 0")
    a("s_cbranch_scc1 K3_nosh1")
    for k in range(8):
        a(f"ds_read_b128 {vr(SH+4*k)}, v12 offset:{10240+1024*k}")
    E(unpack(SX + 4, A8) + unpack(SX + 4, A8 + 4))
    for q in range(4):
        a(f"v_dot2_f32_bf16 v{A8+2*q}, v{SX+q}, s75, v{A8+2*q}")
        a(f"v_dot2_f32_bf16 v{A8+2*q+1}, v{SX+q}, s76, v{A8+2*q+1}")
    a("s_waitcnt lgkmcnt(0)")
    E(take_share())
    a.label("K3_nosh1")
    a("s_waitcnt lgkmcnt(0)")
    E(take(4, LZs[4], False))
    E(lread(5, LZs[5]))
    E(take(6, LZs[6]))
    a("s_waitcnt lgkmcnt(0)")
    E(take(5, LZs[5], False))
    E(take(7, LZs[7]))
    a.stamp(6)
    a(f"s_mov_b32 s88, {Opt.PBOUND}")
    LZt = LZs
    a.label("K3_poll")
    a("s_cmp_eq_u32 s74, 0")
    a("s_cbranch_scc1 K3_done")
    a("s_sub_u32 s88, s88, 1")
    a("s_cmp_eq_u32 s88, 0")
    a("s_cbranch_scc1 K3_done")
    a("s_mov_b32 s31, s74")
    for n in range(1, 9):
        a(f"s_bitcmp0_b32 s31, {n}")
        a(f"s_cbranch_scc1 K3_pf{n}")
        E(fetch(n, LZt[n], False) if n < 8 else fetch_share(False))
        a.label(f"K3_pf{n}")
    a("s_waitcnt vmcnt(0)")
    for n in range(1, 9):
        a(f"s_bitcmp0_b32 s31, {n}")
        a(f"s_cbranch_scc1 K3_pt{n}")
        E(take(n, LZt[n], False) if n < 8 else take_share())
        a.label(f"K3_pt{n}")
    a("s_branch K3_poll")
    a.label("K3_done")
    a.stamp(7)
    a("s_nop 1")
    if Opt.OW:
        a("s_cmp_eq_u32 s80, 0")
        a("s_cbranch_scc1 K3_nosh3")
        for tt in range(2):
            a(f"v_cvt_pk_bf16_f32 v{A8+4*tt}, v{A8+4*tt}, v{A8+4*tt+1}")
            a(f"v_cvt_pk_bf16_f32 v{A8+4*tt+1}, v{A8+4*tt+2}, v{A8+4*tt+3}")
            a(f"ds_write_b64 v11, {vr(A8+4*tt,2)} offset:{512*tt}")
        a(f"ds_read_b128 {vr(SX)}, v12")
        a.label("K3_nosh3")
        for tt in range(4):
            for q in range(2):
                a(f"v_pk_add_f32 {vr(accO+4*tt+2*q,2)}, {vr(accO+4*tt+2*q,2)}, {vr(ACCP+4*tt+2*q,2)}")
            a(f"v_cvt_pk_bf16_f32 v{TMP+2*tt}, v{accO+4*tt}, v{accO+4*tt+1}")
            a(f"v_cvt_pk_bf16_f32 v{TMP+2*tt+1}, v{accO+4*tt+2}, v{accO+4*tt+3}")
            a(f"ds_write_b64 v6, {vr(TMP+2*tt,2)} offset:{16*144*tt}")
        a("s_waitcnt lgkmcnt(0)")
        a("s_barrier")
        a(f"ds_read_b128 {vr(LZ)}, v7")
        a(f"ds_read_b128 {vr(LZ+4)}, v7 offset:{8*144}")
        a("s_cbranch_scc1 K3_nosh4")
        a(f"buffer_store_dwordx4 {vr(SX)}, v10, s[20:23], s83 offen{Opt.OST}")
        a.label("K3_nosh4")
        a(f"s_add_u32 s83, s81, {8*ROW}")
        a("s_waitcnt lgkmcnt(1)")
        a(f"buffer_store_dwordx4 {vr(LZ)}, v8, s[20:23], s81 offen{Opt.OST}")
        a("s_waitcnt lgkmcnt(0)")
        a(f"buffer_store_dwordx4 {vr(LZ+4)}, v8, s[20:23], s83 offen{Opt.OST}")
    else:
        for tt in range(4):
            for q in range(2):
                a(f"v_pk_add_f32 {vr(accO+4*tt+2*q,2)}, {vr(accO+4*tt+2*q,2)}, {vr(ACCP+4*tt+2*q,2)}")
            a(f"v_cvt_pk_bf16_f32 v{TMP+2*tt}, v{accO+4*tt}, v{accO+4*tt+1}")
            a(f"v_cvt_pk_bf16_f32 v{TMP+2*tt+1}, v{accO+4*tt+2}, v{accO+4*tt+3}")
            a(f"ds_write_b64 v11, {vr(TMP+2*tt,2)} offset:{512*tt}")
            if tt & 1:
                a(f"ds_read_b128 {vr(LZ+2*(tt-1))}, v12 offset:{512*(tt-1)}")
        a("s_cmp_eq_u32 s80, 0")
        a("s_cbranch_scc1 K3_nosh3")
        for tt in range(2):
            a(f"v_cvt_pk_bf16_f32 v{A8+4*tt}, v{A8+4*tt}, v{A8+4*tt+1}")
            a(f"v_cvt_pk_bf16_f32 v{A8+4*tt+1}, v{A8+4*tt+2}, v{A8+4*tt+3}")
            a(f"ds_write_b64 v11, {vr(A8+4*tt,2)} offset:{2048+512*tt}")
        a(f"ds_read_b128 {vr(SX)}, v12 offset:2048")
        a("s_waitcnt lgkmcnt(0)")
        a(f"buffer_store_dwordx4 {vr(SX)}, v10, s[20:23], s83 offen{Opt.OST}")
        a.label("K3_nosh3")
        a(f"s_add_u32 s83, s82, {32*ROW}")
        a("s_waitcnt lgkmcnt(0)")
        a(f"buffer_store_dwordx4 {vr(LZ)}, v10, s[20:23], s82 offen{Opt.OST}")
        a(f"buffer_store_dwordx4 {vr(LZ+4)}, v10, s[20:23], s83 offen{Opt.OST}")
    if Opt.DBG:
        a("s_getreg_b32 s100, hwreg(HW_REG_XCC_ID)")
        a("v_writelane_b32 v1, s100, 0")
        a("v_writelane_b32 v1, s88, 1")
        a("s_lshl_b32 s100, s2, 2")
        a("s_add_u32 s100, s100, s3")
        a("s_lshl_b32 s100, s100, 8")
        a(f"s_add_u32 s100, s100, {WS_DBG + 6 * 4096 * 64}")
        a("v_lshrrev_b32 v2, 2, v5")
        a("buffer_store_dword v1, v2, s[8:11], s100 offen")
    a.end(4, 8, 4)
    a.label("K3_end")
    a("s_endpgm")
    return K, desc(K, 512, 256), (256, 256, LDS)
```

```python
from common import *
RING = 11
RB = 68
BF = 112
ACC = [36, 52]
EXL = 28
BIAS = 20
ACCP = 20
B1R = 16
TMP = 16
HOFF = 0
EX0 = 72 * 1024
XOFF = EX0 + 16384
LND = XOFF + 16384
LDS = XOFF + 72 * 1024
NF = 162
CH = 3

def bfrag(k, j): return vr(BF + 4 * (4 * k + j))
def slot(i): return RB + (i % RING) * 4

def ffn(a, fused, vWC=None):
    SC = " sc1" if fused else ""
    def E(L):
        for x in L: a.emit(x)
    a(f"s_load_dwordx2 s[6:7], s[0:1], {A_B1}")
    a(f"s_load_dwordx4 s[24:27], s[0:1], {A_B2}")
    if not fused:
        a(f"s_load_dwordx2 s[4:5], s[0:1], {A_WS}")
        a("v_lshrrev_b32 v1, 6, v0")
        a("s_nop 0")
        a("v_readfirstlane_b32 s3, v1")
    a("v_and_b32 v2, 63, v0")
    a("v_and_b32 v3, 15, v0")
    a("v_bfe_u32 v4, v0, 4, 2")
    a("v_lshlrev_b32 v5, 4, v2")
    a("v_add_u32 v6, 4096, v5")
    a("v_add_u32 v7, 8192, v5")
    a("v_lshlrev_b32 v12, 3, v4")
    a("v_and_b32 v10, 0x23, v2")
    a("v_lshlrev_b32 v10, 4, v10")
    a("v_bfe_u32 v11, v2, 3, 2")
    a("v_lshl_add_u32 v10, v11, 6, v10")
    a("v_bfe_u32 v11, v2, 2, 1")
    a("v_lshl_add_u32 v10, v11, 8, v10")
    a("s_and_b32 s28, s2, 7")
    a("s_lshr_b32 s29, s2, 3")
    a("s_and_b32 s52, s3, 3")
    a("s_lshr_b32 s53, s3, 2")
    a("s_mul_i32 s30, s53, 36864")
    a("s_lshl_b32 s62, s52, 10")
    a("s_add_u32 s30, s30, s62")
    a("s_mul_i32 s31, s29, 73728")
    a("s_add_u32 s31, s31, s30")
    a(f"s_add_u32 s31, s31, {WS_XN}")
    a(f"s_add_u32 s30, s30, {XOFF}")
    a("s_mul_i32 s60, s28, 36")
    a("s_mul_i32 s59, s52, 9")
    a("s_mul_i32 s61, s29, 57")
    a("s_lshr_b32 s61, s61, 9")
    a("s_mul_i32 s61, s61, 9")
    a("s_sub_u32 s61, s29, s61")
    a("s_mul_i32 s58, s53, 9216")
    def tloc(n, d):
        return [f"s_add_u32 s{d}, s61, {n}", f"s_cmp_ge_u32 s{d}, 9", "s_cselect_b32 s62, 9, 0", f"s_sub_u32 s{d}, s{d}, s62", f"s_add_u32 s{d}, s{d}, s59"]
    def g1par(n):
        E(tloc(n, 63))
        a("s_add_u32 s62, s63, s60")
        a(f"s_mul_i32 s62, s62, {18*1024}")
        a("s_add_u32 s62, s62, s58")
        a(f"s_add_u32 s{32+n}, s62, {WS_W1F}")
    g1par(0); g1par(1)
    a("s_waitcnt lgkmcnt(0)")
    if not fused: a.srd(8, 4, WS_SIZE)
    a.srd(12, 6, 4608 * 2)
    def load(i):
        t, k = divmod(i, 9)
        return [("vm", ("A", i), f"buffer_load_dwordx4 {vr(slot(i))}, v{5 + k // 4}, s[8:11], s{32+t} offen offset:{(k%4)*1024}{SC}")]
    def dmax(k):
        return ["s_mov_b32 m0, s30", "s_add_u32 s30, s30, 4096",
                ("vm", ("X", k), f"buffer_load_dwordx4 v10, s[8:11], s31 offen{SC} lds"), "s_add_u32 s31, s31, 4096"]
    def ldb1(n):
        return tloc(n, 63) + ["s_add_u32 s62, s63, s60", "s_lshl_b32 s62, s62, 5",
                ("vm", ("b1", n), f"buffer_load_dwordx2 {vr(B1R+2*(n&1),2)}, v12, s[12:15], s62 offen")]
    def setup():
        for n in range(2, 9): g1par(n)
        a.srd(16, 24, 576 * 2)
        a.srd(20, 26, 2048 * ROW)
        a("s_add_u32 s28, s28, s29")
        a("s_and_b32 s28, s28, 7")
        for n in range(9):
            if n == 0:
                a(f"s_mov_b32 s{64+n}, 8")
            else:
                a(f"s_add_u32 s{64+n}, s28, {n}")
                a(f"s_and_b32 s{64+n}, s{64+n}, 7")
            a(f"s_lshl_b32 s62, s{64+n}, 2")
            a("s_add_u32 s62, s62, s52")
            a("s_add_u32 s62, s62, s60")
            a(f"s_mul_i32 s62, s62, {18*1024}")
            a("s_add_u32 s62, s62, s58")
            a(f"s_add_u32 s{41+n}, s62, {WS_W2F}")
        a("s_mov_b32 s75, 0x00003f80")
        a("s_mov_b32 s76, 0x3f800000")
        a("s_mul_i32 s54, s53, 38912")
        a("s_mul_i32 s55, s53, 34816")
        a("s_add_u32 s55, s55, 2048")
        a("v_lshlrev_b32 v9, 3, v2")
        a(f"v_add_u32 v9, {XOFF}, v9")
        a("v_add_u32 v8, s54, v9")
        a("v_add_u32 v9, s55, v9")
        a("s_lshl_b32 s62, s3, 11")
        a(f"s_add_u32 s62, s62, {EX0}")
        a("v_add_u32 v13, s62, v5")
        a("s_xor_b32 s62, s3, 4")
        a("s_lshl_b32 s62, s62, 11")
        a(f"s_add_u32 s62, s62, {EX0}")
        a("v_add_u32 v14, s62, v5")
        a("s_lshl_b32 s56, s53, 10")
        a("s_mul_i32 s78, s29, 36")
        a("s_add_u32 s78, s78, s52")
        a("s_lshl_b32 s77, s78, 14")
        a("s_add_u32 s77, s77, s56")
        a(f"s_add_u32 s77, s77, {WS_PART}")
        a("s_lshl_b32 s78, s78, 11")
        a("s_add_u32 s78, s78, s56")
        a(f"s_add_u32 s78, s78, {WS_HRES}")
        a("s_lshl_b32 s79, s28, 11")
        a("s_add_u32 s79, s79, s77")
        a("s_lshl_b32 s84, s28, 16")
        a("s_add_u32 s84, s84, s77")
        a(f"s_add_u32 s85, s77, {8*65536}")
        a("s_lshl_b32 s62, s28, 7")
        a("s_lshl_b32 s63, s52, 5")
        a("s_add_u32 s82, s62, s63")
        a("s_add_u32 s83, s63, 1024")
        a("s_lshl_b32 s62, s52, 1")
        a("s_add_u32 s62, s62, s53")
        a("s_cmp_eq_u32 s62, s28")
        a("s_cselect_b32 s80, 1, 0")
        a("s_lshl_b32 s74, s80, 8")
        a("s_or_b32 s74, s74, 0xfe")
        a("s_mul_i32 s57, s3, 5120")
        a(f"s_add_u32 s57, s57, {LND}")
    if not fused:
        a("s_cmp_lg_u32 s3, 7")
        a("s_cbranch_scc1 K3_nopf")
        a.codepf("k3_kernel", "K3_end", 29, 5, EXL, 86)
        a.vmq.pop()
        a.label("K3_nopf")
        for k in range(3): E(dmax(k))
        E(ldb1(0))
        for i in range(3): E(load(i))
        for k in range(3, 6): E(dmax(k))
        setup()
        pre_x, pre_a = 6, 3
    else:
        a("s_lshl_b32 s63, s28, 7")
        a(f"s_add_u32 s63, s63, {WS_FLAG + 64 * 128}")
        a("v_lshlrev_b32 v15, 2, v2")
        a(f"s_mov_b32 s88, {Opt.PBOUND}")
        a.waitvm("wc")
        a.label("K3_wp")
        a(f"v_cmp_eq_u32 vcc, 0, v{vWC}")
        a("s_nop 3")
        a("s_cmp_eq_u32 vcc_lo, 0")
        a("s_cbranch_scc1 K3_wok")
        a(f"buffer_load_dword v{vWC}, v15, s[8:11], s63 offen sc1")
        a("s_sub_u32 s88, s88, 1")
        a("s_cmp_lg_u32 s88, 0")
        a("s_waitcnt vmcnt(0)")
        a("s_cbranch_scc1 K3_wp")
        a.label("K3_wok")
        E(ldb1(0))
        for i in range(Opt.PA): E(load(i))
        a("s_lshl_b32 s81, s29, 8")
        a(f"s_add_u32 s81, s81, {WS_FLAG}")
        a("v_mov_b32 v11, 1")
        a("s_lshl_b32 s62, s28, 3")
        a("s_add_u32 s62, s62, s3")
        a("s_lshl_b32 s62, s62, 2")
        a("s_add_u32 s62, s62, s81")
        a.waitvm("xs")
        a("s_mov_b64 exec, 1")
        a.vm("fl", "buffer_store_dword v11, v15, s[8:11], s62 offen sc1")
        a("s_mov_b64 exec, -1")
        a.stamp(1)
        for i in range(Opt.PA, RING): E(load(i))
        setup()
        a("s_mov_b32 s63, s81")
        a(f"s_mov_b32 s88, {Opt.PBOUND}")
        a.label("K3_xp")
        a(f"buffer_load_dword v{EXL}, v15, s[8:11], s63 offen sc1")
        a("s_sub_u32 s88, s88, 1")
        a("s_waitcnt vmcnt(0)")
        a(f"v_cmp_eq_u32 vcc, 0, v{EXL}")
        a("s_nop 3")
        a("s_cmp_eq_u64 vcc, 0")
        a("s_cbranch_scc1 K3_xok")
        a("s_cmp_lg_u32 s88, 0")
        a("s_cbranch_scc1 K3_xp")
        a.label("K3_xok")
        a.stamp(2)
        for k in range(Opt.PX): E(dmax(k))
        pre_x, pre_a = Opt.PX, RING
    def unpack(src, dst):
        return [f"v_lshlrev_b32 v{dst}, 16, v{src}", f"v_and_b32 v{dst+1}, 0xffff0000, v{src}",
                f"v_lshlrev_b32 v{dst+2}, 16, v{src+1}", f"v_and_b32 v{dst+3}, 0xffff0000, v{src+1}"]
    def exw(t):
        acc = ACC[t % 2]
        return [f"ds_write_b128 v13, {vr(acc+8+4*h)} offset:{16384*(t&1)+1024*h}" for h in range(2)]
    def exr(t):
        return [f"ds_read_b128 {vr(EXL+4*h)}, v14 offset:{16384*(t&1)+1024*h}" for h in range(2)]
    def exadd(t):
        acc = ACC[t % 2]
        return ["s_waitcnt lgkmcnt(0)"] + [f"v_add_f32 v{acc+r}, v{acc+r}, v{EXL+r}" for r in range(8)]
    def g1_epilogue(n):
        acc = ACC[n % 2]
        L = tloc(n, 63) + ["s_lshr_b32 s62, s63, 1", "s_lshl_b32 s62, s62, 12", "s_and_b32 s63, s63, 1", "s_lshl_b32 s63, s63, 3",
                           "s_add_u32 s62, s62, s63", "s_add_u32 s62, s62, s56", "s_add_u32 s62, s62, s56", "v_add_u32 v15, s62, v5"]
        L += exadd(n)
        for j in range(2):
            for r in range(4):
                L.append(f"v_mul_f32 v{acc+4*j+r}, v{acc+4*j+r}, abs(v{acc+4*j+r})")
            L.append(f"v_cvt_pk_bf16_f32 v{acc+4*j}, v{acc+4*j}, v{acc+4*j+1}")
            L.append(f"v_cvt_pk_bf16_f32 v{acc+4*j+1}, v{acc+4*j+2}, v{acc+4*j+3}")
            L.append(f"v_pk_max_i16 v{acc+4*j}, v{acc+4*j}, 0")
            L.append(f"v_pk_max_i16 v{acc+4*j+1}, v{acc+4*j+1}, 0")
            L.append(f"ds_write_b64 v15, {vr(acc+4*j,2)} offset:{HOFF+1024*j}")
        return L
    def g2_epilogue(n):
        acc = ACC[(9 + n) % 2]
        L = exadd(9 + n) + [f"v_cvt_pk_bf16_f32 v{TMP+q}, v{acc+2*q}, v{acc+2*q+1}" for q in range(4)]
        L += [f"s_lshl_b32 s62, s{64+n}, 16", "s_add_u32 s62, s62, s79",
              ("vm", "st", f"buffer_store_dwordx4 {vr(TMP)}, v5, s[8:11], s62 offen sc1")]
        return L
    vC = 15
    def check(regs, bit):
        L = [f"v_max3_i32 v{vC}, v{regs[0]}, v{regs[1]}, v{regs[2]}"]
        k = 3
        while k + 1 < len(regs):
            L.append(f"v_max3_i32 v{vC}, v{vC}, v{regs[k]}, v{regs[k+1]}"); k += 2
        if k < len(regs):
            L.append(f"v_max_i32 v{vC}, v{vC}, v{regs[k]}")
        L.append(f"v_cmp_eq_i32 vcc, {POISON}, v{vC}")
        L.append("v_nop"); L.append("v_nop")
        L += ["s_cmp_eq_u64 vcc, 0", "s_cselect_b32 s86, s75, 0", "s_cselect_b32 s87, s76, 0",
              f"s_cselect_b32 s62, {1 << bit}, 0", "s_andn2_b32 s74, s74, s62"]
        return L
    def accum(lz, dst, n):
        L = []
        for q in range(n):
            L.append(f"v_dot2_f32_bf16 v{dst+2*q}, v{lz+q}, s86, v{dst+2*q}")
            L.append(f"v_dot2_f32_bf16 v{dst+2*q+1}, v{lz+q}, s87, v{dst+2*q+1}")
        return L
    def accum2(lz, dst, n):
        L = []
        for q in range(n):
            L += [f"v_lshlrev_b32 v10, 16, v{lz+q}", f"v_and_b32 v11, 0xffff0000, v{lz+q}",
                  f"v_fmac_f32 v{dst+2*q}, s87, v10", f"v_fmac_f32 v{dst+2*q+1}, s87, v11"]
        return L
    def take(n, lz, track=True, shadow=False):
        return ([("wait", ("P", n))] if track else []) + check(list(range(lz, lz + 4)), n) + (accum2 if shadow else accum)(lz, ACCP, 4)
    def fetch(n, lz, track=True):
        s_ = f"buffer_load_dwordx4 {vr(lz)}, v5, s[8:11], s63 offen sc1"
        return [f"s_lshl_b32 s63, s{64+8-n}, 11", "s_add_u32 s63, s63, s84", ("vm", ("P", n), s_) if track else s_]
    def dfetch(n):
        return [f"s_lshl_b32 s63, s{64+8-n}, 11", "s_add_u32 s63, s63, s84", f"s_add_u32 s30, s57, {1024*(n-1)}", "s_mov_b32 m0, s30", "s_nop 0",
                ("vm", ("P", n), "buffer_load_dwordx4 v5, s[8:11], s63 offen sc1 lds")]
    SHL = LND + 8 * 5120
    def dfetch_sh():
        L = ["s_cmp_eq_u32 s80, 0", "s_cbranch_scc1 K3_nosh0"]
        for k in range(8):
            L += [f"s_add_u32 s63, s85, {2048*k}", f"s_mov_b32 m0, {SHL+1024*k}", "s_nop 0", "buffer_load_dwordx4 v5, s[8:11], s63 offen sc1 lds"]
        return L + [("label", "K3_nosh0")]
    def lread(n, lz):
        return [("wait", ("P", n)), f"ds_read_b128 {vr(lz)}, v12 offset:{1024*(n-1)}"]
    def ltake(n):
        return lread(n, EXL) + [None] * 3 + ["s_waitcnt lgkmcnt(0)"] + take(n, EXL, False, True)
    LZs = {n: BF + 4 * n for n in range(1, 8)}
    SH = BF + 32
    SX = BF + 64
    A8 = BF + 72
    def fetch_share():
        L = []
        for n in range(8):
            L += [f"s_add_u32 s63, s85, {2048*n}", f"buffer_load_dwordx4 {vr(SH+4*n)}, v5, s[8:11], s63 offen sc1"]
        return L
    def take_share():
        L = check(list(range(SH, SH + 32)), 8)
        for n in range(8):
            L += accum(SH + 4 * n, A8, 4)
        return L
    def rdX(k, j):
        o = (k * 4096 + (j & 1) * 1024) // 512
        a(f"ds_read2st64_b64 {bfrag(k, j)}, v{8 + (j >> 1)} offset0:{o} offset1:{o+1}")
    def rdH(k, j):
        a(f"ds_read_b128 {bfrag(k, j)}, v{8 + (j >> 1)} offset:{k*4096+(j&1)*1024}")
    a.waitvm(("b1", 0))
    E(unpack(B1R, BIAS))
    post = {}
    def addpost(i, L): post.setdefault(i, []).extend(L)
    for k in range(pre_x, 9):
        addpost((k - pre_x) // 3 if fused else k - pre_x, dmax(k))
    nxt = pre_a
    for i in range(NF):
        t = i // 9
        k_ = 0
        while nxt < NF and k_ < 2:
            old = nxt - RING
            last_use = old if old // 9 in (0, 9) else old - old % CH + CH - 1
            if old >= 0 and last_use > i: break
            if fused and i < 3: break
            addpost(i, load(nxt)); nxt += 1; k_ += 1
    assert nxt == NF
    for n in range(1, 9):
        addpost(9 * (n - 1), ldb1(n))
    addpost(9 * 9 + 1, [("vm", "b2", f"buffer_load_dwordx2 v[10:11], v12, s[16:19], s82 offen"),
                        "s_lshl_b32 s62, s28, 13", "s_add_u32 s62, s62, s78",
                        "v_lshrrev_b32 v2, 3, v3", "v_lshlrev_b32 v2, 8, v2", "v_lshl_add_u32 v2, v4, 6, v2",
                        "v_and_b32 v15, 7, v3", "v_lshl_add_u32 v2, v15, 3, v2"] +
                       [("vm", "hr", f"buffer_load_dwordx2 {vr(TMP+2*j,2)}, v2, s[8:11], s62 offen offset:{512*j}{SC}") for j in range(2)])
    addpost(12 * 9, ["v_add_u32 v12, s57, v5"])
    addpost(13 * 9 + 8, dfetch_sh())
    for n in range(1, 6):
        addpost((12 + n) * 9 + 8, dfetch(n))
    pend = []
    for i in range(NF):
        t, k = divmod(i, 9)
        extra = ""
        first = t in (0, 9)
        if t == 0:
            cs = [0, 1, 3, 6, 9] if fused else [0, 3, 6, 9]
            if k in cs:
                ke = cs[cs.index(k) + 1]
                a.waitvm(("X", ke - 1))
                if k == 0 and not fused: a.stamp(1)
                a("s_barrier")
                if k == 0: a.stamp(3 if fused else 2)
                for kk in range(k, ke):
                    for j in range(4): rdX(kk, j)
            extra = f" lgkmcnt({4 * (ke - 1 - k)})"
        if t == 9:
            if k == 0:
                assert not pend
                a("v_add_u32 v8, s54, v5")
                a("v_add_u32 v9, s55, v5")
                a("s_nop 3")
                E(exw(8))
                a("s_waitcnt lgkmcnt(0)")
                a("s_barrier")
                E(exr(8) + g1_epilogue(8))
                a("s_waitcnt lgkmcnt(0)")
                a.stamp(4)
                a("s_barrier")
                for kk in range(3):
                    for j in range(4): rdH(kk, j)
            elif k + 2 < 9:
                for j in range(4): rdH(k + 2, j)
            extra = f" lgkmcnt({4 * min(2, 8 - k)})"
        if first: a.waitvm(("A", i), extra)
        elif k % CH == 0: a.waitvm(("A", i + CH - 1))
        acc = ACC[t % 2]
        if k == 0 and not first:
            assert not pend, (t, pend)
            pend = [None] * 4 + exw(t - 1) + [None] * 4 + ["BAR"] + exr(t - 1) + [None] * 3
            pend += g1_epilogue(t - 1) if t <= 8 else g2_epilogue(t - 10)
            if t == 10:
                pend = [("wait", "hr")] + unpack(TMP, ACCP) + unpack(TMP + 2, ACCP + 4) + unpack(10, EXL) + \
                       [f"v_add_f32 v{ACCP+q}, v{ACCP+q}, v{EXL+q%4}" for q in range(8)] + pend[4:]
            if t == 16: pend += ltake(1)
            if t == 17: pend += ltake(2)
        if k == 0 and t < 8:
            pend += ([None] * 30 if t == 0 else []) + [("wait", ("b1", t + 1))] + unpack(B1R + 2 * ((t + 1) & 1), BIAS + 4 * ((t + 1) % 2))
        for e4 in range(4):
            if first:
                k2, j2 = k, (2, 3, 0, 1)[e4]
            else:
                e_ = (k % CH) * 4 + e4
                k2, j2 = k - k % CH + e_ % CH, (2, 3, 0, 1)[e_ // CH]
            if k2 == 0:
                c = vr(BIAS + 4 * (t % 2)) if (t < 9 and j2 < 2) else "0"
            else:
                c = vr(acc + 4 * j2)
            a(f"v_mfma_f32_16x16x32_bf16 {vr(acc+4*j2)}, {vr(slot(9*t+k2))}, {bfrag(k2, j2)}, {c}")
            for _ in range(2):
                while pend:
                    s = pend.pop(0)
                    if s is None: break
                    if s == "BAR":
                        a("s_waitcnt lgkmcnt(0)"); a("s_barrier"); break
                    a.emit(s)
                    if not (isinstance(s, str) and s.startswith("s_")): break
        E(post.get(i, []))
    assert not pend, pend
    accO = ACC[17 % 2]
    a.stamp(5)
    for n in (6, 7):
        E(fetch(n, LZs[n]))
    E(exw(17))
    a("v_lshlrev_b32 v10, 3, v4")
    a(f"s_add_u32 s62, s78, {8*8192}")
    a.vm("sh0", f"buffer_load_dwordx2 {vr(SX,2)}, v2, s[8:11], s62 offen{SC}")
    a.vm("sh0", f"buffer_load_dwordx2 {vr(SX+2,2)}, v2, s[8:11], s62 offen offset:512{SC}")
    a.vm("sh0", f"buffer_load_dwordx2 {vr(SX+4,2)}, v10, s[16:19], s83 offen")
    E(lread(3, LZs[3]) + lread(4, LZs[4]))
    a(f"v_mul_u32_u24 v10, {ROW}, v3")
    a("v_lshl_add_u32 v10, v4, 3, v10")
    a(f"s_mul_i32 s30, s29, {64*ROW}")
    a(f"s_mul_i32 s62, s53, {32*ROW}")
    a("s_add_u32 s30, s30, s62")
    a("s_add_u32 s82, s30, s82")
    a("s_add_u32 s83, s30, s83")
    a("s_waitcnt lgkmcnt(0)")
    a("s_barrier")
    E(exr(17))
    E(take(3, LZs[3], False) + take(4, LZs[4], False))
    E(exadd(17))
    a("s_cmp_eq_u32 s80, 0")
    a("s_cbranch_scc1 K3_nosh1")
    a(f"v_add_u32 v11, {SHL}, v5")
    for k in range(8):
        a(f"ds_read_b128 {vr(SH+4*k)}, v11 offset:{1024*k}")
    for q in range(8):
        a(f"v_mov_b32 v{A8+q}, 0")
    a("s_waitcnt lgkmcnt(0)")
    E(take_share())
    a.label("K3_nosh1")
    E(lread(5, LZs[5]))
    E(take(6, LZs[6]))
    a("s_waitcnt lgkmcnt(0)")
    E(take(5, LZs[5], False))
    E(take(7, LZs[7]))
    a.stamp(6)
    a(f"s_mov_b32 s88, {Opt.PBOUND}")
    a.label("K3_poll")
    a("s_cmp_eq_u32 s74, 0")
    a("s_cbranch_scc1 K3_done")
    a("s_sub_u32 s88, s88, 1")
    a("s_cmp_eq_u32 s88, 0")
    a("s_cbranch_scc1 K3_done")
    a("s_mov_b32 s31, s74")
    for n in range(1, 9):
        a(f"s_bitcmp0_b32 s31, {n}")
        a(f"s_cbranch_scc1 K3_pf{n}")
        E(fetch(n, LZs[n], False) if n < 8 else fetch_share())
        a.label(f"K3_pf{n}")
    a("s_waitcnt vmcnt(0)")
    for n in range(1, 9):
        a(f"s_bitcmp0_b32 s31, {n}")
        a(f"s_cbranch_scc1 K3_pt{n}")
        E(take(n, LZs[n], False) if n < 8 else take_share())
        a.label(f"K3_pt{n}")
    a("s_branch K3_poll")
    a.label("K3_done")
    a.stamp(7)
    a("s_nop 1")
    for j in range(2):
        for q in range(2):
            a(f"v_pk_add_f32 {vr(accO+4*j+2*q,2)}, {vr(accO+4*j+2*q,2)}, {vr(ACCP+4*j+2*q,2)}")
        a(f"v_cvt_pk_bf16_f32 v{TMP+2*j}, v{accO+4*j}, v{accO+4*j+1}")
        a(f"v_cvt_pk_bf16_f32 v{TMP+2*j+1}, v{accO+4*j+2}, v{accO+4*j+3}")
        a(f"buffer_store_dwordx2 {vr(TMP+2*j,2)}, v10, s[20:23], s82 offen")
        a(f"s_add_u32 s82, s82, {16*ROW}")
    a("s_cmp_eq_u32 s80, 0")
    a("s_cbranch_scc1 K3_nosh2")
    a("s_waitcnt vmcnt(2)")
    for q in range(4):
        a(f"v_dot2_f32_bf16 v{A8+2*q}, v{SX+q}, s75, v{A8+2*q}")
        a(f"v_dot2_f32_bf16 v{A8+2*q+1}, v{SX+q}, s76, v{A8+2*q+1}")
    for q in range(4):
        a(f"v_dot2_f32_bf16 v{A8+2*q}, v{SX+4+(q&1)}, s75, v{A8+2*q}")
        a(f"v_dot2_f32_bf16 v{A8+2*q+1}, v{SX+4+(q&1)}, s76, v{A8+2*q+1}")
    a("s_nop 2")
    for j in range(2):
        a(f"v_cvt_pk_bf16_f32 v{EXL+2*j}, v{A8+4*j}, v{A8+4*j+1}")
        a(f"v_cvt_pk_bf16_f32 v{EXL+2*j+1}, v{A8+4*j+2}, v{A8+4*j+3}")
        a(f"buffer_store_dwordx2 {vr(EXL+2*j,2)}, v10, s[20:23], s83 offen")
        a(f"s_add_u32 s83, s83, {16*ROW}")
    a.label("K3_nosh2")

def k3(a):
    K = "k3_kernel"
    a.begin(K)
    a.guard("K3")
    a.stamp(0); a.stampc(10)
    ffn(a, False)
    a.end(4, 8, 8)
    a.label("K3_end")
    a("s_endpgm")
    return K, desc(K, 256), (256, 512, LDS)
```

```python
import sys, math, struct

NAME = "sequential_preLN__grouped_kv_mqa__dense_activation_squared_relu__prompt"

ROW = 1152
KVB = 2304
K2OFF = 64 * KVB
KV_BYTES = K2OFF + 16 * 512
WS_Q    = 0
WS_XN   = WS_Q + 2048 * ROW
WS_KV   = WS_XN + 2048 * ROW
WS_FLAG = WS_KV + 160 * 1024
WS_WOF  = WS_FLAG + 128 * 128
WOF_BYTES = 36 * 18 * 1024
WS_W1F  = WS_WOF + WOF_BYTES
WS_W2F  = WS_W1F + 288 * 18 * 1024
WS_PART = WS_W2F + 288 * 18 * 1024
WS_HRES = WS_PART + 32 * 36 * 8 * 2048
WS_DBG  = WS_HRES + 32 * 36 * 2048
POISON  = 0x7f7f7f7f
WS_END  = WS_DBG + 8 * 4096 * 64 + 2048 * 256
WS_SIZE = 0x10000000
OOB = 0x7ff00000
class Opt:
    WST = ' sc1'
    S1 = ' sc1'
    S2 = ' sc1'
    W2PF = 0
    XW = False
    OW = False
    OST = ''
    PA = 4
    PRI = 4
    WP = 1
    WF = 0
    SK4 = True
    NONOP = True
    WPOS = (6, 13, 14, 20, 21)
    PX = 3
    FUSE = False
    W8 = False
    W4 = False
    IPF = 0
    WBL = 0
    LAM = 22
    LA0 = 12
    LAG = 4
    ABL = ''
    STEP = True
    CHAIN = 2
    XNT = ''
    QNT = ''
    WNT = ''
    K1BAR = 3
    PST = ' sc1'
    PBOUND = '0x8000'
    EXP = ''
    CPF = True
    XST = ' sc1'
    FOLD = True
    DBG = False
assert WS_END < WS_SIZE

QSCALE = (18 ** -0.5) * math.log2(math.e)
DMAP = [[0, 1, 2, 3, 8, 9, 10, 11, 16], [4, 5, 6, 7, 12, 13, 14, 15, 17]]

def f32bits(x):
    return "0x%08x" % struct.unpack("<I", struct.pack("<f", x))[0]

class Asm:
    def __init__(self):
        self.L = []
        self.vmq = []
    def __call__(self, s):
        for ln in s.split("\n"):
            self.L.append("    " + ln.strip())
    def label(self, s):
        self.L.append(s + ":")
    def raw(self, s):
        self.L.append(s)
    def vm(self, tag, s):
        self.vmq.append(tag)
        self(s)
    def vmn(self, tag):
        idx = len(self.vmq) - 1 - self.vmq[::-1].index(tag)
        n = len(self.vmq) - 1 - idx
        return min(n, 63)
    def waitvm(self, tag, extra=""):
        self(f"s_waitcnt vmcnt({self.vmn(tag)}){extra}")
    def emit(self, it):
        if isinstance(it, str):
            self(it)
        elif it[0] == "vm":
            self.vm(it[1], it[2])
        elif it[0] == "wait":
            self.waitvm(it[1], it[2] if len(it) > 2 else "")
        elif it[0] == "label":
            self.label(it[1])
        elif it[0] == "stamp":
            self.stamp(it[1])
        else:
            raise ValueError(it)
    def srd(self, d, p, size, off=0):
        if off:
            self(f"s_add_u32 s{d}, s{p}, {off}")
            self(f"s_addc_u32 s{d+1}, s{p+1}, 0")
        else:
            self(f"s_mov_b32 s{d}, s{p}")
            self(f"s_mov_b32 s{d+1}, s{p+1}")
        self(f"s_mov_b32 s{d+2}, {size}")
        self(f"s_mov_b32 s{d+3}, 0x00020000")
    smap = None
    def stamp(self, i):
        if not Opt.DBG: return
        if self.smap is not None and i not in (0, 8):
            if i not in self.smap: return
            i = self.smap[i]
        self("s_memrealtime s[100:101]")
        self("s_waitcnt lgkmcnt(0)")
        self(f"s_mov_b32 s{89+i}, s100")
    def stampc(self, i):
        if not Opt.DBG: return
        self("s_memtime s[100:101]")
        self("s_waitcnt lgkmcnt(0)")
        self(f"s_mov_b32 s{89+i}, s100")
    def end(self, kid, srd, nwaves, n=10):
        if Opt.DBG:
            self.stamp(8)
            self.stampc(9)
            self("s_mov_b64 exec, 1")
            self(f"s_mul_i32 s100, s2, {nwaves}")
            self("s_add_u32 s100, s100, s3")
            self("s_lshl_b32 s100, s100, 6")
            self(f"s_add_u32 s100, s100, {WS_DBG + kid * 4096 * 64}")
            self("v_mov_b32 v1, 0")
            for i in range(n + 1):
                self(f"v_mov_b32 v2, s{89+i}")
                self(f"buffer_store_dword v2, v1, s[{srd}:{srd+3}], s100 offen offset:{4*i} sc1")
        self("s_endpgm")
    def codepf(self, start, end, sidx, vlane16, vdst, sp, tag="cpf"):
        if not Opt.CPF: return
        self.n_pf = getattr(self, "n_pf", 0) + 1
        lb = f"Lpf{self.n_pf}"
        self(f"s_getpc_b64 s[{sp}:{sp+1}]")
        self.label(lb)
        self(f"s_lshl_b32 s{sp+2}, s{sidx}, 10")
        self(f"s_min_u32 s{sp+2}, s{sp+2}, {end}-{start}-1024")
        self(f"s_add_u32 s{sp}, s{sp}, s{sp+2}")
        self(f"s_addc_u32 s{sp+1}, s{sp+1}, 0")
        self(f"s_add_u32 s{sp}, s{sp}, {start}-{lb}")
        self(f"s_addc_u32 s{sp+1}, s{sp+1}, ({start}-{lb})>>32")
        self.vm(tag, f"global_load_dwordx4 v[{vdst}:{vdst+3}], v{vlane16}, s[{sp}:{sp+1}]")
    def guard(self, tag):
        self("s_cmp_lt_u32 s2, 256")
        self(f"s_cbranch_scc1 {tag}_run")
        self("s_endpgm")
        if Opt.IPF:
            self.label(f"{tag}_pad0")
            self("s_setpc_b64 s[100:101]")
        self.label(f"{tag}_run")
    def pad(self, tag, n):
        if n >= Opt.IPF: return
        self(f"s_branch {tag}_ov{n}")
        self.label(f"{tag}_pad{n}")
        self("s_setpc_b64 s[100:101]")
        self.label(f"{tag}_ov{n}")
    def touch(self, lbl):
        return [f"s_call_b64 s[100:101], {lbl}_pad{n}" for n in range(Opt.IPF)]
    def begin(self, k):
        self.vmq = []
        self.raw(f".globl {k}\n.p2align 8\n.type {k},@function\n{k}:")
    def text(self):
        return "\n".join(self.L) + "\n"

def vr(b, n=4):
    return f"v[{b}:{b+n-1}]"
def ar(b, n=4):
    return f"a[{b}:{b+n-1}]"

def desc(k, nv, acc=None, ns=102):
    if acc is None:
        acc = min(256, (nv + 3) // 4 * 4)
    return f""".p2align 6
.amdhsa_kernel {k}
  .amdhsa_next_free_vgpr {nv}
  .amdhsa_next_free_sgpr {ns}
  .amdhsa_accum_offset {acc}
  .amdhsa_group_segment_fixed_size 0
  .amdhsa_kernarg_size 104
  .amdhsa_user_sgpr_count 2
  .amdhsa_user_sgpr_kernarg_segment_ptr 1
  .amdhsa_system_sgpr_workgroup_id_x 1
.end_amdhsa_kernel
"""

A_X, A_WQ, A_WK, A_WV, A_WO, A_BX, A_W1, A_B1, A_W2, A_B2, A_OUT, A_DBG, A_WS = [8 * i for i in range(13)]

def weave(main, side):
    out = []
    for i, m in enumerate(main):
        out += side.get(i, [])
        out.append(m)
    out += side.get(len(main), [])
    return out

def cross_g_sum(a, v, t):
    a(f"v_mov_b32 v{t}, v{v}")
    a("s_nop 1")
    a(f"v_permlane16_swap_b32 v{v}, v{t}")
    a("s_nop 1")
    a(f"v_add_f32 v{v}, v{v}, v{t}")
    a(f"v_mov_b32 v{t}, v{v}")
    a("s_nop 1")
    a(f"v_permlane32_swap_b32 v{v}, v{t}")
    a("s_nop 1")
    a(f"v_add_f32 v{v}, v{v}, v{t}")

def build(kernels, out):
    a = Asm()
    metas = [k(a) for k in kernels]
    hdr = open("cdna_kernels/" + NAME + ".s.ref").read().split("\n")
    top = []
    for ln in hdr:
        if ln.startswith(";") and "@launch" not in ln and "Override launch" not in ln and "grid=ceil" not in ln:
            top.append(ln)
        if not ln.startswith(";"):
            break
    s = "\n".join(top) + "\n"
    s += """;
"""
    for K, d, (g, b, l) in metas:
        s += f"; @launch kernel={K} grid=({g},1,1) block=({b},1,1) lds={l}\n"
    s += '.amdgcn_target "amdgcn-amd-amdhsa--gfx950"\n.text\n'
    s += a.text()
    s += '.section .rodata,"a"\n'
    for K, d, _ in metas:
        s += d
    open(out, "w").write(s)
```

```python
from common import *
import relayout as RL
WIMG = 0
KVIMG = 576 * 144
XIMG = KVIMG + 576 * 16
FL = XIMG + 4 * 17 * 1024
LDS = FL + 64

def k1(a):
    K = "k1_kernel"
    a.begin(K)
    a("s_cmp_ge_u32 s2, 256")
    a("s_cbranch_scc1 K1_end")
    a.stamp(0); a.stampc(10)
    a(f"s_load_dwordx4 s[4:7], s[0:1], {A_X}")
    a(f"s_load_dwordx4 s[8:11], s[0:1], {A_WK}")
    a(f"s_load_dwordx2 s[12:13], s[0:1], {A_WS}")
    a(f"s_load_dwordx2 s[52:53], s[0:1], {A_WO}")
    a("v_lshrrev_b32 v1, 6, v0")
    a("v_and_b32 v2, 63, v0")
    a("v_readfirstlane_b32 s3, v1")
    a("v_and_b32 v3, 15, v0")
    a("v_bfe_u32 v4, v0, 4, 2")
    a("s_and_b32 s14, s2, 31")
    a("s_lshr_b32 s15, s2, 5")
    a("s_lshr_b32 s48, s14, 3")
    a("s_lshl_b32 s48, s48, 1")
    a("s_add_u32 s48, s48, s15")
    a("s_cmp_ge_u32 s48, 9")
    a("s_cselect_b32 s49, 9, 0")
    a("s_sub_u32 s48, s48, s49")
    a("s_cmp_lt_u32 s3, 4")
    a("s_cbranch_scc1 K1_compute")
    a("s_sub_u32 s50, s3, 4")
    a("s_lshl_b32 s34, s50, 2")
    a(f"s_add_u32 s34, s34, {FL}")
    a("v_mov_b32 v21, s34")
    a("v_mov_b32 v22, 0")
    a("ds_write_b32 v21, v22")
    a("ds_write_b32 v21, v22 offset:16")
    def pattern(vq, vd, stride, usec):
        if usec:
            a(f"v_mul_u32_u24 v10, 7282, v{vq}")
            a("v_lshrrev_b32 v10, 16, v10")
            a("v_mul_u32_u24 v11, 9, v10")
            a(f"v_sub_u32 v11, v{vq}, v11")
        else:
            a(f"v_mov_b32 v10, v{vq}")
        a("v_and_b32 v12, 1, v10")
        a("v_bfe_u32 v13, v10, 1, 2")
        a("v_lshl_or_b32 v12, v12, 2, v13")
        a("v_and_or_b32 v10, v10, -8, v12")
        a(f"v_mul_u32_u24 v{vd}, {stride}, v10")
        if usec:
            a(f"v_lshl_add_u32 v{vd}, v11, 4, v{vd}")
    a("v_and_b32 v9, 255, v0")
    pattern(9, 6, ROW, True)
    a("v_add_u32 v9, 256, v9")
    pattern(9, 7, ROW, True)
    a("v_add_u32 v9, 512, v2")
    pattern(9, 8, ROW, True)
    pattern(2, 9, 36, False)
    a("s_cmp_eq_u32 s50, 1")
    a("s_cselect_b64 vcc, -1, 0")
    a("v_lshrrev_b32 v5, 2, v2")
    a(f"v_mul_u32_u24 v5, {ROW}, v5")
    a("v_sub_u32 v10, 0, v4")
    a("v_xor_b32 v10, v10, v2")
    a("v_and_b32 v10, 3, v10")
    a("v_lshl_add_u32 v5, v10, 4, v5")
    a("v_cndmask_b32 v8, v8, v9, vcc")
    a("s_mul_i32 s33, s15, 144")
    a("s_lshl_b32 s32, s14, 2")
    a("s_add_u32 s32, s32, s50")
    a(f"s_mul_i32 s32, s32, {16*ROW}")
    a("s_mul_i32 s44, s50, 17408")
    a(f"s_add_u32 s44, s44, {XIMG}")
    a("s_lshl_b32 s35, s50, 10")
    a("s_mov_b32 s42, 0")
    a("s_cmp_lt_u32 s15, 3")
    a("s_cselect_b32 s36, 0, 3")
    a("s_waitcnt lgkmcnt(0)")
    a("s_cselect_b32 s24, s8, s10")
    a("s_cselect_b32 s25, s9, s11")
    a("s_barrier")
    a.srd(16, 4, 2048 * ROW)
    a.srd(20, 6, 576 * ROW)
    a("s_sub_u32 s36, s15, s36")
    a("s_lshl_b32 s37, s36, 4")
    a("s_cmp_ge_u32 s36, 2")
    a("s_cselect_b32 s37, 20, s37")
    a("s_cmp_eq_u32 s50, 1")
    a("s_cselect_b32 s24, s24, s6")
    a("s_cselect_b32 s25, s25, s7")
    a(f"s_cselect_b32 s26, {576*36}, s22")
    a("s_mov_b32 s27, 0x00020000")
    a("s_cselect_b32 s37, s37, s33")
    a(f"s_mov_b32 s41, {64*ROW}")
    a(f"s_cselect_b32 s41, {64*36}, s41")
    a("s_mov_b32 s38, 8192")
    a(f"s_cselect_b32 s38, {KVIMG}, s38")
    a("s_mov_b32 s39, 9216")
    a("s_cselect_b32 s39, 1024, s39")
    a.stamp(1)
    a("s_lshl_b32 s45, s48, 7")
    a("s_mov_b32 s46, 9")
    if Opt.WF: a("s_branch K1_dma")
    a.label("K1_xl")
    a("s_add_u32 s34, s45, s32")
    a("s_mov_b32 m0, s44")
    a("s_add_u32 s40, s44, 960")
    a(f"buffer_load_dwordx4 v5, s[16:19], s34 offen{Opt.XNT} lds")
    a("s_sub_u32 s46, s46, 1")
    a("s_cmp_eq_u32 s46, 0")
    a("s_cbranch_scc1 K1_dma")
    a("s_mov_b32 m0, s40")
    a("s_add_u32 s44, s44, 2048")
    a(f"buffer_load_dwordx4 v5, s[16:19], s34 offen offset:64{Opt.XNT} lds")
    a("s_add_u32 s45, s45, 128")
    a(f"s_cmp_ge_u32 s45, {ROW}")
    a("s_cselect_b32 s45, 0, s45")
    a("s_branch K1_xl")
    a.label("K1_dma")
    a(f"s_mul_i32 s34, s48, {64*ROW}")
    a("s_add_u32 s34, s34, s33")
    a("s_mov_b32 m0, s35")
    a("s_add_u32 s40, s35, 4096")
    a(f"buffer_load_dwordx4 v6, s[20:23], s34 offen{Opt.QNT} lds")
    a("s_mov_b32 m0, s40")
    a("s_add_u32 s35, s35, 9216")
    a(f"buffer_load_dwordx4 v7, s[20:23], s34 offen{Opt.QNT} lds")
    a(f"s_cmp_lg_u32 s42, {Opt.WF}")
    a("s_cbranch_scc1 K1_nxf")
    a(f"v_mov_b32 v22, {Opt.WF + 2}")
    a("s_waitcnt vmcnt(2)")
    a("ds_write_b32 v21, v22 offset:16")
    a("ds_write_b32 v21, v22")
    a.label("K1_nxf")
    a("s_cmp_ge_u32 s50, 2")
    a("s_cbranch_scc1 K1_two")
    a("s_mul_i32 s34, s48, s41")
    a("s_add_u32 s34, s34, s37")
    a("s_mov_b32 m0, s38")
    a("s_add_u32 s38, s38, s39")
    a("buffer_load_dwordx4 v8, s[24:27], s34 offen lds")
    a.label("K1_two")
    a("s_add_u32 s48, s48, 1")
    a("s_cmp_ge_u32 s48, 9")
    a("s_cselect_b32 s48, 0, s48")
    a("s_add_u32 s42, s42, 1")
    if Opt.WF:
        a(f"s_cmp_lt_u32 s42, {Opt.WF}")
        a("s_cbranch_scc1 K1_dma")
        a(f"s_cmp_eq_u32 s42, {Opt.WF}")
        a("s_cbranch_scc1 K1_xl")
    a(f"s_max_u32 s40, s42, {Opt.WF + 2}")
    a("v_mov_b32 v22, s40")
    a("s_cmp_lt_u32 s42, 9")
    a("s_waitcnt vmcnt(4)")
    a("ds_write_b32 v21, v22")
    a("s_cbranch_scc1 K1_dma")
    a.stamp(2)
    a("v_mov_b32 v23, 10")
    a("v_mov_b32 v24, 11")
    a("s_waitcnt vmcnt(2)")
    a("ds_write_b32 v21, v23")
    a("s_waitcnt vmcnt(0)")
    a("ds_write_b32 v21, v24")
    a.stamp(4)
    for x_ in a.touch("K2"): a(x_)
    if Opt.DBG: a.srd(28, 12, WS_SIZE)
    a.end(1, 28, 8)
    a.label("K1_compute")
    X = 64
    RAW = 200
    a(f"v_mul_u32_u24 v5, {ROW}, v3")
    a("v_lshl_add_u32 v5, v4, 4, v5")
    a("s_lshl_b32 s32, s14, 2")
    a("s_add_u32 s32, s32, s3")
    a(f"s_mul_i32 s33, s32, {16*ROW}")
    a("s_lshl_b32 s34, s48, 7")
    a("s_sub_u32 s34, s34, 64")
    a("s_cmp_eq_u32 s48, 0")
    a(f"s_cselect_b32 s34, {ROW-64}, s34")
    a("s_add_u32 s36, s33, s34")
    a("s_waitcnt lgkmcnt(0)")
    a("s_barrier")
    a.srd(16, 4, 2048 * ROW)
    a.srd(28, 12, WS_SIZE)
    a.stamp(1)
    a("s_min_u32 s54, s2, 161")
    RL.params_wo(a, 54, 56, 64, 52)
    a("v_bfe_u32 v198, v0, 3, 1")
    a("v_mul_lo_u32 v196, v198, s58")
    a("v_bfe_u32 v198, v0, 4, 1")
    a("v_mul_lo_u32 v197, v198, s59")
    a("v_add_u32 v196, v196, v197")
    a("v_bfe_u32 v198, v0, 5, 1")
    a("v_mul_lo_u32 v197, v198, s60")
    a("v_add_u32 v196, v196, v197")
    a("v_and_b32 v198, 7, v0")
    a("v_lshl_add_u32 v196, v198, 4, v196")
    a("v_bfe_u32 v198, v0, 2, 2")
    a("v_lshl_add_u32 v197, v4, 3, v198")
    a("v_lshlrev_b32 v197, 7, v197")
    a("v_and_b32 v198, 3, v0")
    a("v_lshl_add_u32 v197, v198, 3, v197")
    a(f"v_add_u32 v197, {XIMG + 3 * 17408 + 4096}, v197")
    a("s_cmp_lt_u32 s2, 162")
    a("s_cselect_b32 s55, s3, 0")
    a(f"buffer_load_dwordx4 {vr(X+68)}, v5, s[16:19], s36 offen")
    a("v_lshrrev_b32 v7, 2, v3")
    a("v_sub_u32 v7, 0, v7")
    a("v_xor_b32 v7, v7, v4")
    a("v_and_b32 v7, 3, v7")
    a("v_lshlrev_b32 v7, 4, v7")
    a("v_lshl_add_u32 v7, v3, 6, v7")
    a("s_mul_i32 s35, s3, 17408")
    a(f"s_add_u32 s35, s35, {XIMG}")
    a("v_add_u32 v7, s35, v7")
    a("v_bfe_u32 v5, v0, 2, 2")
    a("v_and_b32 v6, 3, v0")
    a("v_lshlrev_b32 v12, 3, v4")
    a("v_lshl_add_u32 v12, v5, 1, v12")
    a("v_mul_u32_u24 v8, 144, v12")
    a("v_lshl_add_u32 v8, v6, 3, v8")
    TA = 232
    for t in range(4):
        a(f"s_add_u32 s{76+t}, s3, {t}")
        a(f"s_and_b32 s{76+t}, s{76+t}, 3")
        a(f"s_lshl_b32 s80, s{76+t}, 5")
        a(f"v_add_u32 v{TA+t}, s80, v8")
        a(f"v_add_u32 v{TA+4+t}, {9*4608}, v{TA+t}")
    a("v_lshlrev_b32 v10, 4, v12")
    a("v_lshl_add_u32 v10, v6, 3, v10")
    a(f"v_add_u32 v10, {KVIMG-16}, v10")
    a("v_add_u32 v11, 16, v10")
    a("v_add_u32 v15, 128, v8")
    a("v_cmp_gt_u32 vcc, 2, v6")
    a("v_mov_b32 v14, 512")
    a("v_mov_b32 v5, 4608")
    a("v_cndmask_b32 v10, v10, v15, vcc")
    a("v_add_u32 v15, 144, v15")
    a("v_cndmask_b32 v14, v14, v5, vcc")
    a("v_cndmask_b32 v11, v11, v15, vcc")
    ONES = 56
    for i in range(4):
        a(f"v_mov_b32 v{ONES+i}, 0x3f803f80")
    ACC, CSA, SM, GR, FT = 16, 36, 60, 188, 192
    QA = 176
    a(f"v_mov_b32 v5, {FL}")
    a("s_mov_b32 s43, 0")
    W = 136
    def need(blk):
        a.label(f"K1_w{blk+1}")
        a(f"s_cmp_ge_u32 s43, {blk+3}")
        a(f"s_cbranch_scc1 K1_ok{blk+1}")
        a(f"ds_read_b128 {vr(FT)}, v5")
        a("s_waitcnt lgkmcnt(0)")
        a(f"v_min3_u32 v{FT}, v{FT}, v{FT+1}, v{FT+2}")
        a(f"v_min_u32 v{FT}, v{FT}, v{FT+3}")
        a("s_nop 0")
        a(f"v_readfirstlane_b32 s43, v{FT}")
        a(f"s_branch K1_w{blk+1}")
        a.label(f"K1_ok{blk+1}")
    a("v_and_b32 v16, 7, v3")
    a("v_lshrrev_b32 v17, 3, v3")
    a(f"v_mul_u32_u24 v17, {ROW}, v17")
    a("s_add_u32 s81, s35, 256")
    a("v_add_u32 v17, s81, v17")
    a("v_lshl_add_u32 v18, v16, 4, v17")
    a("v_lshl_add_u32 v19, v16, 2, v17")
    a("v_add_u32 v19, 1024, v19")
    a("v_lshlrev_b32 v20, 2, v4")
    for t in range(5):
        for q in range(2):
            d = QA + 2 * t + q
            if t < 4:
                a(f"s_lshl_b32 s80, s{76+t}, 4")
                a(f"s_add_u32 s80, s80, {2*q}")
                a("v_add_u32 v21, s80, v20")
            else:
                a(f"v_add_u32 v21, {16*t+2*q}, v20")
            a("v_mul_u32_u24 v22, 57, v21")
            a("v_lshrrev_b32 v22, 10, v22")
            a("v_mad_i32_i24 v21, v22, -16, v21")
            a("v_mad_i32_i24 v21, v22, -2, v21")
            a("v_cmp_gt_u32 vcc, 16, v21")
            a("v_lshrrev_b32 v23, 3, v21")
            a(f"v_lshl_add_u32 v{d}, v23, 9, v18")
            a(f"v_lshl_add_u32 v{d}, v22, 7, v{d}")
            a("v_and_b32 v23, 7, v21")
            a(f"v_lshl_add_u32 v{d}, v23, 1, v{d}")
            a("v_lshl_add_u32 v23, v22, 5, v19")
            a(f"v_cndmask_b32 v{d}, v23, v{d}, vcc")
    VS = 240
    a("s_lshl_b32 s34, s32, 4")
    a("s_add_u32 s34, s34, s15")
    a(f"s_mul_i32 s34, s34, {ROW}")
    a(f"s_add_u32 s34, s34, {WS_Q}")
    a("s_lshr_b32 s35, s32, 1")
    a(f"s_mul_i32 s35, s35, {KVB}")
    a(f"s_add_u32 s35, s35, {WS_KV}")
    a("s_sub_u32 s35, s35, s34")
    a("s_and_b32 s37, s32, 1")
    a("v_lshlrev_b32 v16, 4, v2")
    a(f"v_add_u32 v{VS}, s81, v16")
    a("v_cmp_lt_u32 vcc, 7, v2")
    a("v_add_u32 v17, 1024, v16")
    a(f"v_add_u32 v18, {1024+8064}, v16")
    a(f"v_cndmask_b32 v{VS+1}, v17, v18, vcc")
    a("v_lshlrev_b32 v17, 4, v3")
    a("s_lshl_b32 s38, s15, 9")
    a("s_lshl_b32 s39, s37, 8")
    a("s_add_u32 s38, s38, s39")
    a("s_add_u32 s38, s38, s35")
    a("v_add_u32 v18, s38, v17")
    a("s_mul_i32 s38, s37, 640")
    a("s_add_u32 s38, s38, s35")
    a("s_add_u32 s38, s38, 1024")
    a("s_sub_u32 s36, s15, 3")
    a("s_lshl_b32 s39, s36, 7")
    a("s_cmp_eq_u32 s36, 2")
    a("s_cselect_b32 s39, 160, s39")
    a("s_cselect_b32 s36, 16, 0")
    a("s_add_u32 s39, s39, s38")
    a("v_lshrrev_b32 v19, 3, v3")
    a("v_mul_u32_u24 v19, 192, v19")
    a("v_add3_u32 v19, v19, v17, s39")
    a("v_and_b32 v20, 7, v3")
    a("v_cmp_eq_u32 vcc, 7, v20")
    a("v_add_u32 v20, s36, v19")
    a("v_lshrrev_b32 v21, 1, v3")
    a("v_cndmask_b32 v19, v19, v20, vcc")
    a("v_mul_u32_u24 v21, 320, v21")
    a("v_and_b32 v22, 1, v3")
    a("v_lshl_add_u32 v21, v22, 5, v21")
    a(f"s_add_u32 s38, s38, {17*16}")
    a("v_add_u32 v21, s38, v21")
    a("v_cmp_gt_u32 vcc, 4, v3")
    a(f"v_mov_b32 v22, {OOB}")
    a("s_cmp_lt_u32 s15, 2")
    a("s_cselect_b64 s[44:45], -1, 0")
    a("v_cndmask_b32 v21, v22, v21, vcc")
    a("s_sub_u32 s36, s15, 3")
    a("s_cmp_lt_u32 s36, 3")
    a("s_cselect_b64 s[46:47], -1, 0")
    a("s_cmp_eq_u32 s15, 6")
    a("s_cselect_b64 vcc, -1, 0")
    a("v_cndmask_b32_e64 v22, v22, v18, s[44:45]")
    a("v_cndmask_b32_e64 v22, v22, v19, s[46:47]")
    a("v_cndmask_b32 v22, v22, v21, vcc")
    a("v_cmp_eq_u32 vcc, 0, v4")
    a(f"v_add_u32 v18, {2048+8064}, v16")
    a("v_lshl_add_u32 v19, v4, 3, v17")
    a(f"v_cndmask_b32 v{VS+2}, v22, v18, vcc")
    a("v_subrev_u32 v19, 16, v19")
    a("v_bfe_u32 v20, v3, 2, 1")
    a("v_lshlrev_b32 v20, 7, v20")
    a("v_lshl_add_u32 v20, v4, 6, v20")
    a("v_and_b32 v21, 3, v3")
    a("v_lshl_add_u32 v20, v21, 1, v20")
    a("v_lshrrev_b32 v21, 3, v3")
    a("v_lshl_add_u32 v20, v21, 3, v20")
    a("v_subrev_u32 v20, 128, v20")
    a("v_cndmask_b32_e64 v19, v19, v20, s[46:47]")
    a("s_add_u32 s38, s81, 2304")
    a(f"v_add_u32 v{VS+3}, s38, v19")
    a("s_lshl_b32 s38, s37, 8")
    a(f"v_add_u32 v{VS+4}, s38, v17")
    a("s_lshr_b32 s38, s32, 3")
    a("s_lshl_b32 s38, s38, 9")
    a("s_and_b32 s39, s32, 6")
    a("s_lshl_b32 s39, s39, 1")
    a("s_add_u32 s38, s38, s39")
    a(f"s_add_u32 s82, s38, {WS_KV + K2OFF}")
    def rd1(kk, t, h):
        wb = W + 20 * (kk & 1)
        o = (kk % 9) * 4608
        if t < 4:
            a(f"ds_read_b64_tr_b16 {vr(wb+4*t+2*h,2)}, v{TA + t + (4 if kk >= 9 else 0)} offset:{o+144*h}")
        else:
            a(f"ds_read_b64_tr_b16 {vr(wb+16+2*h,2)}, v{10+h}")
            a(f"v_add_u32 v{10+h}, v{10+h}, v14")
    a.stamp(2)
    a("s_lshl_b32 s80, s3, 2")
    a("v_add_u32 v6, s80, v5")
    a.label("K1_xw")
    a(f"ds_read_b32 v{FT}, v6 offset:16")
    a("s_waitcnt lgkmcnt(0)")
    a(f"v_readfirstlane_b32 s80, v{FT}")
    a("s_cmp_eq_u32 s80, 0")
    a("s_cbranch_scc1 K1_xw")
    a.stamp(3)
    for n in range(17):
        a(f"ds_read_b128 {vr(X+4*n)}, v7 offset:{1024*n}")
    a("s_waitcnt vmcnt(0)")
    a("s_cmp_lg_u32 s55, 3")
    a("s_cbranch_scc1 K1_nowo")
    a("s_waitcnt lgkmcnt(0)")
    for n in range(4):
        a(f"s_mov_b32 m0, {XIMG + 3 * 17408 + 4096 + 1024 * n}")
        a("s_nop 0")
        a("buffer_load_dwordx4 v196, s[64:67], s57 offen lds")
        a("s_add_u32 s57, s57, s56")
    a.label("K1_nowo")
    a("v_lshlrev_b32 v199, 4, v2")
    a("s_lshr_b32 s70, s2, 3")
    a("s_lshl_b32 s71, s3, 5")
    a("s_add_u32 s70, s70, s71")
    a("s_cmp_ge_u32 s3, 3")
    a("s_cbranch_scc1 K1_nopf")
    a.codepf("k1_kernel", "K3_end", 70, 199, RAW, 72)
    a.label("K1_nopf")
    for n in range(18):
        if n < 17 and n % 4 == 0: a(f"s_waitcnt lgkmcnt({max(17 - n - 4, 0)})")
        z = n == 0
        a(f"v_mfma_f32_16x16x32_bf16 {vr(SM)}, {vr(ONES)}, {vr(X+4*n)}, {'0' if z else vr(SM)}")
        a(f"v_mfma_f32_16x16x32_bf16 {vr(GR)}, {vr(X+4*n)}, {vr(X+4*n)}, {'0' if z else vr(GR)}")
    vMean, vRstd = 12, 13
    a("v_and_b32 v16, 3, v3")
    a("v_lshrrev_b32 v17, 2, v3")
    a("v_cmp_eq_u32 vcc, 1, v16")
    a("v_cmp_eq_u32 s[44:45], 2, v16")
    a("v_cmp_eq_u32 s[46:47], 3, v16")
    a(f"v_lshlrev_b32 v6, 4, v4")
    a(f"v_add_u32 v6, {XIMG}, v6")
    a("s_nop 1")
    a(f"v_mul_f32 v{vMean}, {f32bits(-1.0/576)}, v{SM}")
    a(f"v_cndmask_b32 v{GR}, v{GR}, v{GR+1}, vcc")
    a("v_cmp_eq_u32 vcc, v17, v4")
    a(f"v_cndmask_b32_e64 v{GR}, v{GR}, v{GR+2}, s[44:45]")
    a(f"v_cndmask_b32_e64 v{GR}, v{GR}, v{GR+3}, s[46:47]")
    a(f"v_cndmask_b32 v{GR}, 0, v{GR}, vcc")
    cross_g_sum(a, GR, GR + 1)
    a(f"v_mov_b32 v{GR+1}, {f32bits(1e-5)}")
    a(f"v_fmac_f32 v{GR+1}, {f32bits(1.0/576)}, v{GR}")
    a(f"v_fma_f32 v{GR+1}, -v{vMean}, v{vMean}, v{GR+1}")
    a(f"v_max_f32 v{GR+1}, {f32bits(1e-5)}, v{GR+1}")
    a(f"v_rsq_f32 v{vRstd}, v{GR+1}")
    a("v_cmp_gt_u32 vcc, 2, v4")
    a(f"v_mul_f32 v245, {f32bits(QSCALE)}, v{vRstd}")
    a("s_nop 0")
    a(f"v_cndmask_b32 v15, v{vRstd}, v245, vcc")
    for t in range(4):
        a(f"s_mul_i32 s80, s{76+t}, 17408")
        a(f"v_add_u32 v{SM+t}, s80, v6")
    need(0)
    for t in range(5):
        rd1(0, t, 0); rd1(0, t, 1)
    for kk in range(18):
        wb = W + 20 * (kk & 1)
        last = kk == 17
        if kk % 2 == 1 and not last:
            need((kk + 1) // 2)
        z = kk == 0
        for t in range(5):
            a(f"s_waitcnt lgkmcnt({8 - 2 * t if last else 8})")
            if t in (0, 4):
                a(f"v_mfma_f32_16x16x32_bf16 {vr(CSA+4*t)}, {vr(wb+4*t)}, {vr(ONES)}, {'0' if z else vr(CSA+4*t)}")
                if not last: rd1(kk + 1, t, 0)
            a(f"v_mfma_f32_16x16x32_bf16 {vr(ACC+4*t)}, {vr(wb+4*t)}, {vr(X+4*kk)}, {'0' if z else vr(ACC+4*t)}")
            if not last:
                if t not in (0, 4): rd1(kk + 1, t, 0)
                rd1(kk + 1, t, 1)
        if kk == 8: a.stamp(4)
        if kk == 6:
            a("s_cmp_lg_u32 s55, 3")
            a("s_cbranch_scc1 K1_aend")
            a("s_waitcnt vmcnt(0)")
            for q in range(4):
                a(f"ds_read_b64_tr_b16 {vr(RAW+4*q,2)}, v197 offset:{32*q}")
                a(f"ds_read_b64_tr_b16 {vr(RAW+4*q+2,2)}, v197 offset:{32*q+512}")
            a("s_waitcnt lgkmcnt(0)")
            for q in range(4):
                a(f"buffer_store_dwordx4 {vr(RAW+4*q)}, v199, s[28:31], s61 offen{Opt.S2}")
                a("s_add_u32 s61, s61, 18432")
            a.label("K1_aend")
    a.stamp(5)
    a(f"ds_write_b128 v{SM}, {vr(CSA)}")
    a("v_cmp_gt_u32 vcc, 2, v4")
    a("s_waitcnt lgkmcnt(0)")
    a("s_barrier")
    for t in range(1, 4):
        a(f"ds_read_b128 {vr(CSA+4*t)}, v{SM+t}")
    for r in list(range(4)) + list(range(16, 20)):
        a(f"v_fmac_f32 v{ACC+r}, v{vMean}, v{CSA+r}")
    a.stamp(6)
    PK = X
    for t in (4, 0, 1, 2, 3):
        sc = 245 if t < 4 else 15
        if t == 1: a("s_waitcnt lgkmcnt(0)")
        if 1 <= t <= 3:
            for r in range(4):
                a(f"v_fmac_f32 v{ACC+4*t+r}, v{vMean}, v{CSA+4*t+r}")
        for r in range(4):
            a(f"v_mul_f32 v{ACC+4*t+r}, v{sc}, v{ACC+4*t+r}")
        a(f"v_cvt_pk_bf16_f32 v{PK+2*t}, v{ACC+4*t}, v{ACC+4*t+1}")
        a(f"v_cvt_pk_bf16_f32 v{PK+1+2*t}, v{ACC+4*t+2}, v{ACC+4*t+3}")
        if t == 4:
            a("s_mov_b64 exec, vcc")
        for q in range(2):
            a(f"ds_write_b32 v{QA+2*t+q}, v{PK+2*t+q}")
        if t == 4:
            a("s_not_b64 exec, vcc")
            a("s_cmp_lt_u32 s36, 3")
            a("s_cbranch_scc1 K1_v")
            a("s_cmp_eq_u32 s15, 6")
            a("s_cbranch_scc1 K1_on")
            a(f"ds_write_b64 v{VS+3}, {vr(PK+8,2)}")
            a("s_cmp_lg_u32 s15, 2")
            a("s_cbranch_scc1 K1_kvd")
            a("s_mov_b32 exec_hi, 0xffff0000")
            a(f"buffer_store_dword v{PK+9}, v{VS+4}, s[28:31], s82 offen{Opt.S1}")
            a("s_branch K1_kvd")
            a.label("K1_on")
            a(f"ds_write_b64 v{VS+3}, {vr(ONES,2)}")
            a("s_branch K1_kvd")
            a.label("K1_v")
            for r in range(4):
                op = "ds_write_b16" if r % 2 == 0 else "ds_write_b16_d16_hi"
                a(f"{op} v{VS+3}, v{PK + 8 + r // 2} offset:{16*r}")
            a.label("K1_kvd")
            a("s_mov_b64 exec, -1")
    for k in range(3):
        a(f"ds_read_b128 {vr(W+4*k)}, v{VS} offset:{1024*k}")
    a("v_lshlrev_b32 v16, 4, v2")
    for k in range(3):
        a(f"s_waitcnt lgkmcnt({2-k})")
        if k == 2: a("s_mov_b32 exec_hi, 0")
        a(f"buffer_store_dwordx4 {vr(W+4*k)}, v{(16, VS+1, VS+2)[k]}, s[28:31], s34 offen{Opt.S1}")
    if Opt.FUSE:
        a("s_cmp_lg_u32 s15, 7")
        a("s_cbranch_scc1 K1_fin")
        a("s_lshl_b32 s38, s32, 7")
        a(f"s_add_u32 s38, s38, {WS_FLAG}")
        a("v_mov_b32 v6, 0")
        a("v_lshlrev_b32 v7, 2, v2")
        a(f"buffer_store_dword v6, v7, s[28:31], s38 offen{Opt.S1}")
    a.label("K1_fin")
    a.end(1, 28, 8)
    a.label("K1_end")
    a("s_endpgm")
    return K, desc(K, 248), (256, 512, LDS)
```

```python
from common import *
RING = 36
RB = 104
BV = 72
ACC = [40, 56]
TMP = 248
BIAS = 16
B1R = 24
ACCP = 16
LZ = 32
HOFF = 72 * 1024
LDS = HOFF + 72 * 1024
NF = 324

def bfrag(f):
    return ar(4 * f) if f < 64 else vr(BV + 4 * (f - 64))
def b1reg(n):
    return B1R + 2 * n if n < 8 else 14
def slot(i):
    return RB + (i % RING) * 4

def k3(a):
    K = "k3_kernel"
    a.begin(K)
    a.guard("K3")
    a.stamp(0); a.stampc(10)
    a(f"s_load_dwordx2 s[4:5], s[0:1], {A_WS}")
    a(f"s_load_dwordx2 s[6:7], s[0:1], {A_B1}")
    a(f"s_load_dwordx4 s[24:27], s[0:1], {A_B2}")
    a("v_lshrrev_b32 v1, 6, v0")
    a("v_and_b32 v2, 63, v0")
    a("v_readfirstlane_b32 s3, v1")
    a("v_and_b32 v3, 15, v0")
    a("v_bfe_u32 v4, v0, 4, 2")
    a("v_lshlrev_b32 v5, 4, v2")
    for k in range(1, 5):
        a(f"v_add_u32 v{5+k}, {4096*k}, v5")
    a("v_lshlrev_b32 v12, 3, v4")
    a("v_and_b32 v10, 0x23, v2")
    a("v_lshlrev_b32 v10, 4, v10")
    a("v_bfe_u32 v11, v2, 3, 2")
    a("v_lshl_add_u32 v10, v11, 6, v10")
    a("v_bfe_u32 v11, v2, 2, 1")
    a("v_lshl_add_u32 v10, v11, 8, v10")
    if Opt.EXP == "badmap":
        a("s_lshr_b32 s28, s2, 5")
        a("s_and_b32 s29, s2, 31")
    else:
        a("s_and_b32 s28, s2, 7")
        a("s_lshr_b32 s29, s2, 3")
    a("s_mul_i32 s31, s29, 73728")
    a("s_lshl_b32 s30, s3, 10")
    a("s_add_u32 s31, s31, s30")
    a(f"s_add_u32 s31, s31, {WS_XN}")
    a("s_mul_i32 s60, s28, 36")
    a("s_mul_i32 s59, s3, 9")
    a("s_mul_i32 s61, s29, 57")
    a("s_lshr_b32 s61, s61, 9")
    a("s_mul_i32 s61, s61, 9")
    a("s_sub_u32 s61, s29, s61")
    def g1par(n):
        a(f"s_add_u32 s{50+n}, s61, {n}")
        a(f"s_cmp_ge_u32 s{50+n}, 9")
        a(f"s_cselect_b32 s62, 9, 0")
        a(f"s_sub_u32 s{50+n}, s{50+n}, s62")
        a(f"s_add_u32 s{50+n}, s{50+n}, s59")
        a(f"s_add_u32 s62, s{50+n}, s60")
        a(f"s_mul_i32 s62, s62, {18*1024}")
        a(f"s_add_u32 s{32+n}, s62, {WS_W1F}")
    g1par(0); g1par(1)
    a.pad("K3", 1)
    a("s_waitcnt lgkmcnt(0)")
    a.srd(8, 4, WS_SIZE)
    a.srd(12, 6, 4608 * 2)
    def load(i):
        t, kk = divmod(i, 18)
        if Opt.EXP == "halfld" and i >= 36 and i % 2 == 0: return []
        if Opt.EXP == "nold3" and i >= 36 and i % 18 != 17: return []
        return [("vm", ("A", i), f"buffer_load_dwordx4 {vr(slot(i))}, v{5 + kk // 4}, s[8:11], s{32+t} offen offset:{(kk%4)*1024}")]
    def dmax(kk):
        return ["s_mov_b32 m0, s30", "s_add_u32 s30, s30, 4096",
                ("vm", ("X", kk), "buffer_load_dwordx4 v10, s[8:11], s31 offen lds"), "s_add_u32 s31, s31, 4096"]
    def ldb1(n):
        return [f"s_add_u32 s62, s{50+n}, s60", f"s_lshl_b32 s62, s62, 5",
                ("vm", ("b1", n), f"buffer_load_dwordx2 {vr(b1reg(n),2)}, v12, s[12:15], s62 offen")]
    def E(L):
        for x in L: a.emit(x)
    a("s_cmp_lg_u32 s3, 3")
    a("s_cbranch_scc1 K3_nopf")
    a.codepf("k3_kernel", "K3_end", 29, 5, TMP, 86)
    a.vmq.pop()
    a.label("K3_nopf")
    for kk in range(3): E(dmax(kk))
    E(ldb1(0)); E(ldb1(1))
    E(load(0)); E(load(18))
    for kk in range(3, 6): E(dmax(kk))
    for kk in range(1, 3): E(load(kk)); E(load(18 + kk))
    a.pad("K3", 2)
    for n in range(2, 9): g1par(n)
    a.srd(16, 24, 576 * 2)
    a.srd(20, 26, 2048 * ROW)
    a("s_add_u32 s28, s28, s29")
    a("s_and_b32 s28, s28, 7")
    for n in range(9):
        if n == 0:
            a(f"s_mov_b32 s{64+n}, 8")
        else:
            a(f"s_add_u32 s{64+n}, s28, {n}")
            a(f"s_and_b32 s{64+n}, s{64+n}, 7")
        a(f"s_lshl_b32 s62, s{64+n}, 2")
        a(f"s_add_u32 s62, s62, s3")
        a(f"s_add_u32 s62, s62, s60")
        a(f"s_mul_i32 s62, s62, {18*1024}")
        a(f"s_add_u32 s{41+n}, s62, {WS_W2F}")
    a.pad("K3", 3)
    a("s_mov_b32 s75, 0x00003f80")
    a("s_mov_b32 s76, 0x3f800000")
    a(f"v_lshlrev_b32 v{TMP+7}, 3, v2")
    a(f"v_add_u32 v11, {HOFF}, v5")
    a(f"v_add_u32 v13, {HOFF+36864}, v5")
    a("s_mul_i32 s78, s29, 36")
    a("s_add_u32 s78, s78, s3")
    a("s_lshl_b32 s77, s78, 14")
    a(f"s_add_u32 s77, s77, {WS_PART}")
    a("s_lshl_b32 s78, s78, 11")
    a(f"s_add_u32 s78, s78, {WS_HRES}")
    a("s_lshl_b32 s79, s28, 11")
    a("s_add_u32 s79, s79, s77")
    a("s_lshl_b32 s84, s28, 16")
    a("s_add_u32 s84, s84, s77")
    a("s_lshl_b32 s62, s28, 7")
    a("s_lshl_b32 s63, s3, 5")
    a("s_add_u32 s82, s62, s63")
    a("s_add_u32 s83, s63, 1024")
    a("s_and_b32 s73, s28, 1")
    a("s_lshl_b32 s73, s73, 10")
    a("s_add_u32 s85, s73, s77")
    a(f"s_add_u32 s85, s85, {8*65536}")
    a("s_lshr_b32 s62, s28, 1")
    a("s_cmp_eq_u32 s62, s3")
    a("s_cselect_b32 s80, 1, 0")
    a("s_lshl_b32 s74, s80, 8")
    a("s_or_b32 s74, s74, 0xfe")
    def unpack(src, dst):
        return [f"v_lshlrev_b32 v{dst}, 16, v{src}", f"v_and_b32 v{dst+1}, 0xffff0000, v{src}",
                f"v_lshlrev_b32 v{dst+2}, 16, v{src+1}", f"v_and_b32 v{dst+3}, 0xffff0000, v{src+1}"]
    def g1_epilogue(n):
        acc = ACC[n % 2]
        L = [f"s_lshr_b32 s63, s{50+n}, 1", f"s_lshl_b32 s63, s63, 12", f"s_and_b32 s62, s{50+n}, 1",
             f"s_lshl_b32 s62, s62, 3", f"s_add_u32 s62, s62, s63", f"v_add_u32 v{TMP}, s62, v11"]
        for tt in range(4):
            for r in range(4):
                L.append(f"v_mul_f32 v{acc+4*tt+r}, v{acc+4*tt+r}, abs(v{acc+4*tt+r})")
            L.append(f"v_cvt_pk_bf16_f32 v{acc+4*tt}, v{acc+4*tt}, v{acc+4*tt+1}")
            L.append(f"v_cvt_pk_bf16_f32 v{acc+4*tt+1}, v{acc+4*tt+2}, v{acc+4*tt+3}")
            L.append(f"v_pk_max_i16 v{acc+4*tt}, v{acc+4*tt}, 0")
            L.append(f"v_pk_max_i16 v{acc+4*tt+1}, v{acc+4*tt+1}, 0")
            L.append(f"ds_write_b64 v{TMP}, {vr(acc+4*tt,2)} offset:{1024*tt}")
        return L
    def g2_epilogue(n):
        acc = ACC[(9 + n) % 2]
        L = [f"s_lshl_b32 s62, s{64+n}, 16", f"s_add_u32 s62, s62, s79"]
        for hf in range(2):
            for tt in (2 * hf, 2 * hf + 1):
                L.append(f"v_cvt_pk_bf16_f32 v{TMP+2*tt}, v{acc+4*tt}, v{acc+4*tt+1}")
                L.append(f"v_cvt_pk_bf16_f32 v{TMP+2*tt+1}, v{acc+4*tt+2}, v{acc+4*tt+3}")
            if "nost" not in Opt.ABL: L.append(("vm", "st", f"buffer_store_dwordx4 {vr(TMP+4*hf)}, v5, s[8:11], s62 offen offset:{1024*hf}{Opt.PST}"))
        return L
    def fetch(n, lz, track=True):
        L = [f"s_lshl_b32 s63, s{64+8-n}, 11", "s_add_u32 s63, s63, s84"]
        for hf in range(2):
            s_ = f"buffer_load_dwordx4 {vr(lz+4*hf)}, v5, s[8:11], s63 offen offset:{1024*hf} sc1"
            L.append(("vm", ("P", n), s_) if track else s_)
        return L
    vC = 14
    def check(regs, bit):
        L = [f"v_max3_i32 v{vC}, v{regs[0]}, v{regs[1]}, v{regs[2]}"]
        k = 3
        while k + 1 < len(regs):
            L.append(f"v_max3_i32 v{vC}, v{vC}, v{regs[k]}, v{regs[k+1]}"); k += 2
        if k < len(regs):
            L.append(f"v_max_i32 v{vC}, v{vC}, v{regs[k]}")
        L.append(f"v_cmp_eq_i32 vcc, {POISON}, v{vC}")
        L.append("v_nop"); L.append("v_nop")
        L += ["s_cmp_eq_u64 vcc, 0", "s_cselect_b32 s86, s75, 0", "s_cselect_b32 s87, s76, 0",
              f"s_cselect_b32 s62, {1 << bit}, 0", "s_andn2_b32 s74, s74, s62"]
        return L
    def accum(lz, dst, n):
        L = []
        for q in range(n):
            L.append(f"v_dot2_f32_bf16 v{dst+2*q}, v{lz+q}, s86, v{dst+2*q}")
            L.append(f"v_dot2_f32_bf16 v{dst+2*q+1}, v{lz+q}, s87, v{dst+2*q+1}")
        return L
    def accum2(lz, dst, n):
        L = []
        for q in range(n):
            t_ = 10
            L += [f"v_lshlrev_b32 v{t_}, 16, v{lz+q}", f"v_and_b32 v{t_+1}, 0xffff0000, v{lz+q}",
                  f"v_fmac_f32 v{dst+2*q}, s87, v{t_}", f"v_fmac_f32 v{dst+2*q+1}, s87, v{t_+1}"]
        return L
    def take(n, lz, track=True, shadow=False):
        return ([("wait", ("P", n))] if track else []) + check(list(range(lz, lz + 8)), n) + (accum2 if shadow else accum)(lz, ACCP, 8)
    LZs = {1: slot(304), 2: LZ, 3: slot(288), 4: slot(296), 5: slot(298), 6: slot(300), 7: slot(302)}
    def dfetch(n):
        L = [f"s_lshl_b32 s63, s{64+8-n}, 11", "s_add_u32 s63, s63, s84", f"s_add_u32 s30, s31, {2048*(n-1)}", "s_mov_b32 m0, s30", "s_nop 0"]
        for hf in range(2):
            nf = "nofe" in Opt.ABL
            L.append(("vm", ("P", n), f"buffer_load_dwordx4 v5, s[8:11], s{41 if nf else 63} offen offset:{1024*hf}{'' if nf else ' sc1'} lds"))
        return L
    def dfetch_sh():
        L = ["s_cmp_eq_u32 s80, 0" if "nofe" not in Opt.ABL else "s_cmp_eq_u32 s80, s80", "s_cbranch_scc1 K3_nosh0"]
        for k in range(8):
            L += [f"s_add_u32 s63, s85, {2048*k}", f"s_add_u32 s30, s31, {10240+1024*k}", "s_mov_b32 m0, s30", "s_nop 0",
                  "buffer_load_dwordx4 v5, s[8:11], s63 offen sc1 lds"]
        return L + [("label", "K3_nosh0")]
    def lread(n, lz):
        return [("wait", ("P", n))] + [f"ds_read_b128 {vr(lz+4*hf)}, v12 offset:{2048*(n-1)+1024*hf}" for hf in range(2)]
    def ltake(n, lz):
        return lread(n, lz) + [None] * 4 + ["s_waitcnt lgkmcnt(0)"] + take(n, lz, False, True)
    SH = slot(306)
    SX = slot(290)
    A8 = SX + 8
    def fetch_share(track=True):
        L = []
        for n in range(8):
            L += [f"s_add_u32 s63, s85, {2048*n}", f"buffer_load_dwordx4 {vr(SH+4*n)}, v5, s[8:11], s63 offen sc1"]
        return L

    a.waitvm(("b1", 1))
    E(unpack(b1reg(0), BIAS) + unpack(b1reg(1), BIAS + 4))
    def rdB(f, lo, hi):
        a(f"ds_read_b128 {bfrag(f)}, v{lo if f < 36 else hi} offset:{(f%36)*1024}")
    def rdX(f):
        a(f"ds_read2st64_b64 {bfrag(f)}, v{TMP+7} offset0:{2*f} offset1:{2*f+1}")
    seq = []
    for kk in range(12): seq += [kk, 18 + kk]
    seq += list(range(12, 18)) + list(range(30, NF))
    pend = []
    post = {}
    def addpost(i, L): post.setdefault(i, []).extend(L)
    for kk in range(12):
        addpost(kk, dmax(kk + 6) + load(kk + 3)); addpost(18 + kk, load(18 + kk + 3))
    for kk in range(9, 12):
        addpost(18 + kk, load(kk + 6))
    for kk in range(12, 15):
        addpost(kk, load(18 + kk + 3))
    nxt = 36
    LA0, CH_ = Opt.LA0, Opt.CHAIN
    consumed = set()
    for pos, fr in enumerate(seq):
        consumed.add(fr)
        if pos < 36 - LA0: continue
        depth = min(RING - CH_ + 1, Opt.LAM, LA0 + max(0, pos - 36) // Opt.LAG)
        target = min(NF, pos + 1 + depth)
        k_ = 0
        while nxt < target and k_ < 2:
            old = nxt - RING
            ok = old in consumed and (old < 36 or (old - old % CH_ + CH_ - 1) in consumed)
            if not ok: break
            addpost(fr, load(nxt)); nxt += 1; k_ += 1
    assert nxt == NF, nxt
    for n in range(2, 9):
        addpost(18 + n, ldb1(n))
    addpost(9 * 18 + 2, [("vm", "b2", f"buffer_load_dwordx2 v[14:15], v12, s[16:19], s82 offen"),
                         "s_lshl_b32 s62, s28, 13", "s_add_u32 s62, s62, s78",
                         "v_lshrrev_b32 v2, 3, v3", "v_lshlrev_b32 v2, 8, v2", "v_lshl_add_u32 v2, v4, 6, v2",
                         "v_and_b32 v10, 7, v3", "v_lshl_add_u32 v2, v10, 3, v2"] +
                        [("vm", "hr", f"buffer_load_dwordx2 {vr(LZ+2*tt,2)}, v2, s[8:11], s62 offen offset:{512*tt}") for tt in range(4)])
    if Opt.W2PF:
        addpost(3 * 18, ["s_lshl_b32 s31, s29, 2", "s_add_u32 s31, s31, s3", "s_mul_i32 s31, s31, 5248", f"s_mul_i32 s62, s60, {18*1024}",
                         "s_add_u32 s31, s31, s62", f"s_add_u32 s31, s31, {WS_W2F}", "s_lshl_b32 s30, s3, 10", "s_mov_b32 m0, s30"])
        for k in range(6):
            addpost(3 * 18 + 1 + (k // Opt.W2PF) * 18 + k % Opt.W2PF, [("vm", "w2pf", "buffer_load_dwordx4 v5, s[8:11], s31 offen lds"), "s_add_u32 s31, s31, 1024"])
    addpost(13 * 18, ["s_mul_i32 s31, s3, 18432", "v_add_u32 v12, s31, v5"])
    addpost(13 * 18 + 16, dfetch_sh())
    for n in range(1, 6):
        addpost((12 + n) * 18 + 16, dfetch(n))
    addpost(16 * 18 + 15, ["v_lshlrev_b32 v3, 3, v4", "s_add_u32 s62, s78, s73", f"s_add_u32 s62, s62, {8*8192}",
                          ("vm", "sh0", f"buffer_load_dwordx2 {vr(SX,2)}, v2, s[8:11], s62 offen"),
                          ("vm", "sh0", f"buffer_load_dwordx2 {vr(SX+2,2)}, v2, s[8:11], s62 offen offset:512"),
                          ("vm", "sh0", f"buffer_load_dwordx2 {vr(SX+4,2)}, v3, s[16:19], s83 offen")])
    def take_share():
        L = check(list(range(SH, SH + 32)), 8)
        for n in range(8):
            L += accum(SH + 4 * n, A8, 4)
        return L
    for i in seq:
        t, kk = divmod(i, 18)
        extra = ""
        if t == 0:
            if kk % 3 == 0:
                a.waitvm(("X", kk + 2))
                if kk == 0: a.stamp(1)
                a("s_barrier")
                if kk == 0: a.stamp(2)
                if kk == 12: a.stamp(3)
                for f in range(4 * kk, 4 * kk + 12):
                    rdX(f)
            extra = f" lgkmcnt({8 - 4 * (kk % 3)})"
        if t == 9:
            if kk == 0:
                a("s_nop 7")
                E(g1_epilogue(8))
                a("s_waitcnt lgkmcnt(0)")
                a.stamp(4)
                a("s_barrier")
                for f in range(12):
                    rdB(f, 11, 13)
            elif 4 * kk + 8 < 72:
                for f in range(4 * kk + 8, 4 * kk + 12):
                    rdB(f, 11, 13)
            rem = min(72, 4 * kk + 12) - (4 * kk + 4)
            extra = f" lgkmcnt({rem})"
        if Opt.DBG and kk == 0 and t not in (0, 1, 9):
            a("s_memtime s[100:101]")
        if Opt.DBG and kk == 9 and t not in (0, 1, 9):
            a("s_waitcnt lgkmcnt(0)")
            a(f"v_writelane_b32 v1, s100, {t}")
        CH = Opt.CHAIN
        chain = CH > 1 and t >= 2 and t != 9
        if Opt.EXP in ("halfld", "nold3") and ("A", i + (CH - 1 if chain else 0)) not in a.vmq:
            if extra: a("s_waitcnt" + extra)
        elif not chain: a.waitvm(("A", i), extra)
        elif kk % CH == 0: a.waitvm(("A", i + CH - 1), extra)
        acc = ACC[t % 2]
        rate = 1
        if i == 30:
            pend = [None] + g1_epilogue(0) + [("wait", ("b1", 2))] + unpack(b1reg(2), BIAS)
        if t == 1: rate = 2
        if kk == 1 and t >= 2:
            assert not pend
            if t <= 8: pend += g1_epilogue(t - 1)
            if t >= 10: pend += g2_epilogue(t - 10)
            if t < 8: pend += unpack(b1reg(t + 1), BIAS + 4 * ((t + 1) % 2))
            if t == 11:
                pend += [("wait", "hr")] + unpack(14, 10)
                for q in range(0, 8, 2):
                    pend += unpack(LZ + q, ACCP + 2 * q)
            if t == 12:
                pend += [f"v_add_f32 v{ACCP+q}, v{ACCP+q}, v{10+q%4}" for q in range(16)]
            if t == 16: pend += ltake(1, LZ)
            if t == 17:
                pend += ltake(2, LZ) + [None] * 8 + ltake(3, LZs[3])
        if t >= 16: rate = 2 if kk >= 5 else 1
        for tt in range(4):
            k2, t2 = kk, tt
            if chain:
                e_ = (kk % CH) * 4 + tt
                k2, t2 = kk - kk % CH + e_ % CH, e_ // CH
            if k2 == 0:
                c = vr(BIAS + 4 * (t % 2)) if t < 9 else "0"
            else:
                c = vr(acc + 4 * t2)
            if Opt.EXP == "halfmm" and k2 % 2 == 1: a("s_nop 0")
            else: a(f"v_mfma_f32_16x16x32_bf16 {vr(acc+4*t2)}, {vr(slot(18*t+k2))}, {bfrag(k2*4+t2)}, {c}")
            if (kk >= 2 and (tt < 3 or rate == 2)) or (kk == 1 and tt == 3 and t >= 10):
                for _ in range(rate):
                    while pend:
                        s = pend.pop(0)
                        if s is None: break
                        a.emit(s)
                        if not (isinstance(s, str) and s.startswith("s_")): break
        if kk == 17 and 1 <= t < 17:
            assert not pend, (t, pend)
        E(post.get(i, []))
    accO = ACC[17 % 2]
    a.stamp(5)
    for n in (6, 7):
        E(fetch(n, LZs[n]))
    E([x for x in pend if x is not None])
    a("v_and_b32 v3, 15, v0")
    a("v_lshlrev_b32 v11, 5, v3")
    a("v_lshl_add_u32 v11, v4, 3, v11")
    a("v_add_u32 v11, s31, v11")
    a("v_bfe_u32 v10, v0, 1, 5")
    a(f"v_mul_u32_u24 v10, {ROW}, v10")
    a("v_and_b32 v13, 1, v0")
    a("v_lshl_add_u32 v10, v13, 4, v10")
    a("v_mul_u32_u24 v6, 144, v3")
    a("v_lshl_add_u32 v6, v4, 3, v6")
    a("s_lshl_b32 s62, s3, 5")
    a(f"s_add_u32 s62, s62, {HOFF}")
    a("v_add_u32 v6, s62, v6")
    a("v_bfe_u32 v8, v0, 3, 3")
    a("v_and_b32 v9, 7, v0")
    a("v_mul_u32_u24 v7, 144, v8")
    a("v_lshl_add_u32 v7, v9, 4, v7")
    a(f"s_mul_i32 s62, s3, {16*144}")
    a(f"s_add_u32 s62, s62, {HOFF}")
    a("v_add_u32 v7, s62, v7")
    a(f"v_mul_u32_u24 v8, {ROW}, v8")
    a("v_lshl_add_u32 v8, v9, 4, v8")
    a(f"s_mul_i32 s30, s29, {64*ROW}")
    a(f"s_mul_i32 s81, s3, {16*ROW}")
    a("s_add_u32 s81, s81, s30")
    a("s_lshl_b32 s62, s28, 7")
    a("s_add_u32 s81, s81, s62")
    a("s_add_u32 s82, s30, s82")
    a("s_and_b32 s62, s28, 1")
    a(f"s_mul_i32 s62, s62, {32*ROW}")
    a("s_add_u32 s62, s62, s30")
    a("s_add_u32 s83, s83, s62")
    E(lread(4, LZs[4]))
    a("s_cmp_eq_u32 s80, 0")
    a("s_cbranch_scc1 K3_nosh1")
    for k in range(8):
        a(f"ds_read_b128 {vr(SH+4*k)}, v12 offset:{10240+1024*k}")
    E(unpack(SX + 4, A8) + unpack(SX + 4, A8 + 4))
    for q in range(4):
        a(f"v_dot2_f32_bf16 v{A8+2*q}, v{SX+q}, s75, v{A8+2*q}")
        a(f"v_dot2_f32_bf16 v{A8+2*q+1}, v{SX+q}, s76, v{A8+2*q+1}")
    a("s_waitcnt lgkmcnt(0)")
    E(take_share())
    a.label("K3_nosh1")
    a("s_waitcnt lgkmcnt(0)")
    E(take(4, LZs[4], False))
    E(lread(5, LZs[5]))
    E(take(6, LZs[6]))
    a("s_waitcnt lgkmcnt(0)")
    E(take(5, LZs[5], False))
    E(take(7, LZs[7]))
    a.stamp(6)
    a(f"s_mov_b32 s88, {Opt.PBOUND}")
    LZt = LZs
    a.label("K3_poll")
    a("s_cmp_eq_u32 s74, 0")
    a("s_cbranch_scc1 K3_done")
    a("s_sub_u32 s88, s88, 1")
    a("s_cmp_eq_u32 s88, 0")
    a("s_cbranch_scc1 K3_done")
    a("s_mov_b32 s31, s74")
    for n in range(1, 9):
        a(f"s_bitcmp0_b32 s31, {n}")
        a(f"s_cbranch_scc1 K3_pf{n}")
        E(fetch(n, LZt[n], False) if n < 8 else fetch_share(False))
        a.label(f"K3_pf{n}")
    a("s_waitcnt vmcnt(0)")
    for n in range(1, 9):
        a(f"s_bitcmp0_b32 s31, {n}")
        a(f"s_cbranch_scc1 K3_pt{n}")
        E(take(n, LZt[n], False) if n < 8 else take_share())
        a.label(f"K3_pt{n}")
    a("s_branch K3_poll")
    a.label("K3_done")
    a.stamp(7)
    a("s_nop 1")
    if Opt.OW:
        a("s_cmp_eq_u32 s80, 0")
        a("s_cbranch_scc1 K3_nosh3")
        for tt in range(2):
            a(f"v_cvt_pk_bf16_f32 v{A8+4*tt}, v{A8+4*tt}, v{A8+4*tt+1}")
            a(f"v_cvt_pk_bf16_f32 v{A8+4*tt+1}, v{A8+4*tt+2}, v{A8+4*tt+3}")
            a(f"ds_write_b64 v11, {vr(A8+4*tt,2)} offset:{512*tt}")
        a(f"ds_read_b128 {vr(SX)}, v12")
        a.label("K3_nosh3")
        for tt in range(4):
            for q in range(2):
                a(f"v_pk_add_f32 {vr(accO+4*tt+2*q,2)}, {vr(accO+4*tt+2*q,2)}, {vr(ACCP+4*tt+2*q,2)}")
            a(f"v_cvt_pk_bf16_f32 v{TMP+2*tt}, v{accO+4*tt}, v{accO+4*tt+1}")
            a(f"v_cvt_pk_bf16_f32 v{TMP+2*tt+1}, v{accO+4*tt+2}, v{accO+4*tt+3}")
            a(f"ds_write_b64 v6, {vr(TMP+2*tt,2)} offset:{16*144*tt}")
        a("s_waitcnt lgkmcnt(0)")
        a("s_barrier")
        a(f"ds_read_b128 {vr(LZ)}, v7")
        a(f"ds_read_b128 {vr(LZ+4)}, v7 offset:{8*144}")
        a("s_cbranch_scc1 K3_nosh4")
        a(f"buffer_store_dwordx4 {vr(SX)}, v10, s[20:23], s83 offen{Opt.OST}")
        a.label("K3_nosh4")
        a(f"s_add_u32 s83, s81, {8*ROW}")
        a("s_waitcnt lgkmcnt(1)")
        a(f"buffer_store_dwordx4 {vr(LZ)}, v8, s[20:23], s81 offen{Opt.OST}")
        a("s_waitcnt lgkmcnt(0)")
        a(f"buffer_store_dwordx4 {vr(LZ+4)}, v8, s[20:23], s83 offen{Opt.OST}")
    else:
        for tt in range(4):
            for q in range(2):
                a(f"v_pk_add_f32 {vr(accO+4*tt+2*q,2)}, {vr(accO+4*tt+2*q,2)}, {vr(ACCP+4*tt+2*q,2)}")
            a(f"v_cvt_pk_bf16_f32 v{TMP+2*tt}, v{accO+4*tt}, v{accO+4*tt+1}")
            a(f"v_cvt_pk_bf16_f32 v{TMP+2*tt+1}, v{accO+4*tt+2}, v{accO+4*tt+3}")
            a(f"ds_write_b64 v11, {vr(TMP+2*tt,2)} offset:{512*tt}")
            if tt & 1:
                a(f"ds_read_b128 {vr(LZ+2*(tt-1))}, v12 offset:{512*(tt-1)}")
        a("s_cmp_eq_u32 s80, 0")
        a("s_cbranch_scc1 K3_nosh3")
        for tt in range(2):
            a(f"v_cvt_pk_bf16_f32 v{A8+4*tt}, v{A8+4*tt}, v{A8+4*tt+1}")
            a(f"v_cvt_pk_bf16_f32 v{A8+4*tt+1}, v{A8+4*tt+2}, v{A8+4*tt+3}")
            a(f"ds_write_b64 v11, {vr(A8+4*tt,2)} offset:{2048+512*tt}")
        a(f"ds_read_b128 {vr(SX)}, v12 offset:2048")
        a("s_waitcnt lgkmcnt(0)")
        a(f"buffer_store_dwordx4 {vr(SX)}, v10, s[20:23], s83 offen{Opt.OST}")
        a.label("K3_nosh3")
        a(f"s_add_u32 s83, s82, {32*ROW}")
        a("s_waitcnt lgkmcnt(0)")
        a(f"buffer_store_dwordx4 {vr(LZ)}, v10, s[20:23], s82 offen{Opt.OST}")
        a(f"buffer_store_dwordx4 {vr(LZ+4)}, v10, s[20:23], s83 offen{Opt.OST}")
    if Opt.DBG:
        a("s_getreg_b32 s100, hwreg(HW_REG_XCC_ID)")
        a("v_writelane_b32 v1, s100, 0")
        a("v_writelane_b32 v1, s88, 1")
        a("s_lshl_b32 s100, s2, 2")
        a("s_add_u32 s100, s100, s3")
        a("s_lshl_b32 s100, s100, 8")
        a(f"s_add_u32 s100, s100, {WS_DBG + 6 * 4096 * 64}")
        a("v_lshrrev_b32 v2, 2, v5")
        a("buffer_store_dword v1, v2, s[8:11], s100 offen sc1")
    a.end(4, 8, 4)
    a.label("K3_end")
    a("s_endpgm")
    return K, desc(K, 512, 256), (256, 256, LDS)
```
